```python
import torch

def _softmax(x, axis=-1):
    return torch.softmax(x, dim=axis)
def _gelu(x):
    return torch.nn.functional.gelu(x, approximate="tanh")
def _silu(x):
    return torch.nn.functional.silu(x)
def _sigmoid(x):
    return torch.sigmoid(x)
def _layernorm(x, axis=-1, eps=1e-5):
    m = x.mean(dim=axis, keepdim=True)
    v = x.var(dim=axis, keepdim=True, unbiased=False)
    return (x - m) / torch.sqrt(v + eps)
def _scatter_add(tgt, idx, src, axis=0):
    return tgt.clone().index_add_(axis, idx, src)
def _segment_sum(src, seg, n):
    out = torch.zeros((n,) + src.shape[1:], dtype=src.dtype)
    return out.index_add_(0, seg, src)
def _pad(x, pw):
    flat = tuple(v for pair in reversed(pw) for v in pair)
    return torch.nn.functional.pad(x, flat)

kernel_name = 'standalone__mha_softmax__near_ridge'

def setup_inputs():

    _w = (lambda a: (lambda t: t.to(torch.bfloat16) if t.is_floating_point() else t)(torch.as_tensor(a)))
    B, H, Sq, Sk, D = 8, 32, 608, 1024, 128
    return {
        "q": _w((lambda *s: torch.randn(*s, dtype=torch.bfloat16) * 0.8)(B, H, Sq, D)),
        "k": _w((lambda *s: torch.randn(*s, dtype=torch.bfloat16) * 0.8)(B, H, Sk, D)),
        "v": _w((lambda *s: torch.randn(*s, dtype=torch.bfloat16) * 0.05)(B, H, Sk, D)),
    }

def reference(q, k, v):
    scale = q.shape[-1] ** -0.5
    scores = torch.einsum("bhqd,bhkd->bhqk", q, k) * scale
    p = _softmax(scores, axis=-1)
    return torch.einsum("bhqk,bhkd->bhqd", p, v)
```

```python
import re
from collections import deque

def regs(f, lo, n=1):
    return [f"{f}{i}" for i in range(lo, lo + n)]
def rng(f, lo, n):
    return f"{f}{lo}" if n == 1 else f"{f}[{lo}:{lo+n-1}]"

class I:
    __slots__ = ("t", "k", "w", "r", "c", "ab", "need", "lg", "vm", "tag", "nop", "cmt", "nb", "dlm", "xr", "xw", "wt", "mi", "st", "ring", "priv")
    def __init__(s, t, k, w=(), r=(), c=(), ab=(), tag=None):
        s.t = t; s.k = k; s.w = set(w); s.r = set(r) | set(c) | set(ab); s.c = tuple(c); s.ab = set(ab)
        s.need = None; s.lg = None; s.vm = None; s.tag = tag; s.nop = 0; s.cmt = ""
        s.nb = None; s.dlm = None; s.xr = set(); s.xw = set(); s.wt = set(); s.mi = None; s.st = None; s.ring = None; s.priv = None
    def text(s):
        out = ""
        if s.nop:
            n = s.nop
            while n > 0:
                m = min(n, 16); out += f"    s_nop {m-1}\n"; n -= m
        if s.k == "wait":
            p = []
            if s.vm is not None and s.vm < 63: p.append(f"vmcnt({s.vm})")
            if s.lg is not None and s.lg < 15: p.append(f"lgkmcnt({s.lg})")
            if not p: return out + "    s_nop 0\n"
            return out + "    s_waitcnt " + " ".join(p) + "\n"
        if s.k == "label": return out + s.t + ":\n"
        return out + "    " + s.t + "\n"

VALUK = ("valu", "trans", "perm")
def isvalu(i): return i.k in VALUK
def ismf(i): return i.k in ("mfma", "mfma8")

def R(x):
    if isinstance(x, tuple): return rng(*x), regs(*x)
    if isinstance(x, str) and re.fullmatch(r"-?[vas]\d+", x): return x, [x.lstrip("-")]
    if x in ("vcc",): return x, ["vcc"]
    if x in ("m0",): return x, ["m0"]
    if x in ("exec",): return x, ["exec"]
    return str(x), []
def mfma(d, a, b, c):
    dt, dr = R(d); at, ar = R(a); bt, br = R(b); ct, cr = R(c)
    return I(f"v_mfma_f32_16x16x32_bf16 {dt}, {at}, {bt}, {ct}", "mfma", w=dr, c=cr, ab=ar + br)
def mfma32(d, a, b, c):
    dt, dr = R(d); at, ar = R(a); bt, br = R(b); ct, cr = R(c)
    return I(f"v_mfma_f32_32x32x16_bf16 {dt}, {at}, {bt}, {ct}", "mfma8", w=dr, c=cr, ab=ar + br)
def smfmac(d, a, b, idx):
    dt, dr = R(d); at, ar = R(a); bt, br = R(b); it, ir = R(idx)
    return I(f"v_smfmac_f32_16x16x64_bf16 {dt}, {at}, {bt}, {it}", "mfma", w=dr, c=dr, ab=ar + br + ir, tag="smf")
def V(op, d, *src, k="valu", mod=""):
    dt, dr = R(d); ts = []; rs = []
    for x in src:
        t, r = R(x); ts.append(t); rs += r
    if op in ("v_exp_f32", "v_rcp_f32", "v_log_f32"): k = "trans"
    if op.startswith("v_cndmask") and len(src) == 2: rs.append("vcc")
    return I(f"{op} {dt}, " + ", ".join(ts) + mod, k, w=dr, r=rs)
def swap(op, a, b):
    return I(f"{op} {a}, {b}", "perm", w=[a, b], r=[a, b])
def S(op, d, *src):
    dt, dr = R(d); ts = []; rs = []
    for x in src:
        t, r = R(x); ts.append(t); rs += r
    if op.startswith("s_cmp") or op.startswith("s_bitcmp"):
        return I(f"{op} {dt}, " + ", ".join(ts), "salu", w=["scc"], r=dr + rs)
    w = list(dr)
    if not (op.startswith("s_mov") or op.startswith("s_bitset") or op.startswith("s_mul") or op.startswith("s_cselect") or op.startswith("s_getreg")): w.append("scc")
    if op.startswith("s_bitset"): rs += dr
    if op.startswith("s_addc") or op.startswith("s_cselect") or op.startswith("s_subb"): rs.append("scc")
    return I(f"{op} {dt}, " + ", ".join(ts), "salu", w=w, r=rs)
def ds_read(op, d, addr, off, tag=None):
    dt, dr = R(d)
    return I(f"{op} {dt}, {addr} offset:{off}", "ds", w=dr, r=[addr], tag=tag)
def ds_write(op, addr, d, off, tag=None):
    dt, dr = R(d)
    return I(f"{op} {addr}, {dt} offset:{off}", "dsw", r=[addr] + dr, tag=tag)
def dma(vaddr, srd, soff, off, tag=None, mod=""):
    return I(f"buffer_load_dwordx4 {vaddr}, s[{srd}:{srd+3}], {soff} offen offset:{off}{mod} lds", "vmem", r=[vaddr, soff, "m0"] + regs("s", srd, 4), tag=tag)
def bload(d, vaddr, srd, soff, off, mod=""):
    dt, dr = R(d)
    return I(f"buffer_load_dwordx4 {dt}, {vaddr}, s[{srd}:{srd+3}], {soff} offen offset:{off}{mod}", "vmem", w=dr, r=[vaddr, str(soff)] + regs("s", srd, 4))
def bstore(d, vaddr, srd, soff, off, mod=""):
    dt, dr = R(d)
    return I(f"buffer_store_dwordx4 {dt}, {vaddr}, s[{srd}:{srd+3}], {soff} offen offset:{off}{mod}", "vmem", r=dr + [vaddr, str(soff)] + regs("s", srd, 4), tag=("st", tuple(dr)))
def wait(need=(), vm=None, lg=None):
    i = I("wait", "wait"); i.need = set(need); i.vm = vm; i.lg = lg
    return i
def bar(): return I("s_barrier", "bar")
def label(n): return I(n, "label")
def br(op, tgt):
    return I(f"{op} {tgt}", "br", r=["scc"] if "scc" in op else (["vcc"] if "vcc" in op else []))
def raw(t, k="salu", w=(), r=()): return I(t, k, w=w, r=r)
def nop(n=1):
    i = I(f"s_nop {n-1}", "nop"); i.tag = n; return i

def states(i):
    if i.k == "label": return i.nop
    return i.nop + (i.tag if i.k == "nop" else 1)

def required(p, c):
    n = 0
    if ismf(p):
        big = p.k == "mfma8"
        if ismf(c):
            if p.w & c.ab: n = max(n, 12 if big else 8)
            if p.w & set(c.c):
                same = (set(c.c) == p.w and p.k == c.k)
                if not same: n = max(n, 10 if big else 6)
            elif p.w & c.w and p.k != c.k: n = max(n, 10 if big else 6)
        elif c.k in VALUK + ("ds", "dsw", "vmem"):
            if p.w & (c.r | c.w): n = max(n, 12 if big else 8)
            if isvalu(c) and set(p.c) & c.w: n = max(n, 7 if big else 3)
    if isvalu(p):
        if ismf(c) and p.w & c.r: n = max(n, 2)
        if c.k == "perm" and p.w & c.r: n = max(n, 2)
        if p.k == "trans" and isvalu(c) and c.k != "trans" and p.w & c.r: n = max(n, 1)
        if p.k == "trans" and c.k == "trans" and p.w & c.r: n = max(n, 1)
        sg = {x for x in p.w if x[0] == "s" or x == "vcc"}
        if sg & c.r:
            if c.k == "vmem": n = max(n, 5)
            elif isvalu(c): n = max(n, 2)
            elif c.k in ("salu", "br"): n = max(n, 1)
        if "readfirstlane" in c.t and p.w & c.r: n = max(n, 1)
    if p.k == "salu" and "m0" in p.w and c.k == "vmem" and "m0" in c.r: n = max(n, 1)
    if p.k == "vmem" and isinstance(p.tag, tuple) and p.tag[0] == "st" and set(p.tag[1]) & c.w: n = max(n, 2)
    if p.k == "dsw" and p.r & c.w and isvalu(c): n = max(n, 0)
    return n

def fix_hazards(trace, verbose=True):
    added = 0
    for j, c in enumerate(trace):
        if c.k in ("label", "wait", "nop", "bar"): continue
        d = c.nop
        k = j - 1
        while k >= 0 and d < 12:
            p = trace[k]
            req = required(p, c)
            if req > d:
                if verbose: print(f"  nop {req-d}: [{p.t}] -> [{c.t}]")
                c.nop += req - d; added += req - d; d = req
            d += states(p)
            k -= 1
    return added

def resolve_waits(trace):
    lq = deque(); vq = deque()
    for i in trace:
        if i.k == "wait":
            if i.need:
                for q, a in ((lq, "lg"), (vq, "vm")):
                    last = -1
                    for n, o in enumerate(q):
                        if o.w & i.need: last = n
                    if last >= 0:
                        cnt = len(q) - 1 - last
                        cur = getattr(i, a)
                        setattr(i, a, cnt if cur is None else min(cur, cnt))
            if i.lg is not None:
                while len(lq) > i.lg: lq.popleft()
            if i.vm is not None:
                while len(vq) > i.vm: vq.popleft()
        elif i.k in ("ds", "dsw"): lq.append(i)
        elif i.k == "vmem": vq.append(i)

def verify(trace, nslots=4):
    lq = deque(); vq = deque(); errs = 0
    landed = set(); visible = set()
    dcount = {"K": 0, "V": 0}
    pend_reads = {}
    last_read_done_bar = {}
    nbar = 0
    cur = {"K": -1, "V": -1}
    readdone = {}
    maxl = 0
    for i in trace:
        if i.k == "wait":
            if i.lg is not None:
                while len(lq) > i.lg:
                    o, key = lq.popleft()
                    if key: readdone[key] = nbar
            if i.vm is not None:
                while len(vq) > i.vm:
                    o, key = vq.popleft()
                    if key: landed.add(key)
            continue
        if i.k == "bar":
            nbar += 1; visible |= landed; continue
        for q in (lq, vq):
            for o, _ in q:
                if o.w & (i.r | i.w):
                    print(f"  ERR pending load [{o.t}] vs [{i.t}]"); errs += 1
        if i.k in ("ds", "dsw"):
            key = None
            if isinstance(i.tag, tuple) and i.tag[0] in ("K", "V"):
                kind, new = i.tag[0], i.tag[1]
                if new: cur[kind] += 1
                b = cur[kind]; key = (kind, b)
                if i.tag[2] != b % 2: print(f"  ERR slot parity {i.t} blk {b}"); errs += 1
                for p in range(4):
                    if (kind, b, p) not in visible: print(f"  ERR RAW LDS {kind}{b} piece {p} not visible at [{i.t}]"); errs += 1; break
                readdone[key] = 10**9
            lq.append((i, key)); maxl = max(maxl, len(lq))
        elif i.k == "vmem":
            key = None
            if i.tag in ("K", "V"):
                n = dcount[i.tag]; dcount[i.tag] += 1
                b, p = divmod(n, 4); key = (i.tag, b, p)
                old = (i.tag, b - nslots)
                if b >= nslots:
                    if old not in readdone or cur[i.tag] < b - nslots: print(f"  ERR WAR: DMA {key} before reads of {old}"); errs += 1
                    elif any(k2 == old for _, k2 in lq) or readdone[old] >= nbar: print(f"  ERR WAR: DMA {key} not separated from reads of {old}"); errs += 1
                for pp in range(4): visible.discard((i.tag, b - nslots, pp)); landed.discard((i.tag, b - nslots, pp))
            vq.append((i, key))
            if len(vq) > 63: print("  ERR vmcnt overflow"); errs += 1
    if maxl > 15: print("  WARN lgkm depth", maxl)
    return errs
```

```python
import sys, struct, math
from asmir import *

NAME = "standalone__mha_softmax__near_ridge"
OPT = dict(stamps=0, nt=5)
for a in sys.argv[2:]:
    k, v = a.split("="); OPT[k] = int(v)
NT = 5
vKA = 2
vVA = 6
vDA, vDB = 14, 15
vS = 16
vNM = 36
vQ = 56
vP = 136
vIDX = 216
vQO = 217
vOO = 218
vT = 220
aO = 0; aL = 160; aV = 180; aK = 196; aONE = 212; aX = 216
sQ, sK, sV, sO = 4, 8, 12, 16
sOFF = "s20"
sROW = "s24"
sROWN = "s25"
sC = "s26"; sMASK = "s27"; sCNT = "s28"; sPASS = "s29"; sBAD = ("s", 30, 2); sBADP = "s32"; sTHR = "s33"; sW = "s34"; sT0 = "s35"; sT1 = "s36"; sT2 = "s37"
HEADQ = 608 * 256; HEADK = 1024 * 256
CSCALE = struct.unpack("<I", struct.pack("<f", math.log2(math.e) / math.sqrt(128.0)))[0]

def Sx(n): return ("v", vS + 4 * n, 4)
def NM(n): return ("v", vNM + 4 * n, 4)
def Q(n, ks): return ("v", vQ + 16 * n + 4 * ks, 4)
def P(par, n, ks): return ("v", vP + 40 * par + 8 * n + 4 * ks, 4)
def O(n, dt): return ("a", aO + 32 * n + 4 * dt, 4)
def L(n): return ("a", aL + 4 * n, 4)
def KF(buf, ks): return ("a", buf + 4 * ks, 4)
def VF(buf, h, ks): return ("a", buf + 8 * h + 4 * ks, 4)

def kread(buf, ks, t, par, new=False):
    return ds_read("ds_read_b128", KF(buf, ks), f"v{vKA+ks}", par * 16384 + t * 4096, tag=("K", new, par))
def vread(buf, h, dt, ks, u, par, new=False):
    return ds_read("ds_read_b64_tr_b16", ("a", buf + 8 * h + 4 * ks + 2 * u, 2), f"v{vVA+dt}", par * 16384 + ks * 8192 + u * 4096, tag=("V", new, par))
def qk_chain(buf, n, czero=False):
    order = [0, 1, 2, 3] if n % 2 == 0 else [3, 2, 1, 0]
    out = []
    for i, ks in enumerate(order):
        c = Sx(n) if i else ("0" if czero else NM(n))
        out.append(mfma(Sx(n), KF(buf, ks), Q(n, ks), c))
    return out
def pv_group(buf, q, par):
    out = []
    for n in range(NT):
        for ks in ([0, 1] if n % 2 == 0 else [1, 0]):
            out.append(mfma(O(n, 2 * q), VF(buf, 0, ks), P(par, n, ks), O(n, 2 * q)))
    for n in reversed(range(NT)):
        for ks in ([1, 0] if n % 2 == 0 else [0, 1]):
            out.append(mfma(O(n, 2 * q + 1), VF(buf, 1, ks), P(par, n, ks), O(n, 2 * q + 1)))
    return out
def smf(n, par): return smfmac(L(n), ("a", aONE, 4), ("v", vP + 40 * par + 8 * n, 8), f"v{vIDX}")
def vexp(n, r): return V("v_exp_f32", f"v{vS+4*n+r}", f"v{vS+4*n+r}")
def vcvt(par, n, t, h):
    return V("v_cvt_pk_bf16_f32", f"v{vP+40*par+8*n+2*t+h}", f"v{vS+4*n+2*h}", f"v{vS+4*n+2*h+1}")
def vreads(buf, q, par, new):
    l = []
    for h, kss in ((0, (0, 1)), (1, (1, 0))):
        for ks in kss:
            for u in range(2):
                l.append(vread(buf, h, 2 * q + h, ks, u, par, new and not l))
    return l
def dma_batch(kind):
    srd = sK if kind == "K" else sV
    return [dma(f"v{vDA if i % 2 == 0 else vDB}", srd, sOFF, i * 1024, tag=kind) for i in range(4)]

def weave(ms, gaps):
    out = []
    for g, m in enumerate(ms):
        out.append(m)
        l = gaps.get(g, [])
        key = lambda i: 0 if i.k in ("salu", "wait", "bar") else (1 if i.k in ("ds", "dsw", "vmem") else (3 if i.k == "br" else 2))
        out += sorted(l, key=key)
    assert max(gaps) < len(ms), (max(gaps), len(ms))
    return out

def steady_block(par, tail):
    out = []
    smfs = {0: [0], 1: [1], 2: [2, 3], 3: [4]}
    for q in range(4):
        ms = []
        for n in range(NT): ms += qk_chain(aK, n)
        ms += pv_group(aV, q, par)
        ms += [smf(n, par) for n in smfs[q]]
        G = {}
        def put(g, i): G.setdefault(g, []).append(i)
        for k in range(10):
            n, h = divmod(k, 2)
            put(7 + 3 * k, vexp(n, 2 * h)); put(8 + 3 * k, vexp(n, 2 * h + 1)); put(9 + 3 * k, vcvt(par ^ 1, n, q, h))
        vr = vreads(aV, q, par, q == 0)
        if q in (0, 1):
            vg = [0, 1, 2, 9, 12, 15, 18, 21]; kg = [24, 27, 30, 33]
            for g, d in zip([3, 4, 5, 6], dma_batch("V" if q == 0 else "K")): put(g, d)
            if q == 0: put(1, S("s_bitset1_b32", "m0", 16))
            else:
                put(0, S("s_add_u32", sOFF, sOFF, 16384)); put(1, S("s_and_b32", "m0", sOFF, "0xffff"))
        else:
            vg = [0, 1, 2, 3, 4, 5, 6, 9]; kg = [21, 24, 27, 30]
        for g, d in zip(vg, vr): put(g, d)
        if q < 3: kr = [kread(aK, ks, q + 1, par ^ 1) for ks in range(4)]
        else: kr = [kread(aK, ks, 0, par, ks == 0) for ks in range(4)]
        for g, d in zip(kg, kr): put(g, d)
        if q == 3:
            put(19, wait(need=regs("a", aV, 16), vm=16)); put(20, bar())
            if par == 0:
                for ks in range(4): put(ks, V("v_xor_b32", f"v{vKA+ks}", "0x8000", f"v{vKA+ks}"))
            else:
                for dt in range(8):
                    put([0, 1, 2, 3, 4, 5, 37, 37][dt], V("v_xor_b32", f"v{vVA+dt}", "0x8000", f"v{vVA+dt}"))
        else:
            put(19, wait(need=regs("a", aV, 8))); put(29, wait(need=regs("a", aV + 8, 8)))
        put(39, wait(need=regs("a", aK, 16)))
        if q == 3:
            for g, i in tail: put(g, i)
        out += weave(ms, G)
    return out

def proc_tile(t, n):
    l = []
    if t == 0:
        s = [f"v{vS+4*n+r}" for r in range(4)]
        a, b = f"v{vT+2*n}", f"v{vT+2*n+1}"
        l += [V("v_max3_f32", a, s[0], s[1], s[2]), V("v_max_f32", a, a, s[3]), V("v_mov_b32", b, a), nop(2),
              swap("v_permlane16_swap_b32", a, b), V("v_max_f32", a, a, b), V("v_mov_b32", b, a), nop(2),
              swap("v_permlane32_swap_b32", a, b)]
        l += [V("v_min_f32", f"v{vNM+4*n+r}", "-" + a, "-" + b) for r in range(4)]
        l += [V("v_add_f32", s[r], s[r], f"v{vNM+4*n}") for r in range(4)]
    l += [vexp(n, 0), vexp(n, 1), vexp(n, 2), vcvt(0, n, t, 0), vexp(n, 3), nop(1), vcvt(0, n, t, 1)]
    return l

def fill_block():
    out = [wait(need=regs("a", aK, 16))]
    for c in range(20):
        t, n = divmod(c, NT)
        buf = aK if t % 2 == 0 else aX
        nbuf = aX if t % 2 == 0 else aK
        ms = qk_chain(buf, n, czero=(t == 0))
        G = {0: [], 1: [], 2: [], 3: []}
        if t == 3 and n == 0:
            G[0].append(wait(vm=16)); G[1].append(bar())
        if n == 1:
            for ks in range(4):
                G[ks].append(kread(nbuf, ks, t + 1, 0) if t < 3 else kread(nbuf, ks, 0, 1, ks == 0))
        if n == 4: G[3].append(wait(need=regs("a", nbuf, 16)))
        if c >= 2:
            pr = proc_tile(*divmod(c - 2, NT))
            per = (len(pr) + 3) // 4
            for g in range(4): G[g] += pr[g * per:(g + 1) * per]
        for g, m in enumerate(ms):
            out.append(m); out += G[g]
    out += proc_tile(3, 3) + proc_tile(3, 4)
    return out

def q_loads(srow):
    l = []
    for n in range(NT):
        pre = [S("s_add_u32", sT0, srow, n * 4096)]
        for ks in range(4):
            l.append((pre, bload(Q(n, ks), f"v{vQO}", sQ, sT0, ks * 64))); pre = []
    return l

def drain_block():
    out = vreads(aV, 0, 1, True)
    out += [smf(n, 1) for n in range(NT)]
    out.append(wait(need=regs("a", aV, 16)))
    ql = q_loads(sROWN)
    mem = [([S("s_bitset1_b32", "m0", 16), nop(1)] if i == 0 else [], d) for i, d in enumerate(dma_batch("V"))]
    mem += [([S("s_add_u32", sOFF, sOFF, 16384), S("s_and_b32", "m0", sOFF, "0xffff"), nop(1)] if i == 0 else [], d) for i, d in enumerate(dma_batch("K"))]
    mem = ql + mem
    for q in range(4):
        buf = aV if q % 2 == 0 else aX
        nbuf = aX if q % 2 == 0 else aV
        ms = pv_group(buf, q, 1)
        G = {g: [] for g in range(20)}
        if q < 3:
            for g, d in enumerate(vreads(nbuf, q + 1, 1, False)): G[g].append(d)
            G[19].append(wait(need=regs("a", nbuf, 16)))
        else:
            for dt in range(8): G[dt].append(V("v_xor_b32", f"v{vVA+dt}", "0x8000", f"v{vVA+dt}"))
        for g in range(8, 19):
            if mem:
                pre, d = mem.pop(0); G[g] += pre + [d]
        for g, m in enumerate(ms):
            out.append(m); out += G[g]
    assert not mem
    return out

def epilogue():
    out = [S("s_mov_b64", sBAD, 0)]
    for n in range(NT):
        l0, l1 = f"v{vT}", f"v{vT+1}"
        out += [V("v_accvgpr_read_b32", l0, f"a{aL+4*n}"), V("v_accvgpr_read_b32", l1, f"a{aL+4*n+1}"),
                S("s_add_u32", sT0, sROW, n * 4096),
                V("v_add_f32", l0, l0, l1), V("v_cmp_nge_f32", "vcc", sTHR, l0), V("v_rcp_f32", l1, l0),
                S("s_or_b64", sBAD, sBAD, "vcc")]
        if n == 4: out.append(wait(vm=56))
        for D in range(4):
            tb = vT + 4 + (D % 2) * 12
            for r in range(8): out.append(V("v_accvgpr_read_b32", f"v{tb+r}", f"a{aO+32*n+8*D+r}"))
            for r in range(8): out.append(V("v_mul_f32", f"v{tb+r}", f"v{tb+r}", l1))
            for r in range(4): out.append(V("v_cvt_pk_bf16_f32", f"v{tb+8+r}", f"v{tb+2*r}", f"v{tb+2*r+1}"))
            out += [swap("v_permlane16_swap_b32", f"v{tb+8}", f"v{tb+10}"), swap("v_permlane16_swap_b32", f"v{tb+9}", f"v{tb+11}")]
            out.append(bstore(("v", tb + 8, 4), f"v{vOO}", sO, sT0, D * 64))
    return out

def scale_q():
    out = []
    z = ("v", vT + 32, 4)
    out += [V("v_mov_b32", f"v{vT+32+i}", 0) for i in range(4)]
    zm = [mfma32(("a", 16 * i, 16), z, z, "0") for i in range(12)]
    for i in range(80):
        a, b = f"v{vT+2*(i%4)}", f"v{vT+2*(i%4)+1}"
        q = f"v{vQ+i}"
        out += [V("v_lshlrev_b32", a, 16, q), V("v_and_b32", b, sMASK, q), V("v_mul_f32", a, sC, a), V("v_mul_f32", b, sC, b), V("v_cvt_pk_bf16_f32", q, a, b)]
        if i % 4 == 1 and zm: out.append(zm.pop(0))
    return out

def setup():
    o = []
    o += [raw("s_cmp_ge_u32 s2, 256", w=["scc"]), br("s_cbranch_scc1", "Lend"),
          raw("s_load_dwordx4 s[40:43], s[0:1], 0"), raw("s_load_dwordx4 s[44:47], s[0:1], 16"),
          V("v_lshrrev_b32", "v1", 6, "v0"), V("v_and_b32", "v0", 63, "v0"), nop(1),
          V("v_readfirstlane_b32", sW, "v1"),
          S("s_and_b32", sT0, "s2", 7), S("s_lshr_b32", sT1, "s2", 4), S("s_lshl_b32", sT0, sT0, 4), S("s_add_u32", sT0, sT0, sT1),
          S("s_mul_i32", sT1, sT0, 2 * HEADQ), S("s_lshl_b32", sT0, sT0, 19),
          raw("s_waitcnt lgkmcnt(0)", k="salu")]
    for srd, p, off, sz in ((sQ, 40, sT1, 2 * HEADQ), (sK, 42, sT0, 2 * HEADK), (sV, 44, sT0, 2 * HEADK), (sO, 46, sT1, 2 * HEADQ)):
        o += [S("s_add_u32", f"s{srd}", f"s{p}", off), S("s_addc_u32", f"s{srd+1}", f"s{p+1}", 0), S("s_mov_b32", f"s{srd+2}", sz), S("s_mov_b32", f"s{srd+3}", "0x00020000")]
    m, g, t0, t1, t2 = "v1", f"v{vT}", f"v{vT+1}", f"v{vT+2}", f"v{vT+3}"
    o += [V("v_and_b32", m, 15, "v0"), V("v_lshrrev_b32", g, 4, "v0")]
    o += [V("v_lshlrev_b32", t0, 1, g), V("v_xor_b32", t0, t0, m), V("v_lshlrev_b32", t0, 4, t0), V("v_lshl_add_u32", f"v{vDA}", g, 8, t0),
          V("v_xor_b32", f"v{vDB}", 128, f"v{vDA}")]
    o += [S("s_lshl_b32", sOFF, sW, 12), S("s_mov_b32", "m0", sOFF), nop(1)]
    o += dma_batch("K")
    o += [V("v_lshlrev_b32", t0, 4, g), V("v_lshl_add_u32", f"v{vQO}", m, 8, t0)]
    o += [S("s_mul_i32", sT0, sW, 80 * 256), S("s_bitcmp1_b32", "s2", 3), S("s_cselect_b32", sROW, 288 * 256, 0), S("s_cselect_b32", sROWN, 0, 288 * 256),
          S("s_add_u32", sROW, sROW, sT0), S("s_add_u32", sROWN, sROWN, sT0), S("s_add_u32", sROWN, sROWN, HEADQ)]
    for pre, d in q_loads(sROW): o += pre + [d]
    for b in range(3):
        o += [S("s_bitset1_b32", "m0", 16), nop(1)] + dma_batch("V") + [S("s_add_u32", sOFF, sOFF, 16384), S("s_and_b32", "m0", sOFF, "0xffff"), nop(1)] + dma_batch("K")
    o += [V("v_and_b32", t0, 7, m), V("v_lshlrev_b32", t0, 1, t0), V("v_xor_b32", t0, t0, g), V("v_lshlrev_b32", t0, 4, t0), V("v_lshl_add_u32", f"v{vKA}", m, 8, t0)]
    o += [V("v_xor_b32", f"v{vKA+ks}", 64 * ks, f"v{vKA}") for ks in range(1, 4)]
    o += [V("v_lshrrev_b32", t0, 2, "v0"), V("v_and_b32", t1, 7, t0), V("v_lshlrev_b32", t1, 5, t1), V("v_and_b32", t2, 3, "v0"), V("v_lshlrev_b32", t2, 3, t2),
          V("v_xor_b32", t1, t1, t2), V("v_lshl_add_u32", t1, t0, 8, t1), V("v_add_u32", f"v{vVA}", "0x10000", t1)]
    o += [V("v_xor_b32", f"v{vVA+dt}", 32 * dt, f"v{vVA}") for dt in range(1, 8)]
    o += [V("v_and_b32", t0, 1, g), V("v_lshlrev_b32", t0, 5, t0), V("v_lshrrev_b32", t1, 1, g), V("v_lshl_add_u32", t0, t1, 4, t0), V("v_lshl_add_u32", f"v{vOO}", m, 8, t0)]
    o += [V("v_and_b32", t0, 2, m), V("v_cmp_eq_u32", "vcc", 0, t0), V("v_mov_b32", t1, "0x3f803f80"), V("v_cndmask_b32", t1, 0, t1, "vcc")]
    o += [V("v_accvgpr_write_b32", f"a{aONE+i}", t1) for i in range(4)]
    o += [V("v_and_b32", t0, 1, m), V("v_cmp_eq_u32", "vcc", 1, t0), V("v_mov_b32", t1, "0x44444444"), V("v_mov_b32", t2, "0xeeeeeeee"), V("v_cndmask_b32", f"v{vIDX}", t1, t2, "vcc")]
    o += [S("s_mov_b32", sC, hex(CSCALE)), S("s_mov_b32", sMASK, "0xffff0000"), S("s_mov_b32", sTHR, "0x53800000"), S("s_mov_b32", sPASS, 0), S("s_mov_b32", sBADP, 0)]
    o += [wait(vm=44), bar()]
    o += [kread(aK, ks, 0, 0, ks == 0) for ks in range(4)]
    o += [wait(need=regs("v", vQ, 80))]
    return o

def build():
    seg = {}
    seg["setup"] = setup()
    seg["pass"] = [label("Lpass")] + scale_q() + fill_block() + [S("s_mov_b32", sCNT, -8)]
    seg["even"] = [label("Lloop")] + steady_block(0, [(38, S("s_add_u32", sCNT, sCNT, 1)), (40, br("s_cbranch_scc1", "Ldrain"))])
    seg["odd"] = steady_block(1, [(40, br("s_branch", "Lloop"))])
    seg["drain"] = [label("Ldrain")] + drain_block() + epilogue()
    seg["next"] = [S("s_add_u32", sPASS, sPASS, 1), S("s_mov_b32", sROW, sROWN), S("s_mov_b32", sROWN, 2 * HEADQ), wait(need=regs("v", vQ, 80)),
                   S("s_cmp_lt_u32", sPASS, 2), br("s_cbranch_scc1", "Lpass")]
    seg["end"] = [label("Lend"), raw("s_endpgm")]
    tr = list(seg["setup"])
    for p in range(2):
        tr += seg["pass"]
        for it in range(8):
            tr += seg["even"]
            if it < 7: tr += seg["odd"]
        tr += seg["drain"] + seg["next"]
    resolve_waits(tr)
    while fix_hazards(tr, verbose=False): pass
    e = verify(tr)
    assert e == 0, e
    body = ""
    for k in ("setup", "pass", "even", "odd", "drain", "next", "end"):
        if k == "even": body += ".p2align 6\n"
        body += "".join(i.text() for i in seg[k])
    return body

HEAD = f"""; flash-attention forward, B8 H32 Sq608 Sk1024 D128 bf16 (generated by a scheduling script)
; @launch grid=(256,1,1) block=(256,1,1) lds=163840
.amdgcn_target "amdgcn-amd-amdhsa--gfx950"
.text
.globl {NAME}_kernel
.p2align 8
.type {NAME}_kernel,@function
{NAME}_kernel:
"""
TAIL = f""".section .rodata,"a"
.p2align 6
.amdhsa_kernel {NAME}_kernel
  .amdhsa_next_free_vgpr 512
  .amdhsa_next_free_sgpr 102
  .amdhsa_accum_offset 256
  .amdhsa_group_segment_fixed_size 0
  .amdhsa_kernarg_size 48
  .amdhsa_user_sgpr_count 2
  .amdhsa_user_sgpr_kernarg_segment_ptr 1
  .amdhsa_system_sgpr_workgroup_id_x 1
  .amdhsa_float_denorm_mode_32 3
.end_amdhsa_kernel
"""
if __name__ == "__main__":
    open(sys.argv[1], "w").write(HEAD + build() + TAIL)
```

```python
import sys, struct, math
from asmir import *

NAME = "standalone__mha_softmax__near_ridge"
OPT = dict(pi=-1, pj=0, pk=1, pall=0, stamps=0, kv=0, q=0, o=0)
MODS = ["", " nt", " sc1", " sc1 nt", " sc0 sc1", " sc0 sc1 nt", " sc0", " sc0 nt"]
for a in sys.argv[2:]:
    k, v = a.split("="); OPT[k] = int(v)
NT = 5
vKA = 2
vVA = 6
vDA, vDB = 14, 15
vS = 16
vNM = 36
vQ = 56
vP = 136
vIDX = 216
vQO = 217
vOO = 218
vT = 220
aO = 0; aL = 160; aV = 180; aK = 196; aONE = 212; aX = 216
sQ, sK, sV, sO = 4, 8, 12, 16
sOFF = "s20"
sROW = "s24"
sROWN = "s25"
sC = "s26"; sMASK = "s27"; sCNT = "s28"; sPASS = "s29"; sBAD = ("s", 30, 2); sBADP = "s32"; sTHR = "s33"; sW = "s34"; sT0 = "s35"; sT1 = "s36"; sT2 = "s37"
HEADQ = 608 * 256; HEADK = 1024 * 256
CSCALE = struct.unpack("<I", struct.pack("<f", math.log2(math.e) / math.sqrt(128.0)))[0]

def Sx(n): return ("v", vS + 4 * n, 4)
def NM(n): return ("v", vNM + 4 * n, 4)
def Q(n, ks): return ("v", vQ + 16 * n + 4 * ks, 4)
def P(par, n, ks): return ("v", vP + 40 * par + 8 * n + 4 * ks, 4)
def O(n, dt): return ("a", aO + 32 * n + 4 * dt, 4)
def L(n): return ("a", aL + 4 * n, 4)
def KF(buf, ks): return ("a", buf + 4 * ks, 4)
def VF(buf, h, ks): return ("a", buf + 8 * h + 4 * ks, 4)

def kread(buf, ks, t, par, new=False):
    return ds_read("ds_read_b128", KF(buf, ks), f"v{vKA+ks}", par * 16384 + t * 4096, tag=("K", new, par))
def vread(buf, h, dt, ks, u, par, new=False):
    return ds_read("ds_read_b64_tr_b16", ("a", buf + 8 * h + 4 * ks + 2 * u, 2), f"v{vVA+dt}", par * 16384 + ks * 8192 + u * 4096, tag=("V", new, par))
def qk_chain(buf, n, czero=False):
    order = [0, 1, 2, 3] if n % 2 == 0 else [3, 2, 1, 0]
    out = []
    for i, ks in enumerate(order):
        c = Sx(n) if i else ("0" if czero else NM(n))
        out.append(mfma(Sx(n), KF(buf, ks), Q(n, ks), c))
    return out
def pv_group(buf, q, par):
    out = []
    for n in range(NT):
        for ks in ([0, 1] if n % 2 == 0 else [1, 0]):
            out.append(mfma(O(n, 2 * q), VF(buf, 0, ks), P(par, n, ks), O(n, 2 * q)))
    for n in reversed(range(NT)):
        for ks in ([1, 0] if n % 2 == 0 else [0, 1]):
            out.append(mfma(O(n, 2 * q + 1), VF(buf, 1, ks), P(par, n, ks), O(n, 2 * q + 1)))
    return out
def smf(n, par): return smfmac(L(n), ("a", aONE, 4), ("v", vP + 40 * par + 8 * n, 8), f"v{vIDX}")
def vexp(n, r): return V("v_exp_f32", f"v{vS+4*n+r}", f"v{vS+4*n+r}")
def vcvt(par, n, t, h):
    return V("v_cvt_pk_bf16_f32", f"v{vP+40*par+8*n+2*t+h}", f"v{vS+4*n+2*h}", f"v{vS+4*n+2*h+1}")
def vreads(buf, q, par, new):
    l = []
    for h, kss in ((0, (0, 1)), (1, (1, 0))):
        for ks in kss:
            for u in range(2):
                l.append(vread(buf, h, 2 * q + h, ks, u, par, new and not l))
    return l
def dma_batch(kind):
    srd = sK if kind == "K" else sV
    return [dma(f"v{vDA if i % 2 == 0 else vDB}", srd, sOFF, i * 1024, tag=kind, mod=MODS[OPT["kv"]]) for i in range(4)]

def weave(ms, gaps):
    out = []
    for g, m in enumerate(ms):
        out.append(m)
        l = gaps.get(g, [])
        key = lambda i: 0 if i.k in ("salu", "wait", "bar") else (1 if i.k in ("ds", "dsw", "vmem") else (3 if i.k == "br" else 2))
        out += sorted(l, key=key)
    assert max(gaps) < len(ms), (max(gaps), len(ms))
    return out

def steady_block(par, tail):
    out = []
    smfs = {0: [0], 1: [1], 2: [2, 3], 3: [4]}
    for q in range(4):
        ms = []
        for n in range(NT): ms += qk_chain(aK, n)
        ms += pv_group(aV, q, par)
        ms += [smf(n, par) for n in smfs[q]]
        G = {}
        def put(g, i): G.setdefault(g, []).append(i)
        for k in range(10):
            n, h = divmod(k, 2)
            put(7 + 3 * k, vexp(n, 2 * h)); put(8 + 3 * k, vexp(n, 2 * h + 1)); put(9 + 3 * k, vcvt(par ^ 1, n, q, h))
        vr = vreads(aV, q, par, q == 0)
        if q in (0, 1):
            vg = [0, 1, 2, 9, 12, 15, 18, 21]; kg = [24, 27, 30, 33]
            for g, d in zip([3, 4, 5, 6], dma_batch("V" if q == 0 else "K")): put(g, d)
            if q == 0: put(1, S("s_bitset1_b32", "m0", 16))
            else:
                put(0, S("s_add_u32", sOFF, sOFF, 16384)); put(1, S("s_and_b32", "m0", sOFF, "0xffff"))
        else:
            vg = [0, 1, 2, 3, 4, 5, 6, 9]; kg = [21, 24, 27, 30]
        for g, d in zip(vg, vr): put(g, d)
        if q < 3: kr = [kread(aK, ks, q + 1, par ^ 1) for ks in range(4)]
        else: kr = [kread(aK, ks, 0, par, ks == 0) for ks in range(4)]
        for g, d in zip(kg, kr): put(g, d)
        if q == 3:
            put(19, wait(need=regs("a", aV, 16), vm=16)); put(20, bar())
            if par == 0:
                for ks in range(4): put(ks, V("v_xor_b32", f"v{vKA+ks}", "0x8000", f"v{vKA+ks}"))
            else:
                for dt in range(8):
                    put([0, 1, 2, 3, 4, 5, 37, 37][dt], V("v_xor_b32", f"v{vVA+dt}", "0x8000", f"v{vVA+dt}"))
        else:
            put(19, wait(need=regs("a", aV, 8))); put(29, wait(need=regs("a", aV + 8, 8)))
        put(39, wait(need=regs("a", aK, 16)))
        if q == 3:
            for g, i in tail: put(g, i)
        out += weave(ms, G)
    return out

def proc_tile(t, n):
    l = []
    if t == 0:
        s = [f"v{vS+4*n+r}" for r in range(4)]
        a, b = f"v{vT+2*n}", f"v{vT+2*n+1}"
        l += [V("v_max3_f32", a, s[0], s[1], s[2]), V("v_max_f32", a, a, s[3]), V("v_mov_b32", b, a), nop(2),
              swap("v_permlane16_swap_b32", a, b), V("v_max_f32", a, a, b), V("v_mov_b32", b, a), nop(2),
              swap("v_permlane32_swap_b32", a, b)]
        l += [V("v_min_f32", f"v{vNM+4*n+r}", "-" + a, "-" + b) for r in range(4)]
        l += [V("v_add_f32", s[r], s[r], f"v{vNM+4*n}") for r in range(4)]
    l += [vexp(n, 0), vexp(n, 1), vexp(n, 2), vcvt(0, n, t, 0), vexp(n, 3), nop(1), vcvt(0, n, t, 1)]
    return l

def fill_block():
    out = [wait(need=regs("a", aK, 16))]
    for c in range(20):
        t, n = divmod(c, NT)
        buf = aK if t % 2 == 0 else aX
        nbuf = aX if t % 2 == 0 else aK
        ms = qk_chain(buf, n, czero=(t == 0))
        G = {0: [], 1: [], 2: [], 3: []}
        if t == 3 and n == 0:
            G[0].append(wait(vm=16)); G[1].append(bar())
        if n == 1:
            for ks in range(4):
                G[ks].append(kread(nbuf, ks, t + 1, 0) if t < 3 else kread(nbuf, ks, 0, 1, ks == 0))
        if n == 4: G[3].append(wait(need=regs("a", nbuf, 16)))
        if c >= 2:
            pr = proc_tile(*divmod(c - 2, NT))
            per = (len(pr) + 3) // 4
            for g in range(4): G[g] += pr[g * per:(g + 1) * per]
        for g, m in enumerate(ms):
            out.append(m); out += G[g]
    out += proc_tile(3, 3) + proc_tile(3, 4)
    return out

def q_loads(srow):
    l = []
    for n in range(NT):
        pre = [S("s_add_u32", sT0, srow, n * 4096)]
        for ks in range(4):
            l.append((pre, bload(Q(n, ks), f"v{vQO}", sQ, sT0, ks * 64, mod=MODS[OPT["q"]]))); pre = []
    return l

def drain_block():
    out = vreads(aV, 0, 1, True)
    out += [smf(n, 1) for n in range(NT)]
    out.append(wait(need=regs("a", aV, 16)))
    ql = q_loads(sROWN)
    mem = [([S("s_bitset1_b32", "m0", 16), nop(1)] if i == 0 else [], d) for i, d in enumerate(dma_batch("V"))]
    mem += [([S("s_add_u32", sOFF, sOFF, 16384), S("s_and_b32", "m0", sOFF, "0xffff"), nop(1)] if i == 0 else [], d) for i, d in enumerate(dma_batch("K"))]
    mem = ql + mem
    for q in range(4):
        buf = aV if q % 2 == 0 else aX
        nbuf = aX if q % 2 == 0 else aV
        ms = pv_group(buf, q, 1)
        G = {g: [] for g in range(20)}
        if q < 3:
            for g, d in enumerate(vreads(nbuf, q + 1, 1, False)): G[g].append(d)
            G[19].append(wait(need=regs("a", nbuf, 16)))
        else:
            for dt in range(8): G[dt].append(V("v_xor_b32", f"v{vVA+dt}", "0x8000", f"v{vVA+dt}"))
        for g in range(8, 19):
            if mem:
                pre, d = mem.pop(0); G[g] += pre + [d]
        for g, m in enumerate(ms):
            out.append(m); out += G[g]
    assert not mem
    return out

def epilogue():
    out = [S("s_mov_b64", sBAD, 0)]
    for n in range(NT):
        l0, l1 = f"v{vT}", f"v{vT+1}"
        out += [V("v_accvgpr_read_b32", l0, f"a{aL+4*n}"), V("v_accvgpr_read_b32", l1, f"a{aL+4*n+1}"),
                S("s_add_u32", sT0, sROW, n * 4096),
                V("v_add_f32", l0, l0, l1), V("v_cmp_nge_f32", "vcc", sTHR, l0), V("v_rcp_f32", l1, l0),
                S("s_or_b64", sBAD, sBAD, "vcc")]
        if n == 4: out.append(wait(vm=56))
        for D in range(4):
            tb = vT + 4 + (D % 2) * 12
            for r in range(8): out.append(V("v_accvgpr_read_b32", f"v{tb+r}", f"a{aO+32*n+8*D+r}"))
            for r in range(8): out.append(V("v_mul_f32", f"v{tb+r}", f"v{tb+r}", l1))
            for r in range(4): out.append(V("v_cvt_pk_bf16_f32", f"v{tb+8+r}", f"v{tb+2*r}", f"v{tb+2*r+1}"))
            out += [swap("v_permlane16_swap_b32", f"v{tb+8}", f"v{tb+10}"), swap("v_permlane16_swap_b32", f"v{tb+9}", f"v{tb+11}")]
            out.append(bstore(("v", tb + 8, 4), f"v{vOO}", sO, sT0, D * 64, mod=MODS[OPT["o"]]))
    return out

def scale_q():
    out = []
    z = ("v", vT + 32, 4)
    out += [V("v_mov_b32", f"v{vT+32+i}", 0) for i in range(4)]
    zm = [mfma32(("a", 16 * i, 16), z, z, "0") for i in range(12)]
    for i in range(80):
        a, b = f"v{vT+2*(i%4)}", f"v{vT+2*(i%4)+1}"
        q = f"v{vQ+i}"
        out += [V("v_lshlrev_b32", a, 16, q), V("v_and_b32", b, sMASK, q), V("v_mul_f32", a, sC, a), V("v_mul_f32", b, sC, b), V("v_cvt_pk_bf16_f32", q, a, b)]
        if i % 4 == 1 and zm: out.append(zm.pop(0))
    return out

def setup():
    o = []
    o += [raw("s_cmp_ge_u32 s2, 256", w=["scc"]), br("s_cbranch_scc1", "Lend"),
          raw("s_load_dwordx4 s[40:43], s[0:1], 0"), raw("s_load_dwordx4 s[44:47], s[0:1], 16"),
          V("v_lshrrev_b32", "v1", 6, "v0"), V("v_and_b32", "v0", 63, "v0"), nop(1),
          V("v_readfirstlane_b32", sW, "v1"),
          S("s_and_b32", sT0, "s2", 7), S("s_lshr_b32", sT1, "s2", 4), S("s_lshl_b32", sT0, sT0, 4), S("s_add_u32", sT0, sT0, sT1),
          S("s_mul_i32", sT1, sT0, 2 * HEADQ), S("s_lshl_b32", sT0, sT0, 19),
          raw("s_waitcnt lgkmcnt(0)", k="salu")]
    for srd, p, off, sz in ((sQ, 40, sT1, 2 * HEADQ), (sK, 42, sT0, 2 * HEADK), (sV, 44, sT0, 2 * HEADK), (sO, 46, sT1, 2 * HEADQ)):
        o += [S("s_add_u32", f"s{srd}", f"s{p}", off), S("s_addc_u32", f"s{srd+1}", f"s{p+1}", 0), S("s_mov_b32", f"s{srd+2}", sz), S("s_mov_b32", f"s{srd+3}", "0x00020000")]
    m, g, t0, t1, t2 = "v1", f"v{vT}", f"v{vT+1}", f"v{vT+2}", f"v{vT+3}"
    o += [V("v_and_b32", m, 15, "v0"), V("v_lshrrev_b32", g, 4, "v0")]
    o += [V("v_lshlrev_b32", t0, 1, g), V("v_xor_b32", t0, t0, m), V("v_lshlrev_b32", t0, 4, t0), V("v_lshl_add_u32", f"v{vDA}", g, 8, t0),
          V("v_xor_b32", f"v{vDB}", 128, f"v{vDA}")]
    o += [S("s_lshl_b32", sOFF, sW, 12), S("s_mov_b32", "m0", sOFF), nop(1)]
    o += dma_batch("K")
    o += [V("v_lshlrev_b32", t0, 4, g), V("v_lshl_add_u32", f"v{vQO}", m, 8, t0)]
    o += [S("s_mul_i32", sT0, sW, 80 * 256), S("s_bitcmp1_b32", "s2", 3), S("s_cselect_b32", sROW, 288 * 256, 0), S("s_cselect_b32", sROWN, 0, 288 * 256),
          S("s_add_u32", sROW, sROW, sT0), S("s_add_u32", sROWN, sROWN, sT0), S("s_add_u32", sROWN, sROWN, HEADQ)]
    for pre, d in q_loads(sROW): o += pre + [d]
    for b in range(3):
        o += [S("s_bitset1_b32", "m0", 16), nop(1)] + dma_batch("V") + [S("s_add_u32", sOFF, sOFF, 16384), S("s_and_b32", "m0", sOFF, "0xffff"), nop(1)] + dma_batch("K")
    o += [V("v_and_b32", t0, 7, m), V("v_lshlrev_b32", t0, 1, t0), V("v_xor_b32", t0, t0, g), V("v_lshlrev_b32", t0, 4, t0), V("v_lshl_add_u32", f"v{vKA}", m, 8, t0)]
    o += [V("v_xor_b32", f"v{vKA+ks}", 64 * ks, f"v{vKA}") for ks in range(1, 4)]
    o += [V("v_lshrrev_b32", t0, 2, "v0"), V("v_and_b32", t1, 7, t0), V("v_lshlrev_b32", t1, 5, t1), V("v_and_b32", t2, 3, "v0"), V("v_lshlrev_b32", t2, 3, t2),
          V("v_xor_b32", t1, t1, t2), V("v_lshl_add_u32", t1, t0, 8, t1), V("v_add_u32", f"v{vVA}", "0x10000", t1)]
    o += [V("v_xor_b32", f"v{vVA+dt}", 32 * dt, f"v{vVA}") for dt in range(1, 8)]
    o += [V("v_and_b32", t0, 1, g), V("v_lshlrev_b32", t0, 5, t0), V("v_lshrrev_b32", t1, 1, g), V("v_lshl_add_u32", t0, t1, 4, t0), V("v_lshl_add_u32", f"v{vOO}", m, 8, t0)]
    o += [V("v_and_b32", t0, 2, m), V("v_cmp_eq_u32", "vcc", 0, t0), V("v_mov_b32", t1, "0x3f803f80"), V("v_cndmask_b32", t1, 0, t1, "vcc")]
    o += [V("v_accvgpr_write_b32", f"a{aONE+i}", t1) for i in range(4)]
    o += [V("v_and_b32", t0, 1, m), V("v_cmp_eq_u32", "vcc", 1, t0), V("v_mov_b32", t1, "0x44444444"), V("v_mov_b32", t2, "0xeeeeeeee"), V("v_cndmask_b32", f"v{vIDX}", t1, t2, "vcc")]
    o += [S("s_mov_b32", sC, hex(CSCALE)), S("s_mov_b32", sMASK, "0xffff0000"), S("s_mov_b32", sTHR, "0x53800000"), S("s_mov_b32", sPASS, 0), S("s_mov_b32", sBADP, 0)]
    o += [wait(vm=44), bar()]
    o += [kread(aK, ks, 0, 0, ks == 0) for ks in range(4)]
    o += [wait(need=regs("v", vQ, 80))]
    return o

def stamp():
    if not OPT["stamps"]: return []
    return [raw("s_memtime s[62:63]"), raw("s_memrealtime s[64:65]"), raw("s_waitcnt lgkmcnt(0)"),
            raw("s_mov_b32 s61, m0"), raw("s_mov_b32 m0, s60"), raw("s_nop 0"), raw("v_writelane_b32 v219, s62, m0"), raw("s_add_u32 m0, m0, 1"), raw("s_nop 0"), raw("v_writelane_b32 v219, s64, m0"),
            raw("s_add_u32 s60, s60, 2"), raw("s_mov_b32 m0, s61"), raw("s_nop 0")]
def probe():
    i, j, k = OPT["pi"], OPT["pj"], OPT["pk"]
    o = [raw("s_waitcnt vmcnt(0)")] + stamp()
    if not OPT["pall"]: o += [raw("s_cmp_lg_u32 s2, 100"), raw("s_cbranch_scc1 Lend")]
    o += [raw(f"v_readlane_b32 s62, v219, {2*i+k}"), raw(f"v_readlane_b32 s63, v219, {2*j+k}"), raw("s_nop 3"), raw("s_sub_u32 s66, s63, s62")]
    o += [raw("s_mul_i32 s66, s66, 10")] if k else [raw("s_lshr_b32 s66, s66, 1")]
    o += [raw("s_min_u32 s66, s66, 200000"), raw("s_memrealtime s[62:63]"), raw("s_waitcnt lgkmcnt(0)"), label("Lspin"), raw("s_memrealtime s[64:65]"), raw("s_waitcnt lgkmcnt(0)"),
          raw("s_sub_u32 s67, s64, s62"), raw("s_cmp_lt_u32 s67, s66"), raw("s_cbranch_scc1 Lspin")]
    return o
def stamp_out():
    if not OPT["stamps"]: return []
    if OPT["pi"] >= 0: return probe()
    return [raw("s_waitcnt vmcnt(0)")] + stamp() + [raw("; STAMPS"), raw("s_load_dwordx2 s[40:41], s[0:1], 40"), raw("s_lshr_b32 s60, s60, 1"), raw("v_writelane_b32 v219, s60, 63"),
            raw("s_lshl_b32 s60, s2, 2"), raw(f"s_add_u32 s60, s60, {sW}"), raw("s_lshl_b32 s60, s60, 8"), raw("v_lshlrev_b32 v0, 2, v0"),
            raw("s_waitcnt lgkmcnt(0)"), raw("s_mov_b32 s42, 0x100000"), raw("s_mov_b32 s43, 0x00020000"), raw("buffer_store_dword v219, v0, s[40:43], s60 offen"), raw("s_waitcnt vmcnt(0)")]
def build():
    seg = {}
    su = setup()
    seg["setup"] = su[:2] + ([raw("s_mov_b32 s60, 0"), raw("v_mov_b32 v219, 0")] if OPT["stamps"] else []) + stamp() + su[2:]
    seg["pass"] = [label("Lpass")] + stamp() + scale_q() + stamp() + fill_block() + stamp() + [S("s_mov_b32", sCNT, -8)]
    seg["even"] = [label("Lloop")] + steady_block(0, [(38, S("s_add_u32", sCNT, sCNT, 1)), (40, br("s_cbranch_scc1", "Ldrain"))])
    seg["odd"] = steady_block(1, [(40, br("s_branch", "Lloop"))])
    seg["drain"] = [label("Ldrain")] + stamp() + drain_block() + stamp() + epilogue() + stamp()
    seg["next"] = [S("s_add_u32", sPASS, sPASS, 1), S("s_mov_b32", sROW, sROWN), S("s_mov_b32", sROWN, 2 * HEADQ), wait(need=regs("v", vQ, 80)),
                   S("s_cmp_lt_u32", sPASS, 2), br("s_cbranch_scc1", "Lpass")]
    seg["end"] = stamp_out() + [label("Lend"), raw("s_endpgm")]
    tr = list(seg["setup"])
    for p in range(2):
        tr += seg["pass"]
        for it in range(8):
            tr += seg["even"]
            if it < 7: tr += seg["odd"]
        tr += seg["drain"] + seg["next"]
    resolve_waits(tr)
    while fix_hazards(tr, verbose=False): pass
    e = verify(tr)
    assert e == 0, e
    body = ""
    for k in ("setup", "pass", "even", "odd", "drain", "next", "end"):
        if k == "even": body += ".p2align 6\n"
        body += "".join(i.text() for i in seg[k])
    return body

HEAD = f"""; flash-attention forward, B8 H32 Sq608 Sk1024 D128 bf16 (generated by a scheduling script)
; @launch grid=(256,1,1) block=(256,1,1) lds=163840
.amdgcn_target "amdgcn-amd-amdhsa--gfx950"
.text
.globl {NAME}_kernel
.p2align 8
.type {NAME}_kernel,@function
{NAME}_kernel:
"""
TAIL = f""".section .rodata,"a"
.p2align 6
.amdhsa_kernel {NAME}_kernel
  .amdhsa_next_free_vgpr 512
  .amdhsa_next_free_sgpr 102
  .amdhsa_accum_offset 256
  .amdhsa_group_segment_fixed_size 0
  .amdhsa_kernarg_size 48
  .amdhsa_user_sgpr_count 2
  .amdhsa_user_sgpr_kernarg_segment_ptr 1
  .amdhsa_system_sgpr_workgroup_id_x 1
  .amdhsa_float_denorm_mode_32 3
.end_amdhsa_kernel
"""
if __name__ == "__main__":
    open(sys.argv[1], "w").write(HEAD + build() + TAIL)
```

```python
import sys, struct, math
from asmir import *

NAME = "standalone__mha_softmax__near_ridge"
OPT = dict(pfix=0, pi=-1, pj=0, pk=1, pall=0, stamps=0, kv=0, q=0, o=0)
MODS = ["", " nt", " sc1", " sc1 nt", " sc0 sc1", " sc0 sc1 nt", " sc0", " sc0 nt"]
for a in sys.argv[2:]:
    k, v = a.split("="); OPT[k] = int(v)
NT = 5
vKA = 2
vVA = 6
vDA, vDB = 14, 15
vS = 16
vNM = 36
vQ = 56
vP = 136
vIDX = 216
vQO = 217
vOO = 218
vT = 220
aO = 0; aL = 160; aV = 180; aK = 196; aONE = 212; aX = 216
sQ, sK, sV, sO = 4, 8, 12, 16
sOFF = "s20"
sROW = "s24"
sROWN = "s25"
sC = "s26"; sMASK = "s27"; sCNT = "s28"; sPASS = "s29"; sBAD = ("s", 30, 2); sBADP = "s32"; sTHR = "s33"; sW = "s34"; sT0 = "s35"; sT1 = "s36"; sT2 = "s37"
HEADQ = 608 * 256; HEADK = 1024 * 256
CSCALE = struct.unpack("<I", struct.pack("<f", math.log2(math.e) / math.sqrt(128.0)))[0]

def Sx(n): return ("v", vS + 4 * n, 4)
def NM(n): return ("v", vNM + 4 * n, 4)
def Q(n, ks): return ("v", vQ + 16 * n + 4 * ks, 4)
def P(par, n, ks): return ("v", vP + 40 * par + 8 * n + 4 * ks, 4)
def O(n, dt): return ("a", aO + 32 * n + 4 * dt, 4)
def L(n): return ("a", aL + 4 * n, 4)
def KF(buf, ks): return ("a", buf + 4 * ks, 4)
def VF(buf, h, ks): return ("a", buf + 8 * h + 4 * ks, 4)

def kread(buf, ks, t, par, new=False):
    return ds_read("ds_read_b128", KF(buf, ks), f"v{vKA+ks}", par * 16384 + t * 4096, tag=("K", new, par))
def vread(buf, h, dt, ks, u, par, new=False):
    return ds_read("ds_read_b64_tr_b16", ("a", buf + 8 * h + 4 * ks + 2 * u, 2), f"v{vVA+dt}", par * 16384 + ks * 8192 + u * 4096, tag=("V", new, par))
def qk_chain(buf, n, czero=False):
    order = [0, 1, 2, 3] if n % 2 == 0 else [3, 2, 1, 0]
    out = []
    for i, ks in enumerate(order):
        c = Sx(n) if i else ("0" if czero else NM(n))
        out.append(mfma(Sx(n), KF(buf, ks), Q(n, ks), c))
    return out
def pv_group(buf, q, par):
    out = []
    for n in range(NT):
        for ks in ([0, 1] if n % 2 == 0 else [1, 0]):
            out.append(mfma(O(n, 2 * q), VF(buf, 0, ks), P(par, n, ks), O(n, 2 * q)))
    for n in reversed(range(NT)):
        for ks in ([1, 0] if n % 2 == 0 else [0, 1]):
            out.append(mfma(O(n, 2 * q + 1), VF(buf, 1, ks), P(par, n, ks), O(n, 2 * q + 1)))
    return out
def smf(n, par): return smfmac(L(n), ("a", aONE, 4), ("v", vP + 40 * par + 8 * n, 8), f"v{vIDX}")
def vexp(n, r): return V("v_exp_f32", f"v{vS+4*n+r}", f"v{vS+4*n+r}")
def vcvt(par, n, t, h):
    return V("v_cvt_pk_bf16_f32", f"v{vP+40*par+8*n+2*t+h}", f"v{vS+4*n+2*h}", f"v{vS+4*n+2*h+1}")
def vreads(buf, q, par, new):
    l = []
    for h, kss in ((0, (0, 1)), (1, (1, 0))):
        for ks in kss:
            for u in range(2):
                l.append(vread(buf, h, 2 * q + h, ks, u, par, new and not l))
    return l
def dma_batch(kind):
    srd = sK if kind == "K" else sV
    return [dma(f"v{vDA if i % 2 == 0 else vDB}", srd, sOFF, i * 1024, tag=kind, mod=MODS[OPT["kv"]]) for i in range(4)]

def weave(ms, gaps):
    out = []
    for g, m in enumerate(ms):
        out.append(m)
        l = gaps.get(g, [])
        key = lambda i: 0 if i.k in ("salu", "wait", "bar") else (1 if i.k in ("ds", "dsw", "vmem") else (3 if i.k == "br" else 2))
        out += sorted(l, key=key)
    assert max(gaps) < len(ms), (max(gaps), len(ms))
    return out

def steady_block(par, tail):
    out = []
    smfs = {0: [0], 1: [1], 2: [2, 3], 3: [4]}
    for q in range(4):
        ms = []
        for n in range(NT): ms += qk_chain(aK, n)
        ms += pv_group(aV, q, par)
        ms += [smf(n, par) for n in smfs[q]]
        G = {}
        def put(g, i): G.setdefault(g, []).append(i)
        for k in range(10):
            n, h = divmod(k, 2)
            put(7 + 3 * k, vexp(n, 2 * h)); put(8 + 3 * k, vexp(n, 2 * h + 1)); put(9 + 3 * k, vcvt(par ^ 1, n, q, h))
        vr = vreads(aV, q, par, q == 0)
        if q in (0, 1):
            vg = [0, 1, 2, 9, 12, 15, 18, 21]; kg = [24, 27, 30, 33]
            for g, d in zip([3, 4, 5, 6], dma_batch("V" if q == 0 else "K")): put(g, d)
            if q == 0: put(1, S("s_bitset1_b32", "m0", 16))
            else:
                put(0, S("s_add_u32", sOFF, sOFF, 16384)); put(1, S("s_and_b32", "m0", sOFF, "0xffff"))
        else:
            vg = [0, 1, 2, 3, 4, 5, 6, 9]; kg = [21, 24, 27, 30]
        for g, d in zip(vg, vr): put(g, d)
        if q < 3: kr = [kread(aK, ks, q + 1, par ^ 1) for ks in range(4)]
        else: kr = [kread(aK, ks, 0, par, ks == 0) for ks in range(4)]
        for g, d in zip(kg, kr): put(g, d)
        if q == 3:
            put(19, wait(need=regs("a", aV, 16), vm=16)); put(20, bar())
            if par == 0:
                for ks in range(4): put(ks, V("v_xor_b32", f"v{vKA+ks}", "0x8000", f"v{vKA+ks}"))
            else:
                for dt in range(8):
                    put([0, 1, 2, 3, 4, 5, 37, 37][dt], V("v_xor_b32", f"v{vVA+dt}", "0x8000", f"v{vVA+dt}"))
        else:
            put(19, wait(need=regs("a", aV, 8))); put(29, wait(need=regs("a", aV + 8, 8)))
        put(39, wait(need=regs("a", aK, 16)))
        if q == 3:
            for g, i in tail: put(g, i)
        out += weave(ms, G)
    return out

def proc_tile(t, n):
    l = []
    if t == 0:
        s = [f"v{vS+4*n+r}" for r in range(4)]
        a, b = f"v{vT+2*n}", f"v{vT+2*n+1}"
        l += [V("v_max3_f32", a, s[0], s[1], s[2]), V("v_max_f32", a, a, s[3]), V("v_mov_b32", b, a), nop(2),
              swap("v_permlane16_swap_b32", a, b), V("v_max_f32", a, a, b), V("v_mov_b32", b, a), nop(2),
              swap("v_permlane32_swap_b32", a, b)]
        l += [V("v_min_f32", f"v{vNM+4*n+r}", "-" + a, "-" + b) for r in range(4)]
        l += [V("v_add_f32", s[r], s[r], f"v{vNM+4*n}") for r in range(4)]
    l += [vexp(n, 0), vexp(n, 1), vexp(n, 2), vcvt(0, n, t, 0), vexp(n, 3), nop(1), vcvt(0, n, t, 1)]
    return l

def fill_block():
    out = [wait(need=regs("a", aK, 16))]
    for c in range(20):
        t, n = divmod(c, NT)
        buf = aK if t % 2 == 0 else aX
        nbuf = aX if t % 2 == 0 else aK
        ms = qk_chain(buf, n, czero=(t == 0))
        G = {0: [], 1: [], 2: [], 3: []}
        if t == 3 and n == 0:
            G[0].append(wait(vm=16)); G[1].append(bar())
        if n == 1:
            for ks in range(4):
                G[ks].append(kread(nbuf, ks, t + 1, 0) if t < 3 else kread(nbuf, ks, 0, 1, ks == 0))
        if n == 4: G[3].append(wait(need=regs("a", nbuf, 16)))
        if c >= 2:
            pr = proc_tile(*divmod(c - 2, NT))
            per = (len(pr) + 3) // 4
            for g in range(4): G[g] += pr[g * per:(g + 1) * per]
        for g, m in enumerate(ms):
            out.append(m); out += G[g]
    out += proc_tile(3, 3) + proc_tile(3, 4)
    return out

def q_loads(srow):
    l = []
    for n in range(NT):
        pre = [S("s_add_u32", sT0, srow, n * 4096)]
        for ks in range(4):
            l.append((pre, bload(Q(n, ks), f"v{vQO}", sQ, sT0, ks * 64, mod=MODS[OPT["q"]]))); pre = []
    return l

def drain_block():
    out = vreads(aV, 0, 1, True)
    out += [smf(n, 1) for n in range(NT)]
    out.append(wait(need=regs("a", aV, 16)))
    ql = q_loads(sROWN)
    mem = [([S("s_bitset1_b32", "m0", 16), nop(1)] if i == 0 else [], d) for i, d in enumerate(dma_batch("V"))]
    mem += [([S("s_add_u32", sOFF, sOFF, 16384), S("s_and_b32", "m0", sOFF, "0xffff"), nop(1)] if i == 0 else [], d) for i, d in enumerate(dma_batch("K"))]
    mem = ql + mem
    for q in range(4):
        buf = aV if q % 2 == 0 else aX
        nbuf = aX if q % 2 == 0 else aV
        ms = pv_group(buf, q, 1)
        G = {g: [] for g in range(20)}
        if q < 3:
            for g, d in enumerate(vreads(nbuf, q + 1, 1, False)): G[g].append(d)
            G[19].append(wait(need=regs("a", nbuf, 16)))
        else:
            for dt in range(8): G[dt].append(V("v_xor_b32", f"v{vVA+dt}", "0x8000", f"v{vVA+dt}"))
        for g in range(8, 19):
            if mem:
                pre, d = mem.pop(0); G[g] += pre + [d]
        for g, m in enumerate(ms):
            out.append(m); out += G[g]
    assert not mem
    return out

def epilogue():
    out = [S("s_mov_b64", sBAD, 0)]
    for n in range(NT):
        l0, l1 = f"v{vT}", f"v{vT+1}"
        out += [V("v_accvgpr_read_b32", l0, f"a{aL+4*n}"), V("v_accvgpr_read_b32", l1, f"a{aL+4*n+1}"),
                S("s_add_u32", sT0, sROW, n * 4096),
                V("v_add_f32", l0, l0, l1), V("v_cmp_nge_f32", "vcc", sTHR, l0), V("v_rcp_f32", l1, l0),
                S("s_or_b64", sBAD, sBAD, "vcc")]
        if n == 4: out.append(wait(vm=56))
        for D in range(4):
            tb = vT + 4 + (D % 2) * 12
            for r in range(8): out.append(V("v_accvgpr_read_b32", f"v{tb+r}", f"a{aO+32*n+8*D+r}"))
            for r in range(8): out.append(V("v_mul_f32", f"v{tb+r}", f"v{tb+r}", l1))
            for r in range(4): out.append(V("v_cvt_pk_bf16_f32", f"v{tb+8+r}", f"v{tb+2*r}", f"v{tb+2*r+1}"))
            out += [swap("v_permlane16_swap_b32", f"v{tb+8}", f"v{tb+10}"), swap("v_permlane16_swap_b32", f"v{tb+9}", f"v{tb+11}")]
            out.append(bstore(("v", tb + 8, 4), f"v{vOO}", sO, sT0, D * 64, mod=MODS[OPT["o"]]))
    return out

def scale_q():
    out = []
    z = ("v", vT + 32, 4)
    out += [V("v_mov_b32", f"v{vT+32+i}", 0) for i in range(4)]
    zm = [mfma32(("a", 16 * i, 16), z, z, "0") for i in range(12)]
    for i in range(80):
        a, b = f"v{vT+2*(i%4)}", f"v{vT+2*(i%4)+1}"
        q = f"v{vQ+i}"
        out += [V("v_lshlrev_b32", a, 16, q), V("v_and_b32", b, sMASK, q), V("v_mul_f32", a, sC, a), V("v_mul_f32", b, sC, b), V("v_cvt_pk_bf16_f32", q, a, b)]
        if i % 4 == 1 and zm: out.append(zm.pop(0))
    return out

def setup():
    o = []
    o += [raw("s_cmp_ge_u32 s2, 256", w=["scc"]), br("s_cbranch_scc1", "Lend"),
          raw("s_load_dwordx4 s[40:43], s[0:1], 0"), raw("s_load_dwordx4 s[44:47], s[0:1], 16"),
          V("v_lshrrev_b32", "v1", 6, "v0"), V("v_and_b32", "v0", 63, "v0"), nop(1),
          V("v_readfirstlane_b32", sW, "v1"),
          S("s_and_b32", sT0, "s2", 7), S("s_lshr_b32", sT1, "s2", 4), S("s_lshl_b32", sT0, sT0, 4), S("s_add_u32", sT0, sT0, sT1),
          S("s_mul_i32", sT1, sT0, 2 * HEADQ), S("s_lshl_b32", sT0, sT0, 19),
          raw("s_waitcnt lgkmcnt(0)", k="salu")]
    for srd, p, off, sz in ((sQ, 40, sT1, 2 * HEADQ), (sK, 42, sT0, 2 * HEADK), (sV, 44, sT0, 2 * HEADK), (sO, 46, sT1, 2 * HEADQ)):
        o += [S("s_add_u32", f"s{srd}", f"s{p}", off), S("s_addc_u32", f"s{srd+1}", f"s{p+1}", 0), S("s_mov_b32", f"s{srd+2}", sz), S("s_mov_b32", f"s{srd+3}", "0x00020000")]
    m, g, t0, t1, t2 = "v1", f"v{vT}", f"v{vT+1}", f"v{vT+2}", f"v{vT+3}"
    o += [V("v_and_b32", m, 15, "v0"), V("v_lshrrev_b32", g, 4, "v0")]
    o += [V("v_lshlrev_b32", t0, 1, g), V("v_xor_b32", t0, t0, m), V("v_lshlrev_b32", t0, 4, t0), V("v_lshl_add_u32", f"v{vDA}", g, 8, t0),
          V("v_xor_b32", f"v{vDB}", 128, f"v{vDA}")]
    o += [S("s_lshl_b32", sOFF, sW, 12), S("s_mov_b32", "m0", sOFF), nop(1)]
    o += dma_batch("K")
    o += [V("v_lshlrev_b32", t0, 4, g), V("v_lshl_add_u32", f"v{vQO}", m, 8, t0)]
    o += [S("s_mul_i32", sT0, sW, 80 * 256), S("s_bitcmp1_b32", "s2", 3), S("s_cselect_b32", sROW, 288 * 256, 0), S("s_cselect_b32", sROWN, 0, 288 * 256),
          S("s_add_u32", sROW, sROW, sT0), S("s_add_u32", sROWN, sROWN, sT0), S("s_add_u32", sROWN, sROWN, HEADQ)]
    for pre, d in q_loads(sROW): o += pre + [d]
    for b in range(3):
        o += [S("s_bitset1_b32", "m0", 16), nop(1)] + dma_batch("V") + [S("s_add_u32", sOFF, sOFF, 16384), S("s_and_b32", "m0", sOFF, "0xffff"), nop(1)] + dma_batch("K")
    o += [V("v_and_b32", t0, 7, m), V("v_lshlrev_b32", t0, 1, t0), V("v_xor_b32", t0, t0, g), V("v_lshlrev_b32", t0, 4, t0), V("v_lshl_add_u32", f"v{vKA}", m, 8, t0)]
    o += [V("v_xor_b32", f"v{vKA+ks}", 64 * ks, f"v{vKA}") for ks in range(1, 4)]
    o += [V("v_lshrrev_b32", t0, 2, "v0"), V("v_and_b32", t1, 7, t0), V("v_lshlrev_b32", t1, 5, t1), V("v_and_b32", t2, 3, "v0"), V("v_lshlrev_b32", t2, 3, t2),
          V("v_xor_b32", t1, t1, t2), V("v_lshl_add_u32", t1, t0, 8, t1), V("v_add_u32", f"v{vVA}", "0x10000", t1)]
    o += [V("v_xor_b32", f"v{vVA+dt}", 32 * dt, f"v{vVA}") for dt in range(1, 8)]
    o += [V("v_and_b32", t0, 1, g), V("v_lshlrev_b32", t0, 5, t0), V("v_lshrrev_b32", t1, 1, g), V("v_lshl_add_u32", t0, t1, 4, t0), V("v_lshl_add_u32", f"v{vOO}", m, 8, t0)]
    o += [V("v_and_b32", t0, 2, m), V("v_cmp_eq_u32", "vcc", 0, t0), V("v_mov_b32", t1, "0x3f803f80"), V("v_cndmask_b32", t1, 0, t1, "vcc")]
    o += [V("v_accvgpr_write_b32", f"a{aONE+i}", t1) for i in range(4)]
    o += [V("v_and_b32", t0, 1, m), V("v_cmp_eq_u32", "vcc", 1, t0), V("v_mov_b32", t1, "0x44444444"), V("v_mov_b32", t2, "0xeeeeeeee"), V("v_cndmask_b32", f"v{vIDX}", t1, t2, "vcc")]
    o += [S("s_mov_b32", sC, hex(CSCALE)), S("s_mov_b32", sMASK, "0xffff0000"), S("s_mov_b32", sTHR, "0x53800000"), S("s_mov_b32", sPASS, 0), S("s_mov_b32", sBADP, 0)]
    o += [wait(vm=44), bar()]
    o += [kread(aK, ks, 0, 0, ks == 0) for ks in range(4)]
    o += [wait(need=regs("v", vQ, 80))]
    return o

def stamp():
    if not OPT["stamps"]: return []
    return [raw("s_memtime s[62:63]"), raw("s_memrealtime s[64:65]"), raw("s_waitcnt lgkmcnt(0)"),
            raw("s_mov_b32 s61, m0"), raw("s_mov_b32 m0, s60"), raw("s_nop 0"), raw("v_writelane_b32 v219, s62, m0"), raw("s_add_u32 m0, m0, 1"), raw("s_nop 0"), raw("v_writelane_b32 v219, s64, m0"),
            raw("s_add_u32 s60, s60, 2"), raw("s_mov_b32 m0, s61"), raw("s_nop 0")]
def probe():
    i, j, k = OPT["pi"], OPT["pj"], OPT["pk"]
    o = [raw("s_waitcnt vmcnt(0)")] + stamp()
    if not OPT["pall"]: o += [raw("s_cmp_lg_u32 s2, 100"), raw("s_cbranch_scc1 Lend")]
    o += [raw(f"v_readlane_b32 s62, v219, {2*i+k}"), raw(f"v_readlane_b32 s63, v219, {2*j+k}"), raw("s_nop 3"), raw("s_sub_u32 s66, s63, s62")]
    o += [raw("s_mul_i32 s66, s66, 10")] if k else [raw("s_lshr_b32 s66, s66, 1")]
    o += [raw("s_min_u32 s66, s66, 200000"), raw("s_memrealtime s[62:63]"), raw("s_waitcnt lgkmcnt(0)")]
    if OPT["pfix"]: o += [raw(f"s_mov_b32 s66, {OPT['pfix']}"), raw("v_readlane_b32 s62, v219, 1"), raw("s_nop 3")]
    o += [label("Lspin"), raw("s_memrealtime s[64:65]"), raw("s_waitcnt lgkmcnt(0)"),
          raw("s_sub_u32 s67, s64, s62"), raw("s_cmp_lt_u32 s67, s66"), raw("s_cbranch_scc1 Lspin")]
    return o
def stamp_out():
    if not OPT["stamps"]: return []
    if OPT["pi"] >= 0: return probe()
    return [raw("s_waitcnt vmcnt(0)")] + stamp() + [raw("; STAMPS"), raw("s_load_dwordx2 s[40:41], s[0:1], 40"), raw("s_lshr_b32 s60, s60, 1"), raw("v_writelane_b32 v219, s60, 63"),
            raw("s_lshl_b32 s60, s2, 2"), raw(f"s_add_u32 s60, s60, {sW}"), raw("s_lshl_b32 s60, s60, 8"), raw("v_lshlrev_b32 v0, 2, v0"),
            raw("s_waitcnt lgkmcnt(0)"), raw("s_mov_b32 s42, 0x100000"), raw("s_mov_b32 s43, 0x00020000"), raw("buffer_store_dword v219, v0, s[40:43], s60 offen"), raw("s_waitcnt vmcnt(0)")]
def build():
    seg = {}
    su = setup()
    seg["setup"] = su[:2] + ([raw("s_mov_b32 s60, 0"), raw("v_mov_b32 v219, 0")] if OPT["stamps"] else []) + stamp() + su[2:]
    seg["pass"] = [label("Lpass")] + stamp() + scale_q() + stamp() + fill_block() + stamp() + [S("s_mov_b32", sCNT, -8)]
    seg["even"] = [label("Lloop")] + steady_block(0, [(38, S("s_add_u32", sCNT, sCNT, 1)), (40, br("s_cbranch_scc1", "Ldrain"))])
    seg["odd"] = steady_block(1, [(40, br("s_branch", "Lloop"))])
    seg["drain"] = [label("Ldrain")] + stamp() + drain_block() + stamp() + epilogue() + stamp()
    seg["next"] = [S("s_add_u32", sPASS, sPASS, 1), S("s_mov_b32", sROW, sROWN), S("s_mov_b32", sROWN, 2 * HEADQ), wait(need=regs("v", vQ, 80)),
                   S("s_cmp_lt_u32", sPASS, 2), br("s_cbranch_scc1", "Lpass")]
    seg["end"] = stamp_out() + [label("Lend"), raw("s_endpgm")]
    tr = list(seg["setup"])
    for p in range(2):
        tr += seg["pass"]
        for it in range(8):
            tr += seg["even"]
            if it < 7: tr += seg["odd"]
        tr += seg["drain"] + seg["next"]
    resolve_waits(tr)
    while fix_hazards(tr, verbose=False): pass
    e = verify(tr)
    assert e == 0, e
    body = ""
    for k in ("setup", "pass", "even", "odd", "drain", "next", "end"):
        if k == "even": body += ".p2align 6\n"
        body += "".join(i.text() for i in seg[k])
    return body

HEAD = f"""; flash-attention forward, B8 H32 Sq608 Sk1024 D128 bf16 (generated by a scheduling script)
; @launch grid=(256,1,1) block=(256,1,1) lds=163840
.amdgcn_target "amdgcn-amd-amdhsa--gfx950"
.text
.globl {NAME}_kernel
.p2align 8
.type {NAME}_kernel,@function
{NAME}_kernel:
"""
TAIL = f""".section .rodata,"a"
.p2align 6
.amdhsa_kernel {NAME}_kernel
  .amdhsa_next_free_vgpr 512
  .amdhsa_next_free_sgpr 102
  .amdhsa_accum_offset 256
  .amdhsa_group_segment_fixed_size 0
  .amdhsa_kernarg_size 48
  .amdhsa_user_sgpr_count 2
  .amdhsa_user_sgpr_kernarg_segment_ptr 1
  .amdhsa_system_sgpr_workgroup_id_x 1
  .amdhsa_float_denorm_mode_32 3
.end_amdhsa_kernel
"""
if __name__ == "__main__":
    open(sys.argv[1], "w").write(HEAD + build() + TAIL)
```

```python
import sys, struct, math
from asmir import *

NAME = "standalone__mha_softmax__near_ridge"
OPT = dict(unroll=0, pf=0, pfix=0, pi=-1, pj=0, pk=1, pall=0, stamps=0, kv=0, q=0, o=0)
MODS = ["", " nt", " sc1", " sc1 nt", " sc0 sc1", " sc0 sc1 nt", " sc0", " sc0 nt"]
for a in sys.argv[2:]:
    k, v = a.split("="); OPT[k] = int(v)
NT = 5
vKA = 2
vVA = 6
vDA, vDB = 14, 15
vS = 16
vNM = 36
vQ = 56
vP = 136
vIDX = 216
vQO = 217
vOO = 218
vT = 220
aO = 0; aL = 160; aV = 180; aK = 196; aONE = 212; aX = 216
sQ, sK, sV, sO = 4, 8, 12, 16
sOFF = "s20"
sROW = "s24"
sROWN = "s25"
sC = "s26"; sMASK = "s27"; sCNT = "s28"; sPASS = "s29"; sBAD = ("s", 30, 2); sBADP = "s32"; sTHR = "s33"; sW = "s34"; sT0 = "s35"; sT1 = "s36"; sT2 = "s37"
HEADQ = 608 * 256; HEADK = 1024 * 256
CSCALE = struct.unpack("<I", struct.pack("<f", math.log2(math.e) / math.sqrt(128.0)))[0]

def Sx(n): return ("v", vS + 4 * n, 4)
def NM(n): return ("v", vNM + 4 * n, 4)
def Q(n, ks): return ("v", vQ + 16 * n + 4 * ks, 4)
def P(par, n, ks): return ("v", vP + 40 * par + 8 * n + 4 * ks, 4)
def O(n, dt): return ("a", aO + 32 * n + 4 * dt, 4)
def L(n): return ("a", aL + 4 * n, 4)
def KF(buf, ks): return ("a", buf + 4 * ks, 4)
def VF(buf, h, ks): return ("a", buf + 8 * h + 4 * ks, 4)

def kread(buf, ks, t, par, new=False):
    return ds_read("ds_read_b128", KF(buf, ks), f"v{vKA+ks}", par * 16384 + t * 4096, tag=("K", new, par))
def vread(buf, h, dt, ks, u, par, new=False):
    return ds_read("ds_read_b64_tr_b16", ("a", buf + 8 * h + 4 * ks + 2 * u, 2), f"v{vVA+dt}", par * 16384 + ks * 8192 + u * 4096, tag=("V", new, par))
def qk_chain(buf, n, czero=False):
    order = [0, 1, 2, 3] if n % 2 == 0 else [3, 2, 1, 0]
    out = []
    for i, ks in enumerate(order):
        c = Sx(n) if i else ("0" if czero else NM(n))
        out.append(mfma(Sx(n), KF(buf, ks), Q(n, ks), c))
    return out
def pv_group(buf, q, par):
    out = []
    for n in range(NT):
        for ks in ([0, 1] if n % 2 == 0 else [1, 0]):
            out.append(mfma(O(n, 2 * q), VF(buf, 0, ks), P(par, n, ks), O(n, 2 * q)))
    for n in reversed(range(NT)):
        for ks in ([1, 0] if n % 2 == 0 else [0, 1]):
            out.append(mfma(O(n, 2 * q + 1), VF(buf, 1, ks), P(par, n, ks), O(n, 2 * q + 1)))
    return out
def smf(n, par): return smfmac(L(n), ("a", aONE, 4), ("v", vP + 40 * par + 8 * n, 8), f"v{vIDX}")
def vexp(n, r): return V("v_exp_f32", f"v{vS+4*n+r}", f"v{vS+4*n+r}")
def vcvt(par, n, t, h):
    return V("v_cvt_pk_bf16_f32", f"v{vP+40*par+8*n+2*t+h}", f"v{vS+4*n+2*h}", f"v{vS+4*n+2*h+1}")
def vreads(buf, q, par, new):
    l = []
    for h, kss in ((0, (0, 1)), (1, (1, 0))):
        for ks in kss:
            for u in range(2):
                l.append(vread(buf, h, 2 * q + h, ks, u, par, new and not l))
    return l
def dma_batch(kind):
    srd = sK if kind == "K" else sV
    return [dma(f"v{vDA if i % 2 == 0 else vDB}", srd, sOFF, i * 1024, tag=kind, mod=MODS[OPT["kv"]]) for i in range(4)]

def weave(ms, gaps):
    out = []
    for g, m in enumerate(ms):
        out.append(m)
        l = gaps.get(g, [])
        key = lambda i: 0 if i.k in ("salu", "wait", "bar") else (1 if i.k in ("ds", "dsw", "vmem") else (3 if i.k == "br" else 2))
        out += sorted(l, key=key)
    assert max(gaps) < len(ms), (max(gaps), len(ms))
    return out

def steady_block(par, tail):
    out = []
    smfs = {0: [0], 1: [1], 2: [2, 3], 3: [4]}
    for q in range(4):
        ms = []
        for n in range(NT): ms += qk_chain(aK, n)
        ms += pv_group(aV, q, par)
        ms += [smf(n, par) for n in smfs[q]]
        G = {}
        def put(g, i): G.setdefault(g, []).append(i)
        for k in range(10):
            n, h = divmod(k, 2)
            put(7 + 3 * k, vexp(n, 2 * h)); put(8 + 3 * k, vexp(n, 2 * h + 1)); put(9 + 3 * k, vcvt(par ^ 1, n, q, h))
        vr = vreads(aV, q, par, q == 0)
        if q in (0, 1):
            vg = [0, 1, 2, 9, 12, 15, 18, 21]; kg = [24, 27, 30, 33]
            for g, d in zip([3, 4, 5, 6], dma_batch("V" if q == 0 else "K")): put(g, d)
            if q == 0: put(1, S("s_bitset1_b32", "m0", 16))
            else:
                put(0, S("s_add_u32", sOFF, sOFF, 16384)); put(1, S("s_and_b32", "m0", sOFF, "0xffff"))
        else:
            vg = [0, 1, 2, 3, 4, 5, 6, 9]; kg = [21, 24, 27, 30]
        for g, d in zip(vg, vr): put(g, d)
        if q < 3: kr = [kread(aK, ks, q + 1, par ^ 1) for ks in range(4)]
        else: kr = [kread(aK, ks, 0, par, ks == 0) for ks in range(4)]
        for g, d in zip(kg, kr): put(g, d)
        if q == 3:
            put(19, wait(need=regs("a", aV, 16), vm=16)); put(20, bar())
            if par == 0:
                for ks in range(4): put(ks, V("v_xor_b32", f"v{vKA+ks}", "0x8000", f"v{vKA+ks}"))
            else:
                for dt in range(8):
                    put([0, 1, 2, 3, 4, 5, 37, 37][dt], V("v_xor_b32", f"v{vVA+dt}", "0x8000", f"v{vVA+dt}"))
        else:
            put(19, wait(need=regs("a", aV, 8))); put(29, wait(need=regs("a", aV + 8, 8)))
        put(39, wait(need=regs("a", aK, 16)))
        if q == 3:
            for g, i in tail: put(g, i)
        out += weave(ms, G)
    return out

def proc_tile(t, n):
    l = []
    if t == 0:
        s = [f"v{vS+4*n+r}" for r in range(4)]
        a, b = f"v{vT+2*n}", f"v{vT+2*n+1}"
        l += [V("v_max3_f32", a, s[0], s[1], s[2]), V("v_max_f32", a, a, s[3]), V("v_mov_b32", b, a), nop(2),
              swap("v_permlane16_swap_b32", a, b), V("v_max_f32", a, a, b), V("v_mov_b32", b, a), nop(2),
              swap("v_permlane32_swap_b32", a, b)]
        l += [V("v_min_f32", f"v{vNM+4*n+r}", "-" + a, "-" + b) for r in range(4)]
        l += [V("v_add_f32", s[r], s[r], f"v{vNM+4*n}") for r in range(4)]
    l += [vexp(n, 0), vexp(n, 1), vexp(n, 2), vcvt(0, n, t, 0), vexp(n, 3), nop(1), vcvt(0, n, t, 1)]
    return l

def fill_block():
    out = [wait(need=regs("a", aK, 16))]
    for c in range(20):
        t, n = divmod(c, NT)
        buf = aK if t % 2 == 0 else aX
        nbuf = aX if t % 2 == 0 else aK
        ms = qk_chain(buf, n, czero=(t == 0))
        G = {0: [], 1: [], 2: [], 3: []}
        if t == 3 and n == 0:
            G[0].append(wait(vm=16)); G[1].append(bar())
        if n == 1:
            for ks in range(4):
                G[ks].append(kread(nbuf, ks, t + 1, 0) if t < 3 else kread(nbuf, ks, 0, 1, ks == 0))
        if n == 4: G[3].append(wait(need=regs("a", nbuf, 16)))
        if c >= 2:
            pr = proc_tile(*divmod(c - 2, NT))
            per = (len(pr) + 3) // 4
            for g in range(4): G[g] += pr[g * per:(g + 1) * per]
        for g, m in enumerate(ms):
            out.append(m); out += G[g]
    out += proc_tile(3, 3) + proc_tile(3, 4)
    return out

def q_loads(srow):
    l = []
    for n in range(NT):
        pre = [S("s_add_u32", sT0, srow, n * 4096)]
        for ks in range(4):
            l.append((pre, bload(Q(n, ks), f"v{vQO}", sQ, sT0, ks * 64, mod=MODS[OPT["q"]]))); pre = []
    return l

def drain_block():
    out = vreads(aV, 0, 1, True)
    out += [smf(n, 1) for n in range(NT)]
    out.append(wait(need=regs("a", aV, 16)))
    ql = q_loads(sROWN)
    mem = [([S("s_bitset1_b32", "m0", 16), nop(1)] if i == 0 else [], d) for i, d in enumerate(dma_batch("V"))]
    mem += [([S("s_add_u32", sOFF, sOFF, 16384), S("s_and_b32", "m0", sOFF, "0xffff"), nop(1)] if i == 0 else [], d) for i, d in enumerate(dma_batch("K"))]
    mem = ql + mem
    for q in range(4):
        buf = aV if q % 2 == 0 else aX
        nbuf = aX if q % 2 == 0 else aV
        ms = pv_group(buf, q, 1)
        G = {g: [] for g in range(20)}
        if q < 3:
            for g, d in enumerate(vreads(nbuf, q + 1, 1, False)): G[g].append(d)
            G[19].append(wait(need=regs("a", nbuf, 16)))
        else:
            for dt in range(8): G[dt].append(V("v_xor_b32", f"v{vVA+dt}", "0x8000", f"v{vVA+dt}"))
        for g in range(8, 19):
            if mem:
                pre, d = mem.pop(0); G[g] += pre + [d]
        for g, m in enumerate(ms):
            out.append(m); out += G[g]
    assert not mem
    return out

def epilogue():
    out = [S("s_mov_b64", sBAD, 0)]
    for n in range(NT):
        l0, l1 = f"v{vT}", f"v{vT+1}"
        out += [V("v_accvgpr_read_b32", l0, f"a{aL+4*n}"), V("v_accvgpr_read_b32", l1, f"a{aL+4*n+1}"),
                S("s_add_u32", sT0, sROW, n * 4096),
                V("v_add_f32", l0, l0, l1), V("v_cmp_nge_f32", "vcc", sTHR, l0), V("v_rcp_f32", l1, l0),
                S("s_or_b64", sBAD, sBAD, "vcc")]
        if n == 4: out.append(wait(vm=56))
        for D in range(4):
            tb = vT + 4 + (D % 2) * 12
            for r in range(8): out.append(V("v_accvgpr_read_b32", f"v{tb+r}", f"a{aO+32*n+8*D+r}"))
            for r in range(8): out.append(V("v_mul_f32", f"v{tb+r}", f"v{tb+r}", l1))
            for r in range(4): out.append(V("v_cvt_pk_bf16_f32", f"v{tb+8+r}", f"v{tb+2*r}", f"v{tb+2*r+1}"))
            out += [swap("v_permlane16_swap_b32", f"v{tb+8}", f"v{tb+10}"), swap("v_permlane16_swap_b32", f"v{tb+9}", f"v{tb+11}")]
            out.append(bstore(("v", tb + 8, 4), f"v{vOO}", sO, sT0, D * 64, mod=MODS[OPT["o"]]))
    return out

def scale_q():
    out = []
    z = ("v", vT + 32, 4)
    out += [V("v_mov_b32", f"v{vT+32+i}", 0) for i in range(4)]
    zm = [mfma32(("a", 16 * i, 16), z, z, "0") for i in range(12)]
    for i in range(80):
        a, b = f"v{vT+2*(i%4)}", f"v{vT+2*(i%4)+1}"
        q = f"v{vQ+i}"
        out += [V("v_lshlrev_b32", a, 16, q), V("v_and_b32", b, sMASK, q), V("v_mul_f32", a, sC, a), V("v_mul_f32", b, sC, b), V("v_cvt_pk_bf16_f32", q, a, b)]
        if i % 4 == 1 and zm: out.append(zm.pop(0))
    return out

def setup():
    o = []
    o += [raw("s_cmp_ge_u32 s2, 256", w=["scc"]), br("s_cbranch_scc1", "Lend"),
          raw("s_load_dwordx4 s[40:43], s[0:1], 0"), raw("s_load_dwordx4 s[44:47], s[0:1], 16"),
          V("v_lshrrev_b32", "v1", 6, "v0"), V("v_and_b32", "v0", 63, "v0"), nop(1),
          V("v_readfirstlane_b32", sW, "v1"),
          S("s_and_b32", sT0, "s2", 7), S("s_lshr_b32", sT1, "s2", 4), S("s_lshl_b32", sT0, sT0, 4), S("s_add_u32", sT0, sT0, sT1),
          S("s_mul_i32", sT1, sT0, 2 * HEADQ), S("s_lshl_b32", sT0, sT0, 19),
          raw("s_waitcnt lgkmcnt(0)", k="salu")]
    for srd, p, off, sz in ((sQ, 40, sT1, 2 * HEADQ), (sK, 42, sT0, 2 * HEADK), (sV, 44, sT0, 2 * HEADK), (sO, 46, sT1, 2 * HEADQ)):
        o += [S("s_add_u32", f"s{srd}", f"s{p}", off), S("s_addc_u32", f"s{srd+1}", f"s{p+1}", 0), S("s_mov_b32", f"s{srd+2}", sz), S("s_mov_b32", f"s{srd+3}", "0x00020000")]
    m, g, t0, t1, t2 = "v1", f"v{vT}", f"v{vT+1}", f"v{vT+2}", f"v{vT+3}"
    o += [V("v_and_b32", m, 15, "v0"), V("v_lshrrev_b32", g, 4, "v0")]
    o += [V("v_lshlrev_b32", t0, 1, g), V("v_xor_b32", t0, t0, m), V("v_lshlrev_b32", t0, 4, t0), V("v_lshl_add_u32", f"v{vDA}", g, 8, t0),
          V("v_xor_b32", f"v{vDB}", 128, f"v{vDA}")]
    o += [S("s_lshl_b32", sOFF, sW, 12), S("s_mov_b32", "m0", sOFF), nop(1)]
    o += dma_batch("K")
    if OPT["pf"]:
        o += [raw("s_getpc_b64 s[48:49]"), raw("s_and_b32 s48, s48, 0xffffff00"), raw(f"s_mov_b32 s50, Lend-{NAME}_kernel-1024"), raw("s_mov_b32 s51, 0x00020000"),
              raw("s_lshr_b32 s52, s2, 3"), raw("s_and_b32 s52, s52, 15"), raw("s_lshl_b32 s52, s52, 2"), raw(f"s_add_u32 s52, s52, {sW}"), raw("s_lshl_b32 s52, s52, 10"),
              V("v_lshlrev_b32", t1, 4, "v0"), bload(("v", 252, 4), t1, 48, "s52", 0)]
    o += [V("v_lshlrev_b32", t0, 4, g), V("v_lshl_add_u32", f"v{vQO}", m, 8, t0)]
    o += [S("s_mul_i32", sT0, sW, 80 * 256), S("s_bitcmp1_b32", "s2", 3), S("s_cselect_b32", sROW, 288 * 256, 0), S("s_cselect_b32", sROWN, 0, 288 * 256),
          S("s_add_u32", sROW, sROW, sT0), S("s_add_u32", sROWN, sROWN, sT0), S("s_add_u32", sROWN, sROWN, HEADQ)]
    for pre, d in q_loads(sROW): o += pre + [d]
    for b in range(3):
        o += [S("s_bitset1_b32", "m0", 16), nop(1)] + dma_batch("V") + [S("s_add_u32", sOFF, sOFF, 16384), S("s_and_b32", "m0", sOFF, "0xffff"), nop(1)] + dma_batch("K")
    o += [V("v_and_b32", t0, 7, m), V("v_lshlrev_b32", t0, 1, t0), V("v_xor_b32", t0, t0, g), V("v_lshlrev_b32", t0, 4, t0), V("v_lshl_add_u32", f"v{vKA}", m, 8, t0)]
    o += [V("v_xor_b32", f"v{vKA+ks}", 64 * ks, f"v{vKA}") for ks in range(1, 4)]
    o += [V("v_lshrrev_b32", t0, 2, "v0"), V("v_and_b32", t1, 7, t0), V("v_lshlrev_b32", t1, 5, t1), V("v_and_b32", t2, 3, "v0"), V("v_lshlrev_b32", t2, 3, t2),
          V("v_xor_b32", t1, t1, t2), V("v_lshl_add_u32", t1, t0, 8, t1), V("v_add_u32", f"v{vVA}", "0x10000", t1)]
    o += [V("v_xor_b32", f"v{vVA+dt}", 32 * dt, f"v{vVA}") for dt in range(1, 8)]
    o += [V("v_and_b32", t0, 1, g), V("v_lshlrev_b32", t0, 5, t0), V("v_lshrrev_b32", t1, 1, g), V("v_lshl_add_u32", t0, t1, 4, t0), V("v_lshl_add_u32", f"v{vOO}", m, 8, t0)]
    o += [V("v_and_b32", t0, 2, m), V("v_cmp_eq_u32", "vcc", 0, t0), V("v_mov_b32", t1, "0x3f803f80"), V("v_cndmask_b32", t1, 0, t1, "vcc")]
    o += [V("v_accvgpr_write_b32", f"a{aONE+i}", t1) for i in range(4)]
    o += [V("v_and_b32", t0, 1, m), V("v_cmp_eq_u32", "vcc", 1, t0), V("v_mov_b32", t1, "0x44444444"), V("v_mov_b32", t2, "0xeeeeeeee"), V("v_cndmask_b32", f"v{vIDX}", t1, t2, "vcc")]
    o += [S("s_mov_b32", sC, hex(CSCALE)), S("s_mov_b32", sMASK, "0xffff0000"), S("s_mov_b32", sTHR, "0x53800000"), S("s_mov_b32", sPASS, 0), S("s_mov_b32", sBADP, 0)]
    o += [wait(vm=44 + OPT["pf"]), bar()]
    o += [kread(aK, ks, 0, 0, ks == 0) for ks in range(4)]
    o += [wait(need=regs("v", vQ, 80))]
    return o

def stamp():
    if not OPT["stamps"]: return []
    return [raw("s_memtime s[62:63]"), raw("s_memrealtime s[64:65]"), raw("s_waitcnt lgkmcnt(0)"),
            raw("s_mov_b32 s61, m0"), raw("s_mov_b32 m0, s60"), raw("s_nop 0"), raw("v_writelane_b32 v219, s62, m0"), raw("s_add_u32 m0, m0, 1"), raw("s_nop 0"), raw("v_writelane_b32 v219, s64, m0"),
            raw("s_add_u32 s60, s60, 2"), raw("s_mov_b32 m0, s61"), raw("s_nop 0")]
def probe():
    i, j, k = OPT["pi"], OPT["pj"], OPT["pk"]
    o = [raw("s_waitcnt vmcnt(0)")] + stamp()
    if not OPT["pall"]: o += [raw("s_cmp_lg_u32 s2, 100"), raw("s_cbranch_scc1 Lend")]
    o += [raw(f"v_readlane_b32 s62, v219, {2*i+k}"), raw(f"v_readlane_b32 s63, v219, {2*j+k}"), raw("s_nop 3"), raw("s_sub_u32 s66, s63, s62")]
    o += [raw("s_mul_i32 s66, s66, 10")] if k else [raw("s_lshr_b32 s66, s66, 1")]
    o += [raw("s_min_u32 s66, s66, 200000"), raw("s_memrealtime s[62:63]"), raw("s_waitcnt lgkmcnt(0)")]
    if OPT["pfix"]: o += [raw(f"s_mov_b32 s66, {OPT['pfix']}"), raw("v_readlane_b32 s62, v219, 1"), raw("s_nop 3")]
    o += [label("Lspin"), raw("s_memrealtime s[64:65]"), raw("s_waitcnt lgkmcnt(0)"),
          raw("s_sub_u32 s67, s64, s62"), raw("s_cmp_lt_u32 s67, s66"), raw("s_cbranch_scc1 Lspin")]
    return o
def stamp_out():
    if not OPT["stamps"]: return []
    if OPT["pi"] >= 0: return probe()
    return [raw("s_waitcnt vmcnt(0)")] + stamp() + [raw("; STAMPS"), raw("s_load_dwordx2 s[40:41], s[0:1], 40"), raw("s_lshr_b32 s60, s60, 1"), raw("v_writelane_b32 v219, s60, 63"),
            raw("s_lshl_b32 s60, s2, 2"), raw(f"s_add_u32 s60, s60, {sW}"), raw("s_lshl_b32 s60, s60, 8"), raw("v_lshlrev_b32 v0, 2, v0"),
            raw("s_waitcnt lgkmcnt(0)"), raw("s_mov_b32 s42, 0x100000"), raw("s_mov_b32 s43, 0x00020000"), raw("buffer_store_dword v219, v0, s[40:43], s60 offen"), raw("s_waitcnt vmcnt(0)")]
def build():
    seg = {}
    su = setup()
    seg["setup"] = su[:2] + ([raw("s_mov_b32 s60, 0"), raw("v_mov_b32 v219, 0")] if OPT["stamps"] else []) + stamp() + su[2:]
    seg["pass"] = [label("Lpass")] + stamp() + scale_q() + stamp() + fill_block() + stamp() + [S("s_mov_b32", sCNT, -8)]
    seg["even"] = [label("Lloop")] + steady_block(0, [(38, S("s_add_u32", sCNT, sCNT, 1)), (40, br("s_cbranch_scc1", "Ldrain"))])
    seg["odd"] = steady_block(1, [(40, br("s_branch", "Lloop"))])
    if OPT["unroll"]:
        seg["even"] = []
        for j in range(15): seg["even"] += steady_block(j % 2, [])
        seg["odd"] = []
    seg["drain"] = [label("Ldrain")] + stamp() + drain_block() + stamp() + epilogue() + stamp()
    seg["next"] = [S("s_add_u32", sPASS, sPASS, 1), S("s_mov_b32", sROW, sROWN), S("s_mov_b32", sROWN, 2 * HEADQ), wait(need=regs("v", vQ, 80)),
                   S("s_cmp_lt_u32", sPASS, 2), br("s_cbranch_scc1", "Lpass")]
    seg["end"] = stamp_out() + [label("Lend"), raw("s_endpgm")]
    tr = list(seg["setup"])
    for p in range(2):
        tr += seg["pass"]
        for it in range(1 if OPT["unroll"] else 8):
            tr += seg["even"]
            if it < 7: tr += seg["odd"]
        tr += seg["drain"] + seg["next"]
    resolve_waits(tr)
    while fix_hazards(tr, verbose=False): pass
    e = verify(tr)
    assert e == 0, e
    body = ""
    for k in ("setup", "pass", "even", "odd", "drain", "next", "end"):
        if k == "even": body += ".p2align 6\n"
        body += "".join(i.text() for i in seg[k])
    return body

HEAD = f"""; flash-attention forward, B8 H32 Sq608 Sk1024 D128 bf16 (generated by a scheduling script)
; @launch grid=(256,1,1) block=(256,1,1) lds=163840
.amdgcn_target "amdgcn-amd-amdhsa--gfx950"
.text
.globl {NAME}_kernel
.p2align 8
.type {NAME}_kernel,@function
{NAME}_kernel:
"""
TAIL = f""".section .rodata,"a"
.p2align 6
.amdhsa_kernel {NAME}_kernel
  .amdhsa_next_free_vgpr 512
  .amdhsa_next_free_sgpr 102
  .amdhsa_accum_offset 256
  .amdhsa_group_segment_fixed_size 0
  .amdhsa_kernarg_size 48
  .amdhsa_user_sgpr_count 2
  .amdhsa_user_sgpr_kernarg_segment_ptr 1
  .amdhsa_system_sgpr_workgroup_id_x 1
  .amdhsa_float_denorm_mode_32 3
.end_amdhsa_kernel
"""
if __name__ == "__main__":
    open(sys.argv[1], "w").write(HEAD + build() + TAIL)
```

```python
import heapq
from collections import deque
from asmir import *

SCAL = ("salu", "wait", "bar", "nop", "br")
DS_LAT = 112
def cost(i):
    if i.k == "valu": return 4
    if i.k in ("trans", "perm"): return 8
    if i.k == "ds": return 4
    if i.k == "dsw": return 22 if "b128" in i.t else 12
    if i.k == "vmem": return 20 if "store" in i.t else 8
    return 4
def lat_cyc(p, c, raw):
    if p.k == "ds" and raw: return DS_LAT
    if ismf(p) and raw and not ismf(c): return 36
    return 0

class Node:
    __slots__ = ("i", "idx", "pred", "succ", "np", "dl", "rt", "t", "pos", "mi")

def schedule(prog, verbose=False, name=""):
    N = []
    lastw = {}; readers = {}
    lastm = None; lastv = {}; lastseq = None
    mi = 0
    for idx, i in enumerate(prog):
        n = Node(); n.i = i; n.idx = idx; n.pred = {}; n.succ = []; n.t = None; n.pos = None; n.mi = None
        R_ = i.r | i.xr; W_ = i.w | i.xw
        for r in R_:
            p = lastw.get(r)
            if p is not None: n.pred[p] = True
        for r in W_:
            p = lastw.get(r)
            if p is not None: n.pred[p] = True
            for p in readers.get(r, ()):
                if p is not n: n.pred.setdefault(p, p.i.k == "ds" and i.k == "wait")
        for r in R_: readers.setdefault(r, []).append(n)
        for r in W_: lastw[r] = n; readers[r] = []
        if ismf(i):
            if lastm is not None: n.pred.setdefault(lastm, False)
            lastm = n; n.mi = mi; i.mi = mi; mi += 1
        if i.k == "vmem":
            cl = "st" if "store" in i.t else ("dma" if i.t.endswith("lds") else "ld")
            if cl in lastv: n.pred.setdefault(lastv[cl], False)
            lastv[cl] = n
        n.pred.pop(n, None)
        for p in n.pred: p.succ.append(n)
        n.np = len(n.pred); n.rt = 0
        N.append(n)
    NM_ = mi
    for n in reversed(N):
        if n.mi is not None: n.dl = n.mi; continue
        d = NM_ + n.idx * 1e-6
        if n.i.dlm is not None: d = min(d, n.i.dlm.mi)
        for s in n.succ:
            l = cost(n.i) / 8.0 + lat_cyc(n.i, s.i, s.pred[n]) / 16.0
            if n.i.k in SCAL: l = 1.0
            d = min(d, s.dl - l)
        n.dl = d
    ms = [n for n in N if n.mi is not None]
    ready = [n for n in N if n.np == 0 and n.mi is None]
    out = []
    t = 0; pipe = 0; slot = False; last = None; cur = -1
    left = len(N); stall = 0
    def haz_ok(n):
        d = 0; k = len(out) - 1
        while k >= 0 and d < 12:
            p = out[k]
            if required(p.i, n.i) > d: return False
            d += states(p.i); k -= 1
        return True
    def eff_cost(n):
        i = n.i
        if i.k in SCAL: return 0 if slot else 4
        c = cost(i)
        if i.k in ("ds", "dsw", "vmem"):
            if last in VALUK: c += 8
            elif last in ("ds",) and i.k == "ds": c += 4
        return c
    def issue(n):
        nonlocal t, pipe, slot, last, cur, left, stall
        i = n.i
        if n.mi is not None:
            t0 = max(t, pipe, n.rt)
            if cur >= 0: stall += t0 - pipe
            n.t = t0; pipe = t0 + (32 if i.k == "mfma8" else 16); t = t0 + (12 if i.tag == "smf" else 8)
            slot = True; last = i.k; cur = n.mi
        else:
            ready.remove(n)
            c = eff_cost(n); t = max(t, n.rt); n.t = t; t += c
            if i.k == "bar": t += 56
            slot = False
            if i.k not in SCAL: last = i.k
        i.st = n.t
        out.append(n); left -= 1
        for s in n.succ:
            s.np -= 1
            s.rt = max(s.rt, n.t + lat_cyc(i, s.i, s.pred[n]))
            if s.np == 0 and s.mi is None: ready.append(s)
    while left:
        m = ms[cur + 1] if cur + 1 < NM_ else None
        m_ok = m is not None and m.np == 0
        m_rdy = m_ok and m.rt <= max(t, pipe) and haz_ok(m)
        budget = pipe - t
        cand = [n for n in ready if (n.i.nb is None or n.i.nb.mi <= cur or n.dl <= cur + 1) and n.rt <= t]
        cand.sort(key=lambda n: (n.dl, n.idx))
        cand = [n for n in cand[:24] if haz_ok(n)]
        pick = None
        atstart = last in ("mfma", "mfma8")
        if slot:
            sc = [n for n in cand if n.i.k in SCAL]
            if sc: pick = sc[0]
        if pick is None and cand:
            fit = [n for n in cand if eff_cost(n) <= budget]
            top = cand[0]
            mem = [n for n in cand if n.i.k in ("ds", "dsw", "vmem")]
            if atstart and mem and (mem[0] is top or top.i.k == "valu" or top.i.k in SCAL or (mem[0].dl <= cur + 2)):
                x = mem[0]
                if eff_cost(x) <= budget or cost(x.i) > 8 or x.dl <= cur + 2 or not m_rdy:
                    if not (top.i.k == "valu" and cost(x.i) > 4 and top.dl <= cur + 2 and x.dl > cur + 4): pick = x
            if pick is None and fit: pick = fit[0]
            if pick is None and top.dl <= cur + 1 and top.i.k not in ("ds", "dsw", "vmem"): pick = top
            if pick is None and not m_rdy: pick = top
        if pick is not None: issue(pick)
        elif m_rdy: issue(m)
        else:
            later = [n for n in ready if n.rt > t]
            if m_ok and m.rt <= max(t, pipe):
                issue(m)
            elif (m_ok or later) and t < max([n.rt for n in later] + [m.rt if m_ok else 0]):
                t += 4; slot = False
            else:
                r = sorted(ready, key=lambda n: (n.dl, n.idx))
                assert r, "deadlock"
                issue(r[0])
    if verbose: print(f"sched {name}: {len(N)} instrs, {NM_} mfma, est cycles {max(t,pipe)}, mfma stall {stall}")
    return [n.i for n in out]

def insert_waits(seq, lq=None, vq=None):
    lq = deque() if lq is None else lq; vq = deque() if vq is None else vq
    out = []
    def retire(w):
        if w.lg is not None:
            while len(lq) > w.lg: lq.popleft()
        if w.vm is not None:
            while len(vq) > w.vm: vq.popleft()
    for i in seq:
        if i.k == "wait":
            for q, a in ((lq, "lg"), (vq, "vm")):
                lastn = -1
                for n, (o, _) in enumerate(q):
                    if (o.w | o.wt) & i.need: lastn = n
                if lastn >= 0:
                    cnt = len(q) - 1 - lastn; cur = getattr(i, a)
                    setattr(i, a, cnt if cur is None else min(cur, cnt))
            retire(i); out.append(i); continue
        touch = i.r | i.w
        for q, a, mx in ((lq, "lg", 15), (vq, "vm", 63)):
            lastn = -1
            for n, (o, _) in enumerate(q):
                if o.w & touch: lastn = n
            isq = (i.k in ("ds", "dsw")) if a == "lg" else (i.k == "vmem")
            if lastn < 0 and isq and len(q) >= mx: lastn = 0
            if lastn < 0: continue
            opos = q[lastn][1]
            pos = len(out); k = len(out) - 1; tries = 0
            while k > opos and tries < 3:
                if ismf(out[k]):
                    tries += 1
                    nxt = out[k + 1] if k + 1 < len(out) else None
                    early_ok = tries == 1 or (a == "lg" and out[k].st - q[lastn][0].st >= 96)
                    if not early_ok: break
                    if nxt is None or nxt.k not in SCAL: pos = k + 1; break
                    if nxt.k == "wait" and not nxt.need: pos = -(k + 1); break
                if out[k].k in ("label", "br"): break
                k -= 1
            apos = abs(pos)
            tpos = out[apos - 1].st if apos > 0 and out[apos - 1].st is not None else None
            if a == "lg" and tpos is not None:
                for n in range(lastn + 1, len(q)):
                    if q[n][1] < apos and q[n][0].st is not None and tpos - q[n][0].st >= DS_LAT: lastn = n
            cnt = sum(1 for n in range(lastn + 1, len(q)) if q[n][1] < apos)
            if pos < 0:
                w = out[apos]; cur = getattr(w, a); setattr(w, a, cnt if cur is None else min(cur, cnt))
            else:
                w = wait(); setattr(w, a, cnt); w.st = tpos
                out.insert(apos, w)
                for qq in (lq, vq):
                    for n in range(len(qq)):
                        if qq[n][1] >= apos: qq[n] = (qq[n][0], qq[n][1] + 1)
            for _ in range(lastn + 1): q.popleft()
        if i.k in ("ds", "dsw"): lq.append((i, len(out)))
        elif i.k == "vmem": vq.append((i, len(out)))
        out.append(i)
    return out

def verify2(trace):
    lq = deque(); vq = deque(); errs = 0
    landed = {}; visible = {}; slotof = {}; readdone = {}; nbar = 0; privl = {}
    for i in trace:
        if i.k == "wait":
            if i.lg is not None:
                while len(lq) > i.lg:
                    o = lq.popleft()
                    if o.ring: readdone[o.ring] = nbar
            if i.vm is not None:
                while len(vq) > i.vm:
                    o = vq.popleft()
                    if o.ring: landed[o.ring] = landed.get(o.ring, 0) + 1
                    if o.priv: privl[o.priv] = privl.get(o.priv, 0) + 1
            continue
        if i.k == "bar":
            nbar += 1; visible.update(landed); continue
        for q in (lq, vq):
            for o in q:
                if o.w & (i.r | i.w): print(f"  ERR pending load [{o.t}] vs [{i.t}]"); errs += 1
        if i.k in ("ds", "dsw"):
            if i.ring:
                kind, b = i.ring
                if visible.get(i.ring, 0) < 4: print(f"  ERR RAW {i.ring} not visible at [{i.t}]"); errs += 1
                if slotof.get((kind, b % 4)) != b: print(f"  ERR slot overwritten {i.ring} at [{i.t}]"); errs += 1
            if i.priv and privl.get(i.priv, 0) < 4: print(f"  ERR priv RAW {i.priv}"); errs += 1
            lq.append(i)
            if len(lq) > 15: print("  ERR lgkm overflow"); errs += 1
        elif i.k == "vmem":
            if i.ring:
                kind, b = i.ring; old = (kind, b - 4)
                if b >= 4:
                    if any(o.ring == old for o in lq) or old not in readdone or readdone[old] >= nbar:
                        print(f"  ERR WAR DMA {i.ring}"); errs += 1
                if any(o.priv and o.priv[1] == (kind, b % 4) for o in lq): print(f"  ERR WAR priv {i.ring}"); errs += 1
                slotof[(kind, b % 4)] = b
            vq.append(i)
            if len(vq) > 63: print("  ERR vm overflow"); errs += 1
    return errs
```

```python
import sys, struct, math, re
from asmir import *
from sched import *

NAME = "standalone__mha_softmax__near_ridge"
OPT = dict(stamps=0, kv=1, kvy=1, q=1, o0=4, o1=4, ab=1, pf=1, e0=7, pk=1, pi=-1, pj=0, pk_=1, pall=0, verbose=0, compact=1, slow=1)
MODS = ["", " nt", " sc1", " sc1 nt", " sc0 sc1", " sc0 sc1 nt", " sc0", " sc0 nt"]
for a in sys.argv[2:]:
    k, v = a.split("="); assert k in OPT, k; OPT[k] = int(v)
vKA = 0; vVA = 4; vDA, vDB = 12, 13; vIDX = 14; vG = 15
vS = 16; vNM = 36; vQA = 56; vP = 136; vQB = 216; vT = 252
aO = 0; aL = 160; aONE = 172; aV = 180; aK = 196; aQB = 212
sQ, sK, sV, sO = 4, 8, 12, 16
sOFF = "s20"; sW4K = "s21"; sC = "s22"; sC2 = "s23"
sROW = [["s24", "s25"], ["s26", "s27"]]
sMASK = "s28"; sTHR = "s29"; sBAD = [("s", 30, 2), ("s", 32, 2)]; sFK = "s34"; sFV = "s35"; sD0 = "s3"; sD1 = "s2"
sTMP = [f"s{i}" for i in range(36, 44)]
HEADQ = 608 * 256; HEADK = 1024 * 256
CSCALE = struct.unpack("<I", struct.pack("<f", math.log2(math.e) / math.sqrt(128.0)))[0]
X0 = 131072; X1 = 147456
_st = [0]
def stmp():
    _st[0] = (_st[0] + 1) % len(sTMP); return sTMP[_st[0]]
def SS(op, d, *src):
    i = S(op, d, *src); i.w.discard("scc"); return i

def Sx(n): return ("v", vS + 4 * n, 4)
def NM(n): return ("v", vNM + 4 * n, 4)
def Q(p, n, ks):
    f = 4 * n + ks
    if p == 0: return ("v", vQA + 4 * f, 4)
    return ("a", aQB + 4 * f, 4) if f < 11 else ("v", vQB + 4 * (f - 11), 4)
def P(par, n, ks): return ("v", vP + 40 * par + 8 * n + 4 * ks, 4)
def O(n, dt): return ("a", aO + 32 * n + 4 * dt, 4)
def L(n): return ("a", aL + 4 * (n // 2), 4)
def Lr(n): return aL + 4 * (n // 2) + 2 * (n % 2)
def ONE(n): return ("a", aONE + 4 * (n % 2), 4)

class Role:
    def __init__(s, types, tag):
        s.half = [t == "B" for t in types]; s.tag = tag
        s.kst = [[s.half[0], 0] for _ in range(4)]; s.vst = [[s.half[0], 0] for _ in range(8)]
        s.prog = []; s.hints = []; s.nstamp = 0
    def add(s, *l):
        for x in l:
            if isinstance(x, list): s.prog += x
            else: s.prog.append(x)
    def hint(s, i, m, off, attr="nb"): s.hints.append((i, m, off, attr)); return i
    def addr(s, st, reg, half, h, sflip):
        o = []
        if st[0] != half:
            if st[1]: o.append(V("v_xor_b32", reg, "0x2000", reg)); st[1] = 0
            o.append(V("v_xor_b32", reg, sflip, reg)); st[0] = half
        if not half: return o, h * 8192
        if st[1] != h: o.append(V("v_xor_b32", reg, "0x2000", reg)); st[1] = h
        return o, 0
    def kread(s, dst, b, t, ks):
        o, off = s.addr(s.kst[ks], f"v{vKA+ks}", s.half[b // 16], t >> 1, sFK)
        i = ds_read("ds_read_b128", dst, f"v{vKA+ks}", (b % 4) * 16384 + off + (t & 1) * 4096)
        i.ring = ("K", b); i.xr = {f"cK{b}", f"oK{b}"}; i.wt = {f"rK{b}"}
        return o + [i]
    def vread(s, dst, b, dt, ks):
        o, off = s.addr(s.vst[dt], f"v{vVA+dt}", s.half[b // 16], ks, sFV)
        for u in range(2):
            i = ds_read("ds_read_b64_tr_b16", (dst[0], dst[1] + 2 * u, 2), f"v{vVA+dt}", (b % 4) * 16384 + off + u * 4096)
            i.ring = ("V", b); i.xr = {f"cV{b}", f"oV{b}"}; i.wt = {f"rV{b}"}
            o.append(i)
        return o
    def vks(s, b, dt, pref):
        if s.half[b // 16] and s.vst[dt][0]: return [s.vst[dt][1], s.vst[dt][1] ^ 1]
        return pref
    def dma(s, kind, b, gate=None):
        o = []
        if kind == "K" and b > 0: o.append(SS("s_add_u32", sOFF, sOFF, 16384))
        o.append(SS("s_add_u32", "m0", sW4K, (b % 4) * 16384 + (65536 if kind == "V" else 0)))
        for k in range(4):
            i = dma(f"v{vDA if k % 2 == 0 else vDB}", sK if kind == "K" else sV, sOFF, k * 1024, mod=MODS[OPT["kvy" if s.tag == "Y" and b >= 3 else "kv"]])
            i.ring = (kind, b); i.wt = {f"d{kind}{b}"}; i.xw = {f"i{kind}{b}"}
            if gate: i.xr = {gate}
            o.append(i)
        return o
    def barrier(s, close, opn, gate=None, extra_need=(), extra_w=(), extra_r=()):
        w = wait(need=[f"r{x}" for x in close] + [f"d{x}" for x in opn] + list(extra_need))
        w.xw = {f"c{x}" for x in close} | {"barseq"}; w.xr = {f"i{x}" for x in opn} | set(extra_r)
        b = bar(); b.xr = {"barseq"}; b.xw = {f"o{x}" for x in opn} | ({gate} if gate else set()) | set(extra_w)
        return [w, b]
    def chain(s, p, n, sq, kf, czero):
        order = [0, 1, 2, 3] if n % 2 == 0 else [3, 2, 1, 0]
        return [mfma(sq, kf(ks), Q(p, n, ks), sq if k else ("0" if czero else NM(n))) for k, ks in enumerate(order)]
    def rowmax(s, n, sq, a, b):
        x = [f"v{sq[1]+r}" for r in range(4)]
        l = [V("v_max3_f32", a, x[0], x[1], x[2]), V("v_max_f32", a, a, x[3]), V("v_mov_b32", b, a),
             swap("v_permlane16_swap_b32", a, b), V("v_max_f32", a, a, b), V("v_mov_b32", b, a), swap("v_permlane32_swap_b32", a, b)]
        l += [V("v_min_f32", f"v{vNM+4*n+r}", "-" + a, "-" + b) for r in range(4)]
        l += [V("v_add_f32", x[r], x[r], f"v{vNM+4*n}") for r in range(4)]
        return l
    def expcvt(s, par, n, t, sq):
        l = []
        for h in range(2):
            x0, x1 = f"v{sq[1]+2*h}", f"v{sq[1]+2*h+1}"
            l += [V("v_exp_f32", x0, x0), V("v_exp_f32", x1, x1), V("v_cvt_pk_bf16_f32", f"v{vP+40*par+8*n+2*t+h}", x0, x1)]
        return l
    def smf(s, b, n):
        if s.half[b // 16] and n == 4: return mfma(L(4), ONE(4), P(b % 2, 4, 0), L(4))
        return smfmac(L(n), ONE(n), ("v", vP + 40 * (b % 2) + 8 * n, 8), f"v{vIDX}")
    def scale(s, src, dst, ta, pk=False):
        a, b = f"v{ta}", f"v{ta+1}"
        l = [V("v_lshlrev_b32", a, 16, src), V("v_and_b32", b, sMASK, src)]
        if pk: l += [V("v_pk_mul_f32", ("v", ta, 2), ("v", ta, 2), ("s", 22, 2))]
        else: l += [V("v_mul_f32", a, sC, a), V("v_mul_f32", b, sC, b)]
        if dst[0] == "v": return l + [V("v_cvt_pk_bf16_f32", dst, a, b)]
        return l + [V("v_cvt_pk_bf16_f32", a, a, b), V("v_accvgpr_write_b32", dst, a)]
    def rowoff(s, p, n, extra=None):
        t = stmp()
        i = SS("s_add_u32", t, sROW[p][0], n * 4096) if n < 4 else SS("s_mov_b32", t, sROW[p][1])
        if extra is None: return t, [i]
        return t, [i, SS("s_add_u32", t, t, extra)]
    def stamp(s, m=None, off=0):
        if not OPT["stamps"]: return
        k = s.nstamp; s.nstamp += 1; assert k < 14
        a = raw(f"s_memtime s[{44+4*k}:{45+4*k}]"); b = raw(f"s_memrealtime s[{46+4*k}:{47+4*k}]")
        for i in (a, b):
            if m is not None: s.hint(i, m, off); s.hint(i, m, off + 2, "dlm")
            else: i.xw = {"seq"}
        s.add(a, b)

    def start(s):
        half = s.half[0]
        qreg = [(98304, ("V", 2)), (49152, ("K", 3)), (114688, ("V", 3)), (X0, None), (X1, None)]
        def qdma(n):
            t, o = s.rowoff(0, n)
            o.append(SS("s_add_u32", "m0", sW4K, qreg[n][0]))
            for k in range(4):
                i = dma(f"v{vDA if k % 2 == 0 else vDB}", sQ, t, k * 1024, mod=MODS[OPT["q"]])
                i.wt = {f"dQ{n}"}; i.priv = (n, qreg[n][1]); o.append(i)
            return o
        def seq(l):
            for i in l:
                if i.k in ("vmem", "wait", "bar"): i.xw = i.xw | {"seq"}
            return l
        TA = vP + 40
        s.pre = qdma(0) + qdma(1)
        s.TA = TA
        s.add(seq(qdma(2)))
        s.add(seq(s.barrier([], ["K0"])))
        KF0 = lambda t: (lambda ks: ("a", 16 * t + 4 * ks, 4))
        for t in range(4):
            for ks in range(4): s.add(s.kread(KF0(t)(ks), 0, t, ks))
        nxt = [qdma(3), qdma(4), s.dma("V", 0), s.dma("K", 1), s.dma("V", 1) + s.dma("K", 2)]
        sc = 0
        for n in range(5):
            s.add(seq(nxt[n]))
            w = wait(need=[f"dQ{n}"]); w.xw = {"seq", f"oQ{n}"}; s.add(w)
            if n == 0 or n == 4: s.stamp()
            base = TA + (4 if n >= 2 else 0); off = qreg[n][0] - (114688 if n >= 2 else 49152)
            for ks in range(4):
                i = ds_read("ds_read_b128", Q(0, n, ks), f"v{base+ks}", off); i.xr = {f"oQ{n}"}; i.priv = (n, qreg[n][1]); i.wt = {f"rQ{n}"}; s.add(i)
            for r in range(16):
                q = f"v{vQA+16*n+r}"; s.add(s.scale(q, q, TA + 8 + 2 * (r % 4), pk=OPT["pk"]))
            for t in range(2 if half and n == 4 else 4):
                sq = Sx(sc % 5); sc += 1
                ch = s.chain(0, n, sq, KF0(t), t == 0); s.add(ch)
                if t == 0: s.add(s.rowmax(n, sq, f"v{TA+16}", f"v{TA+17}"))
                s.add(s.expcvt(0, n, t, sq))
            ch[-1].xw = {"seq"}
        s.add([V("v_accvgpr_write_b32", f"a{aL+r}", 0) for r in range(12)])
        d = s.dma("V", 2) + s.dma("K", 3)
        s.add(seq(d))
        s.add(seq(s.barrier(["K0"], ["K1", "V0"], gate="D-1")))
        for ks in range(4): s.add(s.kread(("a", aK + 4 * ks, 4), 1, 0, ks))

    def ep_l(s, p, n, rl, tmp):
        a, b = f"v{rl}", f"v{tmp}"
        o = [V("v_accvgpr_read_b32", a, f"a{Lr(n)}")]
        if not (s.half[p] and n == 4): o += [V("v_accvgpr_read_b32", b, f"a{Lr(n)+1}"), V("v_add_f32", a, a, b)]
        o += [V("v_cmp_nge_f32", "vcc", sTHR, a), SS("s_or_b64", sBAD[p], sBAD[p], "vcc")]
        if not (s.half[p] and n == 4): o += [V("v_rcp_f32", a, a)]
        return o
    def ep_store(s, p, n, D, tb, pkq, voo, mod):
        o = [V("v_cvt_pk_bf16_f32", f"v{pkq+r}", f"v{tb+2*r}", f"v{tb+2*r+1}") for r in range(4)]
        o += [swap("v_permlane16_swap_b32", f"v{pkq}", f"v{pkq+2}"), swap("v_permlane16_swap_b32", f"v{pkq+1}", f"v{pkq+3}")]
        if s.half[p]:
            t, oo = s.rowoff(p, n, sD0 if D < 2 else sD1); off = (D & 1) * 64
        else:
            t, oo = s.rowoff(p, n); off = D * 64
        return o + oo + [bstore(("v", pkq, 4), f"v{voo}", sO, t, off, mod=MODS[mod])]
    def voo_calc(s, voo, t):
        return [V("v_lshrrev_b32", f"v{t}", 1, f"v{vG}"), V("v_xor_b32", f"v{t}", f"v{t}", f"v{vG}"), V("v_and_b32", f"v{t}", 16, f"v{t}"),
                V("v_mul_u32_u24", f"v{t}", 3, f"v{t}"), V("v_xor_b32", f"v{voo}", f"v{t}", f"v{vG}")]
    def lane16(s, d):
        return [V("v_mbcnt_lo_u32_b32", d, -1, 0), V("v_mbcnt_hi_u32_b32", d, -1, d), V("v_lshlrev_b32", d, 4, d)]
    def cmb_pre(s, T, base):
        o = s.lane16(f"v{T}") + [V("v_add_u32", f"v{T}", sW4K, f"v{T}"), V("v_add_u32", f"v{T}", base, f"v{T}"), V("v_xor_b32", f"v{T+1}", "0x1000", f"v{T}"),
             V("v_mov_b32", f"v{T+2}", f"v{vNM+16}")]
        return o
    def cmb_give(s, p, T):
        o = s.ep_l(p, 4, T + 3, T + 4)
        w = [ds_write("ds_write_b64", f"v{T}", ("v", T + 2, 2), 16384)] + [ds_write("ds_write_b128", f"v{T}", O(4, dt), dt * 1024) for dt in range(4)]
        for i in w: i.wt = {"cw"}; i.xw = {"cgive"}
        return o + w
    def cmb_take(s, p, T, U, tb, pkq, voo, mod):
        r = [ds_read("ds_read_b64", ("v", T + 4, 2), f"v{T+1}", 16384)] + [ds_read("ds_read_b128", ("v", U + 4 * k, 4), f"v{T+1}", k * 1024) for k in range(4)]
        for i in r: i.xr = {"cmb"}
        nm, l, nm2, l2, x, y = [f"v{T+k}" for k in (2, 3, 4, 5, 6, 7)]
        o = r + [V("v_cmp_nge_f32", "vcc", sTHR, l2), SS("s_or_b64", sBAD[p], sBAD[p], "vcc"),
                 V("v_min_f32", x, nm, nm2), V("v_sub_f32", nm, x, nm), V("v_sub_f32", nm2, x, nm2), V("v_exp_f32", nm, nm), V("v_exp_f32", nm2, nm2),
                 V("v_mul_f32", x, l, nm), V("v_fma_f32", x, l2, nm2, x), V("v_rcp_f32", x, x), V("v_mul_f32", nm, nm, x), V("v_mul_f32", nm2, nm2, x)]
        for D in (2, 3):
            t = tb[D - 2]
            for r_ in range(8):
                o += [V("v_accvgpr_read_b32", f"v{t+r_}", f"a{aO+128+8*D+r_}")]
            for r_ in range(8):
                o += [V("v_mul_f32", f"v{t+r_}", f"v{t+r_}", nm), V("v_fma_f32", f"v{t+r_}", f"v{U+8*(D-2)+r_}", nm2, f"v{t+r_}")]
            o += s.ep_store(p, 4, D, t, pkq[D - 2], voo, mod)
        return o

    def block(s, j):
        b = j + 1; p = b // 16; pv = j // 16
        hq, hv = s.half[p], s.half[pv]
        first = (j % 16 == 0); trans = (j == 15)
        smfs = {0: [0], 1: [1], 2: [2, 3], 3: [4]}
        if trans:
            E = vQA; RL = E; VOO = E + 5; MX = E + 6; TB = [E + 8, E + 16]; CT = E + 24; PK = [E + 4 * k for k in range(8 if hv else 6, 20)]
            if hv: PK = PK[4:]; CU = E + 32
            s.pki = 0
            s.add(s.voo_calc(VOO, MX))
            if hv: s.add(s.cmb_pre(CT, X0))
        for q in range(4):
            for h, pref in ((0, [0, 1]), (1, [0, 1] if hv else [1, 0])):
                for ks in s.vks(j, 2 * q + h, pref): s.add(s.vread(("a", aV + 8 * h + 4 * ks, 4), j, 2 * q + h, ks))
            nq = 4 if hq and q >= 2 else 5
            ch = []
            cz = (b % 16 == 0 and q == 0)
            for n in range(nq): ch += s.chain(p, n, Sx(n), lambda ks: ("a", aK + 4 * ks, 4), cz)
            s.add(ch); m0 = ch[0]
            if q == 0:
                s.bstart[j] = m0
                if j in s.stamp_at: s.stamp(m0)
                dl = []
                if j + 3 <= 31: dl += s.dma("V", j + 3, gate=f"D{j-1}")
                if j + 4 <= 31: dl += s.dma("K", j + 4, gate=f"D{j-1}")
                for k, i in enumerate([x for x in dl if x.k == "vmem"]): s.hint(i, m0, 30 + 2 * k, "dlm")
                s.add(dl)
            qlen = len(ch) + (18 if hv else 20) + 1
            k = 0
            for n in range(nq):
                if cz: s.add(s.rowmax(n, Sx(n), f"v{MX}", f"v{MX+1}"))
                l = s.expcvt(b % 2, n, q, Sx(n))
                for i in l:
                    if i.k == "trans": s.hint(i, m0, OPT["e0"] + (k * qlen) // (4 * nq)); k += 1
                s.add(l)
            if q == 3:
                opn = ([f"K{j+2}"] if j + 2 <= 31 else []) + [f"V{j+1}"]
                cm = trans and hv
                bl = s.barrier([f"K{b}", f"V{j}"], opn, gate=f"D{j}", extra_need=["cw"] if cm else [], extra_w=["cmb"] if cm else [], extra_r=["cgive"] if cm else [])
                s.hint(bl[0], m0, len(ch) - 3); s.add(bl)
            if q < 3:
                for ks in range(4): s.add(s.kread(("a", aK + 4 * ks, 4), b, q + 1, ks))
            elif b + 1 <= 31:
                for ks in range(4): s.add(s.kread(("a", aK + 4 * ks, 4), b + 1, 0, ks))
            if trans and q == 0:
                s.add([s.smf(j, n) for n in range(5)])
                for n in range(4 if hv else 5): s.add(s.ep_l(pv, n, RL + n, MX))
            for h in range(2):
                dt = 2 * q + h
                for n in (range(5) if h == 0 else reversed(range(5))):
                    kss = [0] if hv and n == 4 else ([0, 1] if (n + h) % 2 == 0 else [1, 0])
                    for k_, ks in enumerate(kss):
                        s.add(mfma(O(n, dt), ("a", aV + 8 * h + 4 * ks, 4), P(j % 2, n, ks), "0" if first and k_ == 0 else O(n, dt)))
            if not trans: s.add([s.smf(j, n) for n in smfs[q]])
            if trans:
                if hv and q == 1: s.add(s.cmb_give(pv, CT))
                if q == 1: s.add([V("v_accvgpr_write_b32", f"a{aL+r}", 0) for r in range(10)])
                for n in reversed(range(4 if hv else 5)):
                    tb = TB[s.pki % 2]; pkq = PK[s.pki % len(PK)]; s.pki += 1
                    s.add([V("v_accvgpr_read_b32", f"v{tb+r}", f"a{aO+32*n+8*q+r}") for r in range(8)])
                    s.add([V("v_mul_f32", f"v{tb+r}", f"v{tb+r}", f"v{RL+n}") for r in range(8)])
                    s.add(s.ep_store(pv, n, q, tb, pkq, VOO, OPT["o0"]))
                if hv and q == 3:
                    s.add(s.cmb_take(pv, CT, CU, TB, [PK[s.pki % len(PK)], PK[(s.pki + 1) % len(PK)]], VOO, OPT["o0"]))
            if q == 1 and j in s.stage: s.add(s.stage[j](m0))

    def plan_stage(s):
        s.stage = {}
        land = {}
        for f in range(20): land[f] = vQB + 4 * ((f if f < 9 else f - 2) % 9) if f < 11 else vQB + 4 * (f - 11)
        def loads(fs):
            def g(m):
                o = []
                for f in fs:
                    t, oo = s.rowoff(1, f // 4)
                    i = bload(("v", land[f], 4), f"v{vG}", sQ, t, (f % 4) * 64, mod=MODS[OPT["q"]])
                    s.hint(i, m, 0); s.hint(i, m, 60, "dlm"); o += oo + [i]
                return o
            return g
        def scales(fs):
            def g(m):
                o = []
                for f in fs:
                    d = Q(1, f // 4, f % 4)
                    for r in range(4):
                        l = s.scale(f"v{land[f]+r}", f"{d[0]}{d[1]+r}", vT + 2 * (r % 2))
                        s.hint(l[0], m, -40); s.hint(l[1], m, -40); o += l
                return o
            return g
        LD = {0: [7, 8, 0, 1], 1: [2, 3, 4, 5, 6], 4: [9, 10], 5: [11, 12], 6: [13, 14], 7: [15, 16], 8: [17], 9: [18, 19]}
        SC = {3: [7, 8], 4: [0, 1], 5: [2, 3], 6: [4, 5], 7: [6, 9], 8: [10, 11], 9: [12, 13], 10: [14, 15], 11: [16, 17], 12: [18, 19]}
        for j in range(14):
            fs = []
            if j in LD: fs.append(loads(LD[j]))
            if j in SC: fs.append(scales(SC[j]))
            if fs: s.stage[j] = (lambda fs: lambda m: sum((f(m) for f in fs), []))(fs)

    def tail(s):
        j = 31; hv = s.half[1]; par = 1
        VF = lambda dt, ks: ("v", vQA + 8 * dt + 4 * ks, 4)
        for dt in range(8):
            for ks in s.vks(j, dt, [0, 1]): s.add(s.vread(VF(dt, ks), j, dt, ks))
        E = vQA + 64
        WA = E; RA = E + 4; GA = E + 5; VOO = E + 7; RL = E + 8
        CT = vQB; CU = vQB + 8; TMP = vT
        F = vP
        TB = [F, F + 8]; PKD = [F + 16 + 2 * k for k in range(4)]; RB = [F + 24 + 4 * k for k in range(4)]
        t0, t1 = f"v{TMP}", f"v{TMP+1}"
        a = [V("v_lshrrev_b32", t0, 4, f"v{vG}"), V("v_and_b32", t0, "0x70", t0), V("v_lshrrev_b32", t1, 1, f"v{vG}"), V("v_and_b32", t1, 24, t1),
             V("v_xor_b32", t0, t0, t1), V("v_and_b32", t1, "0xf00", f"v{vG}"), V("v_add3_u32", t0, t0, t1, sW4K), V("v_add_u32", f"v{WA}", X0, t0)]
        a += [V("v_xor_b32", f"v{WA+k}", 32 * k, f"v{WA}") for k in range(1, 4)]
        a += s.lane16(t0) + [V("v_add_u32", t1, sW4K, t0), V("v_add_u32", f"v{RA}", X0, t1)]
        a += [V("v_lshrrev_b32", t1, 4, t0), V("v_and_b32", t1, "0x30", t1), V("v_xor_b32", t0, t0, t1)]
        a += [V("v_xor_b32", f"v{GA}", sD0 if hv else 0, t0), V("v_xor_b32", f"v{GA+1}", 64, f"v{GA}")]
        if hv: a += s.voo_calc(VOO, TMP)
        for i in a: s.hint(i, s.bstart[28], 0)
        s.add(a)
        order = [4, 0, 1, 2, 3] if hv else [0, 1, 2, 3, 4]
        if hv: s.add(s.cmb_pre(CT, 0))
        ep = {}; lastm = None; k2 = 0
        for k, n in enumerate(order):
            ml = [s.smf(j, n)]
            for dt in range(8):
                kss = [0] if hv and n == 4 else ([0, 1] if dt % 2 == 0 else [1, 0])
                ml += [mfma(O(n, dt), VF(dt, ks), P(par, n, ks), O(n, dt)) for ks in kss]
            s.add(ml); lastm = ml[-1]
            if k == 0: s.stamp(ml[0])
            if hv and n == 4: s.add(s.cmb_give(1, CT))
            if hv and k == 2:
                bl = s.barrier([], [], extra_need=["cw"], extra_w=["cmb"], extra_r=["cgive"]); s.hint(bl[0], ml[0], 0); s.add(bl)
        for k, n in enumerate(order):
            if hv and n == 4: continue
            rl = RL + 2 * (k2 % 2); X = (k2 % 2) * 16384; usepk = OPT["pk"] and k2 >= 2; k2 += 1
            s.add(s.ep_l(1, n, rl, TMP + 2))
            for D in range(4):
                tb = TB[D % 2]
                s.add([V("v_accvgpr_read_b32", f"v{tb+r}", f"a{aO+32*n+8*D+r}") for r in range(8)])
                if usepk:
                    s.add([s.hint(V("v_pk_mul_f32", ("v", tb + 2 * r, 2), ("v", tb + 2 * r, 2), ("v", rl, 2), mod=" op_sel_hi:[1,0]"), lastm, 0) for r in range(4)])
                else: s.add([V("v_mul_f32", f"v{tb+r}", f"v{tb+r}", f"v{rl}") for r in range(8)])
                ws = []
                for h in range(2):
                    dt = 2 * D + h; pk = PKD[dt % 4]
                    s.add([V("v_cvt_pk_bf16_f32", f"v{pk+r}", f"v{tb+4*h+2*r}", f"v{tb+4*h+2*r+1}") for r in range(2)])
                    w = ds_write("ds_write_b64", f"v{WA+dt%4}", ("v", pk, 2), X + (dt // 4) * 128); w.xr = {f"Xw{X}"}; w.xw = {f"Xd{X}_{dt}"}; ws.append(w)
                s.add(ws)
            t, oo = s.rowoff(1, n); s.add(oo)
            rs = []
            for r in range(4):
                i = ds_read("ds_read_b128", ("v", RB[r], 4), f"v{RA}", X + r * 1024); i.xr = {f"Xd{X}_{dt}" for dt in range(8)}; rs.append(i)
            s.add(rs)
            s.add([bstore(("v", RB[r], 4), f"v{GA+r%2}", sO, t, r * 1024, mod=MODS[OPT["o1"]]) for r in range(4)])
            if hv and k == 2: s.add(s.cmb_take(1, CT, CU, [vS, vS + 8], [vQB + 24, vQB + 28], VOO, OPT["o1"]))

    def build(s):
        s.bstart = {}; s.stamp_at = {0, 4, 8, 12, 15, 16, 18, 24} if OPT["stamps"] else set()
        s.nstamp = 1
        s.plan_stage()
        s.start()
        for j in range(31): s.block(j)
        s.tail()
        ms = [i for i in s.prog if ismf(i)]
        for k, m in enumerate(ms): m.mi = k
        for i, m, off, attr in s.hints: setattr(i, attr, ms[max(0, min(len(ms) - 1, m.mi + off))])
        out = schedule(s.prog, verbose=True, name=s.tag)
        if OPT["verbose"]:
            prev = None
            for j in sorted(s.bstart):
                if prev is not None: print(f"  blk {j-1}: {s.bstart[j].st - prev}", end="")
                prev = s.bstart[j].st
            print(f"\n  start {s.bstart[0].st}  tail from blk30 {out[-1].st - prev}")
        return out

def setup_common():
    t0, t1, w = "s36", "s37", "s38"
    o = [raw("s_cmp_lt_u32 s2, 256", w=["scc"]), br("s_cbranch_scc1", "Lgo"), raw("s_endpgm"), label("Lgo")]
    if OPT["stamps"]: o += [raw("s_memtime s[44:45]"), raw("s_memrealtime s[46:47]")]
    o += [raw("s_load_dwordx4 s[24:27], s[0:1], 0"), raw("s_load_dwordx4 s[28:31], s[0:1], 16"),
          V("v_lshrrev_b32", "v1", 6, "v0"), V("v_and_b32", "v16", 63, "v0"), V("v_and_b32", "v17", 15, "v0"),
          V("v_readfirstlane_b32", w, "v1"), V("v_lshrrev_b32", "v18", 4, "v16"),
          S("s_and_b32", t0, "s2", 7), S("s_lshr_b32", t1, "s2", 4), S("s_lshl_b32", t0, t0, 4), S("s_add_u32", t0, t0, t1),
          S("s_mul_i32", t1, t0, 2 * HEADQ), S("s_lshl_b32", t0, t0, 19), S("s_lshl_b32", sW4K, w, 12), S("s_mov_b32", sOFF, sW4K)]
    l, m, g, a, b, c = "v16", "v17", "v18", "v19", "v20", "v21"
    o += [V("v_lshlrev_b32", a, 1, g), V("v_xor_b32", a, a, m), V("v_lshlrev_b32", a, 4, a), V("v_lshl_add_u32", f"v{vDA}", g, 8, a), V("v_xor_b32", f"v{vDB}", 128, f"v{vDA}")]
    o += [raw("s_waitcnt lgkmcnt(0)", k="salu")]
    for srd, p, off, sz in ((sK, 26, t0, 2 * HEADK), (sQ, 24, t1, 2 * HEADQ), (sV, 28, t0, 2 * HEADK), (sO, 30, t1, 2 * HEADQ)):
        o += [S("s_add_u32", f"s{srd}", f"s{p}", off), S("s_addc_u32", f"s{srd+1}", f"s{p+1}", 0), S("s_mov_b32", f"s{srd+2}", sz), S("s_mov_b32", f"s{srd+3}", "0x00020000")]
        if srd == sK: o += Role("AA", "").dma("K", 0)
    o += [S("s_bitcmp1_b32", "s2", 3), br("s_cbranch_scc1", "LroleY")]
    return o

def setup_role(R, k):
    t0, t1, w = "s36", "s37", "s38"
    o = []
    for p in range(2):
        if OPT["ab"] and R.half[p]:
            o += [S("s_lshl_b32", sROW[p][0], w, 14), S("s_add_u32", sROW[p][0], sROW[p][0], p * HEADQ + 20 * 4096),
                  S("s_lshr_b32", sROW[p][1], w, 1), S("s_lshl_b32", sROW[p][1], sROW[p][1], 12), S("s_add_u32", sROW[p][1], sROW[p][1], p * HEADQ + 36 * 4096)]
        else:
            base = 0 if OPT["ab"] or (p ^ k) == 0 else 18 * 4096
            o += [S("s_mul_i32", sROW[p][0], w, 5 * 4096), S("s_add_u32", sROW[p][0], sROW[p][0], p * HEADQ + base), S("s_add_u32", sROW[p][1], sROW[p][0], 4 * 4096)]
    o += [S("s_and_b32", sD0, w, 1), S("s_lshr_b32", "s35", "s2", 4), S("s_lshl_b32", "s35", "s35", 2), S("s_add_u32", "s35", "s35", w)]
    if OPT["stamps"]: o += [S("s_lshl_b32", "s100", "s2", 2), S("s_add_u32", "s100", "s100", w), S("s_mov_b32", "s101", "s2")]
    o += R.pre
    l, m, g, a, b, c = "v16", "v17", "v18", "v19", "v20", "v21"
    if OPT["pf"]:
        o += [raw("s_getpc_b64 s[40:41]", w=["s40", "s41"]), label(f"Lpf{k}"), S("s_mov_b32", "s42", f"Lfin{k}-Lpf{k}"), S("s_mov_b32", "s43", "0x00020000"),
              S("s_lshl_b32", "s35", "s35", 11), V("v_lshlrev_b32", a, 5, l)]
        i = I("buffer_load_dword v255, v19, s[40:43], s35 offen", "vmem", w=["v255"], r=["v19", "s35", "s40", "s41", "s42", "s43"]); o.append(i)
    o += [S("s_lshl_b32", sFK, sD0, 13), S("s_lshl_b32", sD0, sD0, 7), S("s_or_b32", sFV, sFK, sD0), S("s_xor_b32", sD1, sD0, 128)]
    o += [V("v_lshlrev_b32", a, 4, g), V("v_lshl_add_u32", f"v{vG}", m, 8, a)]
    o += [V("v_and_b32", a, 7, m), V("v_lshlrev_b32", a, 1, a), V("v_xor_b32", a, a, g), V("v_lshlrev_b32", a, 4, a), V("v_lshl_add_u32", f"v{vKA}", m, 8, a)]
    o += [V("v_xor_b32", f"v{vKA+ks}", 64 * ks, f"v{vKA}") for ks in range(1, 4)]
    o += [S("s_add_u32", t0, sW4K, 49152)]
    for ks in range(4): o += [V("v_add_u32", f"v{R.TA+ks}", t0, f"v{vKA+ks}"), V("v_add_u32", f"v{R.TA+4+ks}", "0x10000", f"v{R.TA+ks}")]
    o += [V("v_lshrrev_b32", a, 2, l), V("v_and_b32", b, 7, a), V("v_lshlrev_b32", b, 5, b), V("v_and_b32", c, 3, l), V("v_lshlrev_b32", c, 3, c),
          V("v_xor_b32", b, b, c), V("v_lshl_add_u32", b, a, 8, b), V("v_add_u32", f"v{vVA}", "0x10000", b)]
    if R.half[0]:
        o += [V("v_xor_b32", f"v{vVA}", sFV, f"v{vVA}")] + [V("v_xor_b32", f"v{vKA+ks}", sFK, f"v{vKA+ks}") for ks in range(4)]
    o += [V("v_xor_b32", f"v{vVA+dt}", 32 * dt, f"v{vVA}") for dt in range(1, 8)]
    o += [V("v_and_b32", a, 2, m), V("v_cmp_eq_u32", "vcc", 0, a), V("v_mov_b32", b, "0x3f803f80"), V("v_cndmask_b32", a, 0, b, "vcc"), V("v_xor_b32", b, a, b)]
    o += [V("v_accvgpr_write_b32", f"a{aONE+i}", a) for i in range(4)] + [V("v_accvgpr_write_b32", f"a{aONE+4+i}", b) for i in range(4)]
    o += [V("v_and_b32", a, 1, m), V("v_cmp_eq_u32", "vcc", 1, a), V("v_mov_b32", b, "0x44444444"), V("v_mov_b32", c, "0xeeeeeeee"), V("v_cndmask_b32", f"v{vIDX}", b, c, "vcc")]
    o += [S("s_mov_b32", sC, hex(CSCALE)), S("s_mov_b32", sC2, hex(CSCALE)), S("s_mov_b32", sMASK, "0xffff0000"), S("s_mov_b32", sTHR, "0x53800000"),
          S("s_mov_b64", sBAD[0], 0), S("s_mov_b64", sBAD[1], 0)]
    return o

def finish(R, k):
    o = []
    if OPT["stamps"]:
        n = R.nstamp
        o += [raw(f"s_memtime s[{44+4*n}:{45+4*n}]"), raw(f"s_memrealtime s[{46+4*n}:{47+4*n}]"), raw("s_waitcnt vmcnt(0) lgkmcnt(0)")]; n += 1
        o += [raw(f"s_memtime s[{44+4*n}:{45+4*n}]"), raw(f"s_memrealtime s[{46+4*n}:{47+4*n}]"), raw("s_waitcnt lgkmcnt(0)")]; n += 1
        assert n <= 14
        if OPT["pi"] >= 0:
            i, j, kk = OPT["pi"], OPT["pj"], OPT["pk_"]
            if not OPT["pall"]: o += [raw("s_and_b32 s101, s101, 0xf7"), raw("s_cmp_lg_u32 s101, 100"), raw(f"s_cbranch_scc1 Lfin{k}")]
            o += [raw(f"s_sub_u32 s36, s{44+4*j+2*kk}, s{44+4*i+2*kk}"), raw("s_mul_i32 s36, s36, 10") if kk else raw("s_lshr_b32 s36, s36, 1"),
                  raw("s_min_u32 s36, s36, 200000"), raw("s_memrealtime s[38:39]"), raw("s_waitcnt lgkmcnt(0)"), label(f"Lspin{k}"), raw("s_memrealtime s[40:41]"), raw("s_waitcnt lgkmcnt(0)"),
                  raw("s_sub_u32 s37, s40, s38"), raw("s_cmp_lt_u32 s37, s36"), raw(f"s_cbranch_scc1 Lspin{k}")]
        else:
            o += [raw("; STAMPS"), raw("s_load_dwordx2 s[40:41], s[0:1], 40"), raw("v_mov_b32 v16, 0")]
            for x in range(n): o += [raw(f"v_writelane_b32 v16, s{44+4*x}, {2*x}"), raw(f"v_writelane_b32 v16, s{46+4*x}, {2*x+1}")]
            o += [raw(f"v_writelane_b32 v16, {n}, 63"), raw("s_lshl_b32 s100, s100, 8"), raw("v_mbcnt_lo_u32_b32 v17, -1, 0"), raw("v_mbcnt_hi_u32_b32 v17, -1, v17"), raw("v_lshlrev_b32 v17, 2, v17"),
                  raw("s_waitcnt lgkmcnt(0)"), raw("s_mov_b32 s42, 0x100000"), raw("s_mov_b32 s43, 0x00020000"), raw("buffer_store_dword v16, v17, s[40:43], s100 offen"), raw("s_waitcnt vmcnt(0)")]
    o += [label(f"Lfin{k}")]
    if OPT["slow"]: o += [raw("s_or_b64 s[36:37], s[30:31], s[32:33]"), raw("s_cbranch_scc1 Lslow")]
    o += [raw("s_endpgm")]
    return o

MACROS = """.macro qa d,a,b,c
v_mfma_f32_16x16x32_bf16 v[\\d:\\d+3], a[\\a:\\a+3], v[\\b:\\b+3], v[\\c:\\c+3]
.endm
.macro qb d,a,b,c
v_mfma_f32_16x16x32_bf16 v[\\d:\\d+3], a[\\a:\\a+3], a[\\b:\\b+3], v[\\c:\\c+3]
.endm
.macro pv d,a,b
v_mfma_f32_16x16x32_bf16 a[\\d:\\d+3], a[\\a:\\a+3], v[\\b:\\b+3], a[\\d:\\d+3]
.endm
.macro ex r
v_exp_f32 v\\r, v\\r
.endm
.macro cv d,a,b
v_cvt_pk_bf16_f32 v\\d, v\\a, v\\b
.endm
.macro lk d,a,o
ds_read_b128 a[\\d:\\d+3], v\\a offset:\\o
.endm
.macro lv d,a,o
ds_read_b64_tr_b16 a[\\d:\\d+1], v\\a offset:\\o
.endm
"""
def compact(txt):
    M = "    v_mfma_f32_16x16x32_bf16 "
    txt = re.sub(M + r"v\[(\d+):\d+\], a\[(\d+):\d+\], v\[(\d+):\d+\], v\[(\d+):\d+\]", r"qa \1,\2,\3,\4", txt)
    txt = re.sub(M + r"v\[(\d+):\d+\], a\[(\d+):\d+\], a\[(\d+):\d+\], v\[(\d+):\d+\]", r"qb \1,\2,\3,\4", txt)
    txt = re.sub(M + r"a\[(\d+):\d+\], a\[(\d+):\d+\], v\[(\d+):\d+\], a\[\1:\d+\]", r"pv \1,\2,\3", txt)
    txt = re.sub(r"    v_exp_f32 v(\d+), v\1\n", r"ex \1\n", txt)
    txt = re.sub(r"    v_cvt_pk_bf16_f32 v(\d+), v(\d+), v(\d+)", r"cv \1,\2,\3", txt)
    txt = re.sub(r"    ds_read_b128 a\[(\d+):\d+\], v(\d+) offset:(\d+)", r"lk \1,\2,\3", txt)
    txt = re.sub(r"    ds_read_b64_tr_b16 a\[(\d+):\d+\], v(\d+) offset:(\d+)", r"lv \1,\2,\3", txt)
    return txt.replace("\n    ", "\n")

def build():
    com = setup_common()
    body = ""
    txt = []
    for k, types in enumerate((("AB", "BA") if OPT["ab"] else ("AA", "AA"))):
        R = Role(types, "XY"[k])
        main = R.build()
        su = setup_role(R, k)
        for i in com + su: i.st = -1000
        tr = insert_waits(com + su + main)
        while fix_hazards(tr, verbose=OPT["verbose"] > 1): pass
        e = verify2(tr); assert e == 0, e
        nc = len(com)
        assert all(a is b for a, b in zip(tr[:nc], com))
        txt.append("".join(i.text() for i in tr[nc:] + finish(R, k)))
        if OPT["verbose"]: print("  nops:", sum(i.nop for i in tr), "waits:", sum(i.k == "wait" for i in tr))
    slow = ""
    if OPT["slow"]:
        import slowpath
        slow = slowpath.text(sys.modules[__name__])
    body = "".join(i.text() for i in com) + txt[0] + slow + ".p2align 6\nLroleY:\n" + txt[1]
    return compact(body) if OPT["compact"] else body

HEAD = f"""; flash-attention forward, B8 H32 Sq608 Sk1024 D128 bf16 (emitted by my own scheduling script)
; @launch grid=(256,1,1) block=(256,1,1) lds=163840
.amdgcn_target "amdgcn-amd-amdhsa--gfx950"
{MACROS}.text
.globl {NAME}_kernel
.p2align 8
.type {NAME}_kernel,@function
{NAME}_kernel:
"""
TAIL = f""".section .rodata,"a"
.p2align 6
.amdhsa_kernel {NAME}_kernel
  .amdhsa_next_free_vgpr 512
  .amdhsa_next_free_sgpr 102
  .amdhsa_accum_offset 256
  .amdhsa_group_segment_fixed_size 0
  .amdhsa_kernarg_size 48
  .amdhsa_user_sgpr_count 2
  .amdhsa_user_sgpr_kernarg_segment_ptr 1
  .amdhsa_system_sgpr_workgroup_id_x 1
  .amdhsa_float_denorm_mode_32 3
.end_amdhsa_kernel
"""
if __name__ == "__main__":
    open(sys.argv[1], "w").write(HEAD + build() + TAIL)
```

```python
import sys, struct, math, re
from asmir import *
from sched import *

NAME = "standalone__mha_softmax__near_ridge"
OPT = dict(lagc=0, lagmax=240, stamps=0, kv=1, kvy=1, q=1, o0=4, o1=4, ab=1, pf=1, e0=7, pk=1, pi=-1, pj=0, pk_=1, pall=0, verbose=0, compact=1, slow=1)
MODS = ["", " nt", " sc1", " sc1 nt", " sc0 sc1", " sc0 sc1 nt", " sc0", " sc0 nt"]
for a in sys.argv[2:]:
    k, v = a.split("="); assert k in OPT, k; OPT[k] = int(v)
vKA = 0; vVA = 4; vDA, vDB = 12, 13; vIDX = 14; vG = 15
vS = 16; vNM = 36; vQA = 56; vP = 136; vQB = 216; vT = 252
aO = 0; aL = 160; aONE = 172; aV = 180; aK = 196; aQB = 212
sQ, sK, sV, sO = 4, 8, 12, 16
sOFF = "s20"; sW4K = "s21"; sC = "s22"; sC2 = "s23"
sROW = [["s24", "s25"], ["s26", "s27"]]
sMASK = "s28"; sTHR = "s29"; sBAD = [("s", 30, 2), ("s", 32, 2)]; sFK = "s34"; sFV = "s35"; sD0 = "s3"; sD1 = "s2"
sTMP = [f"s{i}" for i in range(36, 44)]
HEADQ = 608 * 256; HEADK = 1024 * 256
CSCALE = struct.unpack("<I", struct.pack("<f", math.log2(math.e) / math.sqrt(128.0)))[0]
X0 = 131072; X1 = 147456
_st = [0]
def stmp():
    _st[0] = (_st[0] + 1) % len(sTMP); return sTMP[_st[0]]
def SS(op, d, *src):
    i = S(op, d, *src); i.w.discard("scc"); return i

def Sx(n): return ("v", vS + 4 * n, 4)
def NM(n): return ("v", vNM + 4 * n, 4)
def Q(p, n, ks):
    f = 4 * n + ks
    if p == 0: return ("v", vQA + 4 * f, 4)
    return ("a", aQB + 4 * f, 4) if f < 11 else ("v", vQB + 4 * (f - 11), 4)
def P(par, n, ks): return ("v", vP + 40 * par + 8 * n + 4 * ks, 4)
def O(n, dt): return ("a", aO + 32 * n + 4 * dt, 4)
def L(n): return ("a", aL + 4 * (n // 2), 4)
def Lr(n): return aL + 4 * (n // 2) + 2 * (n % 2)
def ONE(n): return ("a", aONE + 4 * (n % 2), 4)

class Role:
    def __init__(s, types, tag):
        s.half = [t == "B" for t in types]; s.tag = tag
        s.kst = [[s.half[0], 0] for _ in range(4)]; s.vst = [[s.half[0], 0] for _ in range(8)]
        s.prog = []; s.hints = []; s.nstamp = 0
    def add(s, *l):
        for x in l:
            if isinstance(x, list): s.prog += x
            else: s.prog.append(x)
    def hint(s, i, m, off, attr="nb"): s.hints.append((i, m, off, attr)); return i
    def addr(s, st, reg, half, h, sflip):
        o = []
        if st[0] != half:
            if st[1]: o.append(V("v_xor_b32", reg, "0x2000", reg)); st[1] = 0
            o.append(V("v_xor_b32", reg, sflip, reg)); st[0] = half
        if not half: return o, h * 8192
        if st[1] != h: o.append(V("v_xor_b32", reg, "0x2000", reg)); st[1] = h
        return o, 0
    def kread(s, dst, b, t, ks):
        o, off = s.addr(s.kst[ks], f"v{vKA+ks}", s.half[b // 16], t >> 1, sFK)
        i = ds_read("ds_read_b128", dst, f"v{vKA+ks}", (b % 4) * 16384 + off + (t & 1) * 4096)
        i.ring = ("K", b); i.xr = {f"cK{b}", f"oK{b}"}; i.wt = {f"rK{b}"}
        return o + [i]
    def vread(s, dst, b, dt, ks):
        o, off = s.addr(s.vst[dt], f"v{vVA+dt}", s.half[b // 16], ks, sFV)
        for u in range(2):
            i = ds_read("ds_read_b64_tr_b16", (dst[0], dst[1] + 2 * u, 2), f"v{vVA+dt}", (b % 4) * 16384 + off + u * 4096)
            i.ring = ("V", b); i.xr = {f"cV{b}", f"oV{b}"}; i.wt = {f"rV{b}"}
            o.append(i)
        return o
    def vks(s, b, dt, pref):
        if s.half[b // 16] and s.vst[dt][0]: return [s.vst[dt][1], s.vst[dt][1] ^ 1]
        return pref
    def dma(s, kind, b, gate=None):
        o = []
        if kind == "K" and b > 0: o.append(SS("s_add_u32", sOFF, sOFF, 16384))
        o.append(SS("s_add_u32", "m0", sW4K, (b % 4) * 16384 + (65536 if kind == "V" else 0)))
        for k in range(4):
            i = dma(f"v{vDA if k % 2 == 0 else vDB}", sK if kind == "K" else sV, sOFF, k * 1024, mod=MODS[OPT["kvy" if s.tag == "Y" and b >= 3 else "kv"]])
            i.ring = (kind, b); i.wt = {f"d{kind}{b}"}; i.xw = {f"i{kind}{b}"}
            if gate: i.xr = {gate}
            o.append(i)
        return o
    def barrier(s, close, opn, gate=None, extra_need=(), extra_w=(), extra_r=()):
        w = wait(need=[f"r{x}" for x in close] + [f"d{x}" for x in opn] + list(extra_need))
        w.xw = {f"c{x}" for x in close} | {"barseq"}; w.xr = {f"i{x}" for x in opn} | set(extra_r)
        b = bar(); b.xr = {"barseq"}; b.xw = {f"o{x}" for x in opn} | ({gate} if gate else set()) | set(extra_w)
        return [w, b]
    def chain(s, p, n, sq, kf, czero):
        order = [0, 1, 2, 3] if n % 2 == 0 else [3, 2, 1, 0]
        return [mfma(sq, kf(ks), Q(p, n, ks), sq if k else ("0" if czero else NM(n))) for k, ks in enumerate(order)]
    def rowmax(s, n, sq, a, b):
        x = [f"v{sq[1]+r}" for r in range(4)]
        l = [V("v_max3_f32", a, x[0], x[1], x[2]), V("v_max_f32", a, a, x[3]), V("v_mov_b32", b, a),
             swap("v_permlane16_swap_b32", a, b), V("v_max_f32", a, a, b), V("v_mov_b32", b, a), swap("v_permlane32_swap_b32", a, b)]
        l += [V("v_min_f32", f"v{vNM+4*n+r}", "-" + a, "-" + b) for r in range(4)]
        l += [V("v_add_f32", x[r], x[r], f"v{vNM+4*n}") for r in range(4)]
        return l
    def expcvt(s, par, n, t, sq):
        l = []
        for h in range(2):
            x0, x1 = f"v{sq[1]+2*h}", f"v{sq[1]+2*h+1}"
            l += [V("v_exp_f32", x0, x0), V("v_exp_f32", x1, x1), V("v_cvt_pk_bf16_f32", f"v{vP+40*par+8*n+2*t+h}", x0, x1)]
        return l
    def smf(s, b, n):
        if s.half[b // 16] and n == 4: return mfma(L(4), ONE(4), P(b % 2, 4, 0), L(4))
        return smfmac(L(n), ONE(n), ("v", vP + 40 * (b % 2) + 8 * n, 8), f"v{vIDX}")
    def scale(s, src, dst, ta, pk=False):
        a, b = f"v{ta}", f"v{ta+1}"
        l = [V("v_lshlrev_b32", a, 16, src), V("v_and_b32", b, sMASK, src)]
        if pk: l += [V("v_pk_mul_f32", ("v", ta, 2), ("v", ta, 2), ("s", 22, 2))]
        else: l += [V("v_mul_f32", a, sC, a), V("v_mul_f32", b, sC, b)]
        if dst[0] == "v": return l + [V("v_cvt_pk_bf16_f32", dst, a, b)]
        return l + [V("v_cvt_pk_bf16_f32", a, a, b), V("v_accvgpr_write_b32", dst, a)]
    def rowoff(s, p, n, extra=None):
        t = stmp()
        i = SS("s_add_u32", t, sROW[p][0], n * 4096) if n < 4 else SS("s_mov_b32", t, sROW[p][1])
        if extra is None: return t, [i]
        return t, [i, SS("s_add_u32", t, t, extra)]
    def stamp(s, m=None, off=0):
        if not OPT["stamps"]: return
        k = s.nstamp; s.nstamp += 1; assert k < 14
        a = raw(f"s_memtime s[{44+4*k}:{45+4*k}]"); b = raw(f"s_memrealtime s[{46+4*k}:{47+4*k}]")
        for i in (a, b):
            if m is not None: s.hint(i, m, off); s.hint(i, m, off + 2, "dlm")
            else: i.xw = {"seq"}
        s.add(a, b)

    def start(s):
        half = s.half[0]
        qreg = [(98304, ("V", 2)), (49152, ("K", 3)), (114688, ("V", 3)), (X0, None), (X1, None)]
        def qdma(n):
            t, o = s.rowoff(0, n)
            o.append(SS("s_add_u32", "m0", sW4K, qreg[n][0]))
            for k in range(4):
                i = dma(f"v{vDA if k % 2 == 0 else vDB}", sQ, t, k * 1024, mod=MODS[OPT["q"]])
                i.wt = {f"dQ{n}"}; i.priv = (n, qreg[n][1]); o.append(i)
            return o
        def seq(l):
            for i in l:
                if i.k in ("vmem", "wait", "bar"): i.xw = i.xw | {"seq"}
            return l
        TA = vP + 40
        s.pre = qdma(0) + qdma(1)
        s.TA = TA
        s.add(seq(qdma(2)))
        s.add(seq(s.barrier([], ["K0"])))
        KF0 = lambda t: (lambda ks: ("a", 16 * t + 4 * ks, 4))
        for t in range(4):
            for ks in range(4): s.add(s.kread(KF0(t)(ks), 0, t, ks))
        nxt = [qdma(3), qdma(4), s.dma("V", 0), s.dma("K", 1), s.dma("V", 1) + s.dma("K", 2)]
        sc = 0
        for n in range(5):
            s.add(seq(nxt[n]))
            w = wait(need=[f"dQ{n}"]); w.xw = {"seq", f"oQ{n}"}; s.add(w)
            if n == 0 or n == 4: s.stamp()
            base = TA + (4 if n >= 2 else 0); off = qreg[n][0] - (114688 if n >= 2 else 49152)
            for ks in range(4):
                i = ds_read("ds_read_b128", Q(0, n, ks), f"v{base+ks}", off); i.xr = {f"oQ{n}"}; i.priv = (n, qreg[n][1]); i.wt = {f"rQ{n}"}; s.add(i)
            for r in range(16):
                q = f"v{vQA+16*n+r}"; s.add(s.scale(q, q, TA + 8 + 2 * (r % 4), pk=OPT["pk"]))
            for t in range(2 if half and n == 4 else 4):
                sq = Sx(sc % 5); sc += 1
                ch = s.chain(0, n, sq, KF0(t), t == 0); s.add(ch)
                if t == 0: s.add(s.rowmax(n, sq, f"v{TA+16}", f"v{TA+17}"))
                s.add(s.expcvt(0, n, t, sq))
            ch[-1].xw = {"seq"}
        s.add([V("v_accvgpr_write_b32", f"a{aL+r}", 0) for r in range(12)])
        d = s.dma("V", 2) + s.dma("K", 3)
        s.add(seq(d))
        s.add(seq(s.barrier(["K0"], ["K1", "V0"], gate="D-1")))
        for ks in range(4): s.add(s.kread(("a", aK + 4 * ks, 4), 1, 0, ks))

    def ep_l(s, p, n, rl, tmp):
        a, b = f"v{rl}", f"v{tmp}"
        o = [V("v_accvgpr_read_b32", a, f"a{Lr(n)}")]
        if not (s.half[p] and n == 4): o += [V("v_accvgpr_read_b32", b, f"a{Lr(n)+1}"), V("v_add_f32", a, a, b)]
        o += [V("v_cmp_nge_f32", "vcc", sTHR, a), SS("s_or_b64", sBAD[p], sBAD[p], "vcc")]
        if not (s.half[p] and n == 4): o += [V("v_rcp_f32", a, a)]
        return o
    def ep_store(s, p, n, D, tb, pkq, voo, mod):
        o = [V("v_cvt_pk_bf16_f32", f"v{pkq+r}", f"v{tb+2*r}", f"v{tb+2*r+1}") for r in range(4)]
        o += [swap("v_permlane16_swap_b32", f"v{pkq}", f"v{pkq+2}"), swap("v_permlane16_swap_b32", f"v{pkq+1}", f"v{pkq+3}")]
        if s.half[p]:
            t, oo = s.rowoff(p, n, sD0 if D < 2 else sD1); off = (D & 1) * 64
        else:
            t, oo = s.rowoff(p, n); off = D * 64
        return o + oo + [bstore(("v", pkq, 4), f"v{voo}", sO, t, off, mod=MODS[mod])]
    def voo_calc(s, voo, t):
        return [V("v_lshrrev_b32", f"v{t}", 1, f"v{vG}"), V("v_xor_b32", f"v{t}", f"v{t}", f"v{vG}"), V("v_and_b32", f"v{t}", 16, f"v{t}"),
                V("v_mul_u32_u24", f"v{t}", 3, f"v{t}"), V("v_xor_b32", f"v{voo}", f"v{t}", f"v{vG}")]
    def lane16(s, d):
        return [V("v_mbcnt_lo_u32_b32", d, -1, 0), V("v_mbcnt_hi_u32_b32", d, -1, d), V("v_lshlrev_b32", d, 4, d)]
    def cmb_pre(s, T, base):
        o = s.lane16(f"v{T}") + [V("v_add_u32", f"v{T}", sW4K, f"v{T}"), V("v_add_u32", f"v{T}", base, f"v{T}"), V("v_xor_b32", f"v{T+1}", "0x1000", f"v{T}"),
             V("v_mov_b32", f"v{T+2}", f"v{vNM+16}")]
        return o
    def cmb_give(s, p, T):
        o = s.ep_l(p, 4, T + 3, T + 4)
        w = [ds_write("ds_write_b64", f"v{T}", ("v", T + 2, 2), 16384)] + [ds_write("ds_write_b128", f"v{T}", O(4, dt), dt * 1024) for dt in range(4)]
        for i in w: i.wt = {"cw"}; i.xw = {"cgive"}
        return o + w
    def cmb_take(s, p, T, U, tb, pkq, voo, mod):
        r = [ds_read("ds_read_b64", ("v", T + 4, 2), f"v{T+1}", 16384)] + [ds_read("ds_read_b128", ("v", U + 4 * k, 4), f"v{T+1}", k * 1024) for k in range(4)]
        for i in r: i.xr = {"cmb"}
        nm, l, nm2, l2, x, y = [f"v{T+k}" for k in (2, 3, 4, 5, 6, 7)]
        o = r + [V("v_cmp_nge_f32", "vcc", sTHR, l2), SS("s_or_b64", sBAD[p], sBAD[p], "vcc"),
                 V("v_min_f32", x, nm, nm2), V("v_sub_f32", nm, x, nm), V("v_sub_f32", nm2, x, nm2), V("v_exp_f32", nm, nm), V("v_exp_f32", nm2, nm2),
                 V("v_mul_f32", x, l, nm), V("v_fma_f32", x, l2, nm2, x), V("v_rcp_f32", x, x), V("v_mul_f32", nm, nm, x), V("v_mul_f32", nm2, nm2, x)]
        for D in (2, 3):
            t = tb[D - 2]
            for r_ in range(8):
                o += [V("v_accvgpr_read_b32", f"v{t+r_}", f"a{aO+128+8*D+r_}")]
            for r_ in range(8):
                o += [V("v_mul_f32", f"v{t+r_}", f"v{t+r_}", nm), V("v_fma_f32", f"v{t+r_}", f"v{U+8*(D-2)+r_}", nm2, f"v{t+r_}")]
            o += s.ep_store(p, 4, D, t, pkq[D - 2], voo, mod)
        return o

    def block(s, j):
        b = j + 1; p = b // 16; pv = j // 16
        hq, hv = s.half[p], s.half[pv]
        first = (j % 16 == 0); trans = (j == 15)
        smfs = {0: [0], 1: [1], 2: [2, 3], 3: [4]}
        if trans:
            E = vQA; RL = E; VOO = E + 5; MX = E + 6; TB = [E + 8, E + 16]; CT = E + 24; PK = [E + 4 * k for k in range(8 if hv else 6, 20)]
            if hv: PK = PK[4:]; CU = E + 32
            s.pki = 0
            s.add(s.voo_calc(VOO, MX))
            if hv: s.add(s.cmb_pre(CT, X0))
        for q in range(4):
            for h, pref in ((0, [0, 1]), (1, [0, 1] if hv else [1, 0])):
                for ks in s.vks(j, 2 * q + h, pref): s.add(s.vread(("a", aV + 8 * h + 4 * ks, 4), j, 2 * q + h, ks))
            nq = 4 if hq and q >= 2 else 5
            ch = []
            cz = (b % 16 == 0 and q == 0)
            for n in range(nq): ch += s.chain(p, n, Sx(n), lambda ks: ("a", aK + 4 * ks, 4), cz)
            s.add(ch); m0 = ch[0]
            if q == 0:
                s.bstart[j] = m0
                if j in s.stamp_at: s.stamp(m0)
                dl = []
                if j + 3 <= 31: dl += s.dma("V", j + 3, gate=f"D{j-1}")
                if j + 4 <= 31: dl += s.dma("K", j + 4, gate=f"D{j-1}")
                lag = 0
                if s.half[0] and not s.half[1]: lag = min(OPT["lagmax"], (16 * (j if j <= 15 else 31 - j) * OPT["lagc"]) // 100)
                for k, i in enumerate([x for x in dl if x.k == "vmem"]):
                    s.hint(i, m0, lag + 30 + 2 * k, "dlm")
                    if lag: s.hint(i, m0, lag - 20)
                s.add(dl)
            qlen = len(ch) + (18 if hv else 20) + 1
            k = 0
            for n in range(nq):
                if cz: s.add(s.rowmax(n, Sx(n), f"v{MX}", f"v{MX+1}"))
                l = s.expcvt(b % 2, n, q, Sx(n))
                for i in l:
                    if i.k == "trans": s.hint(i, m0, OPT["e0"] + (k * qlen) // (4 * nq)); k += 1
                s.add(l)
            if q == 3:
                opn = ([f"K{j+2}"] if j + 2 <= 31 else []) + [f"V{j+1}"]
                cm = trans and hv
                bl = s.barrier([f"K{b}", f"V{j}"], opn, gate=f"D{j}", extra_need=["cw"] if cm else [], extra_w=["cmb"] if cm else [], extra_r=["cgive"] if cm else [])
                s.hint(bl[0], m0, len(ch) - 3); s.add(bl)
            if q < 3:
                for ks in range(4): s.add(s.kread(("a", aK + 4 * ks, 4), b, q + 1, ks))
            elif b + 1 <= 31:
                for ks in range(4): s.add(s.kread(("a", aK + 4 * ks, 4), b + 1, 0, ks))
            if trans and q == 0:
                s.add([s.smf(j, n) for n in range(5)])
                for n in range(4 if hv else 5): s.add(s.ep_l(pv, n, RL + n, MX))
            for h in range(2):
                dt = 2 * q + h
                for n in (range(5) if h == 0 else reversed(range(5))):
                    kss = [0] if hv and n == 4 else ([0, 1] if (n + h) % 2 == 0 else [1, 0])
                    for k_, ks in enumerate(kss):
                        s.add(mfma(O(n, dt), ("a", aV + 8 * h + 4 * ks, 4), P(j % 2, n, ks), "0" if first and k_ == 0 else O(n, dt)))
            if not trans: s.add([s.smf(j, n) for n in smfs[q]])
            if trans:
                if hv and q == 1: s.add(s.cmb_give(pv, CT))
                if q == 1: s.add([V("v_accvgpr_write_b32", f"a{aL+r}", 0) for r in range(10)])
                for n in reversed(range(4 if hv else 5)):
                    tb = TB[s.pki % 2]; pkq = PK[s.pki % len(PK)]; s.pki += 1
                    s.add([V("v_accvgpr_read_b32", f"v{tb+r}", f"a{aO+32*n+8*q+r}") for r in range(8)])
                    s.add([V("v_mul_f32", f"v{tb+r}", f"v{tb+r}", f"v{RL+n}") for r in range(8)])
                    s.add(s.ep_store(pv, n, q, tb, pkq, VOO, OPT["o0"]))
                if hv and q == 3:
                    s.add(s.cmb_take(pv, CT, CU, TB, [PK[s.pki % len(PK)], PK[(s.pki + 1) % len(PK)]], VOO, OPT["o0"]))
            if q == 1 and j in s.stage: s.add(s.stage[j](m0))

    def plan_stage(s):
        s.stage = {}
        land = {}
        for f in range(20): land[f] = vQB + 4 * ((f if f < 9 else f - 2) % 9) if f < 11 else vQB + 4 * (f - 11)
        def loads(fs):
            def g(m):
                o = []
                for f in fs:
                    t, oo = s.rowoff(1, f // 4)
                    i = bload(("v", land[f], 4), f"v{vG}", sQ, t, (f % 4) * 64, mod=MODS[OPT["q"]])
                    s.hint(i, m, 0); s.hint(i, m, 60, "dlm"); o += oo + [i]
                return o
            return g
        def scales(fs):
            def g(m):
                o = []
                for f in fs:
                    d = Q(1, f // 4, f % 4)
                    for r in range(4):
                        l = s.scale(f"v{land[f]+r}", f"{d[0]}{d[1]+r}", vT + 2 * (r % 2))
                        s.hint(l[0], m, -40); s.hint(l[1], m, -40); o += l
                return o
            return g
        LD = {0: [7, 8, 0, 1], 1: [2, 3, 4, 5, 6], 4: [9, 10], 5: [11, 12], 6: [13, 14], 7: [15, 16], 8: [17], 9: [18, 19]}
        SC = {3: [7, 8], 4: [0, 1], 5: [2, 3], 6: [4, 5], 7: [6, 9], 8: [10, 11], 9: [12, 13], 10: [14, 15], 11: [16, 17], 12: [18, 19]}
        for j in range(14):
            fs = []
            if j in LD: fs.append(loads(LD[j]))
            if j in SC: fs.append(scales(SC[j]))
            if fs: s.stage[j] = (lambda fs: lambda m: sum((f(m) for f in fs), []))(fs)

    def tail(s):
        j = 31; hv = s.half[1]; par = 1
        VF = lambda dt, ks: ("v", vQA + 8 * dt + 4 * ks, 4)
        for dt in range(8):
            for ks in s.vks(j, dt, [0, 1]): s.add(s.vread(VF(dt, ks), j, dt, ks))
        E = vQA + 64
        WA = E; RA = E + 4; GA = E + 5; VOO = E + 7; RL = E + 8
        CT = vQB; CU = vQB + 8; TMP = vT
        F = vP
        TB = [F, F + 8]; PKD = [F + 16 + 2 * k for k in range(4)]; RB = [F + 24 + 4 * k for k in range(4)]
        t0, t1 = f"v{TMP}", f"v{TMP+1}"
        a = [V("v_lshrrev_b32", t0, 4, f"v{vG}"), V("v_and_b32", t0, "0x70", t0), V("v_lshrrev_b32", t1, 1, f"v{vG}"), V("v_and_b32", t1, 24, t1),
             V("v_xor_b32", t0, t0, t1), V("v_and_b32", t1, "0xf00", f"v{vG}"), V("v_add3_u32", t0, t0, t1, sW4K), V("v_add_u32", f"v{WA}", X0, t0)]
        a += [V("v_xor_b32", f"v{WA+k}", 32 * k, f"v{WA}") for k in range(1, 4)]
        a += s.lane16(t0) + [V("v_add_u32", t1, sW4K, t0), V("v_add_u32", f"v{RA}", X0, t1)]
        a += [V("v_lshrrev_b32", t1, 4, t0), V("v_and_b32", t1, "0x30", t1), V("v_xor_b32", t0, t0, t1)]
        a += [V("v_xor_b32", f"v{GA}", sD0 if hv else 0, t0), V("v_xor_b32", f"v{GA+1}", 64, f"v{GA}")]
        if hv: a += s.voo_calc(VOO, TMP)
        for i in a: s.hint(i, s.bstart[28], 0)
        s.add(a)
        order = [4, 0, 1, 2, 3] if hv else [0, 1, 2, 3, 4]
        if hv: s.add(s.cmb_pre(CT, 0))
        ep = {}; lastm = None; k2 = 0
        for k, n in enumerate(order):
            ml = [s.smf(j, n)]
            for dt in range(8):
                kss = [0] if hv and n == 4 else ([0, 1] if dt % 2 == 0 else [1, 0])
                ml += [mfma(O(n, dt), VF(dt, ks), P(par, n, ks), O(n, dt)) for ks in kss]
            s.add(ml); lastm = ml[-1]
            if k == 0: s.stamp(ml[0])
            if hv and n == 4: s.add(s.cmb_give(1, CT))
            if hv and k == 2:
                bl = s.barrier([], [], extra_need=["cw"], extra_w=["cmb"], extra_r=["cgive"]); s.hint(bl[0], ml[0], 0); s.add(bl)
        for k, n in enumerate(order):
            if hv and n == 4: continue
            rl = RL + 2 * (k2 % 2); X = (k2 % 2) * 16384; usepk = OPT["pk"] and k2 >= 2; k2 += 1
            s.add(s.ep_l(1, n, rl, TMP + 2))
            for D in range(4):
                tb = TB[D % 2]
                s.add([V("v_accvgpr_read_b32", f"v{tb+r}", f"a{aO+32*n+8*D+r}") for r in range(8)])
                if usepk:
                    s.add([s.hint(V("v_pk_mul_f32", ("v", tb + 2 * r, 2), ("v", tb + 2 * r, 2), ("v", rl, 2), mod=" op_sel_hi:[1,0]"), lastm, 0) for r in range(4)])
                else: s.add([V("v_mul_f32", f"v{tb+r}", f"v{tb+r}", f"v{rl}") for r in range(8)])
                ws = []
                for h in range(2):
                    dt = 2 * D + h; pk = PKD[dt % 4]
                    s.add([V("v_cvt_pk_bf16_f32", f"v{pk+r}", f"v{tb+4*h+2*r}", f"v{tb+4*h+2*r+1}") for r in range(2)])
                    w = ds_write("ds_write_b64", f"v{WA+dt%4}", ("v", pk, 2), X + (dt // 4) * 128); w.xr = {f"Xw{X}"}; w.xw = {f"Xd{X}_{dt}"}; ws.append(w)
                s.add(ws)
            t, oo = s.rowoff(1, n); s.add(oo)
            rs = []
            for r in range(4):
                i = ds_read("ds_read_b128", ("v", RB[r], 4), f"v{RA}", X + r * 1024); i.xr = {f"Xd{X}_{dt}" for dt in range(8)}; rs.append(i)
            s.add(rs)
            s.add([bstore(("v", RB[r], 4), f"v{GA+r%2}", sO, t, r * 1024, mod=MODS[OPT["o1"]]) for r in range(4)])
            if hv and k == 2: s.add(s.cmb_take(1, CT, CU, [vS, vS + 8], [vQB + 24, vQB + 28], VOO, OPT["o1"]))

    def build(s):
        s.bstart = {}; s.stamp_at = {0, 4, 8, 12, 15, 16, 18, 24} if OPT["stamps"] else set()
        s.nstamp = 1
        s.plan_stage()
        s.start()
        for j in range(31): s.block(j)
        s.tail()
        ms = [i for i in s.prog if ismf(i)]
        for k, m in enumerate(ms): m.mi = k
        for i, m, off, attr in s.hints: setattr(i, attr, ms[max(0, min(len(ms) - 1, m.mi + off))])
        out = schedule(s.prog, verbose=True, name=s.tag)
        if OPT["verbose"]:
            prev = None
            for j in sorted(s.bstart):
                if prev is not None: print(f"  blk {j-1}: {s.bstart[j].st - prev}", end="")
                prev = s.bstart[j].st
            print(f"\n  start {s.bstart[0].st}  tail from blk30 {out[-1].st - prev}")
        return out

def setup_common():
    t0, t1, w = "s36", "s37", "s38"
    o = [raw("s_cmp_lt_u32 s2, 256", w=["scc"]), br("s_cbranch_scc1", "Lgo"), raw("s_endpgm"), label("Lgo")]
    if OPT["stamps"]: o += [raw("s_memtime s[44:45]"), raw("s_memrealtime s[46:47]")]
    o += [raw("s_load_dwordx4 s[24:27], s[0:1], 0"), raw("s_load_dwordx4 s[28:31], s[0:1], 16"),
          V("v_lshrrev_b32", "v1", 6, "v0"), V("v_and_b32", "v16", 63, "v0"), V("v_and_b32", "v17", 15, "v0"),
          V("v_readfirstlane_b32", w, "v1"), V("v_lshrrev_b32", "v18", 4, "v16"),
          S("s_and_b32", t0, "s2", 7), S("s_lshr_b32", t1, "s2", 4), S("s_lshl_b32", t0, t0, 4), S("s_add_u32", t0, t0, t1),
          S("s_mul_i32", t1, t0, 2 * HEADQ), S("s_lshl_b32", t0, t0, 19), S("s_lshl_b32", sW4K, w, 12), S("s_mov_b32", sOFF, sW4K)]
    l, m, g, a, b, c = "v16", "v17", "v18", "v19", "v20", "v21"
    o += [V("v_lshlrev_b32", a, 1, g), V("v_xor_b32", a, a, m), V("v_lshlrev_b32", a, 4, a), V("v_lshl_add_u32", f"v{vDA}", g, 8, a), V("v_xor_b32", f"v{vDB}", 128, f"v{vDA}")]
    o += [raw("s_waitcnt lgkmcnt(0)", k="salu")]
    for srd, p, off, sz in ((sK, 26, t0, 2 * HEADK), (sQ, 24, t1, 2 * HEADQ), (sV, 28, t0, 2 * HEADK), (sO, 30, t1, 2 * HEADQ)):
        o += [S("s_add_u32", f"s{srd}", f"s{p}", off), S("s_addc_u32", f"s{srd+1}", f"s{p+1}", 0), S("s_mov_b32", f"s{srd+2}", sz), S("s_mov_b32", f"s{srd+3}", "0x00020000")]
        if srd == sK: o += Role("AA", "").dma("K", 0)
    o += [S("s_bitcmp1_b32", "s2", 3), br("s_cbranch_scc1", "LroleY")]
    return o

def setup_role(R, k):
    t0, t1, w = "s36", "s37", "s38"
    o = []
    for p in range(2):
        if OPT["ab"] and R.half[p]:
            o += [S("s_lshl_b32", sROW[p][0], w, 14), S("s_add_u32", sROW[p][0], sROW[p][0], p * HEADQ + 20 * 4096),
                  S("s_lshr_b32", sROW[p][1], w, 1), S("s_lshl_b32", sROW[p][1], sROW[p][1], 12), S("s_add_u32", sROW[p][1], sROW[p][1], p * HEADQ + 36 * 4096)]
        else:
            base = 0 if OPT["ab"] or (p ^ k) == 0 else 18 * 4096
            o += [S("s_mul_i32", sROW[p][0], w, 5 * 4096), S("s_add_u32", sROW[p][0], sROW[p][0], p * HEADQ + base), S("s_add_u32", sROW[p][1], sROW[p][0], 4 * 4096)]
    o += [S("s_and_b32", sD0, w, 1), S("s_lshr_b32", "s35", "s2", 4), S("s_lshl_b32", "s35", "s35", 2), S("s_add_u32", "s35", "s35", w)]
    if OPT["stamps"]: o += [S("s_lshl_b32", "s100", "s2", 2), S("s_add_u32", "s100", "s100", w), S("s_mov_b32", "s101", "s2")]
    o += R.pre
    l, m, g, a, b, c = "v16", "v17", "v18", "v19", "v20", "v21"
    if OPT["pf"]:
        o += [raw("s_getpc_b64 s[40:41]", w=["s40", "s41"]), label(f"Lpf{k}"), S("s_mov_b32", "s42", f"Lfin{k}-Lpf{k}"), S("s_mov_b32", "s43", "0x00020000"),
              S("s_lshl_b32", "s35", "s35", 11), V("v_lshlrev_b32", a, 5, l)]
        i = I("buffer_load_dword v255, v19, s[40:43], s35 offen", "vmem", w=["v255"], r=["v19", "s35", "s40", "s41", "s42", "s43"]); o.append(i)
    o += [S("s_lshl_b32", sFK, sD0, 13), S("s_lshl_b32", sD0, sD0, 7), S("s_or_b32", sFV, sFK, sD0), S("s_xor_b32", sD1, sD0, 128)]
    o += [V("v_lshlrev_b32", a, 4, g), V("v_lshl_add_u32", f"v{vG}", m, 8, a)]
    o += [V("v_and_b32", a, 7, m), V("v_lshlrev_b32", a, 1, a), V("v_xor_b32", a, a, g), V("v_lshlrev_b32", a, 4, a), V("v_lshl_add_u32", f"v{vKA}", m, 8, a)]
    o += [V("v_xor_b32", f"v{vKA+ks}", 64 * ks, f"v{vKA}") for ks in range(1, 4)]
    o += [S("s_add_u32", t0, sW4K, 49152)]
    for ks in range(4): o += [V("v_add_u32", f"v{R.TA+ks}", t0, f"v{vKA+ks}"), V("v_add_u32", f"v{R.TA+4+ks}", "0x10000", f"v{R.TA+ks}")]
    o += [V("v_lshrrev_b32", a, 2, l), V("v_and_b32", b, 7, a), V("v_lshlrev_b32", b, 5, b), V("v_and_b32", c, 3, l), V("v_lshlrev_b32", c, 3, c),
          V("v_xor_b32", b, b, c), V("v_lshl_add_u32", b, a, 8, b), V("v_add_u32", f"v{vVA}", "0x10000", b)]
    if R.half[0]:
        o += [V("v_xor_b32", f"v{vVA}", sFV, f"v{vVA}")] + [V("v_xor_b32", f"v{vKA+ks}", sFK, f"v{vKA+ks}") for ks in range(4)]
    o += [V("v_xor_b32", f"v{vVA+dt}", 32 * dt, f"v{vVA}") for dt in range(1, 8)]
    o += [V("v_and_b32", a, 2, m), V("v_cmp_eq_u32", "vcc", 0, a), V("v_mov_b32", b, "0x3f803f80"), V("v_cndmask_b32", a, 0, b, "vcc"), V("v_xor_b32", b, a, b)]
    o += [V("v_accvgpr_write_b32", f"a{aONE+i}", a) for i in range(4)] + [V("v_accvgpr_write_b32", f"a{aONE+4+i}", b) for i in range(4)]
    o += [V("v_and_b32", a, 1, m), V("v_cmp_eq_u32", "vcc", 1, a), V("v_mov_b32", b, "0x44444444"), V("v_mov_b32", c, "0xeeeeeeee"), V("v_cndmask_b32", f"v{vIDX}", b, c, "vcc")]
    o += [S("s_mov_b32", sC, hex(CSCALE)), S("s_mov_b32", sC2, hex(CSCALE)), S("s_mov_b32", sMASK, "0xffff0000"), S("s_mov_b32", sTHR, "0x53800000"),
          S("s_mov_b64", sBAD[0], 0), S("s_mov_b64", sBAD[1], 0)]
    return o

def finish(R, k):
    o = []
    if OPT["stamps"]:
        n = R.nstamp
        o += [raw(f"s_memtime s[{44+4*n}:{45+4*n}]"), raw(f"s_memrealtime s[{46+4*n}:{47+4*n}]"), raw("s_waitcnt vmcnt(0) lgkmcnt(0)")]; n += 1
        o += [raw(f"s_memtime s[{44+4*n}:{45+4*n}]"), raw(f"s_memrealtime s[{46+4*n}:{47+4*n}]"), raw("s_waitcnt lgkmcnt(0)")]; n += 1
        assert n <= 14
        if OPT["pi"] >= 0:
            i, j, kk = OPT["pi"], OPT["pj"], OPT["pk_"]
            if not OPT["pall"]: o += [raw("s_and_b32 s101, s101, 0xf7"), raw("s_cmp_lg_u32 s101, 100"), raw(f"s_cbranch_scc1 Lfin{k}")]
            o += [raw(f"s_sub_u32 s36, s{44+4*j+2*kk}, s{44+4*i+2*kk}"), raw("s_mul_i32 s36, s36, 10") if kk else raw("s_lshr_b32 s36, s36, 1"),
                  raw("s_min_u32 s36, s36, 200000"), raw("s_memrealtime s[38:39]"), raw("s_waitcnt lgkmcnt(0)"), label(f"Lspin{k}"), raw("s_memrealtime s[40:41]"), raw("s_waitcnt lgkmcnt(0)"),
                  raw("s_sub_u32 s37, s40, s38"), raw("s_cmp_lt_u32 s37, s36"), raw(f"s_cbranch_scc1 Lspin{k}")]
        else:
            o += [raw("; STAMPS"), raw("s_load_dwordx2 s[40:41], s[0:1], 40"), raw("v_mov_b32 v16, 0")]
            for x in range(n): o += [raw(f"v_writelane_b32 v16, s{44+4*x}, {2*x}"), raw(f"v_writelane_b32 v16, s{46+4*x}, {2*x+1}")]
            o += [raw(f"v_writelane_b32 v16, {n}, 63"), raw("s_lshl_b32 s100, s100, 8"), raw("v_mbcnt_lo_u32_b32 v17, -1, 0"), raw("v_mbcnt_hi_u32_b32 v17, -1, v17"), raw("v_lshlrev_b32 v17, 2, v17"),
                  raw("s_waitcnt lgkmcnt(0)"), raw("s_mov_b32 s42, 0x100000"), raw("s_mov_b32 s43, 0x00020000"), raw("buffer_store_dword v16, v17, s[40:43], s100 offen"), raw("s_waitcnt vmcnt(0)")]
    o += [label(f"Lfin{k}")]
    if OPT["slow"]: o += [raw("s_or_b64 s[36:37], s[30:31], s[32:33]"), raw("s_cbranch_scc1 Lslow")]
    o += [raw("s_endpgm")]
    return o

MACROS = """.macro qa d,a,b,c
v_mfma_f32_16x16x32_bf16 v[\\d:\\d+3], a[\\a:\\a+3], v[\\b:\\b+3], v[\\c:\\c+3]
.endm
.macro qb d,a,b,c
v_mfma_f32_16x16x32_bf16 v[\\d:\\d+3], a[\\a:\\a+3], a[\\b:\\b+3], v[\\c:\\c+3]
.endm
.macro pv d,a,b
v_mfma_f32_16x16x32_bf16 a[\\d:\\d+3], a[\\a:\\a+3], v[\\b:\\b+3], a[\\d:\\d+3]
.endm
.macro ex r
v_exp_f32 v\\r, v\\r
.endm
.macro cv d,a,b
v_cvt_pk_bf16_f32 v\\d, v\\a, v\\b
.endm
.macro lk d,a,o
ds_read_b128 a[\\d:\\d+3], v\\a offset:\\o
.endm
.macro lv d,a,o
ds_read_b64_tr_b16 a[\\d:\\d+1], v\\a offset:\\o
.endm
"""
def compact(txt):
    M = "    v_mfma_f32_16x16x32_bf16 "
    txt = re.sub(M + r"v\[(\d+):\d+\], a\[(\d+):\d+\], v\[(\d+):\d+\], v\[(\d+):\d+\]", r"qa \1,\2,\3,\4", txt)
    txt = re.sub(M + r"v\[(\d+):\d+\], a\[(\d+):\d+\], a\[(\d+):\d+\], v\[(\d+):\d+\]", r"qb \1,\2,\3,\4", txt)
    txt = re.sub(M + r"a\[(\d+):\d+\], a\[(\d+):\d+\], v\[(\d+):\d+\], a\[\1:\d+\]", r"pv \1,\2,\3", txt)
    txt = re.sub(r"    v_exp_f32 v(\d+), v\1\n", r"ex \1\n", txt)
    txt = re.sub(r"    v_cvt_pk_bf16_f32 v(\d+), v(\d+), v(\d+)", r"cv \1,\2,\3", txt)
    txt = re.sub(r"    ds_read_b128 a\[(\d+):\d+\], v(\d+) offset:(\d+)", r"lk \1,\2,\3", txt)
    txt = re.sub(r"    ds_read_b64_tr_b16 a\[(\d+):\d+\], v(\d+) offset:(\d+)", r"lv \1,\2,\3", txt)
    return txt.replace("\n    ", "\n")

def build():
    com = setup_common()
    body = ""
    txt = []
    for k, types in enumerate((("AB", "BA") if OPT["ab"] else ("AA", "AA"))):
        R = Role(types, "XY"[k])
        main = R.build()
        su = setup_role(R, k)
        for i in com + su: i.st = -1000
        tr = insert_waits(com + su + main)
        while fix_hazards(tr, verbose=OPT["verbose"] > 1): pass
        e = verify2(tr); assert e == 0, e
        nc = len(com)
        assert all(a is b for a, b in zip(tr[:nc], com))
        txt.append("".join(i.text() for i in tr[nc:] + finish(R, k)))
        if OPT["verbose"]: print("  nops:", sum(i.nop for i in tr), "waits:", sum(i.k == "wait" for i in tr))
    slow = ""
    if OPT["slow"]:
        import slowpath
        slow = slowpath.text(sys.modules[__name__])
    body = "".join(i.text() for i in com) + txt[0] + slow + ".p2align 6\nLroleY:\n" + txt[1]
    return compact(body) if OPT["compact"] else body

HEAD = f"""; flash-attention forward, B8 H32 Sq608 Sk1024 D128 bf16 (emitted by my own scheduling script)
; @launch grid=(256,1,1) block=(256,1,1) lds=163840
.amdgcn_target "amdgcn-amd-amdhsa--gfx950"
{MACROS}.text
.globl {NAME}_kernel
.p2align 8
.type {NAME}_kernel,@function
{NAME}_kernel:
"""
TAIL = f""".section .rodata,"a"
.p2align 6
.amdhsa_kernel {NAME}_kernel
  .amdhsa_next_free_vgpr 512
  .amdhsa_next_free_sgpr 102
  .amdhsa_accum_offset 256
  .amdhsa_group_segment_fixed_size 0
  .amdhsa_kernarg_size 48
  .amdhsa_user_sgpr_count 2
  .amdhsa_user_sgpr_kernarg_segment_ptr 1
  .amdhsa_system_sgpr_workgroup_id_x 1
  .amdhsa_float_denorm_mode_32 3
.end_amdhsa_kernel
"""
if __name__ == "__main__":
    open(sys.argv[1], "w").write(HEAD + build() + TAIL)
```

```python
import heapq
from collections import deque
from asmir import *

SCAL = ("salu", "wait", "bar", "nop", "br")
DS_LAT = 112
def cost(i):
    if i.k == "valu": return 4
    if i.k in ("trans", "perm"): return 8
    if i.k == "ds": return 4
    if i.k == "dsw": return 22 if "b128" in i.t else (8 if "b32" in i.t else 12)
    if i.k == "vmem": return 20 if "store" in i.t else 8
    return 4
def lat_cyc(p, c, raw):
    if p.k == "ds" and raw: return DS_LAT
    if ismf(p) and raw and not ismf(c): return 36
    return 0

class Node:
    __slots__ = ("i", "idx", "pred", "succ", "np", "dl", "rt", "t", "pos", "mi")

def schedule(prog, verbose=False, name=""):
    N = []
    lastw = {}; readers = {}
    lastm = None; lastv = {}; lastseq = None
    mi = 0
    for idx, i in enumerate(prog):
        n = Node(); n.i = i; n.idx = idx; n.pred = {}; n.succ = []; n.t = None; n.pos = None; n.mi = None
        R_ = i.r | i.xr; W_ = i.w | i.xw
        for r in R_:
            p = lastw.get(r)
            if p is not None: n.pred[p] = True
        for r in W_:
            p = lastw.get(r)
            if p is not None: n.pred[p] = True
            for p in readers.get(r, ()):
                if p is not n: n.pred.setdefault(p, p.i.k == "ds" and i.k == "wait")
        for r in R_: readers.setdefault(r, []).append(n)
        for r in W_: lastw[r] = n; readers[r] = []
        if ismf(i):
            if lastm is not None: n.pred.setdefault(lastm, False)
            lastm = n; n.mi = mi; i.mi = mi; mi += 1
        if i.k == "vmem":
            cl = "st" if "store" in i.t else ("dma" if i.t.endswith("lds") else "ld")
            if cl in lastv: n.pred.setdefault(lastv[cl], False)
            lastv[cl] = n
        n.pred.pop(n, None)
        for p in n.pred: p.succ.append(n)
        n.np = len(n.pred); n.rt = 0
        N.append(n)
    NM_ = mi
    for n in reversed(N):
        if n.mi is not None: n.dl = n.mi; continue
        d = NM_ + n.idx * 1e-6
        if n.i.dlm is not None: d = min(d, n.i.dlm.mi)
        for s in n.succ:
            l = cost(n.i) / 8.0 + lat_cyc(n.i, s.i, s.pred[n]) / 16.0
            if n.i.k in SCAL: l = 1.0
            d = min(d, s.dl - l)
        n.dl = d
    ms = [n for n in N if n.mi is not None]
    ready = [n for n in N if n.np == 0 and n.mi is None]
    out = []
    t = 0; pipe = 0; slot = False; last = None; cur = -1
    left = len(N); stall = 0
    def haz_ok(n):
        d = 0; k = len(out) - 1
        while k >= 0 and d < 12:
            p = out[k]
            if required(p.i, n.i) > d: return False
            d += states(p.i); k -= 1
        return True
    def eff_cost(n):
        i = n.i
        if i.k in SCAL: return 0 if slot else 4
        c = cost(i)
        if i.k in ("ds", "dsw", "vmem"):
            if last in VALUK: c += 8
            elif last in ("ds",) and i.k == "ds": c += 4
        return c
    def issue(n):
        nonlocal t, pipe, slot, last, cur, left, stall
        i = n.i
        if n.mi is not None:
            t0 = max(t, pipe, n.rt)
            if cur >= 0: stall += t0 - pipe
            n.t = t0; pipe = t0 + (32 if i.k == "mfma8" else 16); t = t0 + (12 if i.tag == "smf" else 8)
            slot = True; last = i.k; cur = n.mi
        else:
            ready.remove(n)
            c = eff_cost(n); t = max(t, n.rt); n.t = t; t += c
            if i.k == "bar": t += 56
            slot = False
            if i.k not in SCAL: last = i.k
        i.st = n.t
        out.append(n); left -= 1
        for s in n.succ:
            s.np -= 1
            s.rt = max(s.rt, n.t + lat_cyc(i, s.i, s.pred[n]))
            if s.np == 0 and s.mi is None: ready.append(s)
    while left:
        m = ms[cur + 1] if cur + 1 < NM_ else None
        m_ok = m is not None and m.np == 0
        m_rdy = m_ok and m.rt <= max(t, pipe) and haz_ok(m)
        budget = pipe - t
        cand = [n for n in ready if (n.i.nb is None or n.i.nb.mi <= cur or n.dl <= cur + 1) and n.rt <= t]
        cand.sort(key=lambda n: (n.dl, n.idx))
        cand = [n for n in cand[:24] if haz_ok(n)]
        pick = None
        atstart = last in ("mfma", "mfma8")
        if slot:
            sc = [n for n in cand if n.i.k in SCAL]
            if sc: pick = sc[0]
        if pick is None and cand:
            fit = [n for n in cand if eff_cost(n) <= budget]
            top = cand[0]
            mem = [n for n in cand if n.i.k in ("ds", "dsw", "vmem")]
            if atstart and mem and (mem[0] is top or top.i.k == "valu" or top.i.k in SCAL or (mem[0].dl <= cur + 2)):
                x = mem[0]
                if eff_cost(x) <= budget or cost(x.i) > 8 or x.dl <= cur + 2 or not m_rdy:
                    if not (top.i.k == "valu" and cost(x.i) > 4 and top.dl <= cur + 2 and x.dl > cur + 4): pick = x
            if pick is None and fit: pick = fit[0]
            if pick is None and top.dl <= cur + 1 and top.i.k not in ("ds", "dsw", "vmem"): pick = top
            if pick is None and not m_rdy: pick = top
        if pick is not None: issue(pick)
        elif m_rdy: issue(m)
        else:
            later = [n for n in ready if n.rt > t]
            if m_ok and m.rt <= max(t, pipe):
                issue(m)
            elif (m_ok or later) and t < max([n.rt for n in later] + [m.rt if m_ok else 0]):
                t += 4; slot = False
            else:
                r = sorted(ready, key=lambda n: (n.dl, n.idx))
                assert r, "deadlock"
                issue(r[0])
    if verbose: print(f"sched {name}: {len(N)} instrs, {NM_} mfma, est cycles {max(t,pipe)}, mfma stall {stall}")
    return [n.i for n in out]

def insert_waits(seq, lq=None, vq=None):
    lq = deque() if lq is None else lq; vq = deque() if vq is None else vq
    out = []
    def retire(w):
        if w.lg is not None:
            while len(lq) > w.lg: lq.popleft()
        if w.vm is not None:
            while len(vq) > w.vm: vq.popleft()
    for i in seq:
        if i.k == "wait":
            for q, a in ((lq, "lg"), (vq, "vm")):
                lastn = -1
                for n, (o, _) in enumerate(q):
                    if (o.w | o.wt) & i.need: lastn = n
                if lastn >= 0:
                    cnt = len(q) - 1 - lastn; cur = getattr(i, a)
                    setattr(i, a, cnt if cur is None else min(cur, cnt))
            retire(i); out.append(i); continue
        touch = i.r | i.w
        for q, a, mx in ((lq, "lg", 15), (vq, "vm", 63)):
            lastn = -1
            for n, (o, _) in enumerate(q):
                if o.w & touch: lastn = n
            isq = (i.k in ("ds", "dsw")) if a == "lg" else (i.k == "vmem")
            if lastn < 0 and isq and len(q) >= mx: lastn = 0
            if lastn < 0: continue
            opos = q[lastn][1]
            pos = len(out); k = len(out) - 1; tries = 0
            while k > opos and tries < 3:
                if ismf(out[k]):
                    tries += 1
                    nxt = out[k + 1] if k + 1 < len(out) else None
                    early_ok = tries == 1 or (a == "lg" and out[k].st - q[lastn][0].st >= 96)
                    if not early_ok: break
                    if nxt is None or nxt.k not in SCAL: pos = k + 1; break
                    if nxt.k == "wait" and not nxt.need: pos = -(k + 1); break
                if out[k].k in ("label", "br"): break
                k -= 1
            apos = abs(pos)
            tpos = out[apos - 1].st if apos > 0 and out[apos - 1].st is not None else None
            if a == "lg" and tpos is not None:
                for n in range(lastn + 1, len(q)):
                    if q[n][1] < apos and q[n][0].st is not None and tpos - q[n][0].st >= DS_LAT: lastn = n
            cnt = sum(1 for n in range(lastn + 1, len(q)) if q[n][1] < apos)
            if pos < 0:
                w = out[apos]; cur = getattr(w, a); setattr(w, a, cnt if cur is None else min(cur, cnt))
            else:
                w = wait(); setattr(w, a, cnt); w.st = tpos
                out.insert(apos, w)
                for qq in (lq, vq):
                    for n in range(len(qq)):
                        if qq[n][1] >= apos: qq[n] = (qq[n][0], qq[n][1] + 1)
            for _ in range(lastn + 1): q.popleft()
        if i.k in ("ds", "dsw"): lq.append((i, len(out)))
        elif i.k == "vmem": vq.append((i, len(out)))
        out.append(i)
    return out

def verify2(trace):
    lq = deque(); vq = deque(); errs = 0
    landed = {}; visible = {}; slotof = {}; readdone = {}; nbar = 0; privl = {}; arrived = False; snap = {}
    for i in trace:
        if i.k == "wait":
            if i.lg is not None:
                while len(lq) > i.lg:
                    o = lq.popleft()
                    if o.ring and o.cmt != "early": readdone[o.ring] = nbar + (1 if arrived else 0)
            if i.vm is not None:
                while len(vq) > i.vm:
                    o = vq.popleft()
                    if o.ring: landed[o.ring] = landed.get(o.ring, 0) + 1
                    if o.priv: privl[o.priv] = privl.get(o.priv, 0) + 1
            continue
        if i.k == "bar":
            nbar += 1; visible.update(landed); continue
        if i.cmt == "arrive":
            snap = dict(landed); arrived = True
            for o in lq:
                if o.ring: o.cmt = "early"; readdone[o.ring] = nbar
        if i.cmt == "check":
            nbar += 1; visible.update(snap); arrived = False; continue
        for q in (lq, vq):
            for o in q:
                if o.w & (i.r | i.w): print(f"  ERR pending load [{o.t}] vs [{i.t}]"); errs += 1
        if i.k in ("ds", "dsw"):
            if i.ring:
                kind, b = i.ring
                if visible.get(i.ring, 0) < 4: print(f"  ERR RAW {i.ring} not visible at [{i.t}]"); errs += 1
                if slotof.get((kind, b % 4)) != b: print(f"  ERR slot overwritten {i.ring} at [{i.t}]"); errs += 1
            if i.priv and privl.get(i.priv, 0) < 4: print(f"  ERR priv RAW {i.priv}"); errs += 1
            lq.append(i)
            if len(lq) > 15: print("  ERR lgkm overflow"); errs += 1
        elif i.k == "vmem":
            if i.ring:
                kind, b = i.ring; old = (kind, b - 4)
                if b >= 4:
                    if any(o.ring == old for o in lq) or old not in readdone or readdone[old] >= nbar:
                        print(f"  ERR WAR DMA {i.ring}"); errs += 1
                if any(o.priv and o.priv[1] == (kind, b % 4) for o in lq): print(f"  ERR WAR priv {i.ring}"); errs += 1
                slotof[(kind, b % 4)] = b
            vq.append(i)
            if len(vq) > 63: print("  ERR vm overflow"); errs += 1
    return errs
```

```python
from asmir import *
def text(G):
    R = G.Role("AA", "S")
    vG, vS, vNM, vQA, vP, vVA = G.vG, G.vS, G.vNM, G.vQA, G.vP, G.vVA
    sQ, sK, sV, sO = G.sQ, G.sK, G.sV, G.sO
    r0, r4, kb0, ko, cnt, t, ps = "s36", "s37", "s38", "s39", "s40", "s41", "s42"
    W0 = lambda: raw("s_waitcnt vmcnt(0) lgkmcnt(0)")
    T = G.vQB; M = T + 8; aLs = G.aQB; VOO = T + 14
    def row(n): return S("s_add_u32", t, r0, n * 4096) if n < 4 else S("s_mov_b32", t, r4)
    o = [label("Lslow"), W0(), S("s_mov_b32", ps, 0)]
    a, b, c = f"v{T}", f"v{T+1}", f"v{T+2}"
    o += [V("v_mbcnt_lo_u32_b32", c, -1, 0), V("v_mbcnt_hi_u32_b32", c, -1, c),
          V("v_lshrrev_b32", a, 2, c), V("v_and_b32", b, 7, a), V("v_lshlrev_b32", b, 5, b), V("v_and_b32", c, 3, c), V("v_lshlrev_b32", c, 3, c),
          V("v_xor_b32", b, b, c), V("v_lshl_add_u32", b, a, 8, b), V("v_add_u32", b, G.sW4K, b), V("v_add_u32", f"v{vVA}", G.VB, b)]
    o += [V("v_xor_b32", f"v{vVA+dt}", 32 * dt, f"v{vVA}") for dt in range(1, 8)]
    o += R.voo_calc(VOO, T)
    o += [label("Lsl_pass"), S("s_cmp_eq_u64", G.sBAD[0], 0), br("s_cbranch_scc1", "Lsl_next"),
          S("s_mov_b32", r0, G.sROW[0][0]), S("s_mov_b32", r4, G.sROW[0][1]), S("s_mul_i32", kb0, ps, G.HEADK)]
    for n in range(5):
        o += [row(n)] + [bload(G.Q(0, n, ks), f"v{vG}", sQ, t, ks * 64) for ks in range(4)]
    o += [W0()]
    for r in range(80): o += R.scale(f"v{vQA+r}", f"v{vQA+r}", T + 2 * (r % 4))
    o += [V("v_mov_b32", f"v{M+n}", "0xff800000") for n in range(5)]
    o += [S("s_mov_b32", ko, kb0), S("s_mov_b32", cnt, 16), label("Lsl_max")]
    for tt in range(4):
        o += [bload(("a", 16 * tt + 4 * ks, 4), f"v{vG}", sK, ko, ks * 64) for ks in range(4)] + [S("s_add_u32", ko, ko, 4096)]
    o += [W0()]
    for tt in range(4):
        for n in range(5): o += R.chain(0, n, G.Sx(n), lambda ks: ("a", 16 * tt + 4 * ks, 4), True)
        for n in range(5):
            x = vS + 4 * n
            o += [V("v_max3_f32", f"v{M+n}", f"v{M+n}", f"v{x}", f"v{x+1}"), V("v_max3_f32", f"v{M+n}", f"v{M+n}", f"v{x+2}", f"v{x+3}")]
    o += [nop(12), S("s_sub_u32", cnt, cnt, 1), S("s_cmp_lg_u32", cnt, 0), br("s_cbranch_scc1", "Lsl_max")]
    for n in range(5):
        m = f"v{M+n}"
        o += [V("v_mov_b32", b, m), swap("v_permlane16_swap_b32", m, b), V("v_max_f32", m, m, b), V("v_mov_b32", b, m), swap("v_permlane32_swap_b32", m, b), V("v_max_f32", m, m, b)]
    o += [V("v_accvgpr_write_b32", f"a{r}", 0) for r in list(range(160)) + list(range(aLs, aLs + 20))]
    KB = G.aV; VB = vP + 40
    o += [S("s_mov_b32", ko, kb0), S("s_mov_b32", cnt, 32), label("Lsl_pv")]
    for u in range(2):
        o += [bload(("a", KB + 16 * u + 4 * ks, 4), f"v{vG}", sK, ko, ks * 64) for ks in range(4)]
        o += [S("s_add_u32", "m0", G.sW4K, G.VB + 16384 * u)]
        o += [dma(f"v{G.vDA if k % 2 == 0 else G.vDB}", sV, ko, k * 1024) for k in range(4)] + [S("s_add_u32", ko, ko, 4096)]
    o += [W0()]
    for dt in range(8):
        o += [ds_read("ds_read_b64_tr_b16", ("v", VB + 4 * dt + 2 * u, 2), f"v{vVA+dt}", u * 16384) for u in range(2)]
        if dt == 3: o += [W0()]
    for u in range(2):
        for n in range(5): o += R.chain(0, n, G.Sx(n), lambda ks: ("a", KB + 16 * u + 4 * ks, 4), True)
        for n in range(5):
            o += [V("v_sub_f32", f"v{vS+4*n+r}", f"v{vS+4*n+r}", f"v{M+n}") for r in range(4)] + R.expcvt(0, n, u, G.Sx(n))
    o += [W0()]
    for n in range(5):
        o += [mfma(("a", aLs + 4 * n, 4), G.ONE(0), G.P(0, n, 0), ("a", aLs + 4 * n, 4))]
        o += [mfma(G.O(n, dt), ("v", VB + 4 * dt, 4), G.P(0, n, 0), G.O(n, dt)) for dt in range(8)]
    o += [nop(12), S("s_sub_u32", cnt, cnt, 1), S("s_cmp_lg_u32", cnt, 0), br("s_cbranch_scc1", "Lsl_pv")]
    for n in range(5):
        o += [V("v_accvgpr_read_b32", a, f"a{aLs+4*n}"), V("v_rcp_f32", a, a), row(n)]
        for D in range(4):
            tb = T + 16; pk = T + 24 + 4 * (D % 2)
            o += [V("v_accvgpr_read_b32", f"v{tb+r}", f"a{32*n+8*D+r}") for r in range(8)]
            o += [V("v_mul_f32", f"v{tb+r}", f"v{tb+r}", a) for r in range(8)]
            o += [V("v_cvt_pk_bf16_f32", f"v{pk+r}", f"v{tb+2*r}", f"v{tb+2*r+1}") for r in range(4)]
            o += [swap("v_permlane16_swap_b32", f"v{pk}", f"v{pk+2}"), swap("v_permlane16_swap_b32", f"v{pk+1}", f"v{pk+3}")]
            o += [bstore(("v", pk, 4), f"v{VOO}", sO, t, D * 64, mod=G.MODS[G.OPT["o1"]])]
    o += [W0(), label("Lsl_next"), nop(12), S("s_mov_b64", G.sBAD[0], G.sBAD[1]), S("s_mov_b32", G.sROW[0][0], G.sROW[1][0]), S("s_mov_b32", G.sROW[0][1], G.sROW[1][1]),
          S("s_add_u32", ps, ps, 1), S("s_cmp_lt_u32", ps, 2), br("s_cbranch_scc1", "Lsl_pass"), raw("s_endpgm")]
    while fix_hazards(o, verbose=False): pass
    return "".join(i.text() for i in o)
```

```python
import sys, struct, math, re
from asmir import *
from sched import *

NAME = "standalone__mha_softmax__near_ridge"
OPT = dict(sdl=40, tdl=34, fl=1, flr=18, stm=0, samekv=0, nosmf=0, nocvt=0, nodma=0, nobar=0, noxor=0, nolds=0, noexp=0, xd=0, thr=0x5f800000, lagc=50, lagmax=240, stamps=0, kv=1, kvy=1, q=1, o0=4, o1=4, ab=1, pf=1, e0=7, pk=1, pi=-1, pj=0, pk_=1, pall=0, verbose=0, compact=1, slow=1)
MODS = ["", " nt", " sc1", " sc1 nt", " sc0 sc1", " sc0 sc1 nt", " sc0", " sc0 nt"]
for a in sys.argv[2:]:
    k, v = a.split("="); assert k in OPT, k; OPT[k] = int(v)
vKA = 0; vVA = 4; vDA, vDB = 12, 13; vIDX = 14; vG = 15
vS = 16; vNM = 36; vQA = 56; vP = 136; vQB = 216; vT = 252
aO = 0; aL = 160; aONE = 172; aV = 180; aK = 196; aQB = 212
sQ, sK, sV, sO = 4, 8, 12, 16
sOFF = "s20"; sW4K = "s21"; sC = "s22"; sC2 = "s23"
sROW = [["s24", "s25"], ["s26", "s27"]]
sMASK = "s28"; sTHR = "s29"; sBAD = [("s", 30, 2), ("s", 32, 2)]; sFK = "s34"; sFV = "s35"; sD0 = "s3"; sD1 = "s2"
sOFV = "s43"
sTMP = [f"s{i}" for i in range(36, 43)]
HEADQ = 608 * 256; HEADK = 1024 * 256
CSCALE = struct.unpack("<I", struct.pack("<f", math.log2(math.e) / math.sqrt(128.0)))[0]
X1 = 0; X0 = 16384; KB = 32768; VB = 98304; FLAG = 1024
vFA, vFE = 254, 255
_st = [0]
def stmp():
    _st[0] = (_st[0] + 1) % len(sTMP); return sTMP[_st[0]]
def SS(op, d, *src):
    i = S(op, d, *src); i.w.discard("scc"); return i

def Sx(n): return ("v", vS + 4 * n, 4)
def NM(n): return ("v", vNM + 4 * n, 4)
def Q(p, n, ks):
    f = 4 * n + ks
    if p == 0: return ("v", vQA + 4 * f, 4)
    return ("a", aQB + 4 * f, 4) if f < 11 else ("v", vQB + 4 * (f - 11), 4)
def P(par, n, ks): return ("v", vP + 40 * par + 8 * n + 4 * ks, 4)
def O(n, dt): return ("a", aO + 32 * n + 4 * dt, 4)
def L(n): return ("a", aL + 4 * (n // 2), 4)
def Lr(n): return aL + 4 * (n // 2) + 2 * (n % 2)
def ONE(n): return ("a", aONE + 4 * (n % 2), 4)

class Role:
    def __init__(s, types, tag):
        s.half = [t == "B" for t in types]; s.tag = tag
        s.kst = [[s.half[0], 0] for _ in range(4)]; s.vst = [[s.half[0], 0] for _ in range(8)]
        s.prog = []; s.hints = []; s.nstamp = 0; s.epoch = 0; s.stubs = []
    def add(s, *l):
        for x in l:
            if isinstance(x, list): s.prog += x
            else: s.prog.append(x)
    def hint(s, i, m, off, attr="nb"): s.hints.append((i, m, off, attr)); return i
    def addr(s, st, reg, half, h, sflip):
        o = []
        if st[0] != half:
            if st[1]: o.append(V("v_xor_b32", reg, "0x2000", reg)); st[1] = 0
            o.append(V("v_xor_b32", reg, sflip, reg)); st[0] = half
        if not half: return o, h * 8192
        if st[1] != h: o.append(V("v_xor_b32", reg, "0x2000", reg)); st[1] = h
        return o, 0
    def kread(s, dst, b, t, ks):
        o, off = s.addr(s.kst[ks], f"v{vKA+ks}", s.half[b // 16], t >> 1, sFK)
        i = ds_read("ds_read_b128", dst, f"v{vKA+ks}", (b % 4) * 16384 + off + (t & 1) * 4096)
        i.ring = ("K", b); i.xr = {f"cK{b}", f"oK{b}"}; i.wt = {f"rK{b}"}
        return o + [i]
    def vread(s, dst, b, dt, ks):
        o, off = s.addr(s.vst[dt], f"v{vVA+dt}", s.half[b // 16], ks, sFV)
        for u in range(2):
            i = ds_read("ds_read_b64_tr_b16", (dst[0], dst[1] + 2 * u, 2), f"v{vVA+dt}", (b % 4) * 16384 + off + u * 4096)
            i.ring = ("V", b); i.xr = {f"cV{b}", f"oV{b}"}; i.wt = {f"rV{b}"}
            o.append(i)
        return o
    def vks(s, b, dt, pref):
        if s.half[b // 16] and s.vst[dt][0]: return [s.vst[dt][1], s.vst[dt][1] ^ 1]
        return pref
    def dma(s, kind, b, gate=None):
        o = []
        so = sOFF if kind == "K" else sOFV
        if b > 0: o.append(SS("s_add_u32", so, so, 16384))
        o.append(SS("s_add_u32", "m0", sW4K, (b % 4) * 16384 + (VB if kind == "V" else KB)))
        for k in range(4):
            i = dma(f"v{vDA if k % 2 == 0 else vDB}", sK if kind == "K" else sV, so, k * 1024, mod=MODS[OPT["kvy" if s.tag == "Y" and b >= 3 else "kv"]])
            i.ring = (kind, b); i.wt = {f"d{kind}{b}"}; i.xw = {f"i{kind}{b}"}
            if gate: i.xr = {gate}
            o.append(i)
        return o
    def barrier(s, close, opn, gate=None, extra_need=(), extra_w=(), extra_r=()):
        w = wait(need=[f"r{x}" for x in close] + [f"d{x}" for x in opn] + list(extra_need))
        w.xw = {f"c{x}" for x in close} | {"barseq"}; w.xr = {f"i{x}" for x in opn} | set(extra_r)
        b = bar(); b.xr = {"barseq"}; b.xw = {f"o{x}" for x in opn} | ({gate} if gate else set()) | set(extra_w)
        return [w, b]
    def sync(s, close, opn, m, gate=None, extra_need=(), extra_w=(), extra_r=(), off_bar=0, off_rd=0):
        if not OPT["fl"]:
            bl = s.barrier(close, opn, gate, extra_need, extra_w, extra_r); s.hint(bl[0], m, off_bar); return bl
        s.epoch += 1; e = s.epoch; tag = f"{s.tag}{e}"
        w = wait(need=[f"d{x}" for x in opn]); w.xr = {f"i{x}" for x in opn}; w.xw = {"flseq"}; s.hint(w, m, 0)
        a = ds_write("ds_write_b32", f"v{vFA}", f"v{vFE}", 0); a.xr = {"flseq"} | set(extra_r); a.xw = {f"c{x}" for x in close}; a.cmt = "arrive"
        r = ds_read("ds_read_b32", f"v{vFE}", f"v{vDA}", FLAG); s.hint(r, m, off_rd)
        c = V("v_cmp_gt_u32", "vcc", e, f"v{vFE}")
        b = I(f"s_cbranch_vccnz Ls{tag}\nLr{tag}:", "br", r=["vcc", f"v{vDA}"], w=["vcc", f"v{vFE}"]); b.cmt = "check"
        b.xw = {f"o{x}" for x in opn} | ({gate} if gate else set()) | set(extra_w)
        s.stubs += [label(f"Ls{tag}"), raw(f"ds_read_b32 v{vFE}, v{vDA} offset:{FLAG}"), raw("s_waitcnt lgkmcnt(0)"), raw(f"v_cmp_gt_u32 vcc, {e}, v{vFE}"), raw("s_nop 0"),
                    raw(f"s_cbranch_vccnz Ls{tag}"), raw(f"s_branch Lr{tag}")]
        mv = V("v_mov_b32", f"v{vFE}", e)
        for i in (w, a): s.hint(i, m, max(0, off_rd - 10), "dlm")
        return ([w] if opn else []) + [mv, a, r, c, b]
    def chain(s, p, n, sq, kf, czero):
        order = [0, 1, 2, 3] if n % 2 == 0 else [3, 2, 1, 0]
        return [mfma(sq, kf(ks), Q(p, n, ks), sq if k else ("0" if czero else NM(n))) for k, ks in enumerate(order)]
    def rowmax(s, n, sq, a, b):
        x = [f"v{sq[1]+r}" for r in range(4)]
        l = [V("v_max3_f32", a, x[0], x[1], x[2]), V("v_max_f32", a, a, x[3]), V("v_mov_b32", b, a),
             swap("v_permlane16_swap_b32", a, b), V("v_max_f32", a, a, b), V("v_mov_b32", b, a), swap("v_permlane32_swap_b32", a, b)]
        l += [V("v_min_f32", f"v{vNM+4*n+r}", "-" + a, "-" + b) for r in range(4)]
        l += [V("v_add_f32", x[r], x[r], f"v{vNM+4*n}") for r in range(4)]
        return l
    def expcvt(s, par, n, t, sq, pb=None):
        l = []
        if pb is None: pb = vP + 40 * par + 8 * n
        for h in range(2):
            x0, x1 = f"v{sq[1]+2*h}", f"v{sq[1]+2*h+1}"
            l += [V("v_exp_f32", x0, x0), V("v_exp_f32", x1, x1), V("v_cvt_pk_bf16_f32", f"v{pb+2*t+h}", x0, x1)]
        return l
    def smf(s, b, n, pb=None):
        if pb is None: pb = vP + 40 * (b % 2) + 8 * n
        if s.half[b // 16] and n == 4: return mfma(L(4), ONE(4), ("v", pb, 4), L(4))
        return smfmac(L(n), ONE(n), ("v", pb, 8), f"v{vIDX}")
    def scale(s, src, dst, ta, pk=False):
        a, b = f"v{ta}", f"v{ta+1}"
        l = [V("v_lshlrev_b32", a, 16, src), V("v_and_b32", b, sMASK, src)]
        if pk: l += [V("v_pk_mul_f32", ("v", ta, 2), ("v", ta, 2), ("s", 22, 2))]
        else: l += [V("v_mul_f32", a, sC, a), V("v_mul_f32", b, sC, b)]
        if dst[0] == "v": return l + [V("v_cvt_pk_bf16_f32", dst, a, b)]
        return l + [V("v_cvt_pk_bf16_f32", a, a, b), V("v_accvgpr_write_b32", dst, a)]
    def rowoff(s, p, n, extra=None):
        t = stmp()
        i = SS("s_add_u32", t, sROW[p][0], n * 4096) if n < 4 else SS("s_mov_b32", t, sROW[p][1])
        if extra is None: return t, [i]
        return t, [i, SS("s_add_u32", t, t, extra)]
    def stamp(s, m=None, off=0):
        if not OPT["stamps"]: return
        k = s.nstamp; s.nstamp += 1; assert k < 14
        a = raw(f"s_memtime s[{44+4*k}:{45+4*k}]"); b = raw(f"s_memrealtime s[{46+4*k}:{47+4*k}]")
        for i in (a, b):
            if m is not None: s.hint(i, m, off); s.hint(i, m, off + 2, "dlm")
            else: i.xw = {"seq"}
        s.add(a, b)

    QREG = [(VB + 16384, ("V", 1)), (VB + 32768, ("V", 2)), (VB + 49152, ("V", 3)), (X0, None), (X1, None)]
    TA = 236
    def qdma(s, n):
        t, o = s.rowoff(0, n)
        o.append(SS("s_add_u32", "m0", sW4K, s.QREG[n][0]))
        for k in range(4):
            i = dma(f"v{vDA if k % 2 == 0 else vDB}", sQ, t, k * 1024, mod=MODS[OPT["q"]])
            i.wt = {f"dQ{n}"}; i.priv = (n, s.QREG[n][1]); o.append(i)
        return o
    def start(s):
        half = s.half[0]; TA = s.TA
        def seq(l):
            for i in l:
                if i.k in ("vmem", "wait", "bar"): i.xw = i.xw | {"seq"}
            return l
        if OPT["stm"] == 1: s.stamp()
        bl = seq(s.barrier([], ["K0", "K1"]))
        s.add(bl[0], seq(s.qdma(2)), bl[1])
        if OPT["stm"] == 1: s.stamp()
        KF = lambda b, t: (lambda ks: ("a", 16 * t + 4 * ks, 4) if b == 0 else Q(1, t, ks))
        s.KF = KF
        for b, t in ((0, 0), (0, 1), (1, 0), (1, 1), (0, 2), (0, 3), (1, 2), (1, 3)):
            for ks in range(4):
                l = s.kread(KF(b, t)(ks), b, t, ks); l[-1].xr = l[-1].xr | {"seq"}; s.add(l)
        nxt = [s.qdma(3), s.qdma(4), s.dma("V", 0), s.dma("K", 2), s.dma("V", 1)]
        s.sc = 0
        for n in range(5):
            w = wait(need=[f"dQ{n}"]); w.xw = {"seq", f"oQ{n}"}; s.add(w)
            if n == 0 or n == 4 or OPT["stm"] == 1: s.stamp()
            base = TA + (4 if n < 3 else 0); off = s.QREG[n][0] - (VB + 16384 if n < 3 else 0)
            for ks in range(4):
                i = ds_read("ds_read_b128", Q(0, n, ks), f"v{base+ks}", off); i.xr = {f"oQ{n}", f"cQ{n}", "seq"}; i.priv = (n, s.QREG[n][1]); i.wt = {f"rQ{n}"}; s.add(i)
            s.add(seq(nxt[n]))
            for r in range(16):
                q = f"v{vQA+16*n+r}"; s.add(s.scale(q, q, TA + 8 + 2 * (r % 4), pk=OPT["pk"]))
            for b in range(2 if n < 4 else 1):
                for t in range(2 if half and n == 4 else 4):
                    sq = Sx(s.sc % 5); s.sc += 1
                    ch = s.chain(0, n, sq, KF(b, t), t == 0 and b == 0); s.add(ch)
                    if t == 0 and b == 0:
                        s.add(s.rowmax(n, sq, f"v{TA+16}", f"v{TA+17}"))
                        if n == 4:
                            ch[-1].xw = {"seq"}
                            s.add(seq(s.barrier(["K0", "K1", "Q4"], ["V0"], gate="D-1", extra_w=["flinit"])))
                            if OPT["fl"]:
                                a = ds_write("ds_write_b32", f"v{vFA}", f"v{vFE}", 0); a.xr = {"flinit"}; a.xw = {"cgive"}; a.wt = {"cw"}
                                s.add(V("v_mov_b32", f"v{vFE}", 0), a)
                    s.add(s.expcvt(b, n, t, sq))
            if n < 4: ch[-1].xw = {"seq"}
        s.add([V("v_accvgpr_write_b32", f"a{aL+r}", 0) for r in range(12)])

    def ep_l(s, p, n, rl, tmp):
        a, b = f"v{rl}", f"v{tmp}"
        o = [V("v_accvgpr_read_b32", a, f"a{Lr(n)}")]
        if not (s.half[p] and n == 4): o += [V("v_accvgpr_read_b32", b, f"a{Lr(n)+1}"), V("v_add_f32", a, a, b)]
        o += [V("v_cmp_nge_f32", "vcc", sTHR, a), SS("s_or_b64", sBAD[p], sBAD[p], "vcc")]
        if not (s.half[p] and n == 4): o += [V("v_rcp_f32", a, a)]
        return o
    def ep_store(s, p, n, D, tb, pkq, voo, mod):
        o = [V("v_cvt_pk_bf16_f32", f"v{pkq+r}", f"v{tb+2*r}", f"v{tb+2*r+1}") for r in range(4)]
        o += [swap("v_permlane16_swap_b32", f"v{pkq}", f"v{pkq+2}"), swap("v_permlane16_swap_b32", f"v{pkq+1}", f"v{pkq+3}")]
        if s.half[p]:
            t, oo = s.rowoff(p, n, sD0 if D < 2 else sD1); off = (D & 1) * 64
        else:
            t, oo = s.rowoff(p, n); off = D * 64
        return o + oo + [bstore(("v", pkq, 4), f"v{voo}", sO, t, off, mod=MODS[mod])]
    def voo_calc(s, voo, t):
        return [V("v_lshrrev_b32", f"v{t}", 1, f"v{vG}"), V("v_xor_b32", f"v{t}", f"v{t}", f"v{vG}"), V("v_and_b32", f"v{t}", 16, f"v{t}"),
                V("v_mul_u32_u24", f"v{t}", 3, f"v{t}"), V("v_xor_b32", f"v{voo}", f"v{t}", f"v{vG}")]
    def lane16(s, d):
        return [V("v_mbcnt_lo_u32_b32", d, -1, 0), V("v_mbcnt_hi_u32_b32", d, -1, d), V("v_lshlrev_b32", d, 4, d)]
    def cmb_pre(s, T, base):
        o = s.lane16(f"v{T}") + [V("v_add_u32", f"v{T}", sW4K, f"v{T}"), V("v_add_u32", f"v{T}", base, f"v{T}"), V("v_xor_b32", f"v{T+1}", "0x1000", f"v{T}"),
             V("v_mov_b32", f"v{T+2}", f"v{vNM+16}")]
        return o
    def cmb_give(s, p, T):
        o = s.ep_l(p, 4, T + 3, T + 4)
        w = [ds_write("ds_write_b64", f"v{T}", ("v", T + 2, 2), 0)] + [ds_write("ds_write_b128", f"v{T}", O(4, dt), 16384 + dt * 1024) for dt in range(4)]
        for i in w: i.wt = {"cw"}; i.xw = {"cgive"}
        return o + w
    def cmb_take(s, p, T, U, tb, pkq, voo, mod):
        r = [ds_read("ds_read_b64", ("v", T + 4, 2), f"v{T+1}", 0)] + [ds_read("ds_read_b128", ("v", U + 4 * k, 4), f"v{T+1}", 16384 + k * 1024) for k in range(4)]
        for i in r: i.xr = {"cmb"}
        nm, l, nm2, l2, x, y = [f"v{T+k}" for k in (2, 3, 4, 5, 6, 7)]
        o = r + [V("v_cmp_nge_f32", "vcc", sTHR, l2), SS("s_or_b64", sBAD[p], sBAD[p], "vcc"),
                 V("v_min_f32", x, nm, nm2), V("v_sub_f32", nm, x, nm), V("v_sub_f32", nm2, x, nm2), V("v_exp_f32", nm, nm), V("v_exp_f32", nm2, nm2),
                 V("v_mul_f32", x, l, nm), V("v_fma_f32", x, l2, nm2, x), V("v_rcp_f32", x, x), V("v_mul_f32", nm, nm, x), V("v_mul_f32", nm2, nm2, x)]
        for D in (2, 3):
            t = tb[D - 2]
            for r_ in range(8):
                o += [V("v_accvgpr_read_b32", f"v{t+r_}", f"a{aO+128+8*D+r_}")]
            for r_ in range(8):
                o += [V("v_mul_f32", f"v{t+r_}", f"v{t+r_}", nm), V("v_fma_f32", f"v{t+r_}", f"v{U+8*(D-2)+r_}", nm2, f"v{t+r_}")]
            o += s.ep_store(p, 4, D, t, pkq[D - 2], voo, mod)
        return o

    def block(s, j):
        b = j + 1; p = b // 16; pv = j // 16
        hq, hv = s.half[p], s.half[pv]
        first = (j % 16 == 0); trans = (j == 15)
        smfs = {0: [0], 1: [1], 2: [2, 3], 3: [4]}
        if trans:
            E = vQA; RL = E; VOO = E + 5; MX = E + 6; TB = [E + 8, E + 16]; CT = E + 24; PK = [E + 4 * k for k in range(8 if hv else 6, 20)]
            if hv: PK = PK[4:]; CU = E + 32
            s.pki = 0
            s.add(s.voo_calc(VOO, MX))
            if hv: s.add(s.cmb_pre(CT, X1))
        if j == 30: s.tail_pre()
        for q in range(4):
            vbuf = aK if (j == 0 and q % 2 == 0) else aV
            for h, pref in ((0, [0, 1]), (1, [0, 1] if hv else [1, 0])):
                for ks in s.vks(j, 2 * q + h, pref): s.add(s.vread(("a", vbuf + 8 * h + 4 * ks, 4), j, 2 * q + h, ks))
            cz = (b % 16 == 0 and q == 0)
            if j == 0:
                work = [(4, t, s.KF(1, t), None) for t in ([[0, 1], [2], [3], []] if not hq else [[0, 1], [], [], []])[q]]
            elif j == 30:
                work = [(4, q, s.KT(q), s.PT[0])] if not (hq and q >= 2) else []
            else: work = [(n, q, (lambda ks: ("a", aK + 4 * ks, 4)), None) for n in range(4 if hq and q >= 2 else 5)]
            ch = []; sqs = []
            for n, t, kf, pb in work:
                if j in (0, 30): sq = Sx(s.sc % 5); s.sc += 1
                else: sq = Sx(n)
                sqs.append(sq); ch += s.chain(p, n, sq, kf, cz)
            pvm = []
            for h in range(2):
                dt = 2 * q + h
                for n in (range(5) if h == 0 else reversed(range(5))):
                    kss = [0] if hv and n == 4 else ([0, 1] if (n + h) % 2 == 0 else [1, 0])
                    for k_, ks in enumerate(kss):
                        pvm.append(mfma(O(n, dt), ("a", vbuf + 8 * h + 4 * ks, 4), P(j % 2, n, ks), "0" if first and k_ == 0 else O(n, dt)))
            s.add(ch); m0 = (ch + pvm)[0]
            if q == 0:
                s.bstart[j] = m0
                if j in s.stamp_at: s.stamp(m0)
                lag = 0
                if s.half[0] and not s.half[1]: lag = min(OPT["lagmax"], (16 * (j if j <= 15 else 31 - j) * OPT["lagc"]) // 100)
                bat = []
                if j == 0: bat.append((s.dma("K", 3, gate="D-1") + s.dma("V", 2, gate="D-1"), 40)); lag = 110
                if j == 1: lag = 90
                if j == 2: lag = 40
                dl = []
                if j + 4 <= 31: dl += s.dma("K", j + 4, gate=f"D{j-1}")
                if j + 3 <= 31: dl += s.dma("V", j + 3, gate=f"D{j-1}")
                bat.append((dl, lag))
                for dl, lag in bat:
                    for k, i in enumerate([x for x in dl if x.k == "vmem"]):
                        s.hint(i, m0, lag + 30 + 2 * k, "dlm")
                        if lag: s.hint(i, m0, lag - 20)
                    s.add(dl)
            qlen = len(ch) + len(pvm) + 1
            k = 0
            for (n, t, kf, pb), sq in zip(work, sqs):
                if cz: s.add(s.rowmax(n, sq, f"v{MX}", f"v{MX+1}"))
                l = s.expcvt(b % 2, n, t, sq, pb)
                for i in l:
                    if i.k == "trans" and j not in (0, 30): s.hint(i, m0, OPT["e0"] + (k * qlen) // (4 * len(work))); k += 1
                s.add(l)
            if q == 3 and j < 30:
                opn = [f"K{j+2}", f"V{j+1}"] + (["V31"] if j == 29 else [])
                cm = (trans and hv) or (j == 0 and OPT["fl"])
                kw = dict(gate=f"D{j}", extra_need=["cw"] if cm else [], extra_w=["cmb"] if cm else [], extra_r=["cgive"] if cm else [])
                if j == 0:
                    bl = s.barrier(["V0"], opn, **kw); s.hint(bl[0], m0, 0); s.add(bl)
                else: s.add(s.sync([f"K{b}", f"V{j}"], opn, m0, off_bar=len(ch) - 3, off_rd=OPT["flr"] - (20 - len(ch)), **kw))
            if j < 30:
                if q < 3 and j > 0:
                    for ks in range(4): s.add(s.kread(("a", aK + 4 * ks, 4), b, q + 1, ks))
                elif q == 3:
                    for ks in range(4): s.add(s.kread(("a", aK + 4 * ks, 4), b + 1, 0, ks))
            if trans and q == 0:
                s.add([s.smf(j, n) for n in range(5)])
                for n in range(4 if hv else 5): s.add(s.ep_l(pv, n, RL + n, MX))
            s.add(pvm)
            if not trans: s.add([s.smf(j, n) for n in smfs[q]])
            if trans:
                if hv and q == 1: s.add(s.cmb_give(pv, CT))
                if q == 1: s.add([V("v_accvgpr_write_b32", f"a{aL+r}", 0) for r in range(10)])
                for n in reversed(range(4 if hv else 5)):
                    tb = TB[s.pki % 2]; pkq = PK[s.pki % len(PK)]; s.pki += 1
                    s.add([V("v_accvgpr_read_b32", f"v{tb+r}", f"a{aO+32*n+8*q+r}") for r in range(8)])
                    s.add([V("v_mul_f32", f"v{tb+r}", f"v{tb+r}", f"v{RL+n}") for r in range(8)])
                    l = s.ep_store(pv, n, q, tb, pkq, VOO, OPT["o0"]); s.hint(l[-1], s.bstart[15], 200 + OPT["sdl"] * s.pki, "dlm"); s.add(l)
                if hv and q == 3:
                    s.add(s.cmb_take(pv, CT, CU, TB, [PK[s.pki % len(PK)], PK[(s.pki + 1) % len(PK)]], VOO, OPT["o0"]))
            if q == 1 and j in s.stage: s.add(s.stage[j](m0))

    def plan_stage(s):
        s.stage = {}
        land = {}
        for f in range(20): land[f] = vQB + 4 * ((f if f < 9 else f - 2) % 9) if f < 11 else vQB + 4 * (f - 11)
        def loads(fs):
            def g(m):
                o = []
                for f in fs:
                    t, oo = s.rowoff(1, f // 4)
                    i = bload(("v", land[f], 4), f"v{vG}", sQ, t, (f % 4) * 64, mod=MODS[OPT["q"]])
                    s.hint(i, m, 0); s.hint(i, m, 60, "dlm"); o += oo + [i]
                return o
            return g
        def scales(fs):
            def g(m):
                o = []
                for f in fs:
                    d = Q(1, f // 4, f % 4)
                    for r in range(4):
                        l = s.scale(f"v{land[f]+r}", f"{d[0]}{d[1]+r}", vT)
                        s.hint(l[0], m, -40); s.hint(l[1], m, -40); o += l
                return o
            return g
        LD = {0: [7, 8, 0, 1], 1: [2, 3, 4, 5, 6], 4: [9, 10], 5: [11, 12], 6: [13, 14], 7: [15, 16], 8: [17], 9: [18, 19]}
        SC = {3: [7, 8], 4: [0, 1], 5: [2, 3], 6: [4, 5], 7: [6, 9], 8: [10, 11], 9: [12, 13], 10: [14, 15], 11: [16, 17], 12: [18, 19]}
        for j in range(13):
            fs = []
            if j in LD: fs.append(loads(LD[j]))
            if j in SC: fs.append(scales(SC[j]))
            if fs: s.stage[j + 2] = (lambda fs: lambda m: sum((f(m) for f in fs), []))(fs)

    def tail_pre(s):
        hv = s.half[1]
        s.KT = lambda t: (lambda ks: ("a", aK + 4 * ks, 4) if t == 0 else (("v", vP + 40 + 16 * (t - 1) + 4 * ks, 4) if t < 3 else ("v", vQA + 48 + 4 * ks, 4)))
        s.VT = lambda dt, ks: ("v", vQA + 8 * dt + 4 * ks, 4) if dt < 6 else ("a", aV + 8 * (dt - 6) + 4 * ks, 4)
        s.PT = [vP + 72, 236]
        for t in range(1, 4):
            for ks in range(4): s.add(s.kread(s.KT(t)(ks), 31, t, ks))
    def tail(s):
        j = 31; hv = s.half[1]
        for dt in range(8):
            for ks in s.vks(j, dt, [0, 1]): s.add(s.vread(s.VT(dt, ks), j, dt, ks))
        E = vQA + 64
        WA = E; RA = E + 4; GA = E + 5; VOO = E + 7; RL = E + 8; TMP = E + 12
        CT = 244; CU = 220
        F = vP
        TB = [F, F + 8]; PKD = [F + 16 + 2 * k for k in range(4)]; RB = [F + 24 + 4 * k for k in range(4)]
        t0, t1 = f"v{TMP}", f"v{TMP+1}"
        a = [V("v_lshrrev_b32", t0, 4, f"v{vG}"), V("v_and_b32", t0, "0x70", t0), V("v_lshrrev_b32", t1, 1, f"v{vG}"), V("v_and_b32", t1, 24, t1),
             V("v_xor_b32", t0, t0, t1), V("v_and_b32", t1, "0xf00", f"v{vG}"), V("v_add3_u32", t0, t0, t1, sW4K), V("v_add_u32", f"v{WA}", VB, t0)]
        a += [V("v_xor_b32", f"v{WA+k}", 32 * k, f"v{WA}") for k in range(1, 4)]
        a += s.lane16(t0) + [V("v_add_u32", t1, sW4K, t0), V("v_add_u32", f"v{RA}", VB, t1)]
        a += [V("v_lshrrev_b32", t1, 4, t0), V("v_and_b32", t1, "0x30", t1), V("v_xor_b32", t0, t0, t1)]
        a += [V("v_xor_b32", f"v{GA}", sD0 if hv else 0, t0), V("v_xor_b32", f"v{GA+1}", 64, f"v{GA}")]
        if hv: a += s.voo_calc(VOO, TMP)
        for i in a: s.hint(i, s.bstart[28], 0)
        s.add(a)
        order = [4, 3, 2, 1, 0]
        if hv: s.add(s.cmb_pre(CT, KB))
        k2 = 0
        for k, n in enumerate(order):
            pb = s.PT[k % 2]
            ml = [[s.smf(j, n, pb)], [], [], []]
            for dt in range(8):
                kss = [0] if hv and n == 4 else ([0, 1] if dt % 2 == 0 else [1, 0])
                ml[dt // 2] += [mfma(O(n, dt), s.VT(dt, ks), ("v", pb + 4 * ks, 4), O(n, dt)) for ks in kss]
            if k == 0: s.stamp(ml[0][0])
            for t in range(4):
                if k < 4:
                    n2 = order[k + 1]; sq = Sx(s.sc % 5); s.sc += 1
                    s.add(s.chain(1, n2, sq, s.KT(t), False), s.expcvt(1, n2, t, sq, s.PT[(k + 1) % 2]))
                s.add(ml[t])
            lastm = ml[3][-1]
            if hv and n == 4:
                s.add(s.cmb_give(1, CT))
                s.add(s.sync([], [], lastm, extra_need=["cw"], extra_w=["cmb"], extra_r=["cgive"], off_bar=24, off_rd=30))
                continue
            rl = RL + 2 * (k2 % 2); X = (k2 % 2) * 16384; usepk = OPT["pk"] and k == 4; k2 += 1
            ep = s.ep_l(1, n, rl, TMP + 2)
            for D in range(4):
                tb = TB[D % 2]
                ep += [V("v_accvgpr_read_b32", f"v{tb+r}", f"a{aO+32*n+8*D+r}") for r in range(8)]
                if usepk and D >= 2: ep += [V("v_pk_mul_f32", ("v", tb + 2 * r, 2), ("v", tb + 2 * r, 2), ("v", rl, 2), mod=" op_sel_hi:[1,0]") for r in range(4)]
                else: ep += [V("v_mul_f32", f"v{tb+r}", f"v{tb+r}", f"v{rl}") for r in range(8)]
                ws = []
                for h in range(2):
                    dt = 2 * D + h; pk = PKD[dt % 4]
                    ep += [V("v_cvt_pk_bf16_f32", f"v{pk+r}", f"v{tb+4*h+2*r}", f"v{tb+4*h+2*r+1}") for r in range(2)]
                    w = ds_write("ds_write_b64", f"v{WA+dt%4}", ("v", pk, 2), X + (dt // 4) * 128); w.xr = {"D29"}; w.xw = {f"Xd{X}_{dt}"}; ws.append(w)
                ep += ws
            t, oo = s.rowoff(1, n); ep += oo
            for r in range(4):
                i = ds_read("ds_read_b128", ("v", RB[r], 4), f"v{RA}", X + r * 1024); i.xr = {f"Xd{X}_{dt}" for dt in range(8)}; ep.append(i)
            st = [bstore(("v", RB[r], 4), f"v{GA+r%2}", sO, t, r * 1024, mod=MODS[OPT["o1"]]) for r in range(4)]
            for i in st: s.hint(i, lastm, OPT["tdl"], "dlm")
            s.add(ep + st)
            if hv and k == 1: s.add(s.cmb_take(1, CT, CU, TB, [RB[0], RB[1]], VOO, OPT["o1"]))

    def build(s):
        s.bstart = {}; s.stamp_at = {0, 4, 8, 12, 15, 16, 18, 24} if OPT["stamps"] else set()
        s.nstamp = 1
        if OPT["stm"] == 1: s.stamp_at = {0}; s.nstamp = 2
        if OPT["stm"] == 2: s.stamp_at = {0, 1, 2, 3, 4, 5, 6, 8}
        if OPT["stm"] == 3: s.stamp_at = {0, 14, 15, 16, 17, 18, 19, 30}
        s.plan_stage()
        s.start()
        for j in range(31): s.block(j)
        s.tail()
        ms = [i for i in s.prog if ismf(i)]
        for k, m in enumerate(ms): m.mi = k
        for i, m, off, attr in s.hints: setattr(i, attr, ms[max(0, min(len(ms) - 1, m.mi + off))])
        out = schedule(s.prog, verbose=True, name=s.tag)
        if OPT["verbose"]:
            prev = None
            for j in sorted(s.bstart):
                if prev is not None: print(f"  blk {j-1}: {s.bstart[j].st - prev}", end="")
                prev = s.bstart[j].st
            print(f"\n  start {s.bstart[0].st}  tail from blk30 {out[-1].st - prev}")
        return out

def setup_common():
    t0, t1, w = "s34", "s35", "s3"
    R = Role("AA", "")
    l, m, g, a, b, c = "v16", "v17", "v18", "v19", "v20", "v21"
    o = [raw("s_cmp_lt_u32 s2, 256", w=["scc"]), br("s_cbranch_scc1", "Lgo"), raw("s_endpgm"), label("Lgo")]
    if OPT["stamps"]: o += [raw("s_memtime s[44:45]"), raw("s_memrealtime s[46:47]")]
    o += [raw("s_load_dwordx4 s[8:11], s[0:1], 0"), raw("s_load_dwordx4 s[12:15], s[0:1], 16"),
          V("v_lshrrev_b32", "v1", 6, "v0"), V("v_and_b32", l, 63, "v0"), V("v_and_b32", m, 15, "v0"),
          V("v_readfirstlane_b32", w, "v1"), V("v_lshrrev_b32", g, 4, l)]
    if OPT["pf"]:
        o += [raw("s_getpc_b64 s[36:37]", w=["s36", "s37"]), label("Lpf"), S("s_mov_b32", "s38", "Lcodeend-Lpf"), S("s_mov_b32", "s39", "0x00020000"),
              S("s_lshr_b32", t0, "s2", 4), S("s_lshl_b32", t0, t0, 13), S("s_bitcmp1_b32", "s2", 3), S("s_cselect_b32", t1, "LroleY-Lpf", 0), S("s_add_u32", t0, t0, t1),
              V("v_lshlrev_b32", a, 5, "v0"),
              I("buffer_load_dword v253, v19, s[36:39], s34 offen", "vmem", w=["v253"], r=["v19", "s34", "s36", "s37", "s38", "s39"])]
    o += [V("v_lshlrev_b32", a, 1, g), V("v_xor_b32", a, a, m), V("v_lshlrev_b32", a, 4, a), V("v_lshl_add_u32", f"v{vDA}", g, 8, a), V("v_xor_b32", f"v{vDB}", 128, f"v{vDA}")]
    o += [S("s_lshl_b32", sW4K, w, 12), S("s_mov_b32", sOFF, sW4K), S("s_mov_b32", sOFV, sW4K)]
    o += [S("s_mul_i32", "s28", w, 5 * 4096), S("s_add_u32", "s29", "s28", 4 * 4096)]
    if OPT["ab"]: o += [S("s_lshl_b32", "s30", w, 14), S("s_add_u32", "s30", "s30", 20 * 4096), S("s_and_b32", "s31", sW4K, "0x2000"), S("s_lshr_b32", "s31", "s31", 1), S("s_add_u32", "s31", "s31", 36 * 4096)]
    else: o += [S("s_add_u32", "s30", "s28", 18 * 4096), S("s_add_u32", "s31", "s28", 22 * 4096)]
    o += [S("s_bitcmp1_b32", "s2", 3), S("s_cselect_b64", ("s", 24, 2), ("s", 30, 2), ("s", 28, 2)), S("s_cselect_b64", ("s", 26, 2), ("s", 28, 2), ("s", 30, 2))]
    o += [S("s_and_b32", t0, "s2", 7), S("s_lshr_b32", t1, "s2", 4), S("s_lshl_b32", t0, t0, 4), S("s_add_u32", t0, t0, t1),
          S("s_mul_i32", t1, t0, 2 * HEADQ), S("s_lshl_b32", t0, t0, 19), S("s_mov_b32", "s6", 2 * HEADQ), S("s_mov_b32", "s7", "0x00020000")]
    o += [raw("s_waitcnt lgkmcnt(0)", k="salu")]
    if OPT["stamps"] and OPT["stm"] == 1: o += [raw("s_memtime s[48:49]"), raw("s_memrealtime s[50:51]")]
    o += [S("s_add_u32", "s4", "s8", t1), S("s_addc_u32", "s5", "s9", 0),
          S("s_add_u32", "s8", "s10", t0), S("s_addc_u32", "s9", "s11", 0), S("s_mov_b32", "s10", 2 * HEADK), S("s_mov_b32", "s11", "0x00020000")]
    o += R.dma("K", 0) + R.dma("K", 1) + R.qdma(0)
    o += [S("s_add_u32", "s16", "s14", t1), S("s_addc_u32", "s17", "s15", 0), S("s_mov_b32", "s18", 2 * HEADQ), S("s_mov_b32", "s19", "0x00020000"),
          S("s_add_u32", "s12", "s12", t0), S("s_addc_u32", "s13", "s13", 0), S("s_mov_b32", "s14", 2 * HEADK), S("s_mov_b32", "s15", "0x00020000")]
    if OPT["stamps"]: o += [S("s_lshl_b32", "s100", "s2", 2), S("s_add_u32", "s100", "s100", w), S("s_mov_b32", "s101", "s2")]
    o += [S("s_add_u32", "s26", "s26", HEADQ), S("s_add_u32", "s27", "s27", HEADQ)]
    o += [V("v_lshlrev_b32", a, 4, g), V("v_lshl_add_u32", f"v{vG}", m, 8, a)]
    o += [V("v_and_b32", a, 7, m), V("v_lshlrev_b32", a, 1, a), V("v_xor_b32", a, a, g), V("v_lshlrev_b32", a, 4, a), V("v_lshl_add_u32", a, m, 8, a)]
    for ks in range(4):
        o += [V("v_xor_b32", b, 64 * ks, a), V("v_add_u32", f"v{vKA+ks}", KB, b), V("v_add_u32", f"v{R.TA+ks}", sW4K, b), V("v_add_u32", f"v{R.TA+4+ks}", VB + 16384, f"v{R.TA+ks}")]
    o += [V("v_lshrrev_b32", a, 2, l), V("v_and_b32", b, 7, a), V("v_lshlrev_b32", b, 5, b), V("v_and_b32", c, 3, l), V("v_lshlrev_b32", c, 3, c),
          V("v_xor_b32", b, b, c), V("v_lshl_add_u32", b, a, 8, b), V("v_add_u32", f"v{vVA}", VB, b)]
    o += [V("v_xor_b32", f"v{vVA+dt}", 32 * dt, f"v{vVA}") for dt in range(1, 8)]
    o += [S("s_lshl_b32", t0, w, 8), S("s_add_u32", t0, t0, FLAG), V("v_lshl_add_u32", f"v{vFA}", l, 2, t0)]
    o += [V("v_and_b32", a, 2, m), V("v_cmp_eq_u32", "vcc", 0, a), V("v_mov_b32", b, "0x3f803f80"), V("v_cndmask_b32", a, 0, b, "vcc"), V("v_xor_b32", b, a, b)]
    o += [V("v_accvgpr_write_b32", f"a{aONE+i}", a) for i in range(4)] + [V("v_accvgpr_write_b32", f"a{aONE+4+i}", b) for i in range(4)]
    o += [V("v_and_b32", a, 1, m), V("v_cmp_eq_u32", "vcc", 1, a), V("v_mov_b32", b, "0x44444444"), V("v_mov_b32", c, "0xeeeeeeee"), V("v_cndmask_b32", f"v{vIDX}", b, c, "vcc")]
    o += [S("s_mov_b32", sC, hex(CSCALE)), S("s_mov_b32", sC2, hex(CSCALE)), S("s_mov_b32", sMASK, "0xffff0000"), S("s_mov_b32", sTHR, hex(OPT["thr"])),
          S("s_mov_b64", sBAD[0], 0), S("s_mov_b64", sBAD[1], 0)]
    o += [S("s_and_b32", sD0, w, 1), S("s_lshl_b32", sFK, sD0, 13), S("s_lshl_b32", sD0, sD0, 7), S("s_or_b32", sFV, sFK, sD0)]
    o += R.qdma(1)
    o += [S("s_bitcmp1_b32", "s2", 3), br("s_cbranch_scc1", "LroleY")]
    return o

def setup_role(R, k):
    o = [S("s_xor_b32", sD1, sD0, 128)]
    if R.half[0]:
        o += [V("v_xor_b32", f"v{vKA+ks}", sFK, f"v{vKA+ks}") for ks in range(4)] + [V("v_xor_b32", f"v{vVA+dt}", sFV, f"v{vVA+dt}") for dt in range(8)]
    return o

def finish(R, k):
    o = []
    if OPT["stamps"]:
        n = R.nstamp
        o += [raw(f"s_memtime s[{44+4*n}:{45+4*n}]"), raw(f"s_memrealtime s[{46+4*n}:{47+4*n}]"), raw("s_waitcnt vmcnt(0) lgkmcnt(0)")]; n += 1
        o += [raw(f"s_memtime s[{44+4*n}:{45+4*n}]"), raw(f"s_memrealtime s[{46+4*n}:{47+4*n}]"), raw("s_waitcnt lgkmcnt(0)")]; n += 1
        assert n <= 14
        if OPT["pi"] >= 0:
            i, j, kk = OPT["pi"], OPT["pj"], OPT["pk_"]
            if not OPT["pall"]: o += [raw("s_and_b32 s101, s101, 0xf7"), raw("s_cmp_lg_u32 s101, 100"), raw(f"s_cbranch_scc1 Lfin{k}")]
            o += [raw(f"s_sub_u32 s36, s{44+4*j+2*kk}, s{44+4*i+2*kk}"), raw("s_mul_i32 s36, s36, 10") if kk else raw("s_lshr_b32 s36, s36, 1"),
                  raw("s_min_u32 s36, s36, 200000"), raw("s_memrealtime s[38:39]"), raw("s_waitcnt lgkmcnt(0)"), label(f"Lspin{k}"), raw("s_memrealtime s[40:41]"), raw("s_waitcnt lgkmcnt(0)"),
                  raw("s_sub_u32 s37, s40, s38"), raw("s_cmp_lt_u32 s37, s36"), raw(f"s_cbranch_scc1 Lspin{k}")]
        else:
            o += [raw("; STAMPS"), raw("s_load_dwordx2 s[40:41], s[0:1], 40"), raw("v_mov_b32 v16, 0")]
            for x in range(n): o += [raw(f"v_writelane_b32 v16, s{44+4*x}, {2*x}"), raw(f"v_writelane_b32 v16, s{46+4*x}, {2*x+1}")]
            o += [raw(f"v_writelane_b32 v16, {n}, 63"), raw("s_lshl_b32 s100, s100, 8"), raw("v_mbcnt_lo_u32_b32 v17, -1, 0"), raw("v_mbcnt_hi_u32_b32 v17, -1, v17"), raw("v_lshlrev_b32 v17, 2, v17"),
                  raw("s_waitcnt lgkmcnt(0)"), raw("s_mov_b32 s42, 0x100000"), raw("s_mov_b32 s43, 0x00020000"), raw("buffer_store_dword v16, v17, s[40:43], s100 offen"), raw("s_waitcnt vmcnt(0)")]
    o += [label(f"Lfin{k}")]
    if OPT["slow"]: o += [raw("s_or_b64 s[36:37], s[30:31], s[32:33]"), raw("s_cbranch_scc1 Lslow")]
    o += [raw("s_endpgm")] + R.stubs
    return o

MACROS = """.macro qa d,a,b,c
v_mfma_f32_16x16x32_bf16 v[\\d:\\d+3], a[\\a:\\a+3], v[\\b:\\b+3], v[\\c:\\c+3]
.endm
.macro qb d,a,b,c
v_mfma_f32_16x16x32_bf16 v[\\d:\\d+3], a[\\a:\\a+3], a[\\b:\\b+3], v[\\c:\\c+3]
.endm
.macro pv d,a,b
v_mfma_f32_16x16x32_bf16 a[\\d:\\d+3], a[\\a:\\a+3], v[\\b:\\b+3], a[\\d:\\d+3]
.endm
.macro ex r
v_exp_f32 v\\r, v\\r
.endm
.macro cv d,a,b
v_cvt_pk_bf16_f32 v\\d, v\\a, v\\b
.endm
.macro lk d,a,o
ds_read_b128 a[\\d:\\d+3], v\\a offset:\\o
.endm
.macro lv d,a,o
ds_read_b64_tr_b16 a[\\d:\\d+1], v\\a offset:\\o
.endm
"""
def compact(txt):
    M = "    v_mfma_f32_16x16x32_bf16 "
    txt = re.sub(M + r"v\[(\d+):\d+\], a\[(\d+):\d+\], v\[(\d+):\d+\], v\[(\d+):\d+\]", r"qa \1,\2,\3,\4", txt)
    txt = re.sub(M + r"v\[(\d+):\d+\], a\[(\d+):\d+\], a\[(\d+):\d+\], v\[(\d+):\d+\]", r"qb \1,\2,\3,\4", txt)
    txt = re.sub(M + r"a\[(\d+):\d+\], a\[(\d+):\d+\], v\[(\d+):\d+\], a\[\1:\d+\]", r"pv \1,\2,\3", txt)
    txt = re.sub(r"    v_exp_f32 v(\d+), v\1\n", r"ex \1\n", txt)
    txt = re.sub(r"    v_cvt_pk_bf16_f32 v(\d+), v(\d+), v(\d+)", r"cv \1,\2,\3", txt)
    txt = re.sub(r"    ds_read_b128 a\[(\d+):\d+\], v(\d+) offset:(\d+)", r"lk \1,\2,\3", txt)
    txt = re.sub(r"    ds_read_b64_tr_b16 a\[(\d+):\d+\], v(\d+) offset:(\d+)", r"lv \1,\2,\3", txt)
    return txt.replace("\n    ", "\n")

def build():
    com = setup_common()
    body = ""
    txt = []
    for k, types in enumerate((("AB", "BA") if OPT["ab"] else ("AA", "AA"))):
        R = Role(types, "XY"[k])
        main = R.build()
        su = setup_role(R, k)
        for i in com + su: i.st = -1000
        tr = insert_waits(com + su + main)
        while fix_hazards(tr, verbose=OPT["verbose"] > 1): pass
        e = verify2(tr); assert e == 0, e
        nc = len(com)
        if OPT["nodma"]: tr = [i for i in tr if not (i.k == "vmem" and i.ring and i.ring[1] >= 4)]
        if OPT["samekv"]:
            for i in tr:
                if i.t == "s_add_u32 s20, s20, 16384": i.t = "s_xor_b32 s20, s20, 16384"
        if OPT["nosmf"]: tr = [i for i in tr if i.tag != "smf"]
        if OPT["nocvt"]: tr = [i for i in tr if not (i.t.startswith("v_cvt_pk") and 136 <= int(i.t.split()[1][1:-1]) < 216 and i.st > 8000)]
        if OPT["nobar"]: tr = [i for i in tr if i.k != "bar"]
        if OPT["noxor"]: tr = [i for i in tr if "0x2000, " not in i.t]
        if OPT["nolds"]: tr = [i for i in tr if not (i.k == "ds" and i.ring and i.ring[1] >= 2)]
        if OPT["noexp"]: tr = [i for i in tr if "v_exp" not in i.t]
        assert all(a is b for a, b in zip(tr[:nc], com))
        txt.append("".join(i.text() for i in tr[nc:] + finish(R, k)))
        if OPT["verbose"]: print("  nops:", sum(i.nop for i in tr), "waits:", sum(i.k == "wait" for i in tr))
    slow = ""
    if OPT["slow"]:
        import slowpath
        slow = slowpath.text(sys.modules[__name__])
    body = "".join(i.text() for i in com) + txt[0] + slow + ".p2align 6\nLroleY:\n" + txt[1] + "Lcodeend:\n    s_endpgm\n"
    return compact(body) if OPT["compact"] else body

HEAD = f"""; flash-attention forward, B8 H32 Sq608 Sk1024 D128 bf16 (emitted by my own scheduling script)
; @launch grid=(256,1,1) block=(256,1,1) lds=163840
.amdgcn_target "amdgcn-amd-amdhsa--gfx950"
{MACROS}.text
.globl {NAME}_kernel
.p2align 8
.type {NAME}_kernel,@function
{NAME}_kernel:
"""
TAIL = f""".section .rodata,"a"
.p2align 6
.amdhsa_kernel {NAME}_kernel
  .amdhsa_next_free_vgpr 512
  .amdhsa_next_free_sgpr 102
  .amdhsa_accum_offset 256
  .amdhsa_group_segment_fixed_size 0
  .amdhsa_kernarg_size 48
  .amdhsa_user_sgpr_count 2
  .amdhsa_user_sgpr_kernarg_segment_ptr 1
  .amdhsa_system_sgpr_workgroup_id_x 1
  .amdhsa_float_denorm_mode_32 3
.end_amdhsa_kernel
"""
if __name__ == "__main__":
    open(sys.argv[1], "w").write(HEAD + build() + TAIL)
```

```python
import re
from collections import deque

def regs(f, lo, n=1):
    return [f"{f}{i}" for i in range(lo, lo + n)]
def rng(f, lo, n):
    return f"{f}{lo}" if n == 1 else f"{f}[{lo}:{lo+n-1}]"

class I:
    __slots__ = ("t", "k", "w", "r", "c", "ab", "need", "lg", "vm", "tag", "nop", "cmt", "nb", "dlm", "xr", "xw", "wt", "mi", "st", "ring", "priv", "fuse")
    def __init__(s, t, k, w=(), r=(), c=(), ab=(), tag=None):
        s.t = t; s.k = k; s.w = set(w); s.r = set(r) | set(c) | set(ab); s.c = tuple(c); s.ab = set(ab)
        s.need = None; s.lg = None; s.vm = None; s.tag = tag; s.nop = 0; s.cmt = ""
        s.nb = None; s.dlm = None; s.xr = set(); s.xw = set(); s.wt = set(); s.mi = None; s.st = None; s.ring = None; s.priv = None; s.fuse = None
    def text(s):
        out = ""
        if s.nop:
            n = s.nop
            while n > 0:
                m = min(n, 16); out += f"    s_nop {m-1}\n"; n -= m
        if s.k == "wait":
            p = []
            if s.vm is not None and s.vm < 63: p.append(f"vmcnt({s.vm})")
            if s.lg is not None and s.lg < 15: p.append(f"lgkmcnt({s.lg})")
            if not p: return out + "    s_nop 0\n"
            return out + "    s_waitcnt " + " ".join(p) + "\n"
        if s.k == "label": return out + s.t + ":\n"
        return out + "    " + s.t + "\n"

VALUK = ("valu", "trans", "perm")
def isvalu(i): return i.k in VALUK
def ismf(i): return i.k in ("mfma", "mfma8")

def R(x):
    if isinstance(x, tuple): return rng(*x), regs(*x)
    if isinstance(x, str) and re.fullmatch(r"-?\|?[vas]\d+\|?", x): return x, [x.strip("-|")]
    if x in ("vcc",): return x, ["vcc"]
    if x in ("m0",): return x, ["m0"]
    if x in ("exec",): return x, ["exec"]
    return str(x), []
def mfma(d, a, b, c):
    dt, dr = R(d); at, ar = R(a); bt, br = R(b); ct, cr = R(c)
    return I(f"v_mfma_f32_16x16x32_bf16 {dt}, {at}, {bt}, {ct}", "mfma", w=dr, c=cr, ab=ar + br)
def mfma32(d, a, b, c):
    dt, dr = R(d); at, ar = R(a); bt, br = R(b); ct, cr = R(c)
    return I(f"v_mfma_f32_32x32x16_bf16 {dt}, {at}, {bt}, {ct}", "mfma8", w=dr, c=cr, ab=ar + br)
def smfmac(d, a, b, idx):
    dt, dr = R(d); at, ar = R(a); bt, br = R(b); it, ir = R(idx)
    return I(f"v_smfmac_f32_16x16x64_bf16 {dt}, {at}, {bt}, {it}", "mfma", w=dr, c=dr, ab=ar + br + ir, tag="smf")
def V(op, d, *src, k="valu", mod=""):
    dt, dr = R(d); ts = []; rs = []
    for x in src:
        t, r = R(x); ts.append(t); rs += r
    if op in ("v_exp_f32", "v_rcp_f32", "v_log_f32"): k = "trans"
    if op.startswith("v_cndmask") and len(src) == 2: rs.append("vcc")
    return I(f"{op} {dt}, " + ", ".join(ts) + mod, k, w=dr, r=rs)
def swap(op, a, b):
    return I(f"{op} {a}, {b}", "perm", w=[a, b], r=[a, b])
def S(op, d, *src):
    dt, dr = R(d); ts = []; rs = []
    for x in src:
        t, r = R(x); ts.append(t); rs += r
    if op.startswith("s_cmp") or op.startswith("s_bitcmp"):
        return I(f"{op} {dt}, " + ", ".join(ts), "salu", w=["scc"], r=dr + rs)
    w = list(dr)
    if not (op.startswith("s_mov") or op.startswith("s_bitset") or op.startswith("s_mul") or op.startswith("s_cselect") or op.startswith("s_getreg")): w.append("scc")
    if op.startswith("s_bitset"): rs += dr
    if op.startswith("s_addc") or op.startswith("s_cselect") or op.startswith("s_subb"): rs.append("scc")
    return I(f"{op} {dt}, " + ", ".join(ts), "salu", w=w, r=rs)
def ds_read(op, d, addr, off, tag=None):
    dt, dr = R(d)
    return I(f"{op} {dt}, {addr} offset:{off}", "ds", w=dr, r=[addr], tag=tag)
def ds_write(op, addr, d, off, tag=None):
    dt, dr = R(d)
    return I(f"{op} {addr}, {dt} offset:{off}", "dsw", r=[addr] + dr, tag=tag)
def dma(vaddr, srd, soff, off, tag=None, mod=""):
    return I(f"buffer_load_dwordx4 {vaddr}, s[{srd}:{srd+3}], {soff} offen offset:{off}{mod} lds", "vmem", r=[vaddr, soff, "m0"] + regs("s", srd, 4), tag=tag)
def bload(d, vaddr, srd, soff, off, mod=""):
    dt, dr = R(d)
    return I(f"buffer_load_dwordx4 {dt}, {vaddr}, s[{srd}:{srd+3}], {soff} offen offset:{off}{mod}", "vmem", w=dr, r=[vaddr, str(soff)] + regs("s", srd, 4))
def bstore(d, vaddr, srd, soff, off, mod=""):
    dt, dr = R(d)
    return I(f"buffer_store_dwordx4 {dt}, {vaddr}, s[{srd}:{srd+3}], {soff} offen offset:{off}{mod}", "vmem", r=dr + [vaddr, str(soff)] + regs("s", srd, 4), tag=("st", tuple(dr)))
def wait(need=(), vm=None, lg=None):
    i = I("wait", "wait"); i.need = set(need); i.vm = vm; i.lg = lg
    return i
def bar(): return I("s_barrier", "bar")
def label(n): return I(n, "label")
def br(op, tgt):
    return I(f"{op} {tgt}", "br", r=["scc"] if "scc" in op else (["vcc"] if "vcc" in op else []))
def raw(t, k="salu", w=(), r=()): return I(t, k, w=w, r=r)
def nop(n=1):
    i = I(f"s_nop {n-1}", "nop"); i.tag = n; return i

def states(i):
    if i.k == "label": return i.nop
    return i.nop + (i.tag if i.k == "nop" else 1)

def required(p, c):
    n = 0
    if ismf(p):
        big = p.k == "mfma8"
        if ismf(c):
            if p.w & c.ab: n = max(n, 12 if big else 8)
            if p.w & set(c.c):
                same = (set(c.c) == p.w and p.k == c.k)
                if not same: n = max(n, 10 if big else 6)
            elif p.w & c.w and p.k != c.k: n = max(n, 10 if big else 6)
        elif c.k in VALUK + ("ds", "dsw", "vmem"):
            if p.w & (c.r | c.w): n = max(n, 12 if big else 8)
            if isvalu(c) and set(p.c) & c.w: n = max(n, 7 if big else 3)
    if isvalu(p):
        if ismf(c) and p.w & c.r: n = max(n, 2)
        if ismf(c) and p.t.startswith('v_pk_'): n = max(n, 2)
        if c.k == "perm" and p.w & c.r: n = max(n, 2)
        if "_dpp" in c.t and p.w & c.r: n = max(n, 2)
        if p.k == "trans" and isvalu(c) and c.k != "trans" and p.w & c.r: n = max(n, 1)
        if p.k == "trans" and c.k == "trans" and p.w & c.r: n = max(n, 1)
        sg = {x for x in p.w if x[0] == "s" or x == "vcc"}
        if sg & c.r:
            if c.k == "vmem": n = max(n, 5)
            elif isvalu(c): n = max(n, 2)
            elif c.k in ("salu", "br"): n = max(n, 1)
        if "readfirstlane" in c.t and p.w & c.r: n = max(n, 1)
    if p.k == "salu" and "m0" in p.w and c.k == "vmem" and "m0" in c.r: n = max(n, 1)
    if p.k == "vmem" and isinstance(p.tag, tuple) and p.tag[0] == "st" and set(p.tag[1]) & c.w: n = max(n, 2)
    if p.k == "dsw" and p.r & c.w and isvalu(c): n = max(n, 0)
    return n

def fix_hazards(trace, verbose=True):
    added = 0
    for j, c in enumerate(trace):
        if c.k in ("label", "wait", "nop", "bar"): continue
        d = c.nop
        k = j - 1
        while k >= 0 and d < 12:
            p = trace[k]
            req = required(p, c)
            if req > d:
                if verbose: print(f"  nop {req-d}: [{p.t}] -> [{c.t}]")
                c.nop += req - d; added += req - d; d = req
            d += states(p)
            k -= 1
    return added

def resolve_waits(trace):
    lq = deque(); vq = deque()
    for i in trace:
        if i.k == "wait":
            if i.need:
                for q, a in ((lq, "lg"), (vq, "vm")):
                    last = -1
                    for n, o in enumerate(q):
                        if o.w & i.need: last = n
                    if last >= 0:
                        cnt = len(q) - 1 - last
                        cur = getattr(i, a)
                        setattr(i, a, cnt if cur is None else min(cur, cnt))
            if i.lg is not None:
                while len(lq) > i.lg: lq.popleft()
            if i.vm is not None:
                while len(vq) > i.vm: vq.popleft()
        elif i.k in ("ds", "dsw"): lq.append(i)
        elif i.k == "vmem": vq.append(i)

def verify(trace, nslots=4):
    lq = deque(); vq = deque(); errs = 0
    landed = set(); visible = set()
    dcount = {"K": 0, "V": 0}
    pend_reads = {}
    last_read_done_bar = {}
    nbar = 0
    cur = {"K": -1, "V": -1}
    readdone = {}
    maxl = 0
    for i in trace:
        if i.k == "wait":
            if i.lg is not None:
                while len(lq) > i.lg:
                    o, key = lq.popleft()
                    if key: readdone[key] = nbar
            if i.vm is not None:
                while len(vq) > i.vm:
                    o, key = vq.popleft()
                    if key: landed.add(key)
            continue
        if i.k == "bar":
            nbar += 1; visible |= landed; continue
        for q in (lq, vq):
            for o, _ in q:
                if o.w & (i.r | i.w):
                    print(f"  ERR pending load [{o.t}] vs [{i.t}]"); errs += 1
        if i.k in ("ds", "dsw"):
            key = None
            if isinstance(i.tag, tuple) and i.tag[0] in ("K", "V"):
                kind, new = i.tag[0], i.tag[1]
                if new: cur[kind] += 1
                b = cur[kind]; key = (kind, b)
                if i.tag[2] != b % 2: print(f"  ERR slot parity {i.t} blk {b}"); errs += 1
                for p in range(4):
                    if (kind, b, p) not in visible: print(f"  ERR RAW LDS {kind}{b} piece {p} not visible at [{i.t}]"); errs += 1; break
                readdone[key] = 10**9
            lq.append((i, key)); maxl = max(maxl, len(lq))
        elif i.k == "vmem":
            key = None
            if i.tag in ("K", "V"):
                n = dcount[i.tag]; dcount[i.tag] += 1
                b, p = divmod(n, 4); key = (i.tag, b, p)
                old = (i.tag, b - nslots)
                if b >= nslots:
                    if old not in readdone or cur[i.tag] < b - nslots: print(f"  ERR WAR: DMA {key} before reads of {old}"); errs += 1
                    elif any(k2 == old for _, k2 in lq) or readdone[old] >= nbar: print(f"  ERR WAR: DMA {key} not separated from reads of {old}"); errs += 1
                for pp in range(4): visible.discard((i.tag, b - nslots, pp)); landed.discard((i.tag, b - nslots, pp))
            vq.append((i, key))
            if len(vq) > 63: print("  ERR vmcnt overflow"); errs += 1
    if maxl > 15: print("  WARN lgkm depth", maxl)
    return errs
```

```python
import heapq
from collections import deque
from asmir import *

SCAL = ("salu", "wait", "bar", "nop", "br")
DS_LAT = 112
def cost(i):
    if i.k == "valu": return 4
    if i.k in ("trans", "perm"): return 8
    if i.k == "ds": return 4
    if i.k == "dsw": return 22 if "b128" in i.t else (8 if "b32" in i.t else 12)
    if i.k == "vmem": return 4 if "store" in i.t else 8
    return 4
TA_LIM = [10**9]; VM_LAT = [0]
def ta_cost(i): return 256 if i.cmt == "strided" else 64
def lat_cyc(p, c, raw):
    if p.k == "ds" and raw: return DS_LAT
    if p.k == "vmem" and raw and p.w & c.r: return VM_LAT[0]
    if ismf(p) and raw and not ismf(c): return 36
    return 0

class Node:
    __slots__ = ("i", "idx", "pred", "succ", "np", "dl", "rt", "t", "pos", "mi", "mate", "hard")

def schedule(prog, verbose=False, name=""):
    N = []
    lastw = {}; readers = {}
    lastm = None; lastv = {}; lastseq = None
    mi = 0; fz = {}
    for idx, i in enumerate(prog):
        n = Node(); n.i = i; n.idx = idx; n.pred = {}; n.succ = []; n.t = None; n.pos = None; n.mi = None
        R_ = i.r | i.xr; W_ = i.w | i.xw
        for r in R_:
            p = lastw.get(r)
            if p is not None: n.pred[p] = True
        for r in W_:
            p = lastw.get(r)
            if p is not None: n.pred[p] = True
            for p in readers.get(r, ()):
                if p is not n: n.pred.setdefault(p, p.i.k == "ds" and i.k == "wait")
        for r in R_: readers.setdefault(r, []).append(n)
        for r in W_: lastw[r] = n; readers[r] = []
        if ismf(i):
            if lastm is not None: n.pred.setdefault(lastm, False)
            lastm = n; n.mi = mi; i.mi = mi; mi += 1
        if i.k == "vmem":
            cl = "st" if "store" in i.t else ("dma" if i.t.endswith("lds") else "ld")
            if cl in lastv: n.pred.setdefault(lastv[cl], False)
            lastv[cl] = n
        n.pred.pop(n, None)
        for p in n.pred: p.succ.append(n)
        n.np = len(n.pred); n.rt = 0
        n.mate = None
        if i.fuse is not None:
            o = fz.pop(id(i.fuse), None)
            if o is None: fz[id(i.fuse)] = n
            else: n.mate = o; o.mate = n
        N.append(n)
    NM_ = mi
    for n in reversed(N):
        if n.mi is not None: n.dl = n.hard = n.mi; continue
        d = h = NM_ + n.idx * 1e-6
        if n.i.dlm is not None: d = min(d, n.i.dlm.mi)
        for s in n.succ:
            l = cost(n.i) / 8.0 + lat_cyc(n.i, s.i, s.pred[n]) / 16.0
            if n.i.k in SCAL: l = 1.0
            d = min(d, s.dl - l); h = min(h, s.hard - l)
        n.dl = d; n.hard = h
    ms = [n for n in N if n.mi is not None]
    ready = [n for n in N if n.np == 0 and n.mi is None]
    out = []
    t = 0; pipe = 0; slot = False; last = None; cur = -1
    left = len(N); stall = 0; tm = -100; ta = 0
    def haz_ok(n):
        d = 0; k = len(out) - 1
        while k >= 0 and d < 12:
            p = out[k]
            if required(p.i, n.i) > d: return False
            d += states(p.i); k -= 1
        return True
    def eff_cost(n):
        i = n.i
        if i.k in SCAL: return 0 if slot else 4
        c = cost(i)
        if i.k in ("ds", "dsw", "vmem"):
            if last in VALUK: c += 8
            elif last in ("ds",) and i.k == "ds": c += 4
        return c
    def issue(n):
        nonlocal t, pipe, slot, last, cur, left, stall, tm, ta
        i = n.i
        if n.mate is not None and n.mate.t is None and n.mate.np == 0 and n.mate.rt <= t and t >= tm + 28 and haz_ok(n.mate):
            o = n.mate; f = Node(); f.i = i.fuse; f.i.st = t
            for x in (n, o):
                ready.remove(x); x.t = t; left -= 1
                for s_ in x.succ:
                    s_.np -= 1; s_.rt = max(s_.rt, t)
                    if s_.np == 0 and s_.mi is None: ready.append(s_)
            out.append(f); t += 4; slot = False; last = "valu"
            return
        if n.mi is not None:
            t0 = max(t, pipe, n.rt)
            if cur >= 0: stall += t0 - pipe
            n.t = t0; pipe = t0 + (32 if i.k == "mfma8" else 16); t = t0 + (12 if i.tag == "smf" else 8)
            slot = True; last = i.k; cur = n.mi; tm = t0
        else:
            ready.remove(n)
            c = eff_cost(n); t = max(t, n.rt); n.t = t; t += c
            if i.k == "vmem": ta = max(ta, n.t) + ta_cost(i)
            if i.k == "bar": t += 56
            if i.k == "vmem" and "store" in i.t: pipe = max(pipe, t + 16)
            slot = False
            if i.k not in SCAL: last = i.k
        i.st = n.t
        out.append(n); left -= 1
        for s in n.succ:
            s.np -= 1
            s.rt = max(s.rt, n.t + lat_cyc(i, s.i, s.pred[n]))
            if s.np == 0 and s.mi is None: ready.append(s)
    while left:
        m = ms[cur + 1] if cur + 1 < NM_ else None
        m_ok = m is not None and m.np == 0
        m_rdy = m_ok and m.rt <= max(t, pipe) and haz_ok(m)
        budget = pipe - t
        cand = [n for n in ready if (n.i.nb is None or n.i.nb.mi <= cur or n.dl <= cur + 1) and n.rt <= t
                and not (n.i.k == "vmem" and ta - t > TA_LIM[0] and n.hard > cur + 1)]
        cand.sort(key=lambda n: (n.dl, n.idx))
        cand = [n for n in cand[:24] if haz_ok(n)]
        pick = None
        atstart = last in ("mfma", "mfma8")
        if slot:
            sc = [n for n in cand if n.i.k in SCAL]
            if sc: pick = sc[0]
        if pick is None and cand:
            fit = [n for n in cand if eff_cost(n) <= budget and not (n.i.k == "vmem" and "store" in n.i.t and not atstart)]
            top = cand[0]
            mem = [n for n in cand if n.i.k in ("ds", "dsw", "vmem")]
            if atstart and mem and (mem[0] is top or top.i.k == "valu" or top.i.k in SCAL or (mem[0].dl <= cur + 2)):
                x = mem[0]
                if eff_cost(x) <= budget or cost(x.i) > 8 or x.dl <= cur + 2 or not m_rdy:
                    if not (top.i.k == "valu" and cost(x.i) > 4 and top.dl <= cur + 2 and x.dl > cur + 4): pick = x
            if pick is None and fit: pick = fit[0]
            if pick is None and top.dl <= cur + 1 and top.i.k not in ("ds", "dsw", "vmem"): pick = top
            if pick is None and not m_rdy: pick = top
        if pick is not None: issue(pick)
        elif m_rdy: issue(m)
        else:
            later = [n for n in ready if n.rt > t]
            if m_ok and m.rt <= max(t, pipe):
                issue(m)
            elif (m_ok or later) and t < max([n.rt for n in later] + [m.rt if m_ok else 0]):
                t += 4; slot = False
            else:
                r = sorted(ready, key=lambda n: (n.dl, n.idx))
                assert r, "deadlock"
                issue(r[0])
    if verbose: print(f"sched {name}: {len(N)} instrs, {NM_} mfma, est cycles {max(t,pipe)}, mfma stall {stall}")
    return [n.i for n in out]

def insert_waits(seq, lq=None, vq=None):
    lq = deque() if lq is None else lq; vq = deque() if vq is None else vq
    out = []
    def retire(w):
        if w.lg is not None:
            while len(lq) > w.lg: lq.popleft()
        if w.vm is not None:
            while len(vq) > w.vm: vq.popleft()
    for i in seq:
        if i.k == "wait":
            for q, a in ((lq, "lg"), (vq, "vm")):
                lastn = -1
                for n, (o, _) in enumerate(q):
                    if (o.w | o.wt) & i.need: lastn = n
                if lastn >= 0:
                    cnt = len(q) - 1 - lastn; cur = getattr(i, a)
                    setattr(i, a, cnt if cur is None else min(cur, cnt))
            retire(i); out.append(i); continue
        touch = i.r | i.w
        for q, a, mx in ((lq, "lg", 15), (vq, "vm", 63)):
            lastn = -1
            for n, (o, _) in enumerate(q):
                if o.w & touch: lastn = n
            isq = (i.k in ("ds", "dsw")) if a == "lg" else (i.k == "vmem")
            if lastn < 0 and isq and len(q) >= mx: lastn = 0
            if lastn < 0: continue
            opos = q[lastn][1]
            pos = len(out); k = len(out) - 1; tries = 0
            while k > opos and tries < 3:
                if ismf(out[k]):
                    tries += 1
                    nxt = out[k + 1] if k + 1 < len(out) else None
                    early_ok = tries == 1 or (a == "lg" and out[k].st - q[lastn][0].st >= 96)
                    if not early_ok: break
                    if nxt is None or nxt.k not in SCAL: pos = k + 1; break
                    if nxt.k == "wait" and not nxt.need: pos = -(k + 1); break
                if out[k].k in ("label", "br"): break
                k -= 1
            apos = abs(pos)
            tpos = out[apos - 1].st if apos > 0 and out[apos - 1].st is not None else None
            if a == "lg" and tpos is not None:
                for n in range(lastn + 1, len(q)):
                    if q[n][1] < apos and q[n][0].st is not None and tpos - q[n][0].st >= DS_LAT: lastn = n
            cnt = sum(1 for n in range(lastn + 1, len(q)) if q[n][1] < apos)
            if pos < 0:
                w = out[apos]; cur = getattr(w, a); setattr(w, a, cnt if cur is None else min(cur, cnt))
            else:
                w = wait(); setattr(w, a, cnt); w.st = tpos
                out.insert(apos, w)
                for qq in (lq, vq):
                    for n in range(len(qq)):
                        if qq[n][1] >= apos: qq[n] = (qq[n][0], qq[n][1] + 1)
            for _ in range(lastn + 1): q.popleft()
        if i.k in ("ds", "dsw"): lq.append((i, len(out)))
        elif i.k == "vmem": vq.append((i, len(out)))
        out.append(i)
    return out

def verify2(trace):
    lq = deque(); vq = deque(); errs = 0
    landed = {}; visible = {}; slotof = {}; readdone = {}; nbar = 0; privl = {}; arrived = False; snap = {}
    for i in trace:
        if i.k == "wait":
            if i.lg is not None:
                while len(lq) > i.lg:
                    o = lq.popleft()
                    if o.ring and o.cmt != "early": readdone[o.ring] = nbar + (1 if arrived else 0)
            if i.vm is not None:
                while len(vq) > i.vm:
                    o = vq.popleft()
                    if o.ring: landed[o.ring] = landed.get(o.ring, 0) + 1
                    if o.priv: privl[o.priv] = privl.get(o.priv, 0) + 1
            continue
        if i.k == "bar":
            nbar += 1; visible.update(landed); continue
        if i.cmt == "arrive":
            snap = dict(landed); arrived = True
            for o in lq:
                if o.ring: o.cmt = "early"; readdone[o.ring] = nbar
        if i.cmt == "check":
            nbar += 1; visible.update(snap); arrived = False; continue
        for q in (lq, vq):
            for o in q:
                if o.w & (i.r | i.w): print(f"  ERR pending load [{o.t}] vs [{i.t}]"); errs += 1
        if i.k in ("ds", "dsw"):
            if i.ring:
                kind, b = i.ring
                if visible.get(i.ring, 0) < 4: print(f"  ERR RAW {i.ring} not visible at [{i.t}]"); errs += 1
                if slotof.get((kind, b % 4)) != b: print(f"  ERR slot overwritten {i.ring} at [{i.t}]"); errs += 1
            if i.priv and privl.get(i.priv, 0) < 4: print(f"  ERR priv RAW {i.priv}"); errs += 1
            lq.append(i)
            if len(lq) > 15: print("  ERR lgkm overflow"); errs += 1
        elif i.k == "vmem":
            if i.ring:
                kind, b = i.ring; old = (kind, b - 4)
                if b >= 4:
                    if any(o.ring == old for o in lq) or old not in readdone or readdone[old] >= nbar:
                        print(f"  ERR WAR DMA {i.ring}"); errs += 1
                if any(o.priv and o.priv[1] == (kind, b % 4) for o in lq): print(f"  ERR WAR priv {i.ring}"); errs += 1
                slotof[(kind, b % 4)] = b
            vq.append(i)
            if len(vq) > 63: print("  ERR vm overflow"); errs += 1
    return errs
```

```python
import sys, struct, math, re
from asmir import *
from sched import *

NAME = "standalone__mha_softmax__near_ridge"
OPT = dict(rb=3, kalt=1, sg0=1, sg1=80, vml=3500, tal=0, bp=0, bq=1, ob=1, kap=7, obias=0, dlt=10, olast=0, o2=0, one0=0, cz=0, nosnake=0, so=0, tch=0, u0=66, u1=19, u2=19, ov=1, ddl=130, cd=1, loopt=0, nowait=0, nosync=0, spf=0, spd=6144, sdl=24, tdl=20, fl=1, flr=20, stm=0, samekv=0, nosmf=0, nocvt=0, nodma=0, nobar=0, noxor=0, nolds=0, noexp=0, xd=0, thr=0x5f800000, lagc=50, lagmax=240, stamps=0, kv=1, kvy=1, q=1, o0=4, o1=4, ab=1, pf=1, e0=7, pk=1, pi=-1, pj=0, pk_=1, pall=0, verbose=0, compact=1, slow=1)
MODS = ["", " nt", " sc1", " sc1 nt", " sc0 sc1", " sc0 sc1 nt", " sc0", " sc0 nt"]
for a in sys.argv[2:]:
    k, v = a.split("="); assert k in OPT, k; OPT[k] = int(v)
vKA = 0; vVA = 4; vDA, vDB = 12, 13; vIDX = 14; vG = 15
vS = 16; vNM = 36; vQA = 56; vP = 136; vQB = 216; vT = 252
aO = 0; aL = 160; aONE = 172; aV = 180; aK = 196; aQB = 212
sQ, sK, sV, sO = 4, 8, 12, 16
sOFF = "s20"; sW4K = "s21"; sC = "s22"; sC2 = "s23"
sROW = [["s24", "s25"], ["s26", "s27"]]
sMASK = "s28"; sTHR = "s29"; sBAD = [("s", 30, 2), ("s", 32, 2)]; sFK = "s34"; sFV = "s35"; sD0 = "s3"; sD1 = "s2"
sOFV = "s43"; sB = ["s40", "s41"]
sTMP = [f"s{i}" for i in range(36, 40)]
HEADQ = 608 * 256; HEADK = 1024 * 256
CSCALE = struct.unpack("<I", struct.pack("<f", math.log2(math.e) / math.sqrt(128.0)))[0]
X1 = 0; X0 = 16384; KB = 32768; VB = 98304; FLAG = 1024
vFA, vFE = 254, 255
_st = [0]
def stmp():
    _st[0] = (_st[0] + 1) % len(sTMP); return sTMP[_st[0]]
def SS(op, d, *src):
    i = S(op, d, *src); i.w.discard("scc"); return i

def Sx(n): return ("v", vS + 4 * n, 4)
def NM(n): return ("v", vNM + 4 * n, 4)
def Q(p, n, ks):
    f = 4 * n + ks
    if p == 0: return ("v", vQA + 4 * f, 4)
    return ("a", aQB + 4 * f, 4) if f < 11 else ("v", vQB + 4 * (f - 11), 4)
def P(par, n, ks): return ("v", vP + 40 * par + 8 * n + 4 * ks, 4)
def O(n, dt): return ("a", aO + 32 * n + 4 * dt, 4)
def OP(p, n, dt):
    if p == 1 and n < 2 and OPT["ov"]: return ("v", vQA + 32 * n + 4 * dt, 4)
    return O(n, dt)
def mul2(d, a, m):
    if m[0] == "s": l = [V("v_mul_f32", f"v{d+k}", m, f"v{a+k}") for k in range(2)]; f = V("v_pk_mul_f32", ("v", d, 2), ("v", a, 2), ("s", 22, 2))
    else:
        r = int(m[1:]); l = [V("v_mul_f32", f"v{d+k}", f"v{a+k}", m) for k in range(2)]
        f = V("v_pk_mul_f32", ("v", d, 2), ("v", a, 2), ("v", r & ~1, 2), mod=" op_sel:[0,1] op_sel_hi:[1,1]" if r & 1 else " op_sel_hi:[1,0]")
        f.r.discard(f"v{r^1}")
    if OPT["pk"]: l[0].fuse = l[1].fuse = f
    return l
def f32(x): return hex(struct.unpack("<I", struct.pack("<f", float(x)))[0])
def fma2(d, a, m, c):
    if not OPT["ob"]: return mul2(d, a, f"v{m}")
    l = [V("v_fma_f32", f"v{d+k}", f"v{a+k}", f"v{m}", f"v{c}") for k in range(2)]
    f = V("v_pk_fma_f32", ("v", d, 2), ("v", a, 2), ("v", m & ~1, 2), ("v", c & ~1, 2), mod=f" op_sel:[0,{m&1},{c&1}] op_sel_hi:[1,{m&1},{c&1}]")
    f.r = {f"v{a}", f"v{a+1}", f"v{m}", f"v{c}"}
    if OPT["pk"]: l[0].fuse = l[1].fuse = f
    return l
def L(n): return ("a", aL + 4 * (n // 2), 4)
def Lr(n): return aL + 4 * (n // 2) + 2 * (n % 2)
def ONE(n): return ("a", aONE + 4 * (n % 2), 4)

class Role:
    def __init__(s, types, tag):
        s.half = [t == "B" for t in types]; s.tag = tag
        s.kst = [[s.half[0], 0] for _ in range(4)]; s.vst = [[s.half[0], 0] for _ in range(8)]
        s.prog = []; s.hints = []; s.nstamp = 0; s.epoch = 0; s.stubs = []
    def add(s, *l):
        for x in l:
            if isinstance(x, list): s.prog += x
            else: s.prog.append(x)
    def hint(s, i, m, off, attr="nb"): s.hints.append((i, m, off, attr)); return i
    def addr(s, st, reg, half, h, sflip):
        o = []
        if st[0] != half:
            if st[1]: o.append(V("v_xor_b32", reg, "0x2000", reg)); st[1] = 0
            o.append(V("v_xor_b32", reg, sflip, reg)); st[0] = half
        if not half: return o, h * 8192
        if st[1] != h: o.append(V("v_xor_b32", reg, "0x2000", reg)); st[1] = h
        return o, 0
    def kread(s, dst, b, t, ks):
        o, off = s.addr(s.kst[ks], f"v{vKA+ks}", s.half[b // 16], t >> 1, sFK)
        i = ds_read("ds_read_b128", dst, f"v{vKA+ks}", (b % 4) * 16384 + off + (t & 1) * 4096)
        i.ring = ("K", b); i.xr = {f"cK{b}", f"oK{b}"}; i.wt = {f"rK{b}"}
        return o + [i]
    def vread(s, dst, b, dt, ks):
        o, off = s.addr(s.vst[dt], f"v{vVA+dt}", s.half[b // 16], ks, sFV)
        for u in range(2):
            i = ds_read("ds_read_b64_tr_b16", (dst[0], dst[1] + 2 * u, 2), f"v{vVA+dt}", (b % 4) * 16384 + off + u * 4096)
            i.ring = ("V", b); i.xr = {f"cV{b}", f"oV{b}"}; i.wt = {f"rV{b}"}
            o.append(i)
        return o
    def vks(s, b, dt, pref):
        if s.half[b // 16] and s.vst[dt][0]: return [s.vst[dt][1], s.vst[dt][1] ^ 1]
        return pref
    def dma(s, kind, b, gate=None):
        o = []
        so = sOFF if kind == "K" else sOFV
        if b > 0: o.append(SS("s_add_u32", so, so, 16384))
        o.append(SS("s_add_u32", "m0", sW4K, (b % 4) * 16384 + (VB if kind == "V" else KB)))
        for k in range(4):
            i = dma(f"v{vDA if k % 2 == 0 else vDB}", sK if kind == "K" else sV, so, k * 1024, mod=MODS[OPT["kvy" if s.tag == "Y" and b >= 3 else "kv"]])
            i.ring = (kind, b); i.wt = {f"d{kind}{b}"}; i.xw = {f"i{kind}{b}"}
            if gate: i.xr = {gate}
            o.append(i)
        return o
    def barrier(s, close, opn, gate=None, extra_need=(), extra_w=(), extra_r=()):
        w = wait(need=[f"r{x}" for x in close] + [f"d{x}" for x in opn] + list(extra_need))
        w.xw = {f"c{x}" for x in close} | {"barseq"}; w.xr = {f"i{x}" for x in opn} | set(extra_r)
        b = bar(); b.xr = {"barseq"}; b.xw = {f"o{x}" for x in opn} | ({gate} if gate else set()) | set(extra_w)
        return [w, b]
    def sync(s, close, opn, m, gate=None, extra_need=(), extra_w=(), extra_r=(), off_bar=0, off_rd=0):
        if not OPT["fl"]:
            bl = s.barrier(close, opn, gate, extra_need, extra_w, extra_r); s.hint(bl[0], m, off_bar); return bl
        s.epoch += 1; e = s.epoch; tag = f"{s.tag}{e}"
        w = wait(need=[f"d{x}" for x in opn]); w.xr = {f"i{x}" for x in opn}; w.xw = {"flseq"}; s.hint(w, m, 0)
        a = ds_write("ds_write_b32", f"v{vFA}", f"v{vFE}", 0); a.xr = {"flseq"} | set(extra_r); a.xw = {f"c{x}" for x in close}; a.cmt = "arrive"
        r = ds_read("ds_read_b32", f"v{vFE}", f"v{vDA}", FLAG); s.hint(r, m, off_rd)
        c = V("v_cmp_gt_u32", "vcc", e, f"v{vFE}")
        b = I(f"s_cbranch_vccnz Ls{tag}\nLr{tag}:", "br", r=["vcc", f"v{vDA}"], w=["vcc", f"v{vFE}"]); b.cmt = "check"
        b.xw = {f"o{x}" for x in opn} | ({gate} if gate else set()) | set(extra_w)
        s.stubs += [label(f"Ls{tag}"), raw(f"ds_read_b32 v{vFE}, v{vDA} offset:{FLAG}"), raw("s_waitcnt lgkmcnt(0)"), raw(f"v_cmp_gt_u32 vcc, {e}, v{vFE}"), raw("s_nop 0"),
                    raw(f"s_cbranch_vccnz Ls{tag}")] + ([raw("s_add_u32 s99, s99, 1")] if OPT["stm"] == 4 else []) + [raw(f"s_branch Lr{tag}")]
        if OPT["cd"]: s.hint(b, m, off_rd + 8 + OPT["cd"])
        mv = V("v_mov_b32", f"v{vFE}", e)
        for i in (w, a): s.hint(i, m, max(0, off_rd - 10), "dlm")
        return ([w] if opn else []) + [mv, a, r, c, b]
    def chain(s, p, n, sq, kf, czero):
        order = [0, 1, 2, 3] if n % 2 == 0 or OPT["nosnake"] else [3, 2, 1, 0]
        return [mfma(sq, kf(ks), Q(p, n, ks), sq if k else ("0" if czero or OPT["cz"] else NM(n))) for k, ks in enumerate(order)]
    def rowmax(s, n, sq, a, b):
        x = [f"v{sq[1]+r}" for r in range(4)]
        l = [V("v_max3_f32", a, x[0], x[1], x[2]), V("v_max_f32", a, a, x[3])] + ([V("v_add_f32", a, hex(struct.unpack("<I", struct.pack("<f", float(OPT["dlt"])))[0]), a)] if OPT["dlt"] else []) + [V("v_mov_b32", b, a),
             swap("v_permlane16_swap_b32", a, b), V("v_max_f32", a, a, b), V("v_mov_b32", b, a), swap("v_permlane32_swap_b32", a, b)]
        l += [V("v_min_f32", f"v{vNM+4*n+r}", "-" + a, "-" + b) for r in range(4)]
        l += [V("v_add_f32", x[r], x[r], f"v{vNM+4*n}") for r in range(4)]
        return l
    def expcvt(s, par, n, t, sq, pb=None):
        l = []
        if pb is None: pb = vP + 40 * par + 8 * n
        for h in range(2):
            x0, x1 = f"v{sq[1]+2*h}", f"v{sq[1]+2*h+1}"
            l += [V("v_exp_f32", x0, x0), V("v_exp_f32", x1, x1), V("v_cvt_pk_bf16_f32", f"v{pb+2*t+h}", x0, x1)]
        return l
    def smf(s, b, n, pb=None):
        if pb is None: pb = vP + 40 * (b % 2) + 8 * n
        if s.half[b // 16] and n == 4: return mfma(L(4), ONE(4), ("v", pb, 4), L(4))
        return smfmac(L(n), ONE(n), ("v", pb, 8), f"v{vIDX}")
    def scale(s, src, dst, ta, pk=False):
        a, b = f"v{ta}", f"v{ta+1}"
        l = [V("v_lshlrev_b32", a, 16, src), V("v_and_b32", b, sMASK, src)]
        l += mul2(ta, ta, sC)
        if dst[0] == "v": return l + [V("v_cvt_pk_bf16_f32", dst, a, b)]
        return l + [V("v_cvt_pk_bf16_f32", a, a, b), V("v_accvgpr_write_b32", dst, a)]
    def rowoff(s, p, n, extra=None):
        t = stmp()
        i = SS("s_add_u32", t, sROW[p][0], n * 4096) if n < 4 else SS("s_mov_b32", t, sROW[p][1])
        if extra is None: return t, [i]
        return t, [i, SS("s_add_u32", t, t, extra)]
    def stamp(s, m=None, off=0):
        if not OPT["stamps"]: return
        k = s.nstamp; s.nstamp += 1; assert k < 14
        a = raw(f"s_memtime s[{44+4*k}:{45+4*k}]"); b = raw(f"s_memrealtime s[{46+4*k}:{47+4*k}]")
        for i in (a, b):
            if m is not None: s.hint(i, m, off); s.hint(i, m, off + 2, "dlm")
            else: i.xw = {"seq"}
        s.add(a, b)

    QREG = [(VB + 16384, ("V", 1)), (VB + 32768, ("V", 2)), (VB + 49152, ("V", 3)), (X0, None), (X1, None)]
    TA = 236
    def qdma(s, n):
        t, o = s.rowoff(0, n)
        o.append(SS("s_add_u32", "m0", sW4K, s.QREG[n][0]))
        for k in range(4):
            i = dma(f"v{vDA if k % 2 == 0 else vDB}", sQ, t, k * 1024, mod=MODS[OPT["q"]])
            i.wt = {f"dQ{n}"}; i.priv = (n, s.QREG[n][1]); o.append(i)
        return o
    def start(s):
        half = s.half[0]; TA = s.TA
        def seq(l):
            for i in l:
                if i.k in ("vmem", "wait", "bar"): i.xw = i.xw | {"seq"}
            return l
        KF = lambda b, t: (lambda ks: ("a", 16 * t + 4 * ks, 4) if b == 0 else Q(1, t, ks))
        s.KF = KF
        def kpart(bs, dm, order, sq):
            if OPT["stm"] == 1 and 0 in bs: s.stamp()
            bl = seq(s.barrier([], [f"K{b}" for b in bs]))
            s.add(bl[0], seq(dm), bl[1]) if not OPT["so"] else s.add(bl, seq(dm))
            if OPT["stm"] == 1 and 0 in bs: s.stamp()
            for b, t in order:
                for ks in range(4):
                    l = s.kread(KF(b, t)(ks), b, t, ks)
                    if sq: l[-1].xr = l[-1].xr | {"seq"}
                    s.add(l)
        if not OPT["so"]:
            kpart([0, 1], s.qdma(2), ((0, 0), (0, 1), (1, 0), (1, 1), (0, 2), (0, 3), (1, 2), (1, 3)), True)
        nxt = [s.qdma(3), s.qdma(4), s.dma("V", 0), s.dma("K", 2), s.dma("V", 1)]
        if OPT["so"]: nxt[0] = s.qdma(1)
        s.sc = 0
        for n in range(5):
            w = wait(need=[f"dQ{n}"]); w.xw = {"seq", f"oQ{n}"}; s.add(w)
            if n == 0 or n == 4 or OPT["stm"] == 1: s.stamp()
            base = TA + (4 if n < 3 else 0); off = s.QREG[n][0] - (VB + 16384 if n < 3 else 0)
            for ks in range(4):
                i = ds_read("ds_read_b128", Q(0, n, ks), f"v{base+ks}", off); i.xr = {f"oQ{n}", f"cQ{n}", "seq"}; i.priv = (n, s.QREG[n][1]); i.wt = {f"rQ{n}"}; s.add(i)
            s.add(seq(nxt[n]))
            for r in range(16):
                q = f"v{vQA+16*n+r}"; s.add(s.scale(q, q, TA + 8 + 2 * (r % 4), pk=OPT["pk"]))
            if OPT["so"] == 1 and n == 0:
                s.prog[-1].xw = {"seq"}
                kpart([0, 1], s.qdma(2) + s.qdma(3), ((0, 0), (0, 1), (0, 2), (0, 3), (1, 2), (1, 3), (1, 0), (1, 1)), False)
            if OPT["so"] == 2 and n == 0:
                s.prog[-1].xw = {"seq"}
                kpart([0], s.qdma(2), ((0, 0), (0, 1), (0, 2), (0, 3)), False)
            for b in range(2 if n < 4 else 1):
                if OPT["so"] == 2 and n == 0 and b == 1:
                    ch[0].xw = {"seq"}
                    kpart([1], s.qdma(3), ((1, 0), (1, 1), (1, 2), (1, 3)), False)
                for t in range(2 if half and n == 4 else 4):
                    sq = Sx(s.sc % 5); s.sc += 1
                    ch = s.chain(0, n, sq, KF(b, t), t == 0 and b == 0); s.add(ch)
                    if t == 0 and b == 0:
                        s.add(s.rowmax(n, sq, f"v{TA+16}", f"v{TA+17}"))
                        if n == 4:
                            ch[-1].xw = {"seq"}
                            s.add(seq(s.barrier(["K0", "K1", "Q4"], ["V0"], gate="D-1", extra_w=["flinit"])))
                            if OPT["fl"]:
                                a = ds_write("ds_write_b32", f"v{vFA}", f"v{vFE}", 0); a.xr = {"flinit"}; a.xw = {"cgive"}; a.wt = {"cw"}
                                s.add(V("v_mov_b32", f"v{vFE}", 0), a)
                    s.add(s.expcvt(b, n, t, sq))
            if n < 4: ch[-1].xw = {"seq"}
        s.add([V("v_accvgpr_write_b32", f"a{aL+r}", 0) for r in range(12)])

    def nbr(s, p, d, rl):
        return [V("v_mul_f32_e64", f"v{d}", "-" + sB[p], f"v{rl}")] if OPT["ob"] else []
    def ep_l(s, p, n, rl, tmp):
        a, b = f"v{rl}", f"v{tmp}"
        o = [V("v_accvgpr_read_b32", a, f"a{Lr(n)}")]
        if not (s.half[p] and n == 4): o += [V("v_accvgpr_read_b32", b, f"a{Lr(n)+1}"), V("v_add_f32", a, a, b)]
        o += [V("v_cmp_nge_f32", "vcc", sTHR, a), SS("s_or_b64", sBAD[p], sBAD[p], "vcc")]
        if not (s.half[p] and n == 4): o += [V("v_rcp_f32", a, a)]
        return o
    def ep_store(s, p, n, D, tb, pkq, voo, mod):
        o = [V("v_cvt_pk_bf16_f32", f"v{pkq+r}", f"v{tb+2*r}", f"v{tb+2*r+1}") for r in range(4)]
        o += [swap("v_permlane16_swap_b32", f"v{pkq}", f"v{pkq+2}"), swap("v_permlane16_swap_b32", f"v{pkq+1}", f"v{pkq+3}")]
        if s.half[p]:
            t, oo = s.rowoff(p, n, sD0 if D < 2 else sD1); off = (D & 1) * 64
        else:
            t, oo = s.rowoff(p, n); off = D * 64
        st = bstore(("v", pkq, 4), f"v{voo}", sO, t, off, mod=MODS[mod]); st.cmt = "strided"
        return o + oo + [st]
    def voo_calc(s, voo, t):
        return [V("v_lshrrev_b32", f"v{t}", 1, f"v{vG}"), V("v_xor_b32", f"v{t}", f"v{t}", f"v{vG}"), V("v_and_b32", f"v{t}", 16, f"v{t}"),
                V("v_mul_u32_u24", f"v{t}", 3, f"v{t}"), V("v_xor_b32", f"v{voo}", f"v{t}", f"v{vG}")]
    def lane16(s, d):
        return [V("v_mbcnt_lo_u32_b32", d, -1, 0), V("v_mbcnt_hi_u32_b32", d, -1, d), V("v_lshlrev_b32", d, 4, d)]
    def cmb_pre(s, T, base):
        o = s.lane16(f"v{T}") + [V("v_add_u32", f"v{T}", sW4K, f"v{T}"), V("v_add_u32", f"v{T}", base, f"v{T}"), V("v_xor_b32", f"v{T+1}", "0x1000", f"v{T}"),
             V("v_mov_b32", f"v{T+2}", f"v{vNM+16}")]
        return o
    def cmb_give(s, p, T):
        o = s.ep_l(p, 4, T + 3, T + 4)
        w = [ds_write("ds_write_b64", f"v{T}", ("v", T + 2, 2), 0)] + [ds_write("ds_write_b128", f"v{T}", O(4, dt), 16384 + dt * 1024) for dt in range(4)]
        for i in w: i.wt = {"cw"}; i.xw = {"cgive"}
        return o + w
    def cmb_take(s, p, T, U, tb, pkq, voo, mod):
        r = [ds_read("ds_read_b64", ("v", T + 4, 2), f"v{T+1}", 0)]
        nm, l, nm2, l2, x, y = [f"v{T+k}" for k in (2, 3, 4, 5, 6, 7)]
        o = r + [V("v_cmp_nge_f32", "vcc", sTHR, l2), SS("s_or_b64", sBAD[p], sBAD[p], "vcc"),
                 V("v_min_f32", x, nm, nm2), V("v_sub_f32", nm, x, nm), V("v_sub_f32", nm2, x, nm2), V("v_exp_f32", nm, nm), V("v_exp_f32", nm2, nm2),
                 V("v_mul_f32", x, l, nm), V("v_fma_f32", x, l2, nm2, x), V("v_rcp_f32", x, x), V("v_mul_f32", nm, nm, x), V("v_mul_f32", nm2, nm2, x)]
        if OPT["ob"]: o += [V("v_add_f32", y, nm, nm2), V("v_mul_f32_e64", y, "-" + sB[p], y)]
        for D in (2, 3):
            t = tb[D - 2]; u = U[D - 2]
            rr = [ds_read("ds_read_b128", ("v", u + 4 * k, 4), f"v{T+1}", 16384 + (2 * (D - 2) + k) * 1024) for k in range(2)]; r += rr; o += rr
            o += [V("v_accvgpr_read_b32", f"v{t+r_}", f"a{aO+128+8*D+r_}") for r_ in range(8)]
            for r_ in range(0, 8, 2): o += fma2(t + r_, t + r_, T + 2, T + 7)
            o += [V("v_fma_f32", f"v{t+r_}", f"v{u+r_}", nm2, f"v{t+r_}") for r_ in range(8)]
            o += s.ep_store(p, 4, D, t, pkq[D - 2], voo, mod)
        for i in r: i.xr = {"cmb"}
        return o

    def tq(s, b, q): return q ^ 2 if (OPT["kalt"] and s.half[b // 16] and b % 2 == 1 and b != 31) else q
    def block(s, j):
        b = j + 1; p = b // 16; pv = j // 16
        hq, hv = s.half[p], s.half[pv]
        first = (j % 16 == 0); trans = (j == 15)
        smfs = {0: [0], 1: [1], 2: [2, 3], 3: [4]}
        if trans:
            E = vQA; RL = E; VOO = E + 5; MX = E + 6; TB = [E + 8, E + 16]; CT = E + 24; PK = [E + 4 * k for k in range(8 if hv else 6, 20)]
            if hv: PK = PK[4:]; CU = [E + 32, E + 40]
            if OPT["ov"]:
                E = vQA + 64; RL = E; VOO = E + 5; MX = E + 6; TB = [E + 8, E + 8]; CT = vQA + 56; CU = [vQA + 48, vQA + 48]
            assert OPT["ov"] or not OPT["ob"]
            NB = MX
            if OPT["ob"]:
                MX = vT
                s.add([V("v_mov_b32", f"v{vQA+28+r}", sB[1]) for r in range(4)])
            s.pki = 0
            s.add(s.voo_calc(VOO, MX))
            if hv: s.add(s.cmb_pre(CT, X1))
        if j == 30: s.tail_pre()
        for q in range(4):
            vbuf = aK if (j == 0 and q % 2 == 0) else aV
            for h, pref in ((0, [0, 1]), (1, [0, 1] if hv else [1, 0])):
                for ks in s.vks(j, 2 * q + h, pref): s.add(s.vread(("a", vbuf + 8 * h + 4 * ks, 4), j, 2 * q + h, ks))
            cz = (b % 16 == 0 and q == 0)
            if j == 0:
                work = [(4, t, s.KF(1, t), None) for t in ([[0, 1], [2], [3], []] if not hq else [[0, 1], [], [], []])[q]]
            elif j == 30:
                work = [(4, q, s.KT(q), s.PT[0])] if not (hq and q >= 2) else []
            else: work = [(n, s.tq(b, q), (lambda ks: ("a", aK + 4 * ks, 4)), None) for n in range(4 if hq and s.tq(b, q) >= 2 else 5)]
            ch = []; sqs = []
            for n, t, kf, pb in work:
                if j in (0, 30): sq = Sx(s.sc % 5); s.sc += 1
                else: sq = Sx(n)
                sqs.append(sq); ch += s.chain(p, n, sq, kf, cz)
            pvm = []
            def cinit(n):
                if not OPT["ob"]: return "0"
                if j == 0: return ("a", aQB, 4)
                return ("a", 0, 4) if OP(1, n, 0)[0] == "a" else ("v", vQA + 28, 4)
            for h in range(2):
                dt = 2 * q + h
                for n in (range(5) if h == 0 else reversed(range(5))):
                    kss = [0] if hv and n == 4 else ([0, 1] if (n + h) % 2 == 0 or OPT["nosnake"] else [1, 0])
                    for k_, ks in enumerate(kss):
                        pvm.append(mfma(OP(pv, n, dt), ("a", vbuf + 8 * h + 4 * ks, 4), P(j % 2, n, ks), cinit(n) if first and k_ == 0 else OP(pv, n, dt)))
            s.add(ch); m0 = (ch + pvm)[0]
            if j == 0 and q == 0 and OPT["ob"]: s.add([V("v_accvgpr_write_b32", f"a{aQB+r}", sB[0]) for r in range(4)])
            if q == 0:
                s.bstart[j] = m0
                if j in s.stamp_at: s.stamp(m0)
                lag = 0
                if s.half[0] and not s.half[1]: lag = min(OPT["lagmax"], (16 * (j if j <= 15 else 31 - j) * OPT["lagc"]) // 100)
                bat = []
                if j == 0: bat.append((s.dma("K", 3, gate="D-1") + s.dma("V", 2, gate="D-1"), 40)); lag = 110
                if j == 1: lag = 90
                if j == 2: lag = 40
                dl = []
                if j + 4 <= 31: dl += s.dma("K", j + 4, gate=f"D{j-1}")
                if j + 3 <= 31: dl += s.dma("V", j + 3, gate=f"D{j-1}")
                bat.append((dl, lag))
                for dl, lag in bat:
                    for k, i in enumerate([x for x in dl if x.k == "vmem"]):
                        s.hint(i, m0, lag + 30 + 2 * k, "dlm")
                        if lag: s.hint(i, m0, lag - 20)
                    s.add(dl)
            qlen = len(ch) + len(pvm) + 1
            if OPT["spf"] and (q == 1 or (OPT["spf"] > 1 and q == 3) or OPT["spf"] > 2):
                for i in (raw("s_getpc_b64 s[40:41]", w=["s40"]), raw(f"s_load_dword s42, s[40:41], {OPT['spd']}", r=["s40"])):
                    s.hint(i, m0, 8); s.hint(i, m0, 12, "dlm"); s.add(i)
            k = 0
            for (n, t, kf, pb), sq in zip(work, sqs):
                if cz: s.add(s.rowmax(n, sq, f"v{MX}", f"v{MX+1}"))
                l = s.expcvt(b % 2, n, t, sq, pb)
                for i in l:
                    if i.k == "trans" and j not in (0, 30): s.hint(i, m0, OPT["e0"] + (k * qlen) // (4 * len(work))); k += 1
                s.add(l)
            if q == 3 and j < 30:
                opn = [f"K{j+2}", f"V{j+1}"] + (["V31"] if j == 29 else [])
                cm = (trans and hv) or (j == 0 and OPT["fl"])
                kw = dict(gate=f"D{j}", extra_need=["cw"] if cm else [], extra_w=["cmb"] if cm else [], extra_r=["cgive"] if cm else [])
                if j == 0:
                    bl = s.barrier(["V0"], opn, **kw); s.hint(bl[0], m0, 0); s.add(bl)
                else: s.add(s.sync([f"K{b}", f"V{j}"], opn, m0, off_bar=len(ch) - 3, off_rd=OPT["flr"] - (20 - len(ch)), **kw))
            if j < 30:
                if q < 3 and j > 0:
                    for ks in range(4): s.add(s.kread(("a", aK + 4 * ks, 4), b, s.tq(b, q + 1), ks))
                elif q == 3:
                    for ks in range(4): s.add(s.kread(("a", aK + 4 * ks, 4), b + 1, s.tq(b + 1, 0), ks))
            if trans and q == 0:
                s.add([s.smf(j, n) for n in range(5)])
                for n in range(4 if hv else 5): s.add(s.ep_l(pv, n, RL + n, MX))
            s.add(pvm)
            if not trans: s.add([s.smf(j, n) for n in smfs[q]])
            if trans:
                if hv and q == 1: s.add(s.cmb_give(pv, CT))
                if q == 1: s.add([V("v_accvgpr_write_b32", f"a{aL+r}", 0) for r in range(10)])
                def quad(n, D, tb, pkq, dl, nb=None):
                    l = [V("v_accvgpr_read_b32", f"v{tb+r}", f"a{aO+32*n+8*D+r}") for r in range(8)]
                    if nb is not None:
                        for i in l: s.hint(i, s.bstart[15], nb)
                    l += s.nbr(pv, NB, RL + n)
                    for r in range(0, 8, 2): l += fma2(tb + r, tb + r, RL + n, NB)
                    l += s.ep_store(pv, n, D, tb, pkq, VOO, OPT["o0"]); s.hint(l[-1], s.bstart[15], dl, "dlm"); s.hint(l[-1], s.bstart[15], dl - 4); s.add(l)
                for n in reversed(range(2 if OPT["ov"] else 0, 4 if hv else 5)):
                    pkq = (vQA + 8 * q + [0, 4, 32][n - 2]) if OPT["ov"] else PK[s.pki % len(PK)]
                    if OPT["ob"] and pkq == vQA + 28: pkq = TB[0] if hv else vQA + 60
                    quad(n, q, TB[s.pki % 2], pkq, (OPT["u0"] + (OPT["u1"] if not hv else OPT["u2"]) * s.pki) if OPT["ov"] else 80 + OPT["sdl"] * s.pki); s.pki += 1
                if OPT["ob"] and q == 0:
                    quad(0, 0, TB[0], vQA + 36, OPT["u0"] + (OPT["u1"] if not hv else OPT["u2"]) * s.pki); s.pki += 1
                    s.add([V("v_accvgpr_write_b32", f"a{r}", sB[1]) for r in range(4)])
                if hv and q == 3:
                    l = s.cmb_take(pv, CT, CU, TB, TB if OPT["ov"] else [PK[s.pki % len(PK)], PK[(s.pki + 1) % len(PK)]], VOO, OPT["o0"])
                    for k, i in enumerate([x for x in l if x.k == "vmem"]):
                        dl = OPT["u0"] + OPT["u2"] * (s.pki + k) if OPT["ov"] else 80 + OPT["sdl"] * (s.pki + k)
                        s.hint(i, s.bstart[15], dl, "dlm"); s.hint(i, s.bstart[15], dl - 4)
                    s.add(l)
                if q == 3 and OPT["ov"]:
                    for k in range(OPT["ob"], 8): quad(k // 4, k % 4, TB[0], TB[0], 330 + OPT["ddl"] * (k + 1 - OPT["ob"]))
            if q == 1 and j in s.stage: s.add(s.stage[j](m0))

    def plan_stage(s):
        s.stage = {}
        def g(m):
            o = []
            def ld(f, dst, k=0):
                t, oo = s.rowoff(1, f // 4)
                i = bload(dst, f"v{vG}", sQ, t, (f % 4) * 64, mod=MODS[OPT["q"]]); i.cmt = "strided"; s.hint(i, m, (k // 2) * OPT["sg1"])
                return oo + [i]
            def sc(f, src):
                d = Q(1, f // 4, f % 4); l = []
                for r in range(4):
                    if src[0] == "a": l += [V("v_accvgpr_read_b32", f"v{vT+1}", f"a{src[1]+r}")] + s.scale(f"v{vT+1}", f"a{d[1]+r}", vT)
                    else: l += s.scale(f"v{src[1]+r}", f"{d[0]}{d[1]+r}", vT)
                return l
            land = lambda f: ("v", vQB + 4 * (f + 1), 4) if f < 8 else Q(1, f // 4, f % 4)
            for f in range(12): o += ld(f, land(f), f)
            for f in range(0, 8, 2): o += sc(f, land(f)) + sc(f + 1, land(f + 1)) + ld(12 + f, land(12 + f)) + ld(13 + f, land(13 + f))
            for f in range(8, 20): o += sc(f, land(f))
            return o
        s.stage[OPT["sg0"]] = g

    def tail_pre(s):
        hv = s.half[1]; Z = ("a", 0) if OPT["ov"] else ("v", vQA)
        s.KT = lambda t: (lambda ks: ("a", aK + 4 * ks, 4) if t == 0 else (("v", vP + 40 + 16 * (t - 1) + 4 * ks, 4) if t < 3 else (Z[0], Z[1] + 48 + 4 * ks, 4)))
        s.VT = lambda dt, ks: (Z[0], Z[1] + 8 * dt + 4 * ks, 4) if dt < 6 else ("a", aV + 8 * (dt - 6) + 4 * ks, 4)
        s.PT = [vP + 72, 236]
        for t in range(1, 4):
            for ks in range(4): s.add(s.kread(s.KT(t)(ks), 31, t, ks))
    def tail(s):
        j = 31; hv = s.half[1]
        for dt in range(8):
            for ks in s.vks(j, dt, [0, 1]): s.add(s.vread(s.VT(dt, ks), j, dt, ks))
        E = vQA + 64
        WA = E; RA = E + 4; GA = E + 5; VOO = E + 7; RL = E + 8; TMP = E + 12
        CT = 244; CU = 220
        F = vP
        TB = [F, F + 8]; PKD = [F + 16 + 2 * k for k in range(4)]; RB = [F + 24 + 4 * k for k in range(4)]
        t0, t1 = f"v{TMP}", f"v{TMP+1}"
        a = [V("v_lshrrev_b32", t0, 4, f"v{vG}"), V("v_and_b32", t0, "0x70", t0), V("v_lshrrev_b32", t1, 1, f"v{vG}"), V("v_and_b32", t1, 24, t1),
             V("v_xor_b32", t0, t0, t1), V("v_and_b32", t1, "0xf00", f"v{vG}"), V("v_add3_u32", t0, t0, t1, sW4K), V("v_add_u32", f"v{WA}", VB, t0)]
        a += [V("v_xor_b32", f"v{WA+k}", 32 * k, f"v{WA}") for k in range(1, 4)]
        a += s.lane16(t0) + [V("v_add_u32", t1, sW4K, t0), V("v_add_u32", f"v{RA}", VB, t1)]
        a += [V("v_lshrrev_b32", t1, 4, t0), V("v_and_b32", t1, "0x30", t1), V("v_xor_b32", t0, t0, t1)]
        a += [V("v_xor_b32", f"v{GA}", sD0 if hv else 0, t0), V("v_xor_b32", f"v{GA+1}", 64, f"v{GA}")]
        if hv: a += s.voo_calc(VOO, TMP)
        for i in a: s.hint(i, s.bstart[28], 0)
        s.add(a)
        order = [4, 3, 2, 1, 0]
        if hv: s.add(s.cmb_pre(CT, KB))
        k2 = 0
        for k, n in enumerate(order):
            pb = s.PT[k % 2]
            ml = [[s.smf(j, n, pb)], [], [], []]
            for dt in range(8):
                kss = [0] if hv and n == 4 else ([0, 1] if dt % 2 == 0 else [1, 0])
                ml[dt // 2] += [mfma(OP(1, n, dt), s.VT(dt, ks), ("v", pb + 4 * ks, 4), OP(1, n, dt)) for ks in kss]
            if k == 0: s.stamp(ml[0][0])
            for t in range(4):
                if k < 4:
                    n2 = order[k + 1]; sq = Sx(s.sc % 5); s.sc += 1
                    s.add(s.chain(1, n2, sq, s.KT(t), False), s.expcvt(1, n2, t, sq, s.PT[(k + 1) % 2]))
                s.add(ml[t])
            lastm = ml[3][-1]
            if hv and n == 4:
                s.add(s.cmb_give(1, CT))
                s.add(s.sync([], [], lastm, extra_need=["cw"], extra_w=["cmb"], extra_r=["cgive"], off_bar=24, off_rd=30))
                continue
            rl = RL + 2 * (k2 % 2); X = (k2 % 2) * 16384; usepk = OPT["pk"] and k == 4; k2 += 1
            ep = s.ep_l(1, n, rl, TMP + 2) + s.nbr(1, rl + 1, rl)
            for D in range(4):
                tb = TB[D % 2]
                if OP(1, n, 0)[0] == "v": tb = OP(1, n, 2 * D)[1]
                else: ep += [V("v_accvgpr_read_b32", f"v{tb+r}", f"a{aO+32*n+8*D+r}") for r in range(8)]
                for r in range(0, 8, 2): ep += fma2(tb + r, tb + r, rl, rl + 1)
                ws = []
                for h in range(2):
                    dt = 2 * D + h; pk = PKD[dt % 4]
                    ep += [V("v_cvt_pk_bf16_f32", f"v{pk+r}", f"v{tb+4*h+2*r}", f"v{tb+4*h+2*r+1}") for r in range(2)]
                    w = ds_write("ds_write_b64", f"v{WA+dt%4}", ("v", pk, 2), X + (dt // 4) * 128); w.xr = {"D29"}; w.xw = {f"Xd{X}_{dt}"}; ws.append(w)
                ep += ws
            t, oo = s.rowoff(1, n); ep += oo
            for r in range(4):
                i = ds_read("ds_read_b128", ("v", RB[r], 4), f"v{RA}", X + r * 1024); i.xr = {f"Xd{X}_{dt}" for dt in range(8)}; ep.append(i)
            st = [bstore(("v", RB[r], 4), f"v{GA+r%2}", sO, t, r * 1024, mod=MODS[OPT["o1"] if k < 5 - OPT["olast"] else OPT["o2"]]) for r in range(4)]
            for i in st: s.hint(i, lastm, OPT["tdl"], "dlm")
            s.add(ep + st)
            if hv and k == 1: s.add(s.cmb_take(1, CT, [CU, CU + 8], TB, [RB[0], RB[1]], VOO, OPT["o1"]))

    def build(s):
        s.bstart = {}; s.stamp_at = {0, 4, 8, 12, 15, 16, 18, 24} if OPT["stamps"] else set()
        s.nstamp = 1
        if OPT["stm"] == 1: s.stamp_at = {0}; s.nstamp = 2
        if OPT["stm"] == 2: s.stamp_at = {0, 1, 2, 3, 4, 5, 6, 8}
        if OPT["stm"] == 5: s.stamp_at = {0}
        if OPT["stm"] == 4: s.stamp_at = {0, 22, 28}
        if OPT["stm"] == 3: s.stamp_at = {0, 14, 15, 16, 17, 18, 19, 30}
        s.plan_stage()
        s.start()
        for j in range(31): s.block(j)
        s.tail()
        ms = [i for i in s.prog if ismf(i)]
        for k, m in enumerate(ms): m.mi = k
        for i, m, off, attr in s.hints: setattr(i, attr, ms[max(0, min(len(ms) - 1, m.mi + off))])
        out = schedule(s.prog, verbose=True, name=s.tag)
        if OPT["verbose"]:
            prev = None
            for j in sorted(s.bstart):
                if prev is not None: print(f"  blk {j-1}: {s.bstart[j].st - prev}", end="")
                prev = s.bstart[j].st
            print(f"\n  start {s.bstart[0].st}  tail from blk30 {out[-1].st - prev}")
        return out

def setup_common():
    t0, t1, w = "s34", "s35", "s3"
    R = Role("AA", "")
    l, m, g, a, b, c = "v16", "v17", "v18", "v19", "v20", "v21"
    o = [raw("s_cmp_lt_u32 s2, 256", w=["scc"]), br("s_cbranch_scc1", "Lgo"), raw("s_endpgm"), label("Lgo")]
    if OPT["stamps"]: o += [raw("s_memtime s[44:45]"), raw("s_memrealtime s[46:47]")]
    if OPT["rb"] != 3:
        o += [S("s_lshr_b32", t0, "s2", OPT["rb"] - 3), S("s_xor_b32", t0, t0, "s2"), S("s_and_b32", t0, t0, 8), S("s_mul_i32", t0, t0, 1 + (1 << (OPT["rb"] - 3))), S("s_xor_b32", "s2", "s2", t0)]
    o += [raw("s_load_dwordx4 s[8:11], s[0:1], 0"), raw("s_load_dwordx4 s[12:15], s[0:1], 16"),
          V("v_lshrrev_b32", "v1", 6, "v0"), V("v_and_b32", l, 63, "v0"), V("v_and_b32", m, 15, "v0"),
          V("v_readfirstlane_b32", w, "v1"), V("v_lshrrev_b32", g, 4, l)]
    if OPT["pf"]:
        o += [raw("s_getpc_b64 s[36:37]", w=["s36", "s37"]), label("Lpf"), S("s_mov_b32", "s38", "Lcodeend-Lpf"), S("s_mov_b32", "s39", "0x00020000"),
              S("s_lshr_b32", t0, "s2", 4), S("s_lshl_b32", t0, t0, 13), S("s_bitcmp1_b32", "s2", 3), S("s_cselect_b32", t1, "LroleY-Lpf", 0), S("s_add_u32", t0, t0, t1),
              V("v_lshlrev_b32", a, 5, "v0"),
              I("buffer_load_dword v253, v19, s[36:39], s34 offen", "vmem", w=["v253"], r=["v19", "s34", "s36", "s37", "s38", "s39"])]
    o += [V("v_lshlrev_b32", a, 1, g), V("v_xor_b32", a, a, m), V("v_lshlrev_b32", a, 4, a), V("v_lshl_add_u32", f"v{vDA}", g, 8, a), V("v_xor_b32", f"v{vDB}", 128, f"v{vDA}")]
    if OPT["ob"]: o += [V("v_and_b32", a, 31, l), V("v_lshlrev_b32", a, 4, a), V("v_lshrrev_b32", b, 5, l), V("v_lshl_add_u32", "v22", b, 18, a)]
    o += [S("s_lshl_b32", sW4K, w, 12), S("s_mov_b32", sOFF, sW4K), S("s_mov_b32", sOFV, sW4K)]
    o += [S("s_mul_i32", "s28", w, 5 * 4096), S("s_add_u32", "s29", "s28", 4 * 4096)]
    if OPT["ab"]: o += [S("s_lshl_b32", "s30", w, 14), S("s_add_u32", "s30", "s30", 20 * 4096), S("s_and_b32", "s31", sW4K, "0x2000"), S("s_lshr_b32", "s31", "s31", 1), S("s_add_u32", "s31", "s31", 36 * 4096)]
    else: o += [S("s_add_u32", "s30", "s28", 18 * 4096), S("s_add_u32", "s31", "s28", 22 * 4096)]
    o += [S("s_bitcmp1_b32", "s2", 3), S("s_cselect_b64", ("s", 24, 2), ("s", 30, 2), ("s", 28, 2)), S("s_cselect_b64", ("s", 26, 2), ("s", 28, 2), ("s", 30, 2))]
    o += [S("s_and_b32", t0, "s2", 7), S("s_lshr_b32", t1, "s2", 4), S("s_lshl_b32", t0, t0, 4), S("s_add_u32", t0, t0, t1),
          S("s_mul_i32", t1, t0, 2 * HEADQ), S("s_lshl_b32", t0, t0, 19), S("s_mov_b32", "s6", 2 * HEADQ), S("s_mov_b32", "s7", "0x00020000")]
    o += [raw("s_waitcnt lgkmcnt(0)", k="salu")]
    if OPT["stamps"] and OPT["stm"] == 1: o += [raw("s_memtime s[48:49]"), raw("s_memrealtime s[50:51]")]
    o += [S("s_add_u32", "s4", "s8", t1), S("s_addc_u32", "s5", "s9", 0),
          S("s_add_u32", "s8", "s10", t0), S("s_addc_u32", "s9", "s11", 0), S("s_mov_b32", "s10", 2 * HEADK), S("s_mov_b32", "s11", "0x00020000")]
    srd2 = [S("s_add_u32", "s16", "s14", t1), S("s_addc_u32", "s17", "s15", 0), S("s_mov_b32", "s18", 2 * HEADQ), S("s_mov_b32", "s19", "0x00020000"),
          S("s_add_u32", "s12", "s12", t0), S("s_addc_u32", "s13", "s13", 0), S("s_mov_b32", "s14", 2 * HEADK), S("s_mov_b32", "s15", "0x00020000")]
    vl = [bload(("v", 24 + 4 * k, 4), "v22", sV, 0, 512 * k, mod=" nt") for k in range(2)] if OPT["ob"] else []
    parts = [R.qdma(0), R.dma("K", 0), R.dma("K", 1)] if OPT["so"] else [R.dma("K", 0), R.dma("K", 1), R.qdma(0)]
    parts.insert(OPT["bp"], srd2 + vl)
    for x in parts: o += x
    if OPT["stamps"]: o += [S("s_lshl_b32", "s100", "s2", 2), S("s_add_u32", "s100", "s100", w), S("s_mov_b32", "s101", "s2")] + ([S("s_mov_b32", "s99", 0)] if OPT["stm"] == 4 else [])
    o += [S("s_add_u32", "s26", "s26", HEADQ), S("s_add_u32", "s27", "s27", HEADQ)]
    o += [V("v_lshlrev_b32", a, 4, g), V("v_lshl_add_u32", f"v{vG}", m, 8, a)]
    o += [V("v_and_b32", a, 7, m), V("v_lshlrev_b32", a, 1, a), V("v_xor_b32", a, a, g), V("v_lshlrev_b32", a, 4, a), V("v_lshl_add_u32", a, m, 8, a)]
    for ks in range(4):
        o += [V("v_xor_b32", b, 64 * ks, a), V("v_add_u32", f"v{vKA+ks}", KB, b), V("v_add_u32", f"v{R.TA+ks}", sW4K, b), V("v_add_u32", f"v{R.TA+4+ks}", VB + 16384, f"v{R.TA+ks}")]
    o += [V("v_lshrrev_b32", a, 2, l), V("v_and_b32", b, 7, a), V("v_lshlrev_b32", b, 5, b), V("v_and_b32", c, 3, l), V("v_lshlrev_b32", c, 3, c),
          V("v_xor_b32", b, b, c), V("v_lshl_add_u32", b, a, 8, b), V("v_add_u32", f"v{vVA}", VB, b)]
    o += [V("v_xor_b32", f"v{vVA+dt}", 32 * dt, f"v{vVA}") for dt in range(1, 8)]
    o += [S("s_lshl_b32", t0, w, 8), S("s_add_u32", t0, t0, FLAG), V("v_lshl_add_u32", f"v{vFA}", l, 2, t0)]
    o += [V("v_and_b32", a, 2, m), V("v_cmp_eq_u32", "vcc", 0, a), V("v_mov_b32", b, "0x3f803f80"), V("v_cndmask_b32", a, 0, b, "vcc"), V("v_xor_b32", b, a, b)]
    if OPT["one0"]: o += [V("v_cmp_gt_u32", "vcc", 4, m), nop(2), V("v_cndmask_b32", a, 0, a, "vcc"), V("v_cndmask_b32", b, 0, b, "vcc")]
    o += [V("v_accvgpr_write_b32", f"a{aONE+i}", a) for i in range(4)] + [V("v_accvgpr_write_b32", f"a{aONE+4+i}", b) for i in range(4)]
    o += [V("v_and_b32", a, 1, m), V("v_cmp_eq_u32", "vcc", 1, a), V("v_mov_b32", b, "0x44444444"), V("v_mov_b32", c, "0xeeeeeeee"), V("v_cndmask_b32", f"v{vIDX}", b, c, "vcc")]
    o += [S("s_mov_b32", sC, hex(CSCALE)), S("s_mov_b32", sC2, hex(CSCALE)), S("s_mov_b32", sMASK, "0xffff0000"), S("s_mov_b32", sTHR, hex(OPT["thr"])),
          S("s_mov_b64", sBAD[0], 0), S("s_mov_b64", sBAD[1], 0)]
    o += [S("s_and_b32", sD0, w, 1), S("s_lshl_b32", sFK, sD0, 13), S("s_lshl_b32", sD0, sD0, 7), S("s_or_b32", sFV, sFK, sD0)]
    if OPT["ob"]:
        x = [f"v{24+k}" for k in range(8)]; y = [f"v{32+k}" for k in range(8)]
        bo = [wait(need=x)] + [V("v_max_f32_e64", y[k], f"|{x[k]}|", f"|{x[4+k]}|") for k in range(4)]
        bo += [V("v_lshlrev_b32", x[k], 16, x[k]) for k in range(8)] + [V("v_max_f32_e64", y[4+k], f"|{x[k]}|", f"|{x[4+k]}|") for k in range(4)]
        bo += [swap("v_permlane16_swap_b32", y[k], y[4+k]) for k in range(4)] + [V("v_max_f32", y[k], y[k], y[4+k]) for k in range(4)]
        bo += [V("v_min3_f32", y[0], y[0], y[1], y[2]), V("v_min_f32", y[0], y[0], y[3])]
        bo += [V("v_min_f32_dpp", y[0], y[0], y[0], mod=f" row_ror:{k} row_mask:0xf bank_mask:0xf") for k in (8, 4, 2, 1)]
        bo += [V("v_and_b32", y[0], "0x7f800000", y[0]), V("v_min_f32", y[0], f32(2.0 ** 100), y[0]), V("v_mul_f32", y[0], f32(1.5 * 2.0 ** (OPT["kap"] - OPT["dlt"])), y[0]), nop(1)]
        bo += [V("v_readlane_b32", "s40", y[0], 0), V("v_readlane_b32", "s36", y[0], 16), V("v_readlane_b32", "s41", y[0], 32), V("v_readlane_b32", "s37", y[0], 48), nop(2),
               S("s_min_u32", "s40", "s40", "s36"), S("s_min_u32", "s41", "s41", "s37")]
    else: bo = []
    if OPT["bq"]: o += bo
    if not OPT["so"]: o += R.qdma(1)
    if not OPT["bq"]: o += bo
    o += [S("s_bitcmp1_b32", "s2", 3), br("s_cbranch_scc1", "LroleY")]
    return o

def setup_role(R, k):
    o = [S("s_xor_b32", sD1, sD0, 128)]
    if R.half[0]:
        o += [V("v_xor_b32", f"v{vKA+ks}", sFK, f"v{vKA+ks}") for ks in range(4)] + [V("v_xor_b32", f"v{vVA+dt}", sFV, f"v{vVA+dt}") for dt in range(8)]
    return o

def finish(R, k):
    o = []
    if OPT["stamps"]:
        n = R.nstamp
        o += [raw(f"s_memtime s[{44+4*n}:{45+4*n}]"), raw(f"s_memrealtime s[{46+4*n}:{47+4*n}]"), raw("s_waitcnt vmcnt(0) lgkmcnt(0)")]; n += 1
        o += [raw(f"s_memtime s[{44+4*n}:{45+4*n}]"), raw(f"s_memrealtime s[{46+4*n}:{47+4*n}]"), raw("s_waitcnt lgkmcnt(0)")]; n += 1
        assert n <= 14
        if OPT["pi"] >= 0:
            i, j, kk = OPT["pi"], OPT["pj"], OPT["pk_"]
            if not OPT["pall"]: o += [raw("s_and_b32 s101, s101, 0xf7"), raw("s_cmp_lg_u32 s101, 100"), raw(f"s_cbranch_scc1 Lfin{k}")]
            o += [raw(f"s_sub_u32 s36, s{44+4*j+2*kk}, s{44+4*i+2*kk}"), raw("s_mul_i32 s36, s36, 10") if kk else raw("s_lshr_b32 s36, s36, 1"),
                  raw("s_min_u32 s36, s36, 200000"), raw("s_memrealtime s[38:39]"), raw("s_waitcnt lgkmcnt(0)"), label(f"Lspin{k}"), raw("s_memrealtime s[40:41]"), raw("s_waitcnt lgkmcnt(0)"),
                  raw("s_sub_u32 s37, s40, s38"), raw("s_cmp_lt_u32 s37, s36"), raw(f"s_cbranch_scc1 Lspin{k}")]
        else:
            o += [raw("; STAMPS"), raw("s_load_dwordx2 s[40:41], s[0:1], 40"), raw("v_mov_b32 v16, 0")]
            for x in range(n): o += [raw(f"v_writelane_b32 v16, s{44+4*x}, {2*x}"), raw(f"v_writelane_b32 v16, s{46+4*x}, {2*x+1}")]
            o += [raw(f"v_writelane_b32 v16, {n}, 63"), raw("v_writelane_b32 v16, s99, 62"), raw("s_lshl_b32 s100, s100, 8"), raw("v_mbcnt_lo_u32_b32 v17, -1, 0"), raw("v_mbcnt_hi_u32_b32 v17, -1, v17"), raw("v_lshlrev_b32 v17, 2, v17"),
                  raw("s_waitcnt lgkmcnt(0)"), raw("s_mov_b32 s42, 0x100000"), raw("s_mov_b32 s43, 0x00020000"), raw("buffer_store_dword v16, v17, s[40:43], s100 offen"), raw("s_waitcnt vmcnt(0)")]
    o += [label(f"Lfin{k}")]
    if OPT["slow"]: o += [raw("s_or_b64 s[36:37], s[30:31], s[32:33]"), raw("s_cbranch_scc1 Lslow")]
    o += [raw("s_endpgm")] + R.stubs
    return o

MACROS = """.macro qa d,a,b,c
v_mfma_f32_16x16x32_bf16 v[\\d:\\d+3], a[\\a:\\a+3], v[\\b:\\b+3], v[\\c:\\c+3]
.endm
.macro qb d,a,b,c
v_mfma_f32_16x16x32_bf16 v[\\d:\\d+3], a[\\a:\\a+3], a[\\b:\\b+3], v[\\c:\\c+3]
.endm
.macro pv d,a,b
v_mfma_f32_16x16x32_bf16 a[\\d:\\d+3], a[\\a:\\a+3], v[\\b:\\b+3], a[\\d:\\d+3]
.endm
.macro pw d,a,b
v_mfma_f32_16x16x32_bf16 v[\\d:\\d+3], a[\\a:\\a+3], v[\\b:\\b+3], v[\\d:\\d+3]
.endm
.macro ex r
v_exp_f32 v\\r, v\\r
.endm
.macro cv d,a,b
v_cvt_pk_bf16_f32 v\\d, v\\a, v\\b
.endm
.macro lk d,a,o
ds_read_b128 a[\\d:\\d+3], v\\a offset:\\o
.endm
.macro lv d,a,o
ds_read_b64_tr_b16 a[\\d:\\d+1], v\\a offset:\\o
.endm
"""
def compact(txt):
    M = "    v_mfma_f32_16x16x32_bf16 "
    txt = re.sub(M + r"v\[(\d+):\d+\], a\[(\d+):\d+\], v\[(\d+):\d+\], v\[\1:\d+\]", r"pw \1,\2,\3", txt)
    txt = re.sub(M + r"v\[(\d+):\d+\], a\[(\d+):\d+\], v\[(\d+):\d+\], v\[(\d+):\d+\]", r"qa \1,\2,\3,\4", txt)
    txt = re.sub(M + r"v\[(\d+):\d+\], a\[(\d+):\d+\], a\[(\d+):\d+\], v\[(\d+):\d+\]", r"qb \1,\2,\3,\4", txt)
    txt = re.sub(M + r"a\[(\d+):\d+\], a\[(\d+):\d+\], v\[(\d+):\d+\], a\[\1:\d+\]", r"pv \1,\2,\3", txt)
    txt = re.sub(r"    v_exp_f32 v(\d+), v\1\n", r"ex \1\n", txt)
    txt = re.sub(r"    v_cvt_pk_bf16_f32 v(\d+), v(\d+), v(\d+)", r"cv \1,\2,\3", txt)
    txt = re.sub(r"    ds_read_b128 a\[(\d+):\d+\], v(\d+) offset:(\d+)", r"lk \1,\2,\3", txt)
    txt = re.sub(r"    ds_read_b64_tr_b16 a\[(\d+):\d+\], v(\d+) offset:(\d+)", r"lv \1,\2,\3", txt)
    return txt.replace("\n    ", "\n")

def build():
    TA_LIM[0] = OPT["tal"]; VM_LAT[0] = OPT["vml"]
    com = setup_common()
    body = ""
    txt = []
    for k, types in enumerate((("AB", "BA") if OPT["ab"] else ("AA", "AA"))):
        R = Role(types, "XY"[k])
        main = R.build()
        su = setup_role(R, k)
        for i in com + su: i.st = -1000
        tr = insert_waits(com + su + main)
        while fix_hazards(tr, verbose=OPT["verbose"] > 1): pass
        e = verify2(tr); assert e == 0, e
        nc = len(com)
        if OPT["loopt"]:
            tr = [i for i in tr if i.cmt != "check"]; R.stubs = []
            i0 = tr.index(R.bstart[23]); i1 = tr.index(R.bstart[27])
            tr = tr[:i0] + [raw(f"s_mov_b32 s42, {OPT['loopt']}"), label(f"Llt{k}")] + tr[i0:i1] + [raw("s_sub_u32 s20, s20, 65536"), raw("s_sub_u32 s43, s43, 65536"), raw("s_sub_u32 s42, s42, 1"), raw("s_cmp_lg_u32 s42, 0"), raw(f"s_cbranch_scc1 Llt{k}")] + tr[i1:]
        if OPT["nowait"]: tr = [i for i in tr if not (i.k == "wait" and i.st > 20000)]
        if OPT["nosync"]: tr = [i for i in tr if not ("v255" in i.t and i.st > 20000)]
        if OPT["nodma"]: tr = [i for i in tr if not (i.k == "vmem" and i.ring and i.ring[1] >= 4)]
        if OPT["samekv"]:
            for i in tr:
                if i.t == "s_add_u32 s20, s20, 16384": i.t = "s_xor_b32 s20, s20, 16384"
        if OPT["nosmf"]: tr = [i for i in tr if i.tag != "smf"]
        if OPT["nocvt"]: tr = [i for i in tr if not (i.t.startswith("v_cvt_pk") and 136 <= int(i.t.split()[1][1:-1]) < 216 and i.st > 8000)]
        if OPT["nobar"]: tr = [i for i in tr if i.k != "bar"]
        if OPT["noxor"]: tr = [i for i in tr if "0x2000, " not in i.t]
        if OPT["nolds"]: tr = [i for i in tr if not (i.k == "ds" and i.ring and i.ring[1] >= 2)]
        if OPT["noexp"]: tr = [i for i in tr if "v_exp" not in i.t]
        assert all(a is b for a, b in zip(tr[:nc], com))
        txt.append("".join(i.text() for i in tr[nc:] + finish(R, k)))
        if OPT["verbose"]: print("  nops:", sum(i.nop for i in tr), "waits:", sum(i.k == "wait" for i in tr))
    slow = ""
    if OPT["slow"]:
        import slowpath
        slow = slowpath.text(sys.modules[__name__])
    body = "".join(i.text() for i in com) + txt[0] + slow + ".p2align 6\nLroleY:\n" + txt[1] + "Lcodeend:\n    s_endpgm\n" + (".fill 4096, 4, 0xbf810000\n" if OPT["spf"] else "")
    return compact(body) if OPT["compact"] else body

HEAD = f"""; flash-attention forward, B8 H32 Sq608 Sk1024 D128 bf16 (emitted by my own scheduling script)
; @launch grid=(256,1,1) block=(256,1,1) lds=163840
.amdgcn_target "amdgcn-amd-amdhsa--gfx950"
{MACROS}.text
.globl {NAME}_kernel
.p2align 8
.type {NAME}_kernel,@function
{NAME}_kernel:
"""
TAIL = f""".section .rodata,"a"
.p2align 6
.amdhsa_kernel {NAME}_kernel
  .amdhsa_next_free_vgpr 512
  .amdhsa_next_free_sgpr 102
  .amdhsa_accum_offset 256
  .amdhsa_group_segment_fixed_size 0
  .amdhsa_kernarg_size 48
  .amdhsa_user_sgpr_count 2
  .amdhsa_user_sgpr_kernarg_segment_ptr 1
  .amdhsa_system_sgpr_workgroup_id_x 1
  .amdhsa_float_denorm_mode_32 3
.end_amdhsa_kernel
"""
if __name__ == "__main__":
    open(sys.argv[1], "w").write(HEAD + build() + TAIL)
```

```python
import heapq
from collections import deque
from asmir import *

SCAL = ("salu", "wait", "bar", "nop", "br")
DS_LAT = 112
def cost(i):
    if i.k == "valu": return 4
    if i.k in ("trans", "perm"): return 8
    if i.k == "ds": return 4
    if i.k == "dsw": return 22 if "b128" in i.t else (8 if "b32" in i.t else 12)
    if i.k == "vmem": return 4 if "store" in i.t or "global" in i.t else 8
    return 4
TA_LIM = [10**9]; VM_LAT = [0]
def ta_cost(i): return 256 if i.cmt == "strided" else 64
def lat_cyc(p, c, raw):
    if p.k == "ds" and raw: return DS_LAT
    if p.k == "vmem" and raw and p.w & c.r: return VM_LAT[0]
    if ismf(p) and raw and not ismf(c): return 36
    return 0

class Node:
    __slots__ = ("i", "idx", "pred", "succ", "np", "dl", "rt", "t", "pos", "mi", "mate", "hard")

def schedule(prog, verbose=False, name=""):
    N = []
    lastw = {}; readers = {}
    lastm = None; lastv = {}; lastseq = None
    mi = 0; fz = {}
    for idx, i in enumerate(prog):
        n = Node(); n.i = i; n.idx = idx; n.pred = {}; n.succ = []; n.t = None; n.pos = None; n.mi = None
        R_ = i.r | i.xr; W_ = i.w | i.xw
        for r in R_:
            p = lastw.get(r)
            if p is not None: n.pred[p] = True
        for r in W_:
            p = lastw.get(r)
            if p is not None: n.pred[p] = True
            for p in readers.get(r, ()):
                if p is not n: n.pred.setdefault(p, p.i.k == "ds" and i.k == "wait")
        for r in R_: readers.setdefault(r, []).append(n)
        for r in W_: lastw[r] = n; readers[r] = []
        if ismf(i):
            if lastm is not None: n.pred.setdefault(lastm, False)
            lastm = n; n.mi = mi; i.mi = mi; mi += 1
        if i.k == "vmem":
            cl = "st" if "store" in i.t else ("dma" if "lds" in i.t else "ld")
            if cl in lastv: n.pred.setdefault(lastv[cl], False)
            lastv[cl] = n
        n.pred.pop(n, None)
        for p in n.pred: p.succ.append(n)
        n.np = len(n.pred); n.rt = 0
        n.mate = None
        if i.fuse is not None:
            o = fz.pop(id(i.fuse), None)
            if o is None: fz[id(i.fuse)] = n
            else: n.mate = o; o.mate = n
        N.append(n)
    NM_ = mi
    for n in reversed(N):
        if n.mi is not None: n.dl = n.hard = n.mi; continue
        d = h = NM_ + n.idx * 1e-6
        if n.i.dlm is not None: d = min(d, n.i.dlm.mi)
        for s in n.succ:
            l = cost(n.i) / 8.0 + lat_cyc(n.i, s.i, s.pred[n]) / 16.0
            if n.i.k in SCAL: l = 1.0
            d = min(d, s.dl - l); h = min(h, s.hard - l)
        if n.i.cmt == "asap": d = h = -1000 + n.idx * 1e-3
        n.dl = d; n.hard = h
    ms = [n for n in N if n.mi is not None]
    ready = [n for n in N if n.np == 0 and n.mi is None]
    out = []
    t = 0; pipe = 0; slot = False; last = None; cur = -1
    left = len(N); stall = 0; tm = -100; ta = 0
    def haz_ok(n):
        d = 0; k = len(out) - 1
        while k >= 0 and d < 12:
            p = out[k]
            if required(p.i, n.i) > d: return False
            d += states(p.i); k -= 1
        return True
    def eff_cost(n):
        i = n.i
        if i.k in SCAL: return (0 if slot else 4) + (4 if i.cmt == "two" else 0)
        c = cost(i)
        if i.k in ("ds", "dsw", "vmem"):
            if last in VALUK: c += 8
            elif last in ("ds",) and i.k == "ds": c += 4
        return c
    def issue(n):
        nonlocal t, pipe, slot, last, cur, left, stall, tm, ta
        i = n.i
        if n.mate is not None and n.mate.t is None and n.mate.np == 0 and n.mate.rt <= t and t >= tm + 28 and haz_ok(n.mate):
            o = n.mate; f = Node(); f.i = i.fuse; f.i.st = t
            for x in (n, o):
                ready.remove(x); x.t = t; left -= 1
                for s_ in x.succ:
                    s_.np -= 1; s_.rt = max(s_.rt, t)
                    if s_.np == 0 and s_.mi is None: ready.append(s_)
            out.append(f); t += 4; slot = False; last = "valu"
            return
        if n.mi is not None:
            t0 = max(t, pipe, n.rt)
            if cur >= 0: stall += t0 - pipe
            n.t = t0; pipe = t0 + (32 if i.k == "mfma8" else 16); t = t0 + (12 if i.tag == "smf" else 8)
            slot = True; last = i.k; cur = n.mi; tm = t0
        else:
            ready.remove(n)
            c = eff_cost(n); t = max(t, n.rt); n.t = t; t += c
            if i.k == "vmem": ta = max(ta, n.t) + ta_cost(i)
            if i.k == "bar": t += 56
            if i.k == "vmem" and "store" in i.t: pipe = max(pipe, t + 16)
            slot = False
            if i.k not in SCAL: last = i.k
        i.st = n.t
        out.append(n); left -= 1
        for s in n.succ:
            s.np -= 1
            s.rt = max(s.rt, n.t + lat_cyc(i, s.i, s.pred[n]))
            if s.np == 0 and s.mi is None: ready.append(s)
    while left:
        m = ms[cur + 1] if cur + 1 < NM_ else None
        m_ok = m is not None and m.np == 0
        m_rdy = m_ok and m.rt <= max(t, pipe) and haz_ok(m)
        budget = pipe - t
        cand = [n for n in ready if (n.i.nb is None or n.i.nb.mi <= cur or n.dl <= cur + 1) and n.rt <= t
                and not (n.i.k == "vmem" and ta - t > TA_LIM[0] and n.hard > cur + 1)]
        cand.sort(key=lambda n: (n.dl, n.idx))
        cand = [n for n in cand[:24] if haz_ok(n)]
        pick = None
        atstart = last in ("mfma", "mfma8")
        if slot:
            sc = [n for n in cand if n.i.k in SCAL]
            if sc: pick = sc[0]
        if pick is None and cand:
            fit = [n for n in cand if eff_cost(n) <= budget and not (n.i.k == "vmem" and "store" in n.i.t and not atstart)]
            top = cand[0]
            mem = [n for n in cand if n.i.k in ("ds", "dsw", "vmem")]
            if atstart and mem and (mem[0] is top or top.i.k == "valu" or top.i.k in SCAL or (mem[0].dl <= cur + 2)):
                x = mem[0]
                if eff_cost(x) <= budget or cost(x.i) > 8 or x.dl <= cur + 2 or not m_rdy:
                    if not (top.i.k == "valu" and cost(x.i) > 4 and top.dl <= cur + 2 and x.dl > cur + 4): pick = x
            if pick is None and fit: pick = fit[0]
            if pick is None and top.dl <= cur + 1 and top.i.k not in ("ds", "dsw", "vmem"): pick = top
            if pick is None and not m_rdy: pick = top
        if pick is not None: issue(pick)
        elif m_rdy: issue(m)
        else:
            later = [n for n in ready if n.rt > t]
            if m_ok and m.rt <= max(t, pipe):
                issue(m)
            elif (m_ok or later) and t < max([n.rt for n in later] + [m.rt if m_ok else 0]):
                t += 4; slot = False
            else:
                r = sorted(ready, key=lambda n: (n.dl, n.idx))
                assert r, "deadlock"
                issue(r[0])
    if verbose: print(f"sched {name}: {len(N)} instrs, {NM_} mfma, est cycles {max(t,pipe)}, mfma stall {stall}")
    return [n.i for n in out]

def insert_waits(seq, lq=None, vq=None):
    lq = deque() if lq is None else lq; vq = deque() if vq is None else vq
    out = []
    def retire(w):
        if w.lg is not None:
            while len(lq) > w.lg: lq.popleft()
        if w.vm is not None:
            while len(vq) > w.vm: vq.popleft()
    for i in seq:
        if i.k == "wait":
            for q, a in ((lq, "lg"), (vq, "vm")):
                lastn = -1
                for n, (o, _) in enumerate(q):
                    if (o.w | o.wt) & i.need: lastn = n
                if lastn >= 0:
                    cnt = len(q) - 1 - lastn; cur = getattr(i, a)
                    setattr(i, a, cnt if cur is None else min(cur, cnt))
            retire(i); out.append(i); continue
        touch = i.r | i.w
        for q, a, mx in ((lq, "lg", 15), (vq, "vm", 63)):
            lastn = -1
            for n, (o, _) in enumerate(q):
                if o.w & touch: lastn = n
            isq = (i.k in ("ds", "dsw")) if a == "lg" else (i.k == "vmem")
            if lastn < 0 and isq and len(q) >= mx: lastn = 0
            if lastn < 0: continue
            opos = q[lastn][1]
            pos = len(out); k = len(out) - 1; tries = 0
            while k > opos and tries < 3:
                if ismf(out[k]):
                    tries += 1
                    nxt = out[k + 1] if k + 1 < len(out) else None
                    early_ok = tries == 1 or (a == "lg" and out[k].st - q[lastn][0].st >= 96)
                    if not early_ok: break
                    if nxt is None or nxt.k not in SCAL: pos = k + 1; break
                    if nxt.k == "wait" and not nxt.need: pos = -(k + 1); break
                if out[k].k in ("label", "br"): break
                k -= 1
            apos = abs(pos)
            tpos = out[apos - 1].st if apos > 0 and out[apos - 1].st is not None else None
            if a == "lg" and tpos is not None:
                for n in range(lastn + 1, len(q)):
                    if q[n][1] < apos and q[n][0].st is not None and tpos - q[n][0].st >= DS_LAT: lastn = n
            cnt = sum(1 for n in range(lastn + 1, len(q)) if q[n][1] < apos)
            if pos < 0:
                w = out[apos]; cur = getattr(w, a); setattr(w, a, cnt if cur is None else min(cur, cnt))
            else:
                w = wait(); setattr(w, a, cnt); w.st = tpos
                out.insert(apos, w)
                for qq in (lq, vq):
                    for n in range(len(qq)):
                        if qq[n][1] >= apos: qq[n] = (qq[n][0], qq[n][1] + 1)
            for _ in range(lastn + 1): q.popleft()
        if i.k in ("ds", "dsw"): lq.append((i, len(out)))
        elif i.k == "vmem": vq.append((i, len(out)))
        out.append(i)
    return out

def verify2(trace):
    lq = deque(); vq = deque(); errs = 0
    landed = {}; visible = {}; slotof = {}; readdone = {}; nbar = 0; privl = {}; arrived = False; snap = {}
    for i in trace:
        if i.k == "wait":
            if i.lg is not None:
                while len(lq) > i.lg:
                    o = lq.popleft()
                    if o.ring and o.cmt != "early": readdone[o.ring] = nbar + (1 if arrived else 0)
            if i.vm is not None:
                while len(vq) > i.vm:
                    o = vq.popleft()
                    if o.ring: landed[o.ring] = landed.get(o.ring, 0) + 1
                    if o.priv: privl[o.priv] = privl.get(o.priv, 0) + 1
            continue
        if i.k == "bar":
            nbar += 1; visible.update(landed); continue
        if i.cmt == "arrive":
            snap = dict(landed); arrived = True
            for o in lq:
                if o.ring: o.cmt = "early"; readdone[o.ring] = nbar
        if i.cmt == "check":
            nbar += 1; visible.update(snap); arrived = False; continue
        for q in (lq, vq):
            for o in q:
                if o.w & (i.r | i.w): print(f"  ERR pending load [{o.t}] vs [{i.t}]"); errs += 1
        if i.k in ("ds", "dsw"):
            if i.ring:
                kind, b = i.ring
                if visible.get(i.ring, 0) < 4: print(f"  ERR RAW {i.ring} not visible at [{i.t}]"); errs += 1
                if slotof.get((kind, b % 4)) != b: print(f"  ERR slot overwritten {i.ring} at [{i.t}]"); errs += 1
            if i.priv and privl.get(i.priv, 0) < 4: print(f"  ERR priv RAW {i.priv}"); errs += 1
            lq.append(i)
            if len(lq) > 15: print("  ERR lgkm overflow"); errs += 1
        elif i.k == "vmem":
            if i.ring:
                kind, b = i.ring; old = (kind, b - 4)
                if b >= 4:
                    if any(o.ring == old for o in lq) or old not in readdone or readdone[old] >= nbar:
                        print(f"  ERR WAR DMA {i.ring}"); errs += 1
                if any(o.priv and o.priv[1] == (kind, b % 4) for o in lq): print(f"  ERR WAR priv {i.ring}"); errs += 1
                slotof[(kind, b % 4)] = b
            vq.append(i)
            if len(vq) > 63: print("  ERR vm overflow"); errs += 1
    return errs
```

```python
import sys, struct, math, re
from asmir import *
from sched import *

NAME = "standalone__mha_softmax__near_ridge"
OPT = dict(gl=1, tl=0, h0=110, h1=22, h2=195, h3=30, hd=260, nost=0, nodsw=0, ep=0, epo=0, l0=40, l1=110, l2=90, l3=40, sv=0, sd=0, asap=1, kq=4, rb=3, kalt=1, sg0=1, sg1=140, vml=3500, tal=0, bp=0, bq=1, ob=1, kap=7, obias=0, dlt=10, olast=0, o2=0, one0=0, cz=0, nosnake=0, so=0, tch=0, u0=66, u1=19, u2=19, ov=1, ddl=130, cd=1, loopt=0, nowait=0, nosync=0, spf=0, spd=6144, sdl=24, tdl=10, fl=1, flr=20, stm=0, samekv=0, nosmf=0, nocvt=0, nodma=0, nobar=0, noxor=0, nolds=0, noexp=0, xd=0, thr=0x5f800000, lagc=50, lagmax=240, stamps=0, kv=1, kvy=1, q=1, o0=4, o1=4, ab=1, pf=1, e0=7, pk=1, pi=-1, pj=0, pk_=1, pall=0, verbose=0, compact=1, slow=1)
MODS = ["", " nt", " sc1", " sc1 nt", " sc0 sc1", " sc0 sc1 nt", " sc0", " sc0 nt"]
for a in sys.argv[2:]:
    k, v = a.split("="); assert k in OPT, k; OPT[k] = int(v)
vKA = 0; vVA = 4; vDA, vDB = 12, 13; vIDX = 14; vG = 15
vS = 16; vNM = 36; vQA = 56; vP = 136; vQB = 216; vT = 252
aO = 0; aL = 160; aONE = 172; aV = 180; aK = 196; aQB = 212
sQ, sK, sV, sO = 4, 8, 12, 16
sOFF = "s20"; sW4K = "s21"; sC = "s22"; sC2 = "s23"
sROW = [["s24", "s25"], ["s26", "s27"]]
sMASK = "s28"; sTHR = "s29"; sBAD = [("s", 30, 2), ("s", 32, 2)]; sFK = "s34"; sFV = "s35"; sD0 = "s3"; sD1 = "s2"
sOFV = "s43"; sB = ["s40", "s41"]
sTMP = [f"s{i}" for i in range(36, 40)]
HEADQ = 608 * 256; HEADK = 1024 * 256
CSCALE = struct.unpack("<I", struct.pack("<f", math.log2(math.e) / math.sqrt(128.0)))[0]
X1 = 0; X0 = 16384; KB = 32768; VB = 98304; FLAG = 1024
vFA, vFE = 254, 255
_st = [0]
def stmp():
    _st[0] = (_st[0] + 1) % len(sTMP); return sTMP[_st[0]]
def SS(op, d, *src):
    i = S(op, d, *src); i.w.discard("scc"); return i

def Sx(n): return ("v", vS + 4 * n, 4)
def NM(n): return ("v", vNM + 4 * n, 4)
def Q(p, n, ks):
    f = 4 * n + ks
    if p == 0: return ("v", vQA + 4 * f, 4)
    return ("a", aQB + 4 * f, 4) if f < 11 else ("v", vQB + 4 * (f - 11), 4)
def P(par, n, ks): return ("v", vP + 40 * par + 8 * n + 4 * ks, 4)
def O(n, dt): return ("a", aO + 32 * n + 4 * dt, 4)
def OP(p, n, dt):
    if p == 1 and n < 2 and OPT["ov"]: return ("v", vQA + 32 * n + 4 * dt, 4)
    return O(n, dt)
def mul2(d, a, m):
    if m[0] == "s": l = [V("v_mul_f32", f"v{d+k}", m, f"v{a+k}") for k in range(2)]; f = V("v_pk_mul_f32", ("v", d, 2), ("v", a, 2), ("s", 22, 2))
    else:
        r = int(m[1:]); l = [V("v_mul_f32", f"v{d+k}", f"v{a+k}", m) for k in range(2)]
        f = V("v_pk_mul_f32", ("v", d, 2), ("v", a, 2), ("v", r & ~1, 2), mod=" op_sel:[0,1] op_sel_hi:[1,1]" if r & 1 else " op_sel_hi:[1,0]")
        f.r.discard(f"v{r^1}")
    if OPT["pk"]: l[0].fuse = l[1].fuse = f
    return l
def f32(x): return hex(struct.unpack("<I", struct.pack("<f", float(x)))[0])
def fma2(d, a, m, c):
    if not OPT["ob"]: return mul2(d, a, f"v{m}")
    l = [V("v_fma_f32", f"v{d+k}", f"v{a+k}", f"v{m}", f"v{c}") for k in range(2)]
    f = V("v_pk_fma_f32", ("v", d, 2), ("v", a, 2), ("v", m & ~1, 2), ("v", c & ~1, 2), mod=f" op_sel:[0,{m&1},{c&1}] op_sel_hi:[1,{m&1},{c&1}]")
    f.r = {f"v{a}", f"v{a+1}", f"v{m}", f"v{c}"}
    if OPT["pk"]: l[0].fuse = l[1].fuse = f
    return l
def L(n): return ("a", aL + 4 * (n // 2), 4)
def Lr(n): return aL + 4 * (n // 2) + 2 * (n % 2)
def ONE(n): return ("a", aONE + 4 * (n % 2), 4)

class Role:
    def __init__(s, types, tag):
        s.half = [t == "B" for t in types]; s.tag = tag
        s.kst = [[s.half[0], 0] for _ in range(4)]; s.vst = [[s.half[0], 0] for _ in range(8)]
        s.prog = []; s.hints = []; s.nstamp = 0; s.epoch = 0; s.stubs = []
    def add(s, *l):
        for x in l:
            if isinstance(x, list): s.prog += x
            else: s.prog.append(x)
    def hint(s, i, m, off, attr="nb"): s.hints.append((i, m, off, attr)); return i
    def addr(s, st, reg, half, h, sflip):
        o = []
        if st[0] != half:
            if st[1]: o.append(V("v_xor_b32", reg, "0x2000", reg)); st[1] = 0
            o.append(V("v_xor_b32", reg, sflip, reg)); st[0] = half
        if not half: return o, h * 8192
        if st[1] != h: o.append(V("v_xor_b32", reg, "0x2000", reg)); st[1] = h
        return o, 0
    def kread(s, dst, b, t, ks):
        o, off = s.addr(s.kst[ks], f"v{vKA+ks}", s.half[b // 16], t >> 1, sFK)
        i = ds_read("ds_read_b128", dst, f"v{vKA+ks}", (b % 4) * 16384 + off + (t & 1) * 4096)
        i.ring = ("K", b); i.xr = {f"cK{b}", f"oK{b}"}; i.wt = {f"rK{b}"}
        return o + [i]
    def vread(s, dst, b, dt, ks):
        o, off = s.addr(s.vst[dt], f"v{vVA+dt}", s.half[b // 16], ks, sFV)
        for u in range(2):
            i = ds_read("ds_read_b64_tr_b16", (dst[0], dst[1] + 2 * u, 2), f"v{vVA+dt}", (b % 4) * 16384 + off + u * 4096)
            i.ring = ("V", b); i.xr = {f"cV{b}", f"oV{b}"}; i.wt = {f"rV{b}"}
            o.append(i)
        return o
    def vks(s, b, dt, pref):
        if s.half[b // 16] and s.vst[dt][0]: return [s.vst[dt][1], s.vst[dt][1] ^ 1]
        return pref
    def dma(s, kind, b, gate=None):
        o = []
        so = sOFF if kind == "K" else sOFV
        gl = OPT["gl"] and b >= 4; gp = 96 if kind == "K" else 98
        if gl:
            if b == 4:
                srd = sK if kind == "K" else sV
                o.append(raw(f"s_add_u32 s{gp}, s{srd}, {so}\n    s_addc_u32 s{gp+1}, s{srd+1}, 0", w=[f"s{gp}"], r=[so])); o[-1].cmt = "two"
            o.append(raw(f"s_add_u32 s{gp}, s{gp}, 16384\n    s_addc_u32 s{gp+1}, s{gp+1}, 0", w=[f"s{gp}"], r=[f"s{gp}"])); o[-1].cmt = "two"
        elif b > 0: o.append(SS("s_add_u32", so, so, 16384))
        o.append(SS("s_add_u32", "m0", sW4K, (b % 4) * 16384 + (VB if kind == "V" else KB)))
        for k in range(4):
            i = dma(f"v{vDA if k % 2 == 0 else vDB}", sK if kind == "K" else sV, so, k * 1024, mod=MODS[OPT["kvy" if s.tag == "Y" and b >= 3 else "kv"]])
            if gl:
                va = f"v{vDA if k % 2 == 0 else vDB}"
                i = I(f"global_load_lds_dwordx4 {va}, s[{gp}:{gp+1}] offset:{k*1024}{MODS[OPT['kv']]}", "vmem", r=[va, f"s{gp}", "m0"])
            i.ring = (kind, b); i.wt = {f"d{kind}{b}"}; i.xw = {f"i{kind}{b}"}
            if gate: i.xr = {gate}
            o.append(i)
        return o
    def barrier(s, close, opn, gate=None, extra_need=(), extra_w=(), extra_r=()):
        w = wait(need=[f"r{x}" for x in close] + [f"d{x}" for x in opn] + list(extra_need))
        w.xw = {f"c{x}" for x in close} | {"barseq"}; w.xr = {f"i{x}" for x in opn} | set(extra_r)
        b = bar(); b.xr = {"barseq"}; b.xw = {f"o{x}" for x in opn} | ({gate} if gate else set()) | set(extra_w)
        return [w, b]
    def sync(s, close, opn, m, gate=None, extra_need=(), extra_w=(), extra_r=(), off_bar=0, off_rd=0):
        if not OPT["fl"]:
            bl = s.barrier(close, opn, gate, extra_need, extra_w, extra_r); s.hint(bl[0], m, off_bar); return bl
        s.epoch += 1; e = s.epoch; tag = f"{s.tag}{e}"
        w = wait(need=[f"d{x}" for x in opn]); w.xr = {f"i{x}" for x in opn}; w.xw = {"flseq"}; s.hint(w, m, 0)
        a = ds_write("ds_write_b32", f"v{vFA}", f"v{vFE}", 0); a.xr = {"flseq"} | set(extra_r); a.xw = {f"c{x}" for x in close}; a.cmt = "arrive"
        r = ds_read("ds_read_b32", f"v{vFE}", f"v{vDA}", FLAG); s.hint(r, m, off_rd)
        c = V("v_cmp_gt_u32", "vcc", e, f"v{vFE}")
        b = I(f"s_cbranch_vccnz Ls{tag}\nLr{tag}:", "br", r=["vcc", f"v{vDA}"], w=["vcc", f"v{vFE}"]); b.cmt = "check"
        b.xw = {f"o{x}" for x in opn} | ({gate} if gate else set()) | set(extra_w)
        s.stubs += [label(f"Ls{tag}"), raw(f"ds_read_b32 v{vFE}, v{vDA} offset:{FLAG}"), raw("s_waitcnt lgkmcnt(0)"), raw(f"v_cmp_gt_u32 vcc, {e}, v{vFE}"), raw("s_nop 0"),
                    raw(f"s_cbranch_vccnz Ls{tag}")] + ([raw("s_add_u32 s95, s95, 1")] if OPT["stm"] == 4 else []) + [raw(f"s_branch Lr{tag}")]
        if OPT["cd"]: s.hint(b, m, off_rd + 8 + OPT["cd"])
        mv = V("v_mov_b32", f"v{vFE}", e)
        for i in (w, a): s.hint(i, m, max(0, off_rd - 10), "dlm")
        return ([w] if opn else []) + [mv, a, r, c, b]
    def chain(s, p, n, sq, kf, czero):
        order = [0, 1, 2, 3] if n % 2 == 0 or OPT["nosnake"] else [3, 2, 1, 0]
        return [mfma(sq, kf(ks), Q(p, n, ks), sq if k else ("0" if czero or OPT["cz"] else NM(n))) for k, ks in enumerate(order)]
    def rowmax(s, n, sq, a, b):
        x = [f"v{sq[1]+r}" for r in range(4)]
        l = [V("v_max3_f32", a, x[0], x[1], x[2]), V("v_max_f32", a, a, x[3])] + ([V("v_add_f32", a, hex(struct.unpack("<I", struct.pack("<f", float(OPT["dlt"])))[0]), a)] if OPT["dlt"] else []) + [V("v_mov_b32", b, a),
             swap("v_permlane16_swap_b32", a, b), V("v_max_f32", a, a, b), V("v_mov_b32", b, a), swap("v_permlane32_swap_b32", a, b)]
        l += [V("v_min_f32", f"v{vNM+4*n+r}", "-" + a, "-" + b) for r in range(4)]
        l += [V("v_add_f32", x[r], x[r], f"v{vNM+4*n}") for r in range(4)]
        return l
    def expcvt(s, par, n, t, sq, pb=None):
        l = []
        if pb is None: pb = vP + 40 * par + 8 * n
        for h in range(2):
            x0, x1 = f"v{sq[1]+2*h}", f"v{sq[1]+2*h+1}"
            l += [V("v_exp_f32", x0, x0), V("v_exp_f32", x1, x1), V("v_cvt_pk_bf16_f32", f"v{pb+2*t+h}", x0, x1)]
        return l
    def smf(s, b, n, pb=None):
        if pb is None: pb = vP + 40 * (b % 2) + 8 * n
        if s.half[b // 16] and n == 4: return mfma(L(4), ONE(4), ("v", pb, 4), L(4))
        return smfmac(L(n), ONE(n), ("v", pb, 8), f"v{vIDX}")
    def scale(s, src, dst, ta, pk=False):
        a, b = f"v{ta}", f"v{ta+1}"
        l = [V("v_lshlrev_b32", a, 16, src), V("v_and_b32", b, sMASK, src)]
        l += mul2(ta, ta, sC)
        if dst[0] == "v": return l + [V("v_cvt_pk_bf16_f32", dst, a, b)]
        return l + [V("v_cvt_pk_bf16_f32", a, a, b), V("v_accvgpr_write_b32", dst, a)]
    def rowoff(s, p, n, extra=None):
        t = stmp()
        i = SS("s_add_u32", t, sROW[p][0], n * 4096) if n < 4 else SS("s_mov_b32", t, sROW[p][1])
        if extra is None: return t, [i]
        return t, [i, SS("s_add_u32", t, t, extra)]
    def stamp(s, m=None, off=0):
        if not OPT["stamps"]: return
        k = s.nstamp; s.nstamp += 1; assert k < 14
        a = raw(f"s_memtime s[{44+4*k}:{45+4*k}]"); b = raw(f"s_memrealtime s[{46+4*k}:{47+4*k}]")
        for i in (a, b):
            if m is not None: s.hint(i, m, off); s.hint(i, m, off + 2, "dlm")
            else: i.xw = {"seq"}
        s.add(a, b)

    QREG = [(KB + 32768, ("K", 2)), (VB + 16384, ("V", 1)), (VB + 32768, ("V", 2)), (KB + 49152, ("K", 3)), (X0, None)]
    TA = 236
    def qdma(s, n):
        t, o = s.rowoff(0, n)
        o.append(SS("s_add_u32", "m0", sW4K, s.QREG[n][0]))
        for k in range(4):
            i = dma(f"v{vDA if k % 2 == 0 else vDB}", sQ, t, k * 1024, mod=MODS[OPT["q"]])
            i.wt = {f"dQ{n}"}; i.priv = (n, s.QREG[n][1]); o.append(i)
        return o
    def start(s):
        half = s.half[0]; TA = s.TA
        def seq(l):
            for i in l:
                if i.k in ("vmem", "wait", "bar"): i.xw = i.xw | {"seq"}
                if OPT["asap"] and i.k in ("vmem", "salu"): i.cmt = "asap"
            return l
        KF = lambda b, t: (lambda ks: ("a", 96 + 16 * t + 4 * ks, 4) if b == 0 else Q(1, t, ks))
        s.KF = KF
        def kpart(bs, dm, order, sq):
            if OPT["stm"] == 1 and 0 in bs: s.stamp()
            bl = seq(s.barrier([], [f"K{b}" for b in bs], extra_need=["cw"]))
            s.add(bl[0], seq(dm), bl[1]) if not OPT["so"] else s.add(bl, seq(dm))
            if OPT["stm"] == 1 and 0 in bs: s.stamp()
            for k, (b, t) in enumerate(order):
                for ks in range(4):
                    l = s.kread(KF(b, t)(ks), b, t, ks)
                    if sq and k < OPT["kq"]: l[-1].xr = l[-1].xr | {"seq"}
                    s.add(l)
        if not OPT["so"]:
            kpart([0, 1], s.qdma(2) + (s.qdma(3) if OPT["sd"] else []), ((0, 0), (0, 1), (0, 2), (0, 3), (1, 2), (1, 3), (1, 0), (1, 1)), True)
        nxt = [s.qdma(3), s.qdma(4), s.dma("V", 0), s.dma("K", 2), s.dma("V", 1)]
        late = []; EP = {}
        if OPT["ep"]:
            nxt = [nxt[2], nxt[0], nxt[1], nxt[3], nxt[4]]
            EP = [{5: [0], 6: [1, 2], 7: [3]}, {6: [0, 1], 7: [2, 3]}, {5: [0, 1], 6: [2, 3]}, {6: [0, 1], 7: [2], 8: [3]}, {6: [0, 1], 8: [2, 3]}, {5: [0, 1], 7: [2, 3]}][OPT["epo"]]
        def grpA(q):
            rd, mm = s.pvgroup(0, q, [0, 1, 2], aK if q % 2 == 0 else aV, lambda n: ("a", 28, 4) if OPT["ob"] else "0")
            if q < 3: mm.append(s.smf(0, q))
            s.add(rd, mm); return mm
        if OPT["sv"] & 1: nxt[1], nxt[2] = nxt[2], nxt[1]
        if OPT["sv"] & 2: late = nxt[3] + nxt[4]; nxt[3] = []; nxt[4] = []
        if OPT["sv"] & 4: late = nxt[4]; nxt[4] = nxt[3]; nxt[3] = []
        if OPT["sd"]: nxt = nxt[1:] + [[]]
        if OPT["so"]: nxt[0] = s.qdma(1 + OPT["sd"])
        s.sc = 0
        for n in range(5):
            w = wait(need=[f"dQ{n}"]); w.xw = {"seq", f"oQ{n}"}; s.add(w)
            if n == 0 or n == 4 or OPT["stm"] == 1: s.stamp()
            base = TA + (4 if n in (1, 2, 3) else 0); off = s.QREG[n][0] - (KB + 49152 if n in (1, 2, 3) else X0)
            for ks in range(4):
                i = ds_read("ds_read_b128", Q(0, n, ks), f"v{base+ks}", off); i.xr = {f"oQ{n}", f"cQ{n}", "seq"}; i.priv = (n, s.QREG[n][1]); i.wt = {f"rQ{n}"}; s.add(i)
            s.add(seq(nxt[n]))
            for r in range(16):
                q = f"v{vQA+16*n+r}"; s.add(s.scale(q, q, TA + 8 + 2 * (r % 4), pk=OPT["pk"]))
            for q in EP.get(2 * n, []): grpA(q)
            if OPT["so"] == 1 and n == 0:
                s.prog[-1].xw = {"seq"}
                kpart([0, 1], s.qdma(2) + s.qdma(3), ((0, 0), (0, 1), (0, 2), (0, 3), (1, 2), (1, 3), (1, 0), (1, 1)), False)
            if OPT["so"] == 2 and n == 0:
                s.prog[-1].xw = {"seq"}
                kpart([0], s.qdma(2 + OPT["sd"]), ((0, 0), (0, 1), (0, 2), (0, 3)), False)
            for b in range(2 if n < 4 else 1):
                if OPT["so"] == 2 and n == 0 and b == 1:
                    ch[0].xw = {"seq"}
                    kpart([1], s.qdma(3 + OPT["sd"]), ((1, 0), (1, 1), (1, 2), (1, 3)), False)
                for t in range(2 if half and n == 4 else 4):
                    sq = Sx(s.sc % 5); s.sc += 1
                    ch = s.chain(0, n, sq, KF(b, t), t == 0 and b == 0); s.add(ch)
                    if t == 0 and b == 0:
                        s.add(s.rowmax(n, sq, f"v{TA+16}", f"v{TA+17}"))
                        if n == 4 and not OPT["ep"]:
                            ch[-1].xw = {"seq"}
                            s.add(seq(s.barrier(["K0", "K1"], ["V0"], gate="D-1")), seq(late))
                    s.add(s.expcvt(b, n, t, sq))
            if n < 4: ch[-1].xw = {"seq"}
            if OPT["ep"] and n == 2: s.add(seq(s.barrier(["K0", "K1"], ["V0"], gate="D-1")))
            for q in EP.get(2 * n + 1, []): grpA(q)[-1].xw = {"seq"}

    def nbr(s, p, d, rl):
        return [V("v_mul_f32_e64", f"v{d}", "-" + sB[p], f"v{rl}")] if OPT["ob"] else []
    def ep_l(s, p, n, rl, tmp):
        a, b = f"v{rl}", f"v{tmp}"
        o = [V("v_accvgpr_read_b32", a, f"a{Lr(n)}")]
        if not (s.half[p] and n == 4): o += [V("v_accvgpr_read_b32", b, f"a{Lr(n)+1}"), V("v_add_f32", a, a, b)]
        o += [V("v_cmp_nge_f32", "vcc", sTHR, a), SS("s_or_b64", sBAD[p], sBAD[p], "vcc")]
        if not (s.half[p] and n == 4): o += [V("v_rcp_f32", a, a)]
        return o
    def ep_store(s, p, n, D, tb, pkq, voo, mod):
        o = [V("v_cvt_pk_bf16_f32", f"v{pkq+r}", f"v{tb+2*r}", f"v{tb+2*r+1}") for r in range(4)]
        o += [swap("v_permlane16_swap_b32", f"v{pkq}", f"v{pkq+2}"), swap("v_permlane16_swap_b32", f"v{pkq+1}", f"v{pkq+3}")]
        if s.half[p]:
            t, oo = s.rowoff(p, n, sD0 if D < 2 else sD1); off = (D & 1) * 64
        else:
            t, oo = s.rowoff(p, n); off = D * 64
        st = bstore(("v", pkq, 4), f"v{voo}", sO, t, off, mod=MODS[mod]); st.cmt = "strided"
        return o + oo + [st]
    def voo_calc(s, voo, t):
        return [V("v_lshrrev_b32", f"v{t}", 1, f"v{vG}"), V("v_xor_b32", f"v{t}", f"v{t}", f"v{vG}"), V("v_and_b32", f"v{t}", 16, f"v{t}"),
                V("v_mul_u32_u24", f"v{t}", 3, f"v{t}"), V("v_xor_b32", f"v{voo}", f"v{t}", f"v{vG}")]
    def lane16(s, d):
        return [V("v_mbcnt_lo_u32_b32", d, -1, 0), V("v_mbcnt_hi_u32_b32", d, -1, d), V("v_lshlrev_b32", d, 4, d)]
    def cmb_pre(s, T, base):
        o = s.lane16(f"v{T}") + [V("v_add_u32", f"v{T}", sW4K, f"v{T}"), V("v_add_u32", f"v{T}", base, f"v{T}"), V("v_xor_b32", f"v{T+1}", "0x1000", f"v{T}"),
             V("v_mov_b32", f"v{T+2}", f"v{vNM+16}")]
        return o
    def cmb_give(s, p, T):
        o = s.ep_l(p, 4, T + 3, T + 4)
        w = [ds_write("ds_write_b64", f"v{T}", ("v", T + 2, 2), 0)] + [ds_write("ds_write_b128", f"v{T}", O(4, dt), 16384 + dt * 1024) for dt in range(4)]
        for i in w: i.wt = {"cw"}; i.xw = {"cgive"}
        return o + w
    def cmb_take(s, p, T, U, tb, out):
        r = [ds_read("ds_read_b64", ("v", T + 4, 2), f"v{T+1}", 0)]
        nm, l, nm2, l2, x, y = [f"v{T+k}" for k in (2, 3, 4, 5, 6, 7)]
        o = r + [V("v_cmp_nge_f32", "vcc", sTHR, l2), SS("s_or_b64", sBAD[p], sBAD[p], "vcc"),
                 V("v_min_f32", x, nm, nm2), V("v_sub_f32", nm, x, nm), V("v_sub_f32", nm2, x, nm2), V("v_exp_f32", nm, nm), V("v_exp_f32", nm2, nm2),
                 V("v_mul_f32", x, l, nm), V("v_fma_f32", x, l2, nm2, x), V("v_rcp_f32", x, x), V("v_mul_f32", nm, nm, x), V("v_mul_f32", nm2, nm2, x)]
        if OPT["ob"]: o += [V("v_add_f32", y, nm, nm2), V("v_mul_f32_e64", y, "-" + sB[p], y)]
        for D in (2, 3):
            t = tb[D - 2]; u = U[D - 2]
            rr = [ds_read("ds_read_b128", ("v", u + 4 * k, 4), f"v{T+1}", 16384 + (2 * (D - 2) + k) * 1024) for k in range(2)]; r += rr; o += rr
            o += [V("v_accvgpr_read_b32", f"v{t+r_}", f"a{aO+128+8*D+r_}") for r_ in range(8)]
            for r_ in range(0, 8, 2): o += fma2(t + r_, t + r_, T + 2, T + 7)
            o += [V("v_fma_f32", f"v{t+r_}", f"v{u+r_}", nm2, f"v{t+r_}") for r_ in range(8)]
            o += out(D, t)
        for i in r: i.xr = {"cmb"}
        return o

    def pvgroup(s, j, q, tiles, vbuf, cinit):
        pv = j // 16; hv = s.half[pv]; rd = []; mm = []
        for h, pref in ((0, [0, 1]), (1, [0, 1] if hv else [1, 0])):
            for ks in s.vks(j, 2 * q + h, pref): rd += s.vread(("a", vbuf + 8 * h + 4 * ks, 4), j, 2 * q + h, ks)
        for h in range(2):
            dt = 2 * q + h
            for n in (tiles if h == 0 else reversed(tiles)):
                kss = [0] if hv and n == 4 else ([0, 1] if (n + h) % 2 == 0 or OPT["nosnake"] else [1, 0])
                for k_, ks in enumerate(kss):
                    mm.append(mfma(OP(pv, n, dt), ("a", vbuf + 8 * h + 4 * ks, 4), P(j % 2, n, ks), cinit(n) if j % 16 == 0 and k_ == 0 else OP(pv, n, dt)))
        return rd, mm
    def tq(s, b, q): return q ^ 2 if (OPT["kalt"] and s.half[b // 16] and b % 2 == 1 and b != 31) else q
    def block(s, j):
        b = j + 1; p = b // 16; pv = j // 16
        hq, hv = s.half[p], s.half[pv]
        first = (j % 16 == 0); trans = (j == 15)
        smfs = {0: [0], 1: [1], 2: [2, 3], 3: [4]}
        if j == 0 and OPT["ep"]: smfs = {0: [], 1: [], 2: [], 3: [3, 4]}
        if trans:
            E = vQA; RL = E; VOO = E + 5; MX = E + 6; TB = [E + 8, E + 16]; CT = E + 24; PK = [E + 4 * k for k in range(8 if hv else 6, 20)]
            if hv: PK = PK[4:]; CU = [E + 32, E + 40]
            if OPT["ov"]:
                E = vQA + 64; RL = E; VOO = E + 5; MX = E + 6; TB = [E + 8, E + 8]; CT = vQA + 56; CU = [vQA + 48, vQA + 48]
            assert OPT["ov"] or not OPT["ob"]
            NB = MX
            if OPT["ob"]:
                MX = vT
                s.add([V("v_mov_b32", f"v{vQA+28+r}", sB[1]) for r in range(4)])
            s.pki = 0; RLn = lambda n: RL + n
            if OPT["tl"]:
                RLn = lambda n: E + n if n < 2 else vQA + 22 + n
                NB = E + 2; RA = E + 3; WA = E + 4; GA = vT; MX = vQA
                s.add(s.half_addr(WA, RA, GA, X1 + 2048, vQA + 2, vQA + 3))
            else: s.add(s.voo_calc(VOO, MX))
            if hv: s.add(s.cmb_pre(CT, X1))
        if j == 30: s.tail_pre()
        for q in range(4):
            vbuf = aK if (j == 0 and q % 2 == 0) else aV
            def cinit(n):
                if not OPT["ob"]: return "0"
                if j == 0: return ("a", aQB, 4)
                return ("a", 0, 4) if OP(1, n, 0)[0] == "a" else ("v", vQA + 28, 4)
            rd, pvm = s.pvgroup(j, q, [3, 4] if j == 0 and OPT["ep"] else [0, 1, 2, 3, 4], vbuf, cinit)
            s.add(rd)
            cz = (b % 16 == 0 and q == 0)
            if j == 0:
                work = [(4, t, s.KF(1, t), None) for t in ([[0, 1], [2], [3], []] if not hq else [[0, 1], [], [], []])[q]]
            elif j == 30:
                work = [(4, q, s.KT(q), s.PT[0])] if not (hq and q >= 2) else []
            else: work = [(n, s.tq(b, q), (lambda ks: ("a", aK + 4 * ks, 4)), None) for n in range(4 if hq and s.tq(b, q) >= 2 else 5)]
            ch = []; sqs = []
            for n, t, kf, pb in work:
                if j in (0, 30): sq = Sx(s.sc % 5); s.sc += 1
                else: sq = Sx(n)
                sqs.append(sq); ch += s.chain(p, n, sq, kf, cz)
            s.add(ch); m0 = (ch + pvm)[0]
            if j == 0 and q == 0 and OPT["ob"]: s.add([V("v_accvgpr_write_b32", f"a{aQB+r}", sB[0]) for r in range(4)])
            if q == 0:
                s.bstart[j] = m0
                if j in s.stamp_at: s.stamp(m0)
                lag = 0
                if s.half[0] and not s.half[1]: lag = min(OPT["lagmax"], (16 * (j if j <= 15 else 31 - j) * OPT["lagc"]) // 100)
                bat = []
                if j == 0: bat.append((s.dma("K", 3, gate="D-1") + s.dma("V", 2, gate="D-1"), OPT["l0"])); lag = OPT["l1"]
                if j == 1: lag = OPT["l2"]
                if j == 2: lag = OPT["l3"]
                dl = []
                if j + 4 <= 31: dl += s.dma("K", j + 4, gate=f"D{j-1}")
                if j + 3 <= 31: dl += s.dma("V", j + 3, gate=f"D{j-1}")
                bat.append((dl, lag))
                for dl, lag in bat:
                    for k, i in enumerate([x for x in dl if x.k == "vmem"]):
                        s.hint(i, m0, lag + 30 + 2 * k, "dlm")
                        if lag: s.hint(i, m0, lag - 20)
                    s.add(dl)
            qlen = len(ch) + len(pvm) + 1
            if OPT["spf"] and (q == 1 or (OPT["spf"] > 1 and q == 3) or OPT["spf"] > 2):
                for i in (raw("s_getpc_b64 s[40:41]", w=["s40"]), raw(f"s_load_dword s42, s[40:41], {OPT['spd']}", r=["s40"])):
                    s.hint(i, m0, 8); s.hint(i, m0, 12, "dlm"); s.add(i)
            k = 0
            for (n, t, kf, pb), sq in zip(work, sqs):
                if cz: s.add(s.rowmax(n, sq, f"v{MX}", f"v{MX+1}"))
                l = s.expcvt(b % 2, n, t, sq, pb)
                for i in l:
                    if i.k == "trans" and j not in (0, 30): s.hint(i, m0, OPT["e0"] + (k * qlen) // (4 * len(work))); k += 1
                s.add(l)
            if q == 3 and j < 30:
                opn = [f"K{j+2}", f"V{j+1}"] + (["V31"] if j == 29 else [])
                cm = trans and hv
                kw = dict(gate=f"D{j}", extra_need=["cw"] if cm else [], extra_w=["cmb"] if cm else [], extra_r=["cgive"] if cm else [])
                if j == 0:
                    bl = s.barrier(["V0"], opn, **kw); s.hint(bl[0], m0, 0); s.add(bl)
                else: s.add(s.sync([f"K{b}", f"V{j}"], opn, m0, off_bar=len(ch) - 3, off_rd=OPT["flr"] - (20 - len(ch)), **kw))
            if j < 30:
                if q < 3 and j > 0:
                    for ks in range(4): s.add(s.kread(("a", aK + 4 * ks, 4), b, s.tq(b, q + 1), ks))
                elif q == 3:
                    for ks in range(4): s.add(s.kread(("a", aK + 4 * ks, 4), b + 1, s.tq(b + 1, 0), ks))
            if trans and q == 0:
                s.add([s.smf(j, n) for n in range(5)])
                for n in range(4 if hv else 5): s.add(s.ep_l(pv, n, RLn(n), MX))
            s.add(pvm)
            if not trans: s.add([s.smf(j, n) for n in smfs[q]])
            if trans:
                if hv and q == 1: s.add(s.cmb_give(pv, CT))
                if q == 1: s.add([V("v_accvgpr_write_b32", f"a{aL+r}", 0) for r in range(10)])
            if trans and OPT["tl"]:
                tb = TB[0]; XB = [0] if hv else [0, X0 - 2048, X0]
                def half(n, H, rb, dl, body=None):
                    X = XB[s.pki % len(XB)]; s.pki += 1
                    put = lambda D, t: s.half_put(D, t, [t, t + 2], WA, X, [])
                    if body: l = body(put)
                    else:
                        l = s.nbr(pv, NB, RLn(n))
                        for D in (2 * H, 2 * H + 1):
                            l += [V("v_accvgpr_read_b32", f"v{tb+r}", f"a{aO+32*n+8*D+r}") for r in range(8)]
                            for r in range(0, 8, 2): l += fma2(tb + r, tb + r, RLn(n), NB)
                            l += put(D, tb)
                    l += s.half_out(pv, n, H, [rb, rb + 4], RA, GA, X, OPT["o0"])
                    for i in l[-2:]: s.hint(i, s.bstart[15], dl, "dlm")
                    s.add(l)
                urg = [3, 2] if hv else [4, 3, 2]
                if q == 1:
                    for k, n in enumerate([0] + urg):
                        half(n, 0, vQA + 8 + 8 * (k % 2), OPT["h0"] + OPT["h1"] * k)
                        if n == 0 and OPT["ob"]: s.add([V("v_accvgpr_write_b32", f"a{r}", sB[1]) for r in range(4)])
                if q == 3:
                    for k, n in enumerate(urg): half(n, 1, vQA + 16 if hv else vQA + 56, OPT["h2"] + OPT["h3"] * k)
                    if hv: half(4, 1, tb, OPT["h2"] + OPT["h3"] * 2, body=lambda put: s.cmb_take(pv, CT, CU, TB, put))
                    for k, (n, H) in enumerate(((0, 1), (1, 0), (1, 1))): half(n, H, tb, 330 + OPT["hd"] * (k + 1))
            if trans and not OPT["tl"]:
                def quad(n, D, tb, pkq, dl, nb=None):
                    l = [V("v_accvgpr_read_b32", f"v{tb+r}", f"a{aO+32*n+8*D+r}") for r in range(8)]
                    if nb is not None:
                        for i in l: s.hint(i, s.bstart[15], nb)
                    l += s.nbr(pv, NB, RL + n)
                    for r in range(0, 8, 2): l += fma2(tb + r, tb + r, RL + n, NB)
                    l += s.ep_store(pv, n, D, tb, pkq, VOO, OPT["o0"]); s.hint(l[-1], s.bstart[15], dl, "dlm"); s.hint(l[-1], s.bstart[15], dl - 4); s.add(l)
                for n in reversed(range(2 if OPT["ov"] else 0, 4 if hv else 5)):
                    pkq = (vQA + 8 * q + [0, 4, 32][n - 2]) if OPT["ov"] else PK[s.pki % len(PK)]
                    if OPT["ob"] and pkq == vQA + 28: pkq = TB[0] if hv else vQA + 60
                    quad(n, q, TB[s.pki % 2], pkq, (OPT["u0"] + (OPT["u1"] if not hv else OPT["u2"]) * s.pki) if OPT["ov"] else 80 + OPT["sdl"] * s.pki); s.pki += 1
                if OPT["ob"] and q == 0:
                    quad(0, 0, TB[0], vQA + 36, OPT["u0"] + (OPT["u1"] if not hv else OPT["u2"]) * s.pki); s.pki += 1
                    s.add([V("v_accvgpr_write_b32", f"a{r}", sB[1]) for r in range(4)])
                if hv and q == 3:
                    l = s.cmb_take(pv, CT, CU, TB, lambda D, t: s.ep_store(pv, 4, D, t, t, VOO, OPT["o0"]))
                    for k, i in enumerate([x for x in l if x.k == "vmem"]):
                        dl = OPT["u0"] + OPT["u2"] * (s.pki + k) if OPT["ov"] else 80 + OPT["sdl"] * (s.pki + k)
                        s.hint(i, s.bstart[15], dl, "dlm"); s.hint(i, s.bstart[15], dl - 4)
                    s.add(l)
                if q == 3 and OPT["ov"]:
                    for k in range(OPT["ob"], 8): quad(k // 4, k % 4, TB[0], TB[0], 330 + OPT["ddl"] * (k + 1 - OPT["ob"]))
            if q == 1 and j in s.stage: s.add(s.stage[j](m0))

    def plan_stage(s):
        s.stage = {}
        def g(m):
            o = []
            def ld(f, dst, k=0):
                t, oo = s.rowoff(1, f // 4)
                i = bload(dst, f"v{vG}", sQ, t, (f % 4) * 64, mod=MODS[OPT["q"]]); i.cmt = "strided"; s.hint(i, m, (k // 2) * OPT["sg1"])
                return oo + [i]
            def sc(f, src):
                d = Q(1, f // 4, f % 4); l = []
                for r in range(4):
                    if src[0] == "a": l += [V("v_accvgpr_read_b32", f"v{vT+1}", f"a{src[1]+r}")] + s.scale(f"v{vT+1}", f"a{d[1]+r}", vT)
                    else: l += s.scale(f"v{src[1]+r}", f"{d[0]}{d[1]+r}", vT)
                return l
            land = lambda f: ("v", vQB + 4 * (f + 1), 4) if f < 8 else Q(1, f // 4, f % 4)
            for f in range(12): o += ld(f, land(f), f)
            for f in range(0, 8, 2): o += sc(f, land(f)) + sc(f + 1, land(f + 1)) + ld(12 + f, land(12 + f)) + ld(13 + f, land(13 + f))
            for f in range(8, 20): o += sc(f, land(f))
            return o
        s.stage[OPT["sg0"]] = g

    def tail_pre(s):
        hv = s.half[1]; Z = ("a", 0) if OPT["ov"] else ("v", vQA)
        s.KT = lambda t: (lambda ks: ("a", aK + 4 * ks, 4) if t == 0 else (("v", vP + 40 + 16 * (t - 1) + 4 * ks, 4) if t < 3 else (Z[0], Z[1] + 48 + 4 * ks, 4)))
        s.VT = lambda dt, ks: (Z[0], Z[1] + 8 * dt + 4 * ks, 4) if dt < 6 else ("a", aV + 8 * (dt - 6) + 4 * ks, 4)
        s.PT = [vP + 72, 236]
        for t in range(1, 4):
            for ks in range(4): s.add(s.kread(s.KT(t)(ks), 31, t, ks))
    def half_addr(s, WA, RA, GA, base, t0, t1):
        t0, t1 = f"v{t0}", f"v{t1}"
        a = [V("v_lshrrev_b32", t0, 4, f"v{vG}"), V("v_and_b32", t0, "0x70", t0), V("v_lshrrev_b32", t1, 1, f"v{vG}"),
             V("v_xor_b32", t0, t0, t1), V("v_add_u32", t0, sW4K, t0), V("v_add_u32", f"v{WA}", base, t0)]
        a += [V("v_xor_b32", f"v{WA+k}", 32 * k, f"v{WA}") for k in range(1, 4)]
        a += s.lane16(t0) + [V("v_add_u32", t1, sW4K, t0), V("v_add_u32", f"v{RA}", base, t1)]
        a += [V("v_lshrrev_b32", t1, 3, t0), V("v_xor_b32", t1, t1, t0), V("v_and_b32", t1, "0x70", t1), V("v_lshrrev_b32", t0, 7, t0), V("v_lshl_add_u32", f"v{GA}", t0, 8, t1)]
        return a
    def half_put(s, D, tb, pk, WA, X, gate):
        o = []; ws = []
        for h in range(2):
            dt = (2 * D + h) % 4
            o += [V("v_cvt_pk_bf16_f32", f"v{pk[h]+r}", f"v{tb+4*h+2*r}", f"v{tb+4*h+2*r+1}") for r in range(2)]
            w = ds_write("ds_write_b64", f"v{WA+dt}", ("v", pk[h], 2), X); w.xr = set(gate); w.xw = {f"Xd{X}_{dt}"}; ws.append(w)
        return o + ws
    def half_out(s, p, n, H, rb, RA, GA, X, mod):
        if s.half[p]: t, o = s.rowoff(p, n, sD1 if H else sD0); off = 0
        else: t, o = s.rowoff(p, n); off = 128 * H
        for r in range(2):
            i = ds_read("ds_read_b128", ("v", rb[r], 4), f"v{RA}", X + r * 1024); i.xr = {f"Xd{X}_{dt}" for dt in range(4)}; o.append(i)
        return o + [bstore(("v", rb[r], 4), f"v{GA}", sO, t, off + r * 2048, mod=MODS[mod]) for r in range(2)]
    def tail(s):
        j = 31; hv = s.half[1]
        for dt in range(8):
            for ks in s.vks(j, dt, [0, 1]): s.add(s.vread(s.VT(dt, ks), j, dt, ks))
        E = vQA + 64
        WA = E; RA = E + 4; GA = E + 5; VOO = E + 7; RL = E + 8; TMP = E + 12
        CT = 244; CU = 220
        F = vP
        TB = [F, F + 8]; PKD = [F + 16 + 2 * k for k in range(4)]; RB = [F + 24 + 4 * k for k in range(4)]
        a = s.half_addr(WA, RA, GA, VB, TMP, TMP + 1)
        for i in a: s.hint(i, s.bstart[28], 0)
        s.add(a)
        order = [4, 3, 2, 1, 0]
        if hv: s.add(s.cmb_pre(CT, KB))
        k2 = 0
        for k, n in enumerate(order):
            pb = s.PT[k % 2]
            ml = [[s.smf(j, n, pb)], [], [], []]
            for dt in range(8):
                kss = [0] if hv and n == 4 else ([0, 1] if dt % 2 == 0 else [1, 0])
                ml[dt // 2] += [mfma(OP(1, n, dt), s.VT(dt, ks), ("v", pb + 4 * ks, 4), OP(1, n, dt)) for ks in kss]
            if k == 0: s.stamp(ml[0][0])
            for t in range(4):
                if k < 4:
                    n2 = order[k + 1]; sq = Sx(s.sc % 5); s.sc += 1
                    s.add(s.chain(1, n2, sq, s.KT(t), False), s.expcvt(1, n2, t, sq, s.PT[(k + 1) % 2]))
                s.add(ml[t])
            lastm = ml[3][-1]
            if hv and n == 4:
                s.add(s.cmb_give(1, CT))
                s.add(s.sync([], [], lastm, extra_need=["cw"], extra_w=["cmb"], extra_r=["cgive"], off_bar=24, off_rd=30))
                continue
            rl = RL + 2 * (k % 2)
            s.add(s.ep_l(1, n, rl, TMP + 2) + s.nbr(1, rl + 1, rl))
            XB = [0, 2048, 16384, 18432]
            for D in range(4):
                tb = TB[D % 2]; X = XB[k2 % 4]; ep = []
                if OP(1, n, 0)[0] == "v": tb = OP(1, n, 2 * D)[1]
                else: ep += [V("v_accvgpr_read_b32", f"v{tb+r}", f"a{aO+32*n+8*D+r}") for r in range(8)]
                for r in range(0, 8, 2): ep += fma2(tb + r, tb + r, rl, rl + 1)
                ep += s.half_put(D, tb, PKD[2 * (D % 2):], WA, X, ["D29"])
                if D % 2:
                    ep += s.half_out(1, n, D // 2, RB[2 * (k2 % 2):], RA, GA, X, OPT["o1"]); k2 += 1
                    for i in ep[-2:]: s.hint(i, ml[D][-1], OPT["tdl"], "dlm")
                s.add(ep)
            if hv and k == 1:
                X = XB[k2 % 4]
                s.add(s.cmb_take(1, CT, [CU, CU + 8], TB, lambda D, t: s.half_put(D, t, PKD[2 * (D % 2):], WA, X, ["D29"])), s.half_out(1, 4, 1, RB[2 * (k2 % 2):], RA, GA, X, OPT["o1"])); k2 += 1

    def build(s):
        s.bstart = {}; s.stamp_at = {0, 4, 8, 15, 16, 18, 24} if OPT["stamps"] else set()
        s.nstamp = 1
        if OPT["stm"] == 1: s.stamp_at = {0}; s.nstamp = 2
        if OPT["stm"] == 2: s.stamp_at = {0, 1, 2, 3, 4, 5, 6}
        if OPT["stm"] == 5: s.stamp_at = {0}
        if OPT["stm"] == 4: s.stamp_at = {0, 22, 28}
        if OPT["stm"] == 3: s.stamp_at = {0, 15, 16, 17, 18, 19, 30}
        s.plan_stage()
        s.start()
        for j in range(31): s.block(j)
        s.tail()
        ms = [i for i in s.prog if ismf(i)]
        for k, m in enumerate(ms): m.mi = k
        for i, m, off, attr in s.hints: setattr(i, attr, ms[max(0, min(len(ms) - 1, m.mi + off))])
        out = schedule(s.prog, verbose=True, name=s.tag)
        if OPT["verbose"]:
            prev = None
            for j in sorted(s.bstart):
                if prev is not None: print(f"  blk {j-1}: {s.bstart[j].st - prev}", end="")
                prev = s.bstart[j].st
            print(f"\n  start {s.bstart[0].st}  tail from blk30 {out[-1].st - prev}")
        return out

def setup_common():
    t0, t1, w = "s34", "s35", "s3"
    R = Role("AA", "")
    l, m, g, a, b, c = "v16", "v17", "v18", "v19", "v20", "v21"
    o = [raw("s_cmp_lt_u32 s2, 256", w=["scc"]), br("s_cbranch_scc1", "Lgo"), raw("s_endpgm"), label("Lgo")]
    if OPT["stamps"]: o += [raw("s_memtime s[44:45]"), raw("s_memrealtime s[46:47]")]
    if OPT["rb"] != 3:
        o += [S("s_lshr_b32", t0, "s2", OPT["rb"] - 3), S("s_xor_b32", t0, t0, "s2"), S("s_and_b32", t0, t0, 8), S("s_mul_i32", t0, t0, 1 + (1 << (OPT["rb"] - 3))), S("s_xor_b32", "s2", "s2", t0)]
    o += [raw("s_load_dwordx4 s[8:11], s[0:1], 0"), raw("s_load_dwordx4 s[12:15], s[0:1], 16"),
          V("v_lshrrev_b32", "v1", 6, "v0"), V("v_and_b32", l, 63, "v0"), V("v_and_b32", m, 15, "v0"),
          V("v_readfirstlane_b32", w, "v1"), V("v_lshrrev_b32", g, 4, l)]
    if OPT["pf"]:
        o += [raw("s_getpc_b64 s[36:37]", w=["s36", "s37"]), label("Lpf"),
              S("s_lshr_b32", t0, "s2", 4), S("s_lshl_b32", t0, t0, 13), S("s_bitcmp1_b32", "s2", 3), S("s_cselect_b32", t1, "LroleY-Lpf", 0), S("s_add_u32", t0, t0, t1),
              V("v_lshl_add_u32", a, "v0", 5, t0), V("v_min_u32", a, "Lcodeend-Lpf", a), V("v_mov_b32", "v25", "s37"),
              I("v_add_co_u32 v24, vcc, s36, v19", "valu", w=["v24", "vcc"], r=["s36", "v19"]), I("v_addc_co_u32 v25, vcc, 0, v25, vcc", "valu", w=["v25", "vcc"], r=["v25", "vcc"]),
              I("global_load_dword v253, v[24:25], off", "vmem", w=["v253"], r=["v24", "v25"])]
    o += [V("v_lshlrev_b32", a, 1, g), V("v_xor_b32", a, a, m), V("v_lshlrev_b32", a, 4, a), V("v_lshl_add_u32", f"v{vDA}", g, 8, a), V("v_xor_b32", f"v{vDB}", 128, f"v{vDA}")]
    if OPT["ob"]: o += [V("v_and_b32", a, 31, l), V("v_lshlrev_b32", a, 4, a), V("v_lshrrev_b32", b, 5, l), V("v_lshl_add_u32", "v22", b, 18, a)]
    o += [S("s_lshl_b32", sW4K, w, 12), S("s_mov_b32", sOFF, sW4K), S("s_mov_b32", sOFV, sW4K)]
    o += [S("s_mul_i32", "s28", w, 5 * 4096), S("s_add_u32", "s29", "s28", 4 * 4096)]
    if OPT["ab"]: o += [S("s_lshl_b32", "s30", w, 14), S("s_add_u32", "s30", "s30", 20 * 4096), S("s_and_b32", "s31", sW4K, "0x2000"), S("s_lshr_b32", "s31", "s31", 1), S("s_add_u32", "s31", "s31", 36 * 4096)]
    else: o += [S("s_add_u32", "s30", "s28", 18 * 4096), S("s_add_u32", "s31", "s28", 22 * 4096)]
    o += [S("s_bitcmp1_b32", "s2", 3), S("s_cselect_b64", ("s", 24, 2), ("s", 30, 2), ("s", 28, 2)), S("s_cselect_b64", ("s", 26, 2), ("s", 28, 2), ("s", 30, 2))]
    o += [S("s_and_b32", t0, "s2", 7), S("s_lshr_b32", t1, "s2", 4), S("s_lshl_b32", t0, t0, 4), S("s_add_u32", t0, t0, t1),
          S("s_mul_i32", t1, t0, 2 * HEADQ), S("s_lshl_b32", t0, t0, 19), S("s_mov_b32", "s6", 2 * HEADQ), S("s_mov_b32", "s7", "0x00020000")]
    o += [raw("s_waitcnt lgkmcnt(0)", k="salu")]
    if OPT["stamps"] and OPT["stm"] == 1: o += [raw("s_memtime s[48:49]"), raw("s_memrealtime s[50:51]")]
    o += [S("s_add_u32", "s4", "s8", t1), S("s_addc_u32", "s5", "s9", 0),
          S("s_add_u32", "s8", "s10", t0), S("s_addc_u32", "s9", "s11", 0), S("s_mov_b32", "s10", 2 * HEADK), S("s_mov_b32", "s11", "0x00020000")]
    srd2 = [S("s_add_u32", "s16", "s14", t1), S("s_addc_u32", "s17", "s15", 0), S("s_mov_b32", "s18", 2 * HEADQ), S("s_mov_b32", "s19", "0x00020000"),
          S("s_add_u32", "s12", "s12", t0), S("s_addc_u32", "s13", "s13", 0), S("s_mov_b32", "s14", 2 * HEADK), S("s_mov_b32", "s15", "0x00020000")]
    vl = [bload(("v", 24 + 4 * k, 4), "v22", sV, 0, 512 * k, mod=" nt") for k in range(2)] if OPT["ob"] else []
    parts = [R.qdma(0), R.dma("K", 0), R.dma("K", 1)] if OPT["so"] else [R.dma("K", 0), R.dma("K", 1), R.qdma(0)]
    parts.insert(OPT["bp"], srd2 + vl)
    for x in parts: o += x
    if OPT["stamps"]: o += [S("s_lshl_b32", "s100", "s2", 2), S("s_add_u32", "s100", "s100", w), S("s_mov_b32", "s101", "s2")] + ([S("s_mov_b32", "s95", 0)] if OPT["stm"] == 4 else [])
    o += [S("s_add_u32", "s26", "s26", HEADQ), S("s_add_u32", "s27", "s27", HEADQ)]
    o += [S("s_add_u32", "s33", sW4K, X0), V("v_lshlrev_b32", a, 4, g), V("v_lshl_add_u32", f"v{vG}", m, 8, a)]
    o += [V("v_and_b32", a, 7, m), V("v_lshlrev_b32", a, 1, a), V("v_xor_b32", a, a, g), V("v_lshlrev_b32", a, 4, a), V("v_lshl_add_u32", a, m, 8, a)]
    for ks in range(4):
        o += [V("v_xor_b32", b, 64 * ks, a), V("v_add_u32", f"v{vKA+ks}", KB, b), V("v_add_u32", f"v{R.TA+ks}", "s33", b), V("v_add_u32", f"v{R.TA+4+ks}", KB + 49152 - X0, f"v{R.TA+ks}")]
    o += [V("v_lshrrev_b32", a, 2, l), V("v_and_b32", b, 7, a), V("v_lshlrev_b32", b, 5, b), V("v_and_b32", c, 3, l), V("v_lshlrev_b32", c, 3, c),
          V("v_xor_b32", b, b, c), V("v_lshl_add_u32", b, a, 8, b), V("v_add_u32", f"v{vVA}", VB, b)]
    o += [V("v_xor_b32", f"v{vVA+dt}", 32 * dt, f"v{vVA}") for dt in range(1, 8)]
    o += [S("s_lshl_b32", t0, w, 8), S("s_add_u32", t0, t0, FLAG), V("v_lshl_add_u32", f"v{vFA}", l, 2, t0), V("v_mov_b32", f"v{vFE}", 0)]
    fi = ds_write("ds_write_b32", f"v{vFA}", f"v{vFE}", 0); fi.wt = {"cw"}; o.append(fi)
    o += [V("v_accvgpr_write_b32", f"a{aL+r}", 0) for r in range(12)]
    o += [V("v_and_b32", a, 2, m), V("v_cmp_eq_u32", "vcc", 0, a), V("v_mov_b32", b, "0x3f803f80"), V("v_cndmask_b32", a, 0, b, "vcc"), V("v_xor_b32", b, a, b)]
    if OPT["one0"]: o += [V("v_cmp_gt_u32", "vcc", 4, m), nop(2), V("v_cndmask_b32", a, 0, a, "vcc"), V("v_cndmask_b32", b, 0, b, "vcc")]
    o += [V("v_accvgpr_write_b32", f"a{aONE+i}", a) for i in range(4)] + [V("v_accvgpr_write_b32", f"a{aONE+4+i}", b) for i in range(4)]
    o += [V("v_and_b32", a, 1, m), V("v_cmp_eq_u32", "vcc", 1, a), V("v_mov_b32", b, "0x44444444"), V("v_mov_b32", c, "0xeeeeeeee"), V("v_cndmask_b32", f"v{vIDX}", b, c, "vcc")]
    o += [S("s_mov_b32", sC, hex(CSCALE)), S("s_mov_b32", sC2, hex(CSCALE)), S("s_mov_b32", sMASK, "0xffff0000"), S("s_mov_b32", sTHR, hex(OPT["thr"])),
          S("s_mov_b64", sBAD[0], 0), S("s_mov_b64", sBAD[1], 0)]
    o += [S("s_and_b32", sD0, w, 1), S("s_lshl_b32", sFK, sD0, 13), S("s_lshl_b32", sD0, sD0, 7), S("s_or_b32", sFV, sFK, sD0)]
    if OPT["ob"]:
        x = [f"v{24+k}" for k in range(8)]; y = [f"v{32+k}" for k in range(8)]
        bo = [wait(need=x)] + [V("v_max_f32_e64", y[k], f"|{x[k]}|", f"|{x[4+k]}|") for k in range(4)]
        bo += [V("v_lshlrev_b32", x[k], 16, x[k]) for k in range(8)] + [V("v_max_f32_e64", y[4+k], f"|{x[k]}|", f"|{x[4+k]}|") for k in range(4)]
        bo += [swap("v_permlane16_swap_b32", y[k], y[4+k]) for k in range(4)] + [V("v_max_f32", y[k], y[k], y[4+k]) for k in range(4)]
        bo += [V("v_min3_f32", y[0], y[0], y[1], y[2]), V("v_min_f32", y[0], y[0], y[3])]
        bo += [V("v_min_f32_dpp", y[0], y[0], y[0], mod=f" row_ror:{k} row_mask:0xf bank_mask:0xf") for k in (8, 4, 2, 1)]
        bo += [V("v_and_b32", y[0], "0x7f800000", y[0]), V("v_min_f32", y[0], f32(2.0 ** 100), y[0]), V("v_mul_f32", y[0], f32(1.5 * 2.0 ** (OPT["kap"] - OPT["dlt"])), y[0]), nop(1)]
        bo += [V("v_readlane_b32", "s40", y[0], 0), V("v_readlane_b32", "s36", y[0], 16), V("v_readlane_b32", "s41", y[0], 32), V("v_readlane_b32", "s37", y[0], 48), nop(2),
               S("s_min_u32", "s40", "s40", "s36"), S("s_min_u32", "s41", "s41", "s37")] + [V("v_accvgpr_write_b32", f"a{28+r}", "s40") for r in range(4)]
    else: bo = []
    if OPT["bq"]: o += bo
    if not OPT["so"] or OPT["sd"]: o += R.qdma(1)
    if not OPT["bq"]: o += bo
    o += [S("s_bitcmp1_b32", "s2", 3), br("s_cbranch_scc1", "LroleY")]
    return o

def setup_role(R, k):
    o = [S("s_xor_b32", sD1, sD0, 128)]
    if R.half[0]:
        o += [V("v_xor_b32", f"v{vKA+ks}", sFK, f"v{vKA+ks}") for ks in range(4)] + [V("v_xor_b32", f"v{vVA+dt}", sFV, f"v{vVA+dt}") for dt in range(8)]
    return o

def finish(R, k):
    o = []
    if OPT["stamps"]:
        n = R.nstamp
        o += [raw(f"s_memtime s[{44+4*n}:{45+4*n}]"), raw(f"s_memrealtime s[{46+4*n}:{47+4*n}]"), raw("s_waitcnt vmcnt(0) lgkmcnt(0)")]; n += 1
        o += [raw(f"s_memtime s[{44+4*n}:{45+4*n}]"), raw(f"s_memrealtime s[{46+4*n}:{47+4*n}]"), raw("s_waitcnt lgkmcnt(0)")]; n += 1
        assert n <= 13
        if OPT["pi"] >= 0:
            i, j, kk = OPT["pi"], OPT["pj"], OPT["pk_"]
            if not OPT["pall"]: o += [raw("s_and_b32 s101, s101, 0xf7"), raw("s_cmp_lg_u32 s101, 100"), raw(f"s_cbranch_scc1 Lfin{k}")]
            o += [raw(f"s_sub_u32 s36, s{44+4*j+2*kk}, s{44+4*i+2*kk}"), raw("s_mul_i32 s36, s36, 10") if kk else raw("s_lshr_b32 s36, s36, 1"),
                  raw("s_min_u32 s36, s36, 200000"), raw("s_memrealtime s[38:39]"), raw("s_waitcnt lgkmcnt(0)"), label(f"Lspin{k}"), raw("s_memrealtime s[40:41]"), raw("s_waitcnt lgkmcnt(0)"),
                  raw("s_sub_u32 s37, s40, s38"), raw("s_cmp_lt_u32 s37, s36"), raw(f"s_cbranch_scc1 Lspin{k}")]
        else:
            o += [raw("; STAMPS"), raw("s_load_dwordx2 s[40:41], s[0:1], 40"), raw("v_mov_b32 v16, 0")]
            for x in range(n): o += [raw(f"v_writelane_b32 v16, s{44+4*x}, {2*x}"), raw(f"v_writelane_b32 v16, s{46+4*x}, {2*x+1}")]
            o += [raw(f"v_writelane_b32 v16, {n}, 63"), raw("v_writelane_b32 v16, s95, 62"), raw("s_lshl_b32 s100, s100, 8"), raw("v_mbcnt_lo_u32_b32 v17, -1, 0"), raw("v_mbcnt_hi_u32_b32 v17, -1, v17"), raw("v_lshlrev_b32 v17, 2, v17"),
                  raw("s_waitcnt lgkmcnt(0)"), raw("s_mov_b32 s42, 0x100000"), raw("s_mov_b32 s43, 0x00020000"), raw("buffer_store_dword v16, v17, s[40:43], s100 offen"), raw("s_waitcnt vmcnt(0)")]
    o += [label(f"Lfin{k}")]
    if OPT["slow"]: o += [raw("s_or_b64 s[36:37], s[30:31], s[32:33]"), raw("s_cbranch_scc1 Lslow")]
    o += [raw("s_endpgm")] + R.stubs
    return o

MACROS = """.macro qa d,a,b,c
v_mfma_f32_16x16x32_bf16 v[\\d:\\d+3], a[\\a:\\a+3], v[\\b:\\b+3], v[\\c:\\c+3]
.endm
.macro qb d,a,b,c
v_mfma_f32_16x16x32_bf16 v[\\d:\\d+3], a[\\a:\\a+3], a[\\b:\\b+3], v[\\c:\\c+3]
.endm
.macro pv d,a,b
v_mfma_f32_16x16x32_bf16 a[\\d:\\d+3], a[\\a:\\a+3], v[\\b:\\b+3], a[\\d:\\d+3]
.endm
.macro pw d,a,b
v_mfma_f32_16x16x32_bf16 v[\\d:\\d+3], a[\\a:\\a+3], v[\\b:\\b+3], v[\\d:\\d+3]
.endm
.macro ex r
v_exp_f32 v\\r, v\\r
.endm
.macro cv d,a,b
v_cvt_pk_bf16_f32 v\\d, v\\a, v\\b
.endm
.macro lk d,a,o
ds_read_b128 a[\\d:\\d+3], v\\a offset:\\o
.endm
.macro lv d,a,o
ds_read_b64_tr_b16 a[\\d:\\d+1], v\\a offset:\\o
.endm
"""
def compact(txt):
    M = "    v_mfma_f32_16x16x32_bf16 "
    txt = re.sub(M + r"v\[(\d+):\d+\], a\[(\d+):\d+\], v\[(\d+):\d+\], v\[\1:\d+\]", r"pw \1,\2,\3", txt)
    txt = re.sub(M + r"v\[(\d+):\d+\], a\[(\d+):\d+\], v\[(\d+):\d+\], v\[(\d+):\d+\]", r"qa \1,\2,\3,\4", txt)
    txt = re.sub(M + r"v\[(\d+):\d+\], a\[(\d+):\d+\], a\[(\d+):\d+\], v\[(\d+):\d+\]", r"qb \1,\2,\3,\4", txt)
    txt = re.sub(M + r"a\[(\d+):\d+\], a\[(\d+):\d+\], v\[(\d+):\d+\], a\[\1:\d+\]", r"pv \1,\2,\3", txt)
    txt = re.sub(r"    v_exp_f32 v(\d+), v\1\n", r"ex \1\n", txt)
    txt = re.sub(r"    v_cvt_pk_bf16_f32 v(\d+), v(\d+), v(\d+)", r"cv \1,\2,\3", txt)
    txt = re.sub(r"    ds_read_b128 a\[(\d+):\d+\], v(\d+) offset:(\d+)", r"lk \1,\2,\3", txt)
    txt = re.sub(r"    ds_read_b64_tr_b16 a\[(\d+):\d+\], v(\d+) offset:(\d+)", r"lv \1,\2,\3", txt)
    return txt.replace("\n    ", "\n")

def build():
    TA_LIM[0] = OPT["tal"]; VM_LAT[0] = OPT["vml"]
    com = setup_common()
    body = ""
    txt = []
    for k, types in enumerate((("AB", "BA") if OPT["ab"] else ("AA", "AA"))):
        R = Role(types, "XY"[k])
        main = R.build()
        su = setup_role(R, k)
        for i in com + su: i.st = -1000
        tr = insert_waits(com + su + main)
        while fix_hazards(tr, verbose=OPT["verbose"] > 1): pass
        e = verify2(tr); assert e == 0, e
        nc = len(com)
        if OPT["loopt"]:
            tr = [i for i in tr if i.cmt != "check"]; R.stubs = []
            i0 = tr.index(R.bstart[23]); i1 = tr.index(R.bstart[27])
            tr = tr[:i0] + [raw(f"s_mov_b32 s42, {OPT['loopt']}"), label(f"Llt{k}")] + tr[i0:i1] + [raw("s_sub_u32 s20, s20, 65536"), raw("s_sub_u32 s43, s43, 65536"), raw("s_sub_u32 s42, s42, 1"), raw("s_cmp_lg_u32 s42, 0"), raw(f"s_cbranch_scc1 Llt{k}")] + tr[i1:]
        if OPT["nost"]: tr = [i for i in tr if not (i.k == "vmem" and "store" in i.t and i.st > 75000)]
        if OPT["nodsw"]: tr = [i for i in tr if not (i.k == "dsw" and "b64" in i.t and i.st > 75000)]
        if OPT["nowait"]: tr = [i for i in tr if not (i.k == "wait" and i.st > 20000)]
        if OPT["nosync"]: tr = [i for i in tr if not ("v255" in i.t and i.st > 20000)]
        if OPT["nodma"]: tr = [i for i in tr if not (i.k == "vmem" and i.ring and i.ring[1] >= 4)]
        if OPT["samekv"]:
            for i in tr:
                if i.t == "s_add_u32 s20, s20, 16384": i.t = "s_xor_b32 s20, s20, 16384"
        if OPT["nosmf"]: tr = [i for i in tr if i.tag != "smf"]
        if OPT["nocvt"]: tr = [i for i in tr if not (i.t.startswith("v_cvt_pk") and 136 <= int(i.t.split()[1][1:-1]) < 216 and i.st > 8000)]
        if OPT["nobar"]: tr = [i for i in tr if i.k != "bar"]
        if OPT["noxor"]: tr = [i for i in tr if "0x2000, " not in i.t]
        if OPT["nolds"]: tr = [i for i in tr if not (i.k == "ds" and i.ring and i.ring[1] >= 2)]
        if OPT["noexp"]: tr = [i for i in tr if "v_exp" not in i.t]
        assert all(a is b for a, b in zip(tr[:nc], com))
        txt.append("".join(i.text() for i in tr[nc:] + finish(R, k)))
        if OPT["verbose"]: print("  nops:", sum(i.nop for i in tr), "waits:", sum(i.k == "wait" for i in tr))
    slow = ""
    if OPT["slow"]:
        import slowpath
        slow = slowpath.text(sys.modules[__name__])
    body = "".join(i.text() for i in com) + txt[0] + slow + ".p2align 6\nLroleY:\n" + txt[1] + "Lcodeend:\n    s_endpgm\n" + (".fill 4096, 4, 0xbf810000\n" if OPT["spf"] else "")
    return compact(body) if OPT["compact"] else body

HEAD = f"""; flash-attention forward, B8 H32 Sq608 Sk1024 D128 bf16 (emitted by my own scheduling script)
; @launch grid=(256,1,1) block=(256,1,1) lds=163840
.amdgcn_target "amdgcn-amd-amdhsa--gfx950"
{MACROS}.text
.globl {NAME}_kernel
.p2align 8
.type {NAME}_kernel,@function
{NAME}_kernel:
"""
TAIL = f""".section .rodata,"a"
.p2align 6
.amdhsa_kernel {NAME}_kernel
  .amdhsa_next_free_vgpr 512
  .amdhsa_next_free_sgpr 102
  .amdhsa_accum_offset 256
  .amdhsa_group_segment_fixed_size 0
  .amdhsa_kernarg_size 48
  .amdhsa_user_sgpr_count 2
  .amdhsa_user_sgpr_kernarg_segment_ptr 1
  .amdhsa_system_sgpr_workgroup_id_x 1
  .amdhsa_float_denorm_mode_32 3
.end_amdhsa_kernel
"""
if __name__ == "__main__":
    open(sys.argv[1], "w").write(HEAD + build() + TAIL)
```

```python
import heapq
from collections import deque
from asmir import *

SCAL = ("salu", "wait", "bar", "nop", "br")
DS_LAT = 112
def cost(i):
    if i.k == "valu": return 4
    if i.k in ("trans", "perm"): return 8
    if i.k == "ds": return 4
    if i.k == "dsw": return 22 if "b128" in i.t else (8 if "b32" in i.t else 12)
    if i.k == "vmem": return 4 if "store" in i.t or "global" in i.t else 8
    return 4
NOPW = [-1000]; TA_LIM = [10**9]; VM_LAT = [0]
def ta_cost(i): return 256 if i.cmt == "strided" else 64
def lat_cyc(p, c, raw):
    if p.k == "ds" and raw: return DS_LAT
    if p.k == "vmem" and raw and p.w & c.r: return VM_LAT[0]
    if ismf(p) and raw and not ismf(c): return 36
    return 0

class Node:
    __slots__ = ("i", "idx", "pred", "succ", "np", "dl", "rt", "t", "pos", "mi", "mate", "hard")

def schedule(prog, verbose=False, name=""):
    N = []
    lastw = {}; readers = {}
    lastm = None; lastv = {}; lastseq = None
    mi = 0; fz = {}
    for idx, i in enumerate(prog):
        n = Node(); n.i = i; n.idx = idx; n.pred = {}; n.succ = []; n.t = None; n.pos = None; n.mi = None
        R_ = i.r | i.xr; W_ = i.w | i.xw
        for r in R_:
            p = lastw.get(r)
            if p is not None: n.pred[p] = True
        for r in W_:
            p = lastw.get(r)
            if p is not None: n.pred[p] = True
            for p in readers.get(r, ()):
                if p is not n: n.pred.setdefault(p, p.i.k == "ds" and i.k == "wait")
        for r in R_: readers.setdefault(r, []).append(n)
        for r in W_: lastw[r] = n; readers[r] = []
        if ismf(i):
            if lastm is not None: n.pred.setdefault(lastm, False)
            lastm = n; n.mi = mi; i.mi = mi; mi += 1
        if i.k == "vmem":
            cl = "st" if "store" in i.t else ("dma" if "lds" in i.t else "ld")
            if cl in lastv: n.pred.setdefault(lastv[cl], False)
            lastv[cl] = n
        n.pred.pop(n, None)
        for p in n.pred: p.succ.append(n)
        n.np = len(n.pred); n.rt = 0
        n.mate = None
        if i.fuse is not None:
            o = fz.pop(id(i.fuse), None)
            if o is None: fz[id(i.fuse)] = n
            else: n.mate = o; o.mate = n
        N.append(n)
    NM_ = mi
    for n in reversed(N):
        if n.mi is not None: n.dl = n.hard = n.mi; continue
        d = h = NM_ + n.idx * 1e-6
        if n.i.dlm is not None: d = min(d, n.i.dlm.mi)
        for s in n.succ:
            l = cost(n.i) / 8.0 + lat_cyc(n.i, s.i, s.pred[n]) / 16.0
            if n.i.k in SCAL: l = 1.0
            d = min(d, s.dl - l); h = min(h, s.hard - l)
        if n.i.cmt == "asap": d = h = -1000 + n.idx * 1e-3
        n.dl = d; n.hard = h
    ms = [n for n in N if n.mi is not None]
    ready = [n for n in N if n.np == 0 and n.mi is None]
    out = []
    t = 0; pipe = 0; slot = False; last = None; cur = -1
    left = len(N); stall = 0; tm = -100; ta = 0
    def haz_ok(n):
        d = 0; k = len(out) - 1
        while k >= 0 and d < 12:
            p = out[k]
            if required(p.i, n.i) > d: return False
            d += states(p.i); k -= 1
        return True
    def haz_need(n):
        d = 0; k = len(out) - 1; need = 0
        while k >= 0 and d < 12:
            p = out[k]
            need = max(need, required(p.i, n.i) - d)
            d += states(p.i); k -= 1
        return need
    def eff_cost(n):
        i = n.i
        if i.k in SCAL: return (0 if slot else 4) + (4 if i.cmt == "two" else 0)
        c = cost(i)
        if i.k in ("ds", "dsw", "vmem"):
            if last in VALUK: c += 8
            elif last in ("ds",) and i.k == "ds": c += 4
        return c
    def issue(n):
        nonlocal t, pipe, slot, last, cur, left, stall, tm, ta
        i = n.i
        if n.mate is not None and n.mate.t is None and n.mate.np == 0 and n.mate.rt <= t and t >= tm + 28 and haz_ok(n.mate):
            o = n.mate; f = Node(); f.i = i.fuse; f.i.st = t
            for x in (n, o):
                ready.remove(x); x.t = t; left -= 1
                for s_ in x.succ:
                    s_.np -= 1; s_.rt = max(s_.rt, t)
                    if s_.np == 0 and s_.mi is None: ready.append(s_)
            out.append(f); t += 4; slot = False; last = "valu"
            return
        if n.mi is not None:
            t0 = max(t, pipe, n.rt)
            if cur >= 0: stall += t0 - pipe
            n.t = t0; pipe = t0 + (32 if i.k == "mfma8" else 16); t = t0 + (12 if i.tag == "smf" else 8)
            slot = True; last = i.k; cur = n.mi; tm = t0
        else:
            ready.remove(n)
            c = eff_cost(n); t = max(t, n.rt); n.t = t; t += c
            if i.k == "vmem": ta = max(ta, n.t) + ta_cost(i)
            if i.k == "bar": t += 56
            if i.k == "vmem" and "store" in i.t: pipe = max(pipe, t + 16)
            slot = False
            if i.k not in SCAL: last = i.k
        i.st = n.t
        out.append(n); left -= 1
        for s in n.succ:
            s.np -= 1
            s.rt = max(s.rt, n.t + lat_cyc(i, s.i, s.pred[n]))
            if s.np == 0 and s.mi is None: ready.append(s)
    while left:
        m = ms[cur + 1] if cur + 1 < NM_ else None
        m_ok = m is not None and m.np == 0
        m_rdy = m_ok and m.rt <= max(t, pipe) and haz_ok(m)
        budget0 = budget = pipe - t
        if cur >= 0 and ms[cur].i.lg: budget = max(budget, tm + 16 + ms[cur].i.lg - t)
        cand = [n for n in ready if (n.i.nb is None or n.i.nb.mi <= cur or n.dl <= cur + 1) and n.rt <= t
                and not (n.i.k == "vmem" and ta - t > TA_LIM[0] and n.hard > cur + 1)]
        cand.sort(key=lambda n: (n.dl, n.idx))
        blocked = [n for n in ready if n.dl <= cur + NOPW[0] and n.rt <= t + 48 and (n.i.nb is None or n.i.nb.mi <= cur + 2)]
        cand = [n for n in cand[:24] if haz_ok(n)]
        pick = None
        atstart = last in ("mfma", "mfma8")
        if slot:
            sc = [n for n in cand if n.i.k in SCAL]
            if sc: pick = sc[0]
        if pick is None and cand:
            fit = [n for n in cand if eff_cost(n) <= budget and not (n.i.k == "vmem" and "store" in n.i.t and not atstart)]
            top = cand[0]
            mem = [n for n in cand if n.i.k in ("ds", "dsw", "vmem")]
            if atstart and mem and (mem[0] is top or top.i.k == "valu" or top.i.k in SCAL or (mem[0].dl <= cur + 2)):
                x = mem[0]
                if eff_cost(x) <= budget or cost(x.i) > 8 or x.dl <= cur + 2 or not m_rdy:
                    if not (top.i.k == "valu" and cost(x.i) > 4 and top.dl <= cur + 2 and x.dl > cur + 4): pick = x
            if pick is None and fit: pick = fit[0]
            if pick is None and top.dl <= cur + 1 and top.i.k not in ("ds", "dsw", "vmem"): pick = top
            if pick is None and not m_rdy: pick = top
        if pick is None and m_rdy and blocked and budget0 >= 4:
            need = max(haz_need(n) for n in sorted(blocked, key=lambda n: n.dl)[:2]) - 1
            k = min(need, (budget0 + (4 if slot else 0)) // 4)
            if k >= 1:
                f = Node(); f.i = nop(k); f.i.st = t; out.append(f)
                t += 4 * k - (4 if slot else 0); slot = False
                continue
        if pick is not None: issue(pick)
        elif m_rdy: issue(m)
        else:
            later = [n for n in ready if n.rt > t]
            if m_ok and m.rt <= max(t, pipe):
                issue(m)
            elif (m_ok or later) and t < max([n.rt for n in later] + [m.rt if m_ok else 0]):
                t += 4; slot = False
            else:
                r = sorted(ready, key=lambda n: (n.dl, n.idx))
                assert r, "deadlock"
                issue(r[0])
    if verbose: print(f"sched {name}: {len(N)} instrs, {NM_} mfma, est cycles {max(t,pipe)}, mfma stall {stall}")
    return [n.i for n in out]

def insert_waits(seq, lq=None, vq=None):
    lq = deque() if lq is None else lq; vq = deque() if vq is None else vq
    out = []
    def retire(w):
        if w.lg is not None:
            while len(lq) > w.lg: lq.popleft()
        if w.vm is not None:
            while len(vq) > w.vm: vq.popleft()
    for i in seq:
        if i.k == "wait":
            for q, a in ((lq, "lg"), (vq, "vm")):
                lastn = -1
                for n, (o, _) in enumerate(q):
                    if (o.w | o.wt) & i.need: lastn = n
                if lastn >= 0:
                    cnt = len(q) - 1 - lastn; cur = getattr(i, a)
                    setattr(i, a, cnt if cur is None else min(cur, cnt))
            retire(i); out.append(i); continue
        touch = i.r | i.w
        for q, a, mx in ((lq, "lg", 15), (vq, "vm", 63)):
            lastn = -1
            for n, (o, _) in enumerate(q):
                if o.w & touch: lastn = n
            isq = (i.k in ("ds", "dsw")) if a == "lg" else (i.k == "vmem")
            if lastn < 0 and isq and len(q) >= mx: lastn = 0
            if lastn < 0: continue
            opos = q[lastn][1]
            pos = len(out); k = len(out) - 1; tries = 0
            while k > opos and tries < 3:
                if ismf(out[k]):
                    tries += 1
                    nxt = out[k + 1] if k + 1 < len(out) else None
                    early_ok = tries == 1 or (a == "lg" and out[k].st - q[lastn][0].st >= 96)
                    if not early_ok: break
                    if nxt is None or nxt.k not in SCAL: pos = k + 1; break
                    if nxt.k == "wait" and not nxt.need: pos = -(k + 1); break
                if out[k].k in ("label", "br"): break
                k -= 1
            apos = abs(pos)
            tpos = out[apos - 1].st if apos > 0 and out[apos - 1].st is not None else None
            if a == "lg" and tpos is not None:
                for n in range(lastn + 1, len(q)):
                    if q[n][1] < apos and q[n][0].st is not None and tpos - q[n][0].st >= DS_LAT: lastn = n
            cnt = sum(1 for n in range(lastn + 1, len(q)) if q[n][1] < apos)
            if pos < 0:
                w = out[apos]; cur = getattr(w, a); setattr(w, a, cnt if cur is None else min(cur, cnt))
            else:
                w = wait(); setattr(w, a, cnt); w.st = tpos
                out.insert(apos, w)
                for qq in (lq, vq):
                    for n in range(len(qq)):
                        if qq[n][1] >= apos: qq[n] = (qq[n][0], qq[n][1] + 1)
            for _ in range(lastn + 1): q.popleft()
        if i.k in ("ds", "dsw"): lq.append((i, len(out)))
        elif i.k == "vmem": vq.append((i, len(out)))
        out.append(i)
    return out

def verify2(trace):
    lq = deque(); vq = deque(); errs = 0
    landed = {}; visible = {}; slotof = {}; readdone = {}; nbar = 0; privl = {}; arrived = False; snap = {}
    for i in trace:
        if i.k == "wait":
            if i.lg is not None:
                while len(lq) > i.lg:
                    o = lq.popleft()
                    if o.ring and o.cmt != "early": readdone[o.ring] = nbar + (1 if arrived else 0)
            if i.vm is not None:
                while len(vq) > i.vm:
                    o = vq.popleft()
                    if o.ring: landed[o.ring] = landed.get(o.ring, 0) + 1
                    if o.priv: privl[o.priv] = privl.get(o.priv, 0) + 1
            continue
        if i.k == "bar":
            nbar += 1; visible.update(landed); continue
        if i.cmt == "arrive":
            snap = dict(landed); arrived = True
            for o in lq:
                if o.ring: o.cmt = "early"; readdone[o.ring] = nbar
        if i.cmt == "check":
            nbar += 1; visible.update(snap); arrived = False; continue
        for q in (lq, vq):
            for o in q:
                if o.w & (i.r | i.w): print(f"  ERR pending load [{o.t}] vs [{i.t}]"); errs += 1
        if i.k in ("ds", "dsw"):
            if i.ring:
                kind, b = i.ring
                if visible.get(i.ring, 0) < 4: print(f"  ERR RAW {i.ring} not visible at [{i.t}]"); errs += 1
                if slotof.get((kind, b % 4)) != b: print(f"  ERR slot overwritten {i.ring} at [{i.t}]"); errs += 1
            if i.priv and privl.get(i.priv, 0) < 4: print(f"  ERR priv RAW {i.priv}"); errs += 1
            lq.append(i)
            if len(lq) > 15: print("  ERR lgkm overflow"); errs += 1
        elif i.k == "vmem":
            if i.ring:
                kind, b = i.ring; old = (kind, b - 4)
                if b >= 4:
                    if any(o.ring == old for o in lq) or old not in readdone or readdone[old] >= nbar:
                        print(f"  ERR WAR DMA {i.ring}"); errs += 1
                if any(o.priv and o.priv[1] == (kind, b % 4) for o in lq): print(f"  ERR WAR priv {i.ring}"); errs += 1
                slotof[(kind, b % 4)] = b
            vq.append(i)
            if len(vq) > 63: print("  ERR vm overflow"); errs += 1
    return errs
```

```python
import sys, struct, math, re
from asmir import *
from sched import *

NAME = "standalone__mha_softmax__near_ridge"
OPT = dict(gt=0, gp_=1, gr=0, nw=12, sm=0, to=0, pfix=0, eh=1, vb=0, c4=0, swp=0, gl=1, tl=0, h0=110, h1=22, h2=195, h3=30, hd=260, nost=0, nodsw=0, ep=0, epo=0, l0=40, l1=110, l2=90, l3=40, sv=0, sd=0, asap=1, kq=4, rb=3, kalt=1, sg0=1, sg1=140, vml=3500, tal=0, bp=0, bq=1, ob=1, kap=7, obias=0, dlt=10, olast=0, o2=0, one0=0, cz=0, nosnake=0, so=0, tch=0, u0=66, u1=19, u2=19, ov=1, ddl=130, cd=1, loopt=0, nowait=0, nosync=0, spf=0, spd=6144, sdl=24, tdl=10, fl=1, flr=20, stm=0, samekv=0, nosmf=0, nocvt=0, nodma=0, nobar=0, noxor=0, nolds=0, noexp=0, xd=0, thr=0x5f800000, lagc=50, lagmax=240, stamps=0, kv=1, kvy=1, q=1, o0=4, o1=4, ab=1, pf=1, e0=7, pk=1, pi=-1, pj=0, pk_=1, pall=0, verbose=0, compact=1, slow=1)
MODS = ["", " nt", " sc1", " sc1 nt", " sc0 sc1", " sc0 sc1 nt", " sc0", " sc0 nt"]
for a in sys.argv[2:]:
    k, v = a.split("="); assert k in OPT, k; OPT[k] = int(v)
vKA = 0; vVA = 4; vDA, vDB = 12, 13; vIDX = 14; vG = 15
vS = 16; vNM = 36; vQA = 56; vP = 136; vQB = 216; vT = 252
aO = 0; aL = 160; aONE = 172; aV = 180; aK = 196; aQB = 212
sQ, sK, sV, sO = 4, 8, 12, 16
sOFF = "s20"; sW4K = "s21"; sC = "s22"; sC2 = "s23"
sROW = [["s24", "s25"], ["s26", "s27"]]
sMASK = "s28"; sTHR = "s29"; sBAD = [("s", 30, 2), ("s", 32, 2)]; sFK = "s34"; sFV = "s35"; sD0 = "s3"; sD1 = "s2"
sOFV = "s43"; sB = ["s40", "s41"]
sTMP = [f"s{i}" for i in range(36, 40)]
HEADQ = 608 * 256; HEADK = 1024 * 256
CSCALE = struct.unpack("<I", struct.pack("<f", math.log2(math.e) / math.sqrt(128.0)))[0]
X1 = 0; X0 = 16384; KB = 32768; VB = 98304; FLAG = 1024
vFA, vFE = 254, 255
_st = [0]
def stmp():
    _st[0] = (_st[0] + 1) % len(sTMP); return sTMP[_st[0]]
def SS(op, d, *src):
    i = S(op, d, *src); i.w.discard("scc"); return i

def Sx(n): return ("v", vS + 4 * n, 4)
def NM(n): return ("v", vNM + 4 * n, 4)
def Q(p, n, ks):
    f = 4 * n + ks
    if p == 0: return ("v", vQA + 4 * f, 4)
    return ("a", aQB + 4 * f, 4) if f < 11 else ("v", vQB + 4 * (f - 11), 4)
def P(par, n, ks): return ("v", vP + 40 * par + 8 * n + 4 * ks, 4)
def O(n, dt): return ("a", aO + 32 * n + 4 * dt, 4)
def OP(p, n, dt):
    if p == 1 and n < 2 and OPT["ov"]: return ("v", vQA + 32 * n + 4 * dt, 4)
    return O(n, dt)
def mul2(d, a, m):
    if m[0] == "s": l = [V("v_mul_f32", f"v{d+k}", m, f"v{a+k}") for k in range(2)]; f = V("v_pk_mul_f32", ("v", d, 2), ("v", a, 2), ("s", 22, 2))
    else:
        r = int(m[1:]); l = [V("v_mul_f32", f"v{d+k}", f"v{a+k}", m) for k in range(2)]
        f = V("v_pk_mul_f32", ("v", d, 2), ("v", a, 2), ("v", r & ~1, 2), mod=" op_sel:[0,1] op_sel_hi:[1,1]" if r & 1 else " op_sel_hi:[1,0]")
        f.r.discard(f"v{r^1}")
    if OPT["pk"]: l[0].fuse = l[1].fuse = f
    return l
def f32(x): return hex(struct.unpack("<I", struct.pack("<f", float(x)))[0])
def fma2(d, a, m, c):
    if not OPT["ob"]: return mul2(d, a, f"v{m}")
    l = [V("v_fma_f32", f"v{d+k}", f"v{a+k}", f"v{m}", f"v{c}") for k in range(2)]
    f = V("v_pk_fma_f32", ("v", d, 2), ("v", a, 2), ("v", m & ~1, 2), ("v", c & ~1, 2), mod=f" op_sel:[0,{m&1},{c&1}] op_sel_hi:[1,{m&1},{c&1}]")
    f.r = {f"v{a}", f"v{a+1}", f"v{m}", f"v{c}"}
    if OPT["pk"]: l[0].fuse = l[1].fuse = f
    return l
def L(n): return ("a", aL + 4 * (n // 2), 4)
def Lr(n): return aL + 4 * (n // 2) + 2 * (n % 2)
def ONE(n): return ("a", aONE + 4 * (n % 2), 4)

class Role:
    def __init__(s, types, tag):
        s.half = [t == "B" for t in types]; s.tag = tag
        s.kst = [[s.half[0], 0] for _ in range(4)]; s.vst = [[s.half[0], 0] for _ in range(8)]
        s.prog = []; s.hints = []; s.nstamp = 0; s.epoch = 0; s.stubs = []
    def add(s, *l):
        for x in l:
            if isinstance(x, list): s.prog += x
            else: s.prog.append(x)
    def hint(s, i, m, off, attr="nb"): s.hints.append((i, m, off, attr)); return i
    def addr(s, st, reg, half, h, sflip):
        o = []
        if st[0] != half:
            if st[1]: o.append(V("v_xor_b32", reg, "0x2000", reg)); st[1] = 0
            o.append(V("v_xor_b32", reg, sflip, reg)); st[0] = half
        if not half: return o, h * 8192
        if st[1] != h: o.append(V("v_xor_b32", reg, "0x2000", reg)); st[1] = h
        return o, 0
    def kread(s, dst, b, t, ks):
        o, off = s.addr(s.kst[ks], f"v{vKA+ks}", s.half[b // 16], t >> 1, sFK)
        i = ds_read("ds_read_b128", dst, f"v{vKA+ks}", (b % 4) * 16384 + off + (t & 1) * 4096)
        i.ring = ("K", b); i.xr = {f"cK{b}", f"oK{b}"}; i.wt = {f"rK{b}"}
        return o + [i]
    def vread(s, dst, b, dt, ks):
        o, off = s.addr(s.vst[dt], f"v{vVA+dt}", s.half[b // 16], ks, sFV)
        for u in range(2):
            i = ds_read("ds_read_b64_tr_b16", (dst[0], dst[1] + 2 * u, 2), f"v{vVA+dt}", (b % 4) * 16384 + off + u * 4096)
            i.ring = ("V", b); i.xr = {f"cV{b}", f"oV{b}"}; i.wt = {f"rV{b}"}
            o.append(i)
        return o
    def vks(s, b, dt, pref):
        if s.half[b // 16] and s.vst[dt][0]: return [s.vst[dt][1], s.vst[dt][1] ^ 1]
        return pref
    def dma(s, kind, b, gate=None):
        o = []
        so = sOFF if kind == "K" else sOFV
        gl = OPT["gl"] and b >= 4; gp = 96 if kind == "K" else 98
        if gl:
            if b == 4:
                srd = sK if kind == "K" else sV
                o.append(raw(f"s_add_u32 s{gp}, s{srd}, {so}\n    s_addc_u32 s{gp+1}, s{srd+1}, 0", w=[f"s{gp}"], r=[so])); o[-1].cmt = "two"
            o.append(raw(f"s_add_u32 s{gp}, s{gp}, 16384\n    s_addc_u32 s{gp+1}, s{gp+1}, 0", w=[f"s{gp}"], r=[f"s{gp}"])); o[-1].cmt = "two"
        elif b > 0: o.append(SS("s_add_u32", so, so, 16384))
        o.append(SS("s_add_u32", "m0", sW4K, (b % 4) * 16384 + (VB if kind == "V" else KB)))
        for k in range(4):
            i = dma(f"v{vDA if k % 2 == 0 else vDB}", sK if kind == "K" else sV, so, k * 1024, mod=MODS[OPT["kvy" if s.tag == "Y" and b >= 3 else "kv"]])
            if gl:
                va = f"v{vDA if k % 2 == 0 else vDB}"
                i = I(f"global_load_lds_dwordx4 {va}, s[{gp}:{gp+1}] offset:{k*1024}{MODS[OPT['kv']]}", "vmem", r=[va, f"s{gp}", "m0"])
            i.ring = (kind, b); i.wt = {f"d{kind}{b}"}; i.xw = {f"i{kind}{b}"}
            if gate: i.xr = {gate}
            o.append(i)
        return o
    def barrier(s, close, opn, gate=None, extra_need=(), extra_w=(), extra_r=()):
        w = wait(need=[f"r{x}" for x in close] + [f"d{x}" for x in opn] + list(extra_need))
        w.xw = {f"c{x}" for x in close} | {"barseq"}; w.xr = {f"i{x}" for x in opn} | set(extra_r)
        b = bar(); b.xr = {"barseq"}; b.xw = {f"o{x}" for x in opn} | ({gate} if gate else set()) | set(extra_w)
        return [w, b]
    def sync(s, close, opn, m, gate=None, extra_need=(), extra_w=(), extra_r=(), off_bar=0, off_rd=0):
        if not OPT["fl"]:
            bl = s.barrier(close, opn, gate, extra_need, extra_w, extra_r); s.hint(bl[0], m, off_bar); return bl
        s.epoch += 1; e = s.epoch; tag = f"{s.tag}{e}"
        w = wait(need=[f"d{x}" for x in opn]); w.xr = {f"i{x}" for x in opn}; w.xw = {"flseq"}; s.hint(w, m, 0)
        a = ds_write("ds_write_b32", f"v{vFA}", f"v{vFE}", 0); a.xr = {"flseq"} | set(extra_r); a.xw = {f"c{x}" for x in close}; a.cmt = "arrive"
        r = ds_read("ds_read_b32", f"v{vFE}", f"v{vDA}", FLAG); s.hint(r, m, off_rd)
        c = V("v_cmp_gt_u32", "vcc", e, f"v{vFE}")
        b = I(f"s_cbranch_vccnz Ls{tag}\nLr{tag}:", "br", r=["vcc", f"v{vDA}"], w=["vcc", f"v{vFE}"]); b.cmt = "check"
        b.xw = {f"o{x}" for x in opn} | ({gate} if gate else set()) | set(extra_w)
        s.stubs += [label(f"Ls{tag}"), raw(f"ds_read_b32 v{vFE}, v{vDA} offset:{FLAG}"), raw("s_waitcnt lgkmcnt(0)"), raw(f"v_cmp_gt_u32 vcc, {e}, v{vFE}"), raw("s_nop 0"),
                    raw(f"s_cbranch_vccnz Ls{tag}")] + ([raw("s_add_u32 s95, s95, 1")] if OPT["stm"] == 4 else []) + [raw(f"s_branch Lr{tag}")]
        if OPT["cd"]: s.hint(b, m, off_rd + 8 + OPT["cd"])
        mv = V("v_mov_b32", f"v{vFE}", e)
        for i in (w, a): s.hint(i, m, max(0, off_rd - 10), "dlm")
        return ([w] if opn else []) + [mv, a, r, c, b]
    def chain(s, p, n, sq, kf, czero):
        order = [0, 1, 2, 3] if n % 2 == 0 or OPT["nosnake"] else [3, 2, 1, 0]
        return [mfma(sq, kf(ks), Q(p, n, ks), sq if k else ("0" if czero or OPT["cz"] else NM(n))) for k, ks in enumerate(order)]
    def rowmax(s, n, sq, a, b):
        x = [f"v{sq[1]+r}" for r in range(4)]
        l = [V("v_max3_f32", a, x[0], x[1], x[2]), V("v_max_f32", a, a, x[3])] + ([V("v_add_f32", a, hex(struct.unpack("<I", struct.pack("<f", float(OPT["dlt"])))[0]), a)] if OPT["dlt"] else []) + [V("v_mov_b32", b, a),
             swap("v_permlane16_swap_b32", a, b), V("v_max_f32", a, a, b), V("v_mov_b32", b, a), swap("v_permlane32_swap_b32", a, b)]
        l += [V("v_min_f32", f"v{vNM+4*n+r}", "-" + a, "-" + b) for r in range(4)]
        l += [V("v_add_f32", x[r], x[r], f"v{vNM+4*n}") for r in range(4)]
        return l
    def expcvt(s, par, n, t, sq, pb=None):
        l = []
        if pb is None: pb = vP + 40 * par + 8 * n
        for h in range(2):
            x0, x1 = f"v{sq[1]+2*h}", f"v{sq[1]+2*h+1}"
            l += [V("v_exp_f32", x0, x0), V("v_exp_f32", x1, x1), V("v_cvt_pk_bf16_f32", f"v{pb+2*t+h}", x0, x1)]
        return l
    def smf(s, b, n, pb=None):
        if pb is None: pb = vP + 40 * (b % 2) + 8 * n
        if s.half[b // 16] and n == 4: return mfma(L(4), ONE(4), ("v", pb, 4), L(4))
        return smfmac(L(n), ONE(n), ("v", pb, 8), f"v{vIDX}")
    def scale(s, src, dst, ta, pk=False):
        a, b = f"v{ta}", f"v{ta+1}"
        l = [V("v_lshlrev_b32", a, 16, src), V("v_and_b32", b, sMASK, src)]
        l += mul2(ta, ta, sC)
        if dst[0] == "v": return l + [V("v_cvt_pk_bf16_f32", dst, a, b)]
        return l + [V("v_cvt_pk_bf16_f32", a, a, b), V("v_accvgpr_write_b32", dst, a)]
    def rowoff(s, p, n, extra=None):
        t = stmp()
        i = SS("s_add_u32", t, sROW[p][0], n * 4096) if n < 4 else SS("s_mov_b32", t, sROW[p][1])
        if extra is None: return t, [i]
        return t, [i, SS("s_add_u32", t, t, extra)]
    def stamp(s, m=None, off=0):
        if not OPT["stamps"]: return
        k = s.nstamp; s.nstamp += 1; assert k < 14
        a = raw(f"s_memtime s[{44+4*k}:{45+4*k}]"); b = raw(f"s_memrealtime s[{46+4*k}:{47+4*k}]")
        for i in (a, b):
            if m is not None: s.hint(i, m, off); s.hint(i, m, off + 2, "dlm")
            else: i.xw = {"seq"}
        s.add(a, b)

    QREG = [(KB + 32768, ("K", 2)), (VB + 16384, ("V", 1)), (VB + 32768, ("V", 2)), (KB + 49152, ("K", 3)), (X0, None)]
    TA = 236
    def qdma(s, n):
        t, o = s.rowoff(0, n)
        o.append(SS("s_add_u32", "m0", sW4K, s.QREG[n][0]))
        for k in range(4):
            i = dma(f"v{vDA if k % 2 == 0 else vDB}", sQ, t, k * 1024, mod=MODS[OPT["q"]])
            i.wt = {f"dQ{n}"}; i.priv = (n, s.QREG[n][1]); o.append(i)
        return o
    def start(s):
        half = s.half[0]; TA = s.TA
        def seq(l):
            for i in l:
                if i.k in ("vmem", "wait", "bar"): i.xw = i.xw | {"seq"}
                if OPT["asap"] and i.k in ("vmem", "salu"): i.cmt = "asap"
            return l
        KF = lambda b, t: (lambda ks: ("a", 96 + 16 * t + 4 * ks, 4) if b == 0 else Q(1, t, ks))
        s.KF = KF
        def kpart(bs, dm, order, sq):
            if OPT["stm"] == 1 and 0 in bs: s.stamp()
            bl = seq(s.barrier([], [f"K{b}" for b in bs], extra_need=["cw"]))
            s.add(bl[0], seq(dm), bl[1]) if not OPT["so"] else s.add(bl, seq(dm))
            if OPT["stm"] == 1 and 0 in bs: s.stamp()
            for k, (b, t) in enumerate(order):
                for ks in range(4):
                    l = s.kread(KF(b, t)(ks), b, t, ks)
                    if sq and k < OPT["kq"]: l[-1].xr = l[-1].xr | {"seq"}
                    s.add(l)
        if not OPT["so"]:
            kpart([0, 1], s.qdma(2) + (s.qdma(3) if OPT["sd"] else []), ((0, 0), (0, 1), (0, 2), (0, 3), (1, 2), (1, 3), (1, 0), (1, 1)), True)
        nxt = [s.qdma(3), s.qdma(4), s.dma("V", 0), s.dma("K", 2), s.dma("V", 1)]
        late = []; EP = {}
        if OPT["ep"]:
            nxt = [nxt[2], nxt[0], nxt[1], nxt[3], nxt[4]]
            EP = [{5: [0], 6: [1, 2], 7: [3]}, {6: [0, 1], 7: [2, 3]}, {5: [0, 1], 6: [2, 3]}, {6: [0, 1], 7: [2], 8: [3]}, {6: [0, 1], 8: [2, 3]}, {5: [0, 1], 7: [2, 3]}][OPT["epo"]]
        def grpA(q):
            rd, mm = s.pvgroup(0, q, [0, 1, 2], aK if q % 2 == 0 else aV, lambda n: ("a", 28, 4) if OPT["ob"] else "0")
            if q < 3: mm.append(s.smf(0, q))
            s.add(rd, mm); return mm
        if OPT["sv"] & 1: nxt[1], nxt[2] = nxt[2], nxt[1]
        if OPT["sv"] & 2: late = nxt[3] + nxt[4]; nxt[3] = []; nxt[4] = []
        if OPT["sv"] & 4: late = nxt[4]; nxt[4] = nxt[3]; nxt[3] = []
        if OPT["sd"]: nxt = nxt[1:] + [[]]
        if OPT["so"]: nxt[0] = s.qdma(1 + OPT["sd"])
        s.sc = 0
        for n in range(5):
            w = wait(need=[f"dQ{n}"]); w.xw = {"seq", f"oQ{n}"}; s.add(w)
            if n == 0 or n == 4 or OPT["stm"] == 1: s.stamp()
            base = TA + (4 if n in (1, 2, 3) else 0); off = s.QREG[n][0] - (KB + 49152 if n in (1, 2, 3) else X0)
            for ks in range(4):
                i = ds_read("ds_read_b128", Q(0, n, ks), f"v{base+ks}", off); i.xr = {f"oQ{n}", f"cQ{n}", "seq"}; i.priv = (n, s.QREG[n][1]); i.wt = {f"rQ{n}"}; s.add(i)
            s.add(seq(nxt[n]))
            for r in range(16):
                q = f"v{vQA+16*n+r}"; s.add(s.scale(q, q, TA + 8 + 2 * (r % 4), pk=OPT["pk"]))
            for q in EP.get(2 * n, []): grpA(q)
            if OPT["so"] == 1 and n == 0:
                s.prog[-1].xw = {"seq"}
                kpart([0, 1], s.qdma(2) + s.qdma(3), ((0, 0), (0, 1), (0, 2), (0, 3), (1, 2), (1, 3), (1, 0), (1, 1)), False)
            if OPT["so"] == 2 and n == 0:
                s.prog[-1].xw = {"seq"}
                kpart([0], s.qdma(2 + OPT["sd"]), ((0, 0), (0, 1), (0, 2), (0, 3)), False)
            for b in range(2 if n < 4 else 1):
                if OPT["so"] == 2 and n == 0 and b == 1:
                    ch[0].xw = {"seq"}
                    kpart([1], s.qdma(3 + OPT["sd"]), ((1, 0), (1, 1), (1, 2), (1, 3)), False)
                for t in range(2 if half and n == 4 else 4):
                    sq = Sx(s.sc % 5); s.sc += 1
                    ch = s.chain(0, n, sq, KF(b, t), t == 0 and b == 0); s.add(ch)
                    if t == 0 and b == 0:
                        s.add(s.rowmax(n, sq, f"v{TA+16}", f"v{TA+17}"))
                        if n == 4 and not OPT["ep"]:
                            ch[-1].xw = {"seq"}
                            s.add(seq(s.barrier(["K0", "K1"], ["V0"], gate="D-1")), seq(late))
                    s.add(s.expcvt(b, n, t, sq))
            if n < 4: ch[-1].xw = {"seq"}
            if OPT["ep"] and n == 2: s.add(seq(s.barrier(["K0", "K1"], ["V0"], gate="D-1")))
            for q in EP.get(2 * n + 1, []): grpA(q)[-1].xw = {"seq"}

    def nbr(s, p, d, rl):
        return [V("v_mul_f32_e64", f"v{d}", "-" + sB[p], f"v{rl}")] if OPT["ob"] else []
    def ep_l(s, p, n, rl, tmp):
        a, b = f"v{rl}", f"v{tmp}"
        o = [V("v_accvgpr_read_b32", a, f"a{Lr(n)}")]
        if not (s.half[p] and n == 4): o += [V("v_accvgpr_read_b32", b, f"a{Lr(n)+1}"), V("v_add_f32", a, a, b)]
        o += [V("v_cmp_nge_f32", "vcc", sTHR, a), SS("s_or_b64", sBAD[p], sBAD[p], "vcc")]
        if not (s.half[p] and n == 4): o += [V("v_rcp_f32", a, a)]
        return o
    def ep_store(s, p, n, D, tb, pkq, voo, mod):
        o = [V("v_cvt_pk_bf16_f32", f"v{pkq+r}", f"v{tb+2*r}", f"v{tb+2*r+1}") for r in range(4)]
        o += [swap("v_permlane16_swap_b32", f"v{pkq}", f"v{pkq+2}"), swap("v_permlane16_swap_b32", f"v{pkq+1}", f"v{pkq+3}")]
        if s.half[p]:
            t, oo = s.rowoff(p, n, sD0 if D < 2 else sD1); off = (D & 1) * 64
        else:
            t, oo = s.rowoff(p, n); off = D * 64
        st = bstore(("v", pkq, 4), f"v{voo}", sO, t, off, mod=MODS[mod]); st.cmt = "strided"
        return o + oo + [st]
    def voo_calc(s, voo, t):
        return [V("v_lshrrev_b32", f"v{t}", 1, f"v{vG}"), V("v_xor_b32", f"v{t}", f"v{t}", f"v{vG}"), V("v_and_b32", f"v{t}", 16, f"v{t}"),
                V("v_mul_u32_u24", f"v{t}", 3, f"v{t}"), V("v_xor_b32", f"v{voo}", f"v{t}", f"v{vG}")]
    def lane16(s, d):
        return [V("v_mbcnt_lo_u32_b32", d, -1, 0), V("v_mbcnt_hi_u32_b32", d, -1, d), V("v_lshlrev_b32", d, 4, d)]
    def cmb_pre(s, T, base):
        o = s.lane16(f"v{T}") + [V("v_add_u32", f"v{T}", sW4K, f"v{T}"), V("v_add_u32", f"v{T}", base, f"v{T}"), V("v_xor_b32", f"v{T+1}", "0x1000", f"v{T}"),
             V("v_mov_b32", f"v{T+2}", f"v{vNM+16}")]
        return o
    def cmb_give(s, p, T):
        o = s.ep_l(p, 4, T + 3, T + 4)
        w = [ds_write("ds_write_b64", f"v{T}", ("v", T + 2, 2), 0)] + [ds_write("ds_write_b128", f"v{T}", O(4, dt), 16384 + dt * 1024) for dt in range(4)]
        for i in w: i.wt = {"cw"}; i.xw = {"cgive"}
        return o + w
    def cmb_take(s, p, T, U, tb, out):
        r = [ds_read("ds_read_b64", ("v", T + 4, 2), f"v{T+1}", 0)]
        nm, l, nm2, l2, x, y = [f"v{T+k}" for k in (2, 3, 4, 5, 6, 7)]
        o = r + [V("v_cmp_nge_f32", "vcc", sTHR, l2), SS("s_or_b64", sBAD[p], sBAD[p], "vcc"),
                 V("v_min_f32", x, nm, nm2), V("v_sub_f32", nm, x, nm), V("v_sub_f32", nm2, x, nm2), V("v_exp_f32", nm, nm), V("v_exp_f32", nm2, nm2),
                 V("v_mul_f32", x, l, nm), V("v_fma_f32", x, l2, nm2, x), V("v_rcp_f32", x, x), V("v_mul_f32", nm, nm, x), V("v_mul_f32", nm2, nm2, x)]
        if OPT["ob"]: o += [V("v_add_f32", y, nm, nm2), V("v_mul_f32_e64", y, "-" + sB[p], y)]
        for D in (2, 3):
            t = tb[D - 2]; u = U[D - 2]
            rr = [ds_read("ds_read_b128", ("v", u + 4 * k, 4), f"v{T+1}", 16384 + (2 * (D - 2) + k) * 1024) for k in range(2)]; r += rr; o += rr
            o += [V("v_accvgpr_read_b32", f"v{t+r_}", f"a{aO+128+8*D+r_}") for r_ in range(8)]
            for r_ in range(0, 8, 2): o += fma2(t + r_, t + r_, T + 2, T + 7)
            o += [V("v_fma_f32", f"v{t+r_}", f"v{u+r_}", nm2, f"v{t+r_}") for r_ in range(8)]
            o += out(D, t)
        for i in r: i.xr = {"cmb"}
        return o

    def pvgroup(s, j, q, tiles, vbuf, cinit):
        pv = j // 16; hv = s.half[pv]; rd = []; mm = []
        for h, pref in ((0, [0, 1]), (1, [0, 1] if hv else [1, 0])):
            for ks in s.vks(j, 2 * q + h, pref): rd += s.vread(("a", vbuf + 8 * h + 4 * ks, 4), j, 2 * q + h, ks)
        for h in range(2):
            dt = 2 * q + h
            for n in (tiles if h == 0 else reversed(tiles)):
                if OPT["c4"] and j % 16 != 0:
                    if h == 0:
                        seq4 = [(0, 0), (0, 1), (1, 0), (1, 1)][::1 if n % 2 == 0 else -1]
                        if hv and n == 4: seq4 = [(0, 0), (1, 0)]
                        for hh, ks in seq4:
                            d_ = OP(pv, n, 2 * q + (j % 2))
                            mm.append(mfma(d_, ("a", vbuf + 8 * hh + 4 * ks, 4), P(j % 2, n if hh == 0 else (n + 2) % 4, ks), d_))
                    continue
                kss = [0] if hv and n == 4 else ([0, 1] if (n + h) % 2 == 0 or OPT["nosnake"] else [1, 0])
                for k_, ks in enumerate(kss):
                    ab = [("a", vbuf + 8 * h + 4 * ks, 4), P(j % 2, n, ks)][::-1 if OPT["swp"] else 1]
                    mm.append(mfma(OP(pv, n, dt), ab[0], ab[1], cinit(n) if j % 16 == 0 and k_ == 0 else OP(pv, n, dt)))
        return rd, mm
    def tq(s, b, q): return q ^ 2 if (OPT["kalt"] and s.half[b // 16] and b % 2 == 1 and b != 31) else q
    def block(s, j):
        b = j + 1; p = b // 16; pv = j // 16
        hq, hv = s.half[p], s.half[pv]
        first = (j % 16 == 0); trans = (j == 15)
        smfs = [{0: [0], 1: [1], 2: [2, 3], 3: [4]}, {0: [0, 1], 1: [2, 3], 2: [4], 3: []}, {0: [0, 1, 2, 3, 4], 1: [], 2: [], 3: []}][OPT["sm"]]
        if j == 0 and OPT["ep"]: smfs = {0: [], 1: [], 2: [], 3: [3, 4]}
        if trans:
            E = vQA; RL = E; VOO = E + 5; MX = E + 6; TB = [E + 8, E + 16]; CT = E + 24; PK = [E + 4 * k for k in range(8 if hv else 6, 20)]
            if hv: PK = PK[4:]; CU = [E + 32, E + 40]
            if OPT["ov"]:
                E = vQA + 64; RL = E; VOO = E + 5; MX = E + 6; TB = [E + 8, E + 8]; CT = vQA + 56; CU = [vQA + 48, vQA + 48]
            assert OPT["ov"] or not OPT["ob"]
            NB = MX
            if OPT["ob"]:
                MX = vT
                s.add([V("v_mov_b32", f"v{vQA+28+r}", sB[1]) for r in range(4)])
            s.pki = 0; RLn = lambda n: RL + n
            if OPT["tl"]:
                RLn = lambda n: E + n if n < 2 else vQA + 22 + n
                NB = E + 2; RA = E + 3; WA = E + 4; GA = vT; MX = vQA
                s.add(s.half_addr(WA, RA, GA, X1 + 2048, vQA + 2, vQA + 3))
            else: s.add(s.voo_calc(VOO, MX))
            if hv: s.add(s.cmb_pre(CT, X1))
        if j == 30: s.tail_pre()
        for q in range(4):
            vbuf = aK if (j == 0 and q % 2 == 0) else aV
            def cinit(n):
                if not OPT["ob"]: return "0"
                if j == 0: return ("a", aQB, 4)
                return ("a", 0, 4) if OP(1, n, 0)[0] == "a" else ("v", vQA + 28, 4)
            rd, pvm = s.pvgroup(j, q, [3, 4] if j == 0 and OPT["ep"] else [0, 1, 2, 3, 4], vbuf, cinit)
            s.add(rd)
            cz = (b % 16 == 0 and q == 0)
            if j == 0:
                work = [(4, t, s.KF(1, t), None) for t in ([[0, 1], [2], [3], []] if not hq else [[0, 1], [], [], []])[q]]
            elif j == 30:
                work = [(4, q, s.KT(q), s.PT[0])] if not (hq and q >= 2) else []
            else: work = [(n, s.tq(b, q), (lambda ks: ("a", aK + 4 * ks, 4)), None) for n in range(4 if hq and s.tq(b, q) >= 2 else 5)]
            ch = []; sqs = []
            for n, t, kf, pb in work:
                if j in (0, 30): sq = Sx(s.sc % 5); s.sc += 1
                else: sq = Sx(n)
                sqs.append(sq); ch += s.chain(p, n, sq, kf, cz)
            s.add(ch); m0 = (ch + pvm)[0]
            if OPT["vb"] and j not in (0, 30):
                for k, i in enumerate([x for x in rd if x.k == "ds"]): s.hint(i, m0, -6 + k); s.hint(i, m0, -5 + k, "dlm")
                for k, i in enumerate(getattr(s, "lastk", [])): s.hint(i, m0, -10 + k - (OPT["vb"] - 1)); s.hint(i, m0, -9 + k - (OPT["vb"] - 1), "dlm")
            if j == 0 and q == 0 and OPT["ob"]: s.add([V("v_accvgpr_write_b32", f"a{aQB+r}", sB[0]) for r in range(4)])
            if q == 0:
                s.bstart[j] = m0
                if j in s.stamp_at: s.stamp(m0)
                lag = 0
                if s.half[0] and not s.half[1]: lag = min(OPT["lagmax"], (16 * (j if j <= 15 else 31 - j) * OPT["lagc"]) // 100)
                bat = []
                if j == 0: bat.append((s.dma("K", 3, gate="D-1") + s.dma("V", 2, gate="D-1"), OPT["l0"])); lag = OPT["l1"]
                if j == 1: lag = OPT["l2"]
                if j == 2: lag = OPT["l3"]
                dl = []
                if j + 4 <= 31: dl += s.dma("K", j + 4, gate=f"D{j-1}")
                if j + 3 <= 31: dl += s.dma("V", j + 3, gate=f"D{j-1}")
                bat.append((dl, lag))
                for dl, lag in bat:
                    for k, i in enumerate([x for x in dl if x.k == "vmem"]):
                        s.hint(i, m0, lag + 30 + 2 * k, "dlm")
                        if lag: s.hint(i, m0, lag - 20)
                    s.add(dl)
            qlen = len(ch) + len(pvm) + 1
            if OPT["spf"] and (q == 1 or (OPT["spf"] > 1 and q == 3) or OPT["spf"] > 2):
                for i in (raw("s_getpc_b64 s[40:41]", w=["s40"]), raw(f"s_load_dword s42, s[40:41], {OPT['spd']}", r=["s40"])):
                    s.hint(i, m0, 8); s.hint(i, m0, 12, "dlm"); s.add(i)
            k = 0
            for (n, t, kf, pb), sq in zip(work, sqs):
                if cz: s.add(s.rowmax(n, sq, f"v{MX}", f"v{MX+1}"))
                l = s.expcvt(b % 2, n, t, sq, pb)
                for i in l:
                    if i.k == "trans" and j not in (0, 30) and OPT["eh"]: s.hint(i, m0, OPT["e0"] + (k * qlen) // (4 * len(work))); k += 1
                s.add(l)
            if q == 3 and j < 30:
                opn = [f"K{j+2}", f"V{j+1}"] + (["V31"] if j == 29 else [])
                cm = trans and hv
                kw = dict(gate=f"D{j}", extra_need=["cw"] if cm else [], extra_w=["cmb"] if cm else [], extra_r=["cgive"] if cm else [])
                if j == 0:
                    bl = s.barrier(["V0"], opn, **kw); s.hint(bl[0], m0, 0); s.add(bl)
                else: s.add(s.sync([f"K{b}", f"V{j}"], opn, m0, off_bar=len(ch) - 3, off_rd=OPT["flr"] - (20 - len(ch)), **kw))
            n0 = len(s.prog)
            if j < 30:
                if q < 3 and j > 0:
                    for ks in range(4): s.add(s.kread(("a", aK + 4 * ks, 4), b, s.tq(b, q + 1), ks))
                elif q == 3:
                    for ks in range(4): s.add(s.kread(("a", aK + 4 * ks, 4), b + 1, s.tq(b + 1, 0), ks))
            s.lastk = [x for x in s.prog[n0:] if x.k == "ds"]
            if trans and q == 0:
                s.add([s.smf(j, n) for n in range(5)])
                for n in range(4 if hv else 5): s.add(s.ep_l(pv, n, RLn(n), MX))
            s.add(pvm)
            if not trans: s.add([s.smf(j, n) for n in smfs[q]])
            if trans:
                if hv and q == 1: s.add(s.cmb_give(pv, CT))
                if q == 1: s.add([V("v_accvgpr_write_b32", f"a{aL+r}", 0) for r in range(10)])
            if trans and OPT["tl"]:
                tb = TB[0]; XB = [0] if hv else [0, X0 - 2048, X0]
                def half(n, H, rb, dl, body=None):
                    X = XB[s.pki % len(XB)]; s.pki += 1
                    put = lambda D, t: s.half_put(D, t, [t, t + 2], WA, X, [])
                    if body: l = body(put)
                    else:
                        l = s.nbr(pv, NB, RLn(n))
                        for D in (2 * H, 2 * H + 1):
                            l += [V("v_accvgpr_read_b32", f"v{tb+r}", f"a{aO+32*n+8*D+r}") for r in range(8)]
                            for r in range(0, 8, 2): l += fma2(tb + r, tb + r, RLn(n), NB)
                            l += put(D, tb)
                    l += s.half_out(pv, n, H, [rb, rb + 4], RA, GA, X, OPT["o0"])
                    for i in l[-2:]: s.hint(i, s.bstart[15], dl, "dlm")
                    s.add(l)
                urg = [3, 2] if hv else [4, 3, 2]
                if q == 1:
                    for k, n in enumerate([0] + urg):
                        half(n, 0, vQA + 8 + 8 * (k % 2), OPT["h0"] + OPT["h1"] * k)
                        if n == 0 and OPT["ob"]: s.add([V("v_accvgpr_write_b32", f"a{r}", sB[1]) for r in range(4)])
                if q == 3:
                    for k, n in enumerate(urg): half(n, 1, vQA + 16 if hv else vQA + 56, OPT["h2"] + OPT["h3"] * k)
                    if hv: half(4, 1, tb, OPT["h2"] + OPT["h3"] * 2, body=lambda put: s.cmb_take(pv, CT, CU, TB, put))
                    for k, (n, H) in enumerate(((0, 1), (1, 0), (1, 1))): half(n, H, tb, 330 + OPT["hd"] * (k + 1))
            if trans and not OPT["tl"]:
                def quad(n, D, tb, pkq, dl, nb=None):
                    l = [V("v_accvgpr_read_b32", f"v{tb+r}", f"a{aO+32*n+8*D+r}") for r in range(8)]
                    if nb is not None:
                        for i in l: s.hint(i, s.bstart[15], nb)
                    l += s.nbr(pv, NB, RL + n)
                    for r in range(0, 8, 2): l += fma2(tb + r, tb + r, RL + n, NB)
                    l += s.ep_store(pv, n, D, tb, pkq, VOO, OPT["o0"]); s.hint(l[-1], s.bstart[15], dl, "dlm"); s.hint(l[-1], s.bstart[15], dl - 4); s.add(l)
                for n in reversed(range(2 if OPT["ov"] else 0, 4 if hv else 5)):
                    pkq = (vQA + 8 * q + [0, 4, 32][n - 2]) if OPT["ov"] else PK[s.pki % len(PK)]
                    if OPT["ob"] and pkq == vQA + 28: pkq = TB[0] if hv else vQA + 60
                    quad(n, q, TB[s.pki % 2], pkq, (OPT["u0"] + (OPT["u1"] if not hv else OPT["u2"]) * s.pki) if OPT["ov"] else 80 + OPT["sdl"] * s.pki); s.pki += 1
                if OPT["ob"] and q == 0:
                    quad(0, 0, TB[0], vQA + 36, OPT["u0"] + (OPT["u1"] if not hv else OPT["u2"]) * s.pki); s.pki += 1
                    s.add([V("v_accvgpr_write_b32", f"a{r}", sB[1]) for r in range(4)])
                if hv and q == 3:
                    l = s.cmb_take(pv, CT, CU, TB, lambda D, t: s.ep_store(pv, 4, D, t, t, VOO, OPT["o0"]))
                    for k, i in enumerate([x for x in l if x.k == "vmem"]):
                        dl = OPT["u0"] + OPT["u2"] * (s.pki + k) if OPT["ov"] else 80 + OPT["sdl"] * (s.pki + k)
                        s.hint(i, s.bstart[15], dl, "dlm"); s.hint(i, s.bstart[15], dl - 4)
                    s.add(l)
                if q == 3 and OPT["ov"]:
                    for k in range(OPT["ob"], 8): quad(k // 4, k % 4, TB[0], TB[0], 330 + OPT["ddl"] * (k + 1 - OPT["ob"]))
            if q == 1 and j in s.stage: s.add(s.stage[j](m0))

    def plan_stage(s):
        s.stage = {}
        def g(m):
            o = []
            def ld(f, dst, k=0):
                t, oo = s.rowoff(1, f // 4)
                i = bload(dst, f"v{vG}", sQ, t, (f % 4) * 64, mod=MODS[OPT["q"]]); i.cmt = "strided"; s.hint(i, m, (k // 2) * OPT["sg1"])
                return oo + [i]
            def sc(f, src):
                d = Q(1, f // 4, f % 4); l = []
                for r in range(4):
                    if src[0] == "a": l += [V("v_accvgpr_read_b32", f"v{vT+1}", f"a{src[1]+r}")] + s.scale(f"v{vT+1}", f"a{d[1]+r}", vT)
                    else: l += s.scale(f"v{src[1]+r}", f"{d[0]}{d[1]+r}", vT)
                return l
            land = lambda f: ("v", vQB + 4 * (f + 1), 4) if f < 8 else Q(1, f // 4, f % 4)
            for f in range(12): o += ld(f, land(f), f)
            for f in range(0, 8, 2): o += sc(f, land(f)) + sc(f + 1, land(f + 1)) + ld(12 + f, land(12 + f)) + ld(13 + f, land(13 + f))
            for f in range(8, 20): o += sc(f, land(f))
            return o
        s.stage[OPT["sg0"]] = g

    def tail_pre(s):
        hv = s.half[1]; Z = ("a", 0) if OPT["ov"] else ("v", vQA)
        s.KT = lambda t: (lambda ks: ("a", aK + 4 * ks, 4) if t == 0 else (("v", vP + 40 + 16 * (t - 1) + 4 * ks, 4) if t < 3 else (Z[0], Z[1] + 48 + 4 * ks, 4)))
        s.VT = lambda dt, ks: (Z[0], Z[1] + 8 * dt + 4 * ks, 4) if dt < 6 else ("a", aV + 8 * (dt - 6) + 4 * ks, 4)
        s.PT = [vP + 72, 236]
        for t in range(1, 4):
            for ks in range(4): s.add(s.kread(s.KT(t)(ks), 31, t, ks))
    def half_addr(s, WA, RA, GA, base, t0, t1):
        t0, t1 = f"v{t0}", f"v{t1}"
        a = [V("v_lshrrev_b32", t0, 4, f"v{vG}"), V("v_and_b32", t0, "0x70", t0), V("v_lshrrev_b32", t1, 1, f"v{vG}"),
             V("v_xor_b32", t0, t0, t1), V("v_add_u32", t0, sW4K, t0), V("v_add_u32", f"v{WA}", base, t0)]
        a += [V("v_xor_b32", f"v{WA+k}", 32 * k, f"v{WA}") for k in range(1, 4)]
        a += s.lane16(t0) + [V("v_add_u32", t1, sW4K, t0), V("v_add_u32", f"v{RA}", base, t1)]
        a += [V("v_lshrrev_b32", t1, 3, t0), V("v_xor_b32", t1, t1, t0), V("v_and_b32", t1, "0x70", t1), V("v_lshrrev_b32", t0, 7, t0), V("v_lshl_add_u32", f"v{GA}", t0, 8, t1)]
        return a
    def half_put(s, D, tb, pk, WA, X, gate):
        o = []; ws = []
        for h in range(2):
            dt = (2 * D + h) % 4
            o += [V("v_cvt_pk_bf16_f32", f"v{pk[h]+r}", f"v{tb+4*h+2*r}", f"v{tb+4*h+2*r+1}") for r in range(2)]
            w = ds_write("ds_write_b64", f"v{WA+dt}", ("v", pk[h], 2), X); w.xr = set(gate); w.xw = {f"Xd{X}_{dt}"}; ws.append(w)
        return o + ws
    def half_out(s, p, n, H, rb, RA, GA, X, mod):
        if s.half[p]: t, o = s.rowoff(p, n, sD1 if H else sD0); off = 0
        else: t, o = s.rowoff(p, n); off = 128 * H
        for r in range(2):
            i = ds_read("ds_read_b128", ("v", rb[r], 4), f"v{RA}", X + r * 1024); i.xr = {f"Xd{X}_{dt}" for dt in range(4)}; o.append(i)
        return o + [bstore(("v", rb[r], 4), f"v{GA}", sO, t, off + r * 2048, mod=MODS[mod]) for r in range(2)]
    def tail(s):
        j = 31; hv = s.half[1]
        for dt in range(8):
            for ks in s.vks(j, dt, [0, 1]): s.add(s.vread(s.VT(dt, ks), j, dt, ks))
        E = vQA + 64
        WA = E; RA = E + 4; GA = E + 5; VOO = E + 7; RL = E + 8; TMP = E + 12
        CT = 244; CU = 220
        F = vP
        TB = [F, F + 8]; PKD = [F + 16 + 2 * k for k in range(4)]; RB = [F + 24 + 4 * k for k in range(4)]
        a = s.half_addr(WA, RA, GA, VB, TMP, TMP + 1)
        for i in a: s.hint(i, s.bstart[28], 0)
        s.add(a)
        order = [4, 3, 2, 1, 0]
        if hv: s.add(s.cmb_pre(CT, KB))
        k2 = 0
        for k, n in enumerate(order):
            pb = s.PT[k % 2]
            ml = [[s.smf(j, n, pb)], [], [], []]
            for dt in range(8):
                kss = [0] if hv and n == 4 else ([0, 1] if dt % 2 == 0 else [1, 0])
                ml[dt // 2] += [mfma(OP(1, n, dt), s.VT(dt, ks), ("v", pb + 4 * ks, 4), OP(1, n, dt)) for ks in kss]
            if k == 0 and OPT["stm"] != 5: s.stamp(ml[0][0])
            for x in ["q0p0q1p1q2p2q3p3", "p0p1p2p3q0q1q2q3", "p0p1q0p2p3q1q2q3", "p0q0p1q1p2q2p3q3", "p0p1q0q1p2p3q2q3"][OPT["to"]].replace("p", " p").replace("q", " q").split():
                t = int(x[1])
                if x[0] == "p": s.add(ml[t])
                elif k < 4:
                    n2 = order[k + 1]; sq = Sx(s.sc % 5); s.sc += 1
                    s.add(s.chain(1, n2, sq, s.KT(t), False), s.expcvt(1, n2, t, sq, s.PT[(k + 1) % 2]))
            lastm = ml[3][-1]
            if hv and n == 4:
                s.add(s.cmb_give(1, CT))
                s.add(s.sync([], [], lastm, extra_need=["cw"], extra_w=["cmb"], extra_r=["cgive"], off_bar=24, off_rd=30))
                continue
            rl = RL + 2 * (k % 2)
            s.add(s.ep_l(1, n, rl, TMP + 2) + s.nbr(1, rl + 1, rl))
            XB = [0, 2048, 16384, 18432]
            for D in range(4):
                tb = TB[D % 2]; X = XB[k2 % 4]; ep = []
                if OP(1, n, 0)[0] == "v": tb = OP(1, n, 2 * D)[1]
                else: ep += [V("v_accvgpr_read_b32", f"v{tb+r}", f"a{aO+32*n+8*D+r}") for r in range(8)]
                for r in range(0, 8, 2): ep += fma2(tb + r, tb + r, rl, rl + 1)
                ep += s.half_put(D, tb, PKD[2 * (D % 2):], WA, X, ["D29"])
                if D % 2:
                    ep += s.half_out(1, n, D // 2, RB[2 * (k2 % 2):], RA, GA, X, OPT["o1"]); k2 += 1
                    for i in ep[-2:]: s.hint(i, ml[D][-1], OPT["tdl"], "dlm")
                s.add(ep)
            if hv and k == 1:
                X = XB[k2 % 4]
                s.add(s.cmb_take(1, CT, [CU, CU + 8], TB, lambda D, t: s.half_put(D, t, PKD[2 * (D % 2):], WA, X, ["D29"])), s.half_out(1, 4, 1, RB[2 * (k2 % 2):], RA, GA, X, OPT["o1"])); k2 += 1

    def build(s):
        s.bstart = {}; s.stamp_at = {0, 4, 8, 15, 16, 18, 24} if OPT["stamps"] else set()
        s.nstamp = 1
        if OPT["stm"] == 1: s.stamp_at = {0}; s.nstamp = 2
        if OPT["stm"] == 2: s.stamp_at = {0, 1, 2, 3, 4, 5, 6}
        if OPT["stm"] == 5: s.stamp_at = {0, 30}
        if OPT["stm"] == 4: s.stamp_at = {0, 22, 28}
        if OPT["stm"] == 3: s.stamp_at = {0, 15, 16, 17, 18, 19, 30}
        s.plan_stage()
        s.start()
        for j in range(31): s.block(j)
        n0 = len(s.prog)
        s.tail()
        for k, m in enumerate([i for i in s.prog[n0:] if ismf(i)]): m.lg = OPT["gt"] if k % OPT["gp_"] == 0 else 0
        ms = [i for i in s.prog if ismf(i)]
        for m in ms[ms.index(s.bstart[15]):ms.index(s.bstart[17]) - 40]: m.lg = OPT["gr"]
        for k, m in enumerate(ms): m.mi = k
        for i, m, off, attr in s.hints: setattr(i, attr, ms[max(0, min(len(ms) - 1, m.mi + off))])
        out = schedule(s.prog, verbose=True, name=s.tag)
        if OPT["verbose"]:
            prev = None
            for j in sorted(s.bstart):
                if prev is not None: print(f"  blk {j-1}: {s.bstart[j].st - prev}", end="")
                prev = s.bstart[j].st
            print(f"\n  start {s.bstart[0].st}  tail from blk30 {out[-1].st - prev}")
        return out

def setup_common():
    t0, t1, w = "s34", "s35", "s3"
    R = Role("AA", "")
    l, m, g, a, b, c = "v16", "v17", "v18", "v19", "v20", "v21"
    o = [raw("s_cmp_lt_u32 s2, 256", w=["scc"]), br("s_cbranch_scc1", "Lgo"), raw("s_endpgm"), label("Lgo")]
    if OPT["stamps"]: o += [raw("s_memtime s[44:45]"), raw("s_memrealtime s[46:47]")]
    if OPT["rb"] != 3:
        o += [S("s_lshr_b32", t0, "s2", OPT["rb"] - 3), S("s_xor_b32", t0, t0, "s2"), S("s_and_b32", t0, t0, 8), S("s_mul_i32", t0, t0, 1 + (1 << (OPT["rb"] - 3))), S("s_xor_b32", "s2", "s2", t0)]
    o += [raw("s_load_dwordx4 s[8:11], s[0:1], 0"), raw("s_load_dwordx4 s[12:15], s[0:1], 16"),
          V("v_lshrrev_b32", "v1", 6, "v0"), V("v_and_b32", l, 63, "v0"), V("v_and_b32", m, 15, "v0"),
          V("v_readfirstlane_b32", w, "v1"), V("v_lshrrev_b32", g, 4, l)]
    if OPT["pf"]:
        o += [raw("s_getpc_b64 s[36:37]", w=["s36", "s37"]), label("Lpf"),
              S("s_lshr_b32", t0, "s2", 4), S("s_lshl_b32", t0, t0, 13), S("s_bitcmp1_b32", "s2", 3), S("s_cselect_b32", t1, "LroleY-Lpf", 0), S("s_add_u32", t0, t0, t1),
              V("v_lshl_add_u32", a, "v0", 5, t0), V("v_min_u32", a, "Lcodeend-Lpf", a), V("v_mov_b32", "v25", "s37"),
              I("v_add_co_u32 v24, vcc, s36, v19", "valu", w=["v24", "vcc"], r=["s36", "v19"]), I("v_addc_co_u32 v25, vcc, 0, v25, vcc", "valu", w=["v25", "vcc"], r=["v25", "vcc"]),
              I("global_load_dword v253, v[24:25], off", "vmem", w=["v253"], r=["v24", "v25"])]
    o += [V("v_lshlrev_b32", a, 1, g), V("v_xor_b32", a, a, m), V("v_lshlrev_b32", a, 4, a), V("v_lshl_add_u32", f"v{vDA}", g, 8, a), V("v_xor_b32", f"v{vDB}", 128, f"v{vDA}")]
    if OPT["ob"]: o += [V("v_and_b32", a, 31, l), V("v_lshlrev_b32", a, 4, a), V("v_lshrrev_b32", b, 5, l), V("v_lshl_add_u32", "v22", b, 18, a)]
    o += [S("s_lshl_b32", sW4K, w, 12), S("s_mov_b32", sOFF, sW4K), S("s_mov_b32", sOFV, sW4K)]
    o += [S("s_mul_i32", "s28", w, 5 * 4096), S("s_add_u32", "s29", "s28", 4 * 4096)]
    if OPT["ab"]: o += [S("s_lshl_b32", "s30", w, 14), S("s_add_u32", "s30", "s30", 20 * 4096), S("s_and_b32", "s31", sW4K, "0x2000"), S("s_lshr_b32", "s31", "s31", 1), S("s_add_u32", "s31", "s31", 36 * 4096)]
    else: o += [S("s_add_u32", "s30", "s28", 18 * 4096), S("s_add_u32", "s31", "s28", 22 * 4096)]
    o += [S("s_bitcmp1_b32", "s2", 3), S("s_cselect_b64", ("s", 24, 2), ("s", 30, 2), ("s", 28, 2)), S("s_cselect_b64", ("s", 26, 2), ("s", 28, 2), ("s", 30, 2))]
    o += [S("s_and_b32", t0, "s2", 7), S("s_lshr_b32", t1, "s2", 4), S("s_lshl_b32", t0, t0, 4), S("s_add_u32", t0, t0, t1),
          S("s_mul_i32", t1, t0, 2 * HEADQ), S("s_lshl_b32", t0, t0, 19), S("s_mov_b32", "s6", 2 * HEADQ), S("s_mov_b32", "s7", "0x00020000")]
    o += [raw("s_waitcnt lgkmcnt(0)", k="salu")]
    if OPT["stamps"] and OPT["stm"] == 1: o += [raw("s_memtime s[48:49]"), raw("s_memrealtime s[50:51]")]
    o += [S("s_add_u32", "s4", "s8", t1), S("s_addc_u32", "s5", "s9", 0),
          S("s_add_u32", "s8", "s10", t0), S("s_addc_u32", "s9", "s11", 0), S("s_mov_b32", "s10", 2 * HEADK), S("s_mov_b32", "s11", "0x00020000")]
    srd2 = [S("s_add_u32", "s16", "s14", t1), S("s_addc_u32", "s17", "s15", 0), S("s_mov_b32", "s18", 2 * HEADQ), S("s_mov_b32", "s19", "0x00020000"),
          S("s_add_u32", "s12", "s12", t0), S("s_addc_u32", "s13", "s13", 0), S("s_mov_b32", "s14", 2 * HEADK), S("s_mov_b32", "s15", "0x00020000")]
    vl = [bload(("v", 24 + 4 * k, 4), "v22", sV, 0, 512 * k, mod=" nt") for k in range(2)] if OPT["ob"] else []
    parts = [R.qdma(0), R.dma("K", 0), R.dma("K", 1)] if OPT["so"] else [R.dma("K", 0), R.dma("K", 1), R.qdma(0)]
    parts.insert(OPT["bp"], srd2 + vl)
    for x in parts: o += x
    if OPT["stamps"]: o += [S("s_lshl_b32", "s100", "s2", 2), S("s_add_u32", "s100", "s100", w), S("s_mov_b32", "s101", "s2")] + ([S("s_mov_b32", "s95", 0)] if OPT["stm"] == 4 else [])
    o += [S("s_add_u32", "s26", "s26", HEADQ), S("s_add_u32", "s27", "s27", HEADQ)]
    o += [S("s_add_u32", "s33", sW4K, X0), V("v_lshlrev_b32", a, 4, g), V("v_lshl_add_u32", f"v{vG}", m, 8, a)]
    o += [V("v_and_b32", a, 7, m), V("v_lshlrev_b32", a, 1, a), V("v_xor_b32", a, a, g), V("v_lshlrev_b32", a, 4, a), V("v_lshl_add_u32", a, m, 8, a)]
    for ks in range(4):
        o += [V("v_xor_b32", b, 64 * ks, a), V("v_add_u32", f"v{vKA+ks}", KB, b), V("v_add_u32", f"v{R.TA+ks}", "s33", b), V("v_add_u32", f"v{R.TA+4+ks}", KB + 49152 - X0, f"v{R.TA+ks}")]
    o += [V("v_lshrrev_b32", a, 2, l), V("v_and_b32", b, 7, a), V("v_lshlrev_b32", b, 5, b), V("v_and_b32", c, 3, l), V("v_lshlrev_b32", c, 3, c),
          V("v_xor_b32", b, b, c), V("v_lshl_add_u32", b, a, 8, b), V("v_add_u32", f"v{vVA}", VB, b)]
    o += [V("v_xor_b32", f"v{vVA+dt}", 32 * dt, f"v{vVA}") for dt in range(1, 8)]
    o += [S("s_lshl_b32", t0, w, 8), S("s_add_u32", t0, t0, FLAG), V("v_lshl_add_u32", f"v{vFA}", l, 2, t0), V("v_mov_b32", f"v{vFE}", 0)]
    fi = ds_write("ds_write_b32", f"v{vFA}", f"v{vFE}", 0); fi.wt = {"cw"}; o.append(fi)
    o += [V("v_accvgpr_write_b32", f"a{aL+r}", 0) for r in range(12)]
    o += [V("v_and_b32", a, 2, m), V("v_cmp_eq_u32", "vcc", 0, a), V("v_mov_b32", b, "0x3f803f80"), V("v_cndmask_b32", a, 0, b, "vcc"), V("v_xor_b32", b, a, b)]
    if OPT["one0"]: o += [V("v_cmp_gt_u32", "vcc", 4, m), nop(2), V("v_cndmask_b32", a, 0, a, "vcc"), V("v_cndmask_b32", b, 0, b, "vcc")]
    o += [V("v_accvgpr_write_b32", f"a{aONE+i}", a) for i in range(4)] + [V("v_accvgpr_write_b32", f"a{aONE+4+i}", b) for i in range(4)]
    o += [V("v_and_b32", a, 1, m), V("v_cmp_eq_u32", "vcc", 1, a), V("v_mov_b32", b, "0x44444444"), V("v_mov_b32", c, "0xeeeeeeee"), V("v_cndmask_b32", f"v{vIDX}", b, c, "vcc")]
    o += [S("s_mov_b32", sC, hex(CSCALE)), S("s_mov_b32", sC2, hex(CSCALE)), S("s_mov_b32", sMASK, "0xffff0000"), S("s_mov_b32", sTHR, hex(OPT["thr"])),
          S("s_mov_b64", sBAD[0], 0), S("s_mov_b64", sBAD[1], 0)]
    o += [S("s_and_b32", sD0, w, 1), S("s_lshl_b32", sFK, sD0, 13), S("s_lshl_b32", sD0, sD0, 7), S("s_or_b32", sFV, sFK, sD0)]
    if OPT["ob"]:
        x = [f"v{24+k}" for k in range(8)]; y = [f"v{32+k}" for k in range(8)]
        bo = [wait(need=x)] + [V("v_max_f32_e64", y[k], f"|{x[k]}|", f"|{x[4+k]}|") for k in range(4)]
        bo += [V("v_lshlrev_b32", x[k], 16, x[k]) for k in range(8)] + [V("v_max_f32_e64", y[4+k], f"|{x[k]}|", f"|{x[4+k]}|") for k in range(4)]
        bo += [swap("v_permlane16_swap_b32", y[k], y[4+k]) for k in range(4)] + [V("v_max_f32", y[k], y[k], y[4+k]) for k in range(4)]
        bo += [V("v_min3_f32", y[0], y[0], y[1], y[2]), V("v_min_f32", y[0], y[0], y[3])]
        bo += [V("v_min_f32_dpp", y[0], y[0], y[0], mod=f" row_ror:{k} row_mask:0xf bank_mask:0xf") for k in (8, 4, 2, 1)]
        bo += [V("v_and_b32", y[0], "0x7f800000", y[0]), V("v_min_f32", y[0], f32(2.0 ** 100), y[0]), V("v_mul_f32", y[0], f32(1.5 * 2.0 ** (OPT["kap"] - OPT["dlt"])), y[0]), nop(1)]
        bo += [V("v_readlane_b32", "s40", y[0], 0), V("v_readlane_b32", "s36", y[0], 16), V("v_readlane_b32", "s41", y[0], 32), V("v_readlane_b32", "s37", y[0], 48), nop(2),
               S("s_min_u32", "s40", "s40", "s36"), S("s_min_u32", "s41", "s41", "s37")] + [V("v_accvgpr_write_b32", f"a{28+r}", "s40") for r in range(4)]
    else: bo = []
    if OPT["bq"]: o += bo
    if not OPT["so"] or OPT["sd"]: o += R.qdma(1)
    if not OPT["bq"]: o += bo
    o += [S("s_bitcmp1_b32", "s2", 3), br("s_cbranch_scc1", "LroleY")]
    return o

def setup_role(R, k):
    o = [S("s_xor_b32", sD1, sD0, 128)]
    if R.half[0]:
        o += [V("v_xor_b32", f"v{vKA+ks}", sFK, f"v{vKA+ks}") for ks in range(4)] + [V("v_xor_b32", f"v{vVA+dt}", sFV, f"v{vVA+dt}") for dt in range(8)]
    return o

def finish(R, k):
    o = []
    if OPT["stamps"]:
        n = R.nstamp
        o += [raw(f"s_memtime s[{44+4*n}:{45+4*n}]"), raw(f"s_memrealtime s[{46+4*n}:{47+4*n}]"), raw("s_waitcnt vmcnt(0) lgkmcnt(0)")]; n += 1
        o += [raw(f"s_memtime s[{44+4*n}:{45+4*n}]"), raw(f"s_memrealtime s[{46+4*n}:{47+4*n}]"), raw("s_waitcnt lgkmcnt(0)")]; n += 1
        assert n <= 13
        if OPT["pi"] >= 0:
            i, j, kk = OPT["pi"], OPT["pj"], OPT["pk_"]
            if not OPT["pall"]: o += [raw("s_and_b32 s101, s101, 0xf7"), raw("s_cmp_lg_u32 s101, 100"), raw(f"s_cbranch_scc1 Lfin{k}")]
            o += [raw(f"s_sub_u32 s36, s{44+4*j+2*kk}, s{44+4*i+2*kk}"), raw("s_mul_i32 s36, s36, 10") if kk else raw("s_lshr_b32 s36, s36, 1"),
                  raw("s_min_u32 s36, s36, 200000"), raw("s_memrealtime s[38:39]"), raw("s_waitcnt lgkmcnt(0)")] + ([raw(f"s_mov_b32 s36, {OPT['pfix']}"), raw("s_mov_b32 s38, s46")] if OPT["pfix"] else []) + [label(f"Lspin{k}"), raw("s_memrealtime s[40:41]"), raw("s_waitcnt lgkmcnt(0)"),
                  raw("s_sub_u32 s37, s40, s38"), raw("s_cmp_lt_u32 s37, s36"), raw(f"s_cbranch_scc1 Lspin{k}")]
        else:
            o += [raw("; STAMPS"), raw("s_load_dwordx2 s[40:41], s[0:1], 40"), raw("v_mov_b32 v16, 0")]
            for x in range(n): o += [raw(f"v_writelane_b32 v16, s{44+4*x}, {2*x}"), raw(f"v_writelane_b32 v16, s{46+4*x}, {2*x+1}")]
            o += [raw(f"v_writelane_b32 v16, {n}, 63"), raw("v_writelane_b32 v16, s95, 62"), raw("s_lshl_b32 s100, s100, 8"), raw("v_mbcnt_lo_u32_b32 v17, -1, 0"), raw("v_mbcnt_hi_u32_b32 v17, -1, v17"), raw("v_lshlrev_b32 v17, 2, v17"),
                  raw("s_waitcnt lgkmcnt(0)"), raw("s_mov_b32 s42, 0x100000"), raw("s_mov_b32 s43, 0x00020000"), raw("buffer_store_dword v16, v17, s[40:43], s100 offen"), raw("s_waitcnt vmcnt(0)")]
    o += [label(f"Lfin{k}")]
    if OPT["slow"]: o += [raw("s_or_b64 s[36:37], s[30:31], s[32:33]"), raw("s_cbranch_scc1 Lslow")]
    o += [raw("s_endpgm")] + R.stubs
    return o

MACROS = """.macro qa d,a,b,c
v_mfma_f32_16x16x32_bf16 v[\\d:\\d+3], a[\\a:\\a+3], v[\\b:\\b+3], v[\\c:\\c+3]
.endm
.macro qb d,a,b,c
v_mfma_f32_16x16x32_bf16 v[\\d:\\d+3], a[\\a:\\a+3], a[\\b:\\b+3], v[\\c:\\c+3]
.endm
.macro pv d,a,b
v_mfma_f32_16x16x32_bf16 a[\\d:\\d+3], a[\\a:\\a+3], v[\\b:\\b+3], a[\\d:\\d+3]
.endm
.macro pw d,a,b
v_mfma_f32_16x16x32_bf16 v[\\d:\\d+3], a[\\a:\\a+3], v[\\b:\\b+3], v[\\d:\\d+3]
.endm
.macro ex r
v_exp_f32 v\\r, v\\r
.endm
.macro cv d,a,b
v_cvt_pk_bf16_f32 v\\d, v\\a, v\\b
.endm
.macro lk d,a,o
ds_read_b128 a[\\d:\\d+3], v\\a offset:\\o
.endm
.macro lv d,a,o
ds_read_b64_tr_b16 a[\\d:\\d+1], v\\a offset:\\o
.endm
"""
def compact(txt):
    M = "    v_mfma_f32_16x16x32_bf16 "
    txt = re.sub(M + r"v\[(\d+):\d+\], a\[(\d+):\d+\], v\[(\d+):\d+\], v\[\1:\d+\]", r"pw \1,\2,\3", txt)
    txt = re.sub(M + r"v\[(\d+):\d+\], a\[(\d+):\d+\], v\[(\d+):\d+\], v\[(\d+):\d+\]", r"qa \1,\2,\3,\4", txt)
    txt = re.sub(M + r"v\[(\d+):\d+\], a\[(\d+):\d+\], a\[(\d+):\d+\], v\[(\d+):\d+\]", r"qb \1,\2,\3,\4", txt)
    txt = re.sub(M + r"a\[(\d+):\d+\], a\[(\d+):\d+\], v\[(\d+):\d+\], a\[\1:\d+\]", r"pv \1,\2,\3", txt)
    txt = re.sub(r"    v_exp_f32 v(\d+), v\1\n", r"ex \1\n", txt)
    txt = re.sub(r"    v_cvt_pk_bf16_f32 v(\d+), v(\d+), v(\d+)", r"cv \1,\2,\3", txt)
    txt = re.sub(r"    ds_read_b128 a\[(\d+):\d+\], v(\d+) offset:(\d+)", r"lk \1,\2,\3", txt)
    txt = re.sub(r"    ds_read_b64_tr_b16 a\[(\d+):\d+\], v(\d+) offset:(\d+)", r"lv \1,\2,\3", txt)
    return txt.replace("\n    ", "\n")

def build():
    NOPW[0] = OPT["nw"]; TA_LIM[0] = OPT["tal"]; VM_LAT[0] = OPT["vml"]
    com = setup_common()
    body = ""
    txt = []
    for k, types in enumerate((("AB", "BA") if OPT["ab"] else ("AA", "AA"))):
        R = Role(types, "XY"[k])
        main = R.build()
        su = setup_role(R, k)
        for i in com + su: i.st = -1000
        tr = insert_waits(com + su + main)
        while fix_hazards(tr, verbose=OPT["verbose"] > 1): pass
        e = verify2(tr); assert e == 0, e
        nc = len(com)
        if OPT["loopt"]:
            tr = [i for i in tr if i.cmt != "check"]; R.stubs = []
            i0 = tr.index(R.bstart[23]); i1 = tr.index(R.bstart[27])
            tr = tr[:i0] + [raw(f"s_mov_b32 s42, {OPT['loopt']}"), label(f"Llt{k}")] + tr[i0:i1] + [raw("s_sub_u32 s20, s20, 65536"), raw("s_sub_u32 s43, s43, 65536"), raw("s_sub_u32 s42, s42, 1"), raw("s_cmp_lg_u32 s42, 0"), raw(f"s_cbranch_scc1 Llt{k}")] + tr[i1:]
        if OPT["nost"]: tr = [i for i in tr if not (i.k == "vmem" and "store" in i.t and i.st > 75000)]
        if OPT["nodsw"]: tr = [i for i in tr if not (i.k == "dsw" and "b64" in i.t and i.st > 75000)]
        if OPT["nowait"]: tr = [i for i in tr if not (i.k == "wait" and i.st > 20000)]
        if OPT["nosync"]: tr = [i for i in tr if not ("v255" in i.t and i.st > 20000)]
        if OPT["nodma"]: tr = [i for i in tr if not (i.k == "vmem" and i.ring and i.ring[1] >= 4)]
        if OPT["samekv"]:
            for i in tr:
                if i.t == "s_add_u32 s20, s20, 16384": i.t = "s_xor_b32 s20, s20, 16384"
        if OPT["nosmf"]: tr = [i for i in tr if i.tag != "smf"]
        if OPT["nocvt"]: tr = [i for i in tr if not (i.t.startswith("v_cvt_pk") and 136 <= int(i.t.split()[1][1:-1]) < 216 and i.st > 8000)]
        if OPT["nobar"]: tr = [i for i in tr if i.k != "bar"]
        if OPT["noxor"]: tr = [i for i in tr if "0x2000, " not in i.t]
        if OPT["nolds"]: tr = [i for i in tr if not (i.k == "ds" and i.ring and i.ring[1] >= 2)]
        if OPT["noexp"]: tr = [i for i in tr if "v_exp" not in i.t]
        assert all(a is b for a, b in zip(tr[:nc], com))
        txt.append("".join(i.text() for i in tr[nc:] + finish(R, k)))
        if OPT["verbose"]: print("  nops:", sum(i.nop for i in tr), "waits:", sum(i.k == "wait" for i in tr))
    slow = ""
    if OPT["slow"]:
        import slowpath
        slow = slowpath.text(sys.modules[__name__])
    body = "".join(i.text() for i in com) + txt[0] + slow + ".p2align 6\nLroleY:\n" + txt[1] + "Lcodeend:\n    s_endpgm\n" + (".fill 4096, 4, 0xbf810000\n" if OPT["spf"] else "")
    return compact(body) if OPT["compact"] else body

HEAD = f"""; flash-attention forward, B8 H32 Sq608 Sk1024 D128 bf16 (emitted by my own scheduling script)
; @launch grid=(256,1,1) block=(256,1,1) lds=163840
.amdgcn_target "amdgcn-amd-amdhsa--gfx950"
{MACROS}.text
.globl {NAME}_kernel
.p2align 8
.type {NAME}_kernel,@function
{NAME}_kernel:
"""
TAIL = f""".section .rodata,"a"
.p2align 6
.amdhsa_kernel {NAME}_kernel
  .amdhsa_next_free_vgpr 512
  .amdhsa_next_free_sgpr 102
  .amdhsa_accum_offset 256
  .amdhsa_group_segment_fixed_size 0
  .amdhsa_kernarg_size 48
  .amdhsa_user_sgpr_count 2
  .amdhsa_user_sgpr_kernarg_segment_ptr 1
  .amdhsa_system_sgpr_workgroup_id_x 1
  .amdhsa_float_denorm_mode_32 3
.end_amdhsa_kernel
"""
if __name__ == "__main__":
    open(sys.argv[1], "w").write(HEAD + build() + TAIL)
```

```python
import heapq
from collections import deque
from asmir import *

SCAL = ("salu", "wait", "bar", "nop", "br")
DS_LAT = 112
def cost(i):
    if i.k == "valu": return 4
    if i.k in ("trans", "perm"): return 8
    if i.k == "ds": return 4
    if i.k == "dsw": return 22 if "b128" in i.t else (8 if "write_b32" in i.t else 12)
    if i.k == "vmem": return 4 if "store" in i.t or "global" in i.t else 8
    return 4
IMPR = [0]; BW = [4]; NOPW = [-1000]; TA_LIM = [10**9]; VM_LAT = [0]
STC = [64]
def ta_cost(i): return 256 if i.cmt == "strided" else (STC[0] if "store" in i.t else 64)
def lat_cyc(p, c, raw):
    if p.k == "ds" and raw: return DS_LAT
    if p.k == "vmem" and raw and (p.w & c.r or (p.cmt == "slow" and c.k == "wait")): return VM_LAT[0]
    if ismf(p) and raw and not ismf(c): return 36
    return 0

class Node:
    __slots__ = ("i", "idx", "pred", "succ", "np", "dl", "rt", "t", "pos", "mi", "mate", "hard")

def schedule(prog, verbose=False, name=""):
    N = []
    lastw = {}; readers = {}
    lastm = None; lastv = {}; lastseq = None
    mi = 0; fz = {}
    for idx, i in enumerate(prog):
        n = Node(); n.i = i; n.idx = idx; n.pred = {}; n.succ = []; n.t = None; n.pos = None; n.mi = None
        R_ = i.r | i.xr; W_ = i.w | i.xw
        for r in R_:
            p = lastw.get(r)
            if p is not None: n.pred[p] = True
        for r in W_:
            p = lastw.get(r)
            if p is not None: n.pred[p] = True
            for p in readers.get(r, ()):
                if p is not n: n.pred.setdefault(p, p.i.k == "ds" and i.k == "wait")
        for r in R_: readers.setdefault(r, []).append(n)
        for r in W_: lastw[r] = n; readers[r] = []
        if ismf(i):
            if lastm is not None: n.pred.setdefault(lastm, False)
            lastm = n; n.mi = mi; i.mi = mi; mi += 1
        if i.k == "vmem":
            cl = "st" if "store" in i.t else ("dma" if "lds" in i.t else "ld")
            if cl in lastv: n.pred.setdefault(lastv[cl], False)
            lastv[cl] = n
        n.pred.pop(n, None)
        for p in n.pred: p.succ.append(n)
        n.np = len(n.pred); n.rt = 0
        n.mate = None
        if i.fuse is not None:
            o = fz.pop(id(i.fuse), None)
            if o is None: fz[id(i.fuse)] = n
            else: n.mate = o; o.mate = n
        N.append(n)
    NM_ = mi
    for n in N: n.dl = None
    for n in list(reversed(N)) * (3 if IMPR[0] & 1 else 1):
        if n.mi is not None: n.dl = n.hard = n.mi; continue
        d = h = NM_ + n.idx * 1e-6
        if n.i.dlm is not None: d = min(d, n.i.dlm.mi)
        for s in n.succ:
            l = cost(n.i) / 8.0 + lat_cyc(n.i, s.i, s.pred[n]) / 16.0
            if n.i.k in SCAL: l = 1.0
            d = min(d, s.dl - l); h = min(h, s.hard - l)
        if n.i.cmt == "asap": d = h = -1000 + n.idx * 1e-3
        if IMPR[0] & 1 and n.mate is not None and n.mate.dl is not None: d = min(d, n.mate.dl)
        n.dl = d; n.hard = h
    ms = [n for n in N if n.mi is not None]
    ready = [n for n in N if n.np == 0 and n.mi is None]
    out = []
    t = 0; pipe = 0; slot = False; last = None; cur = -1
    left = len(N); stall = 0; tm = -100; ta = 0
    def haz_ok(n):
        d = 0; k = len(out) - 1
        while k >= 0 and d < 12:
            p = out[k]
            if required(p.i, n.i) > d: return False
            d += states(p.i); k -= 1
        return True
    def haz_need(n):
        d = 0; k = len(out) - 1; need = 0
        while k >= 0 and d < 12:
            p = out[k]
            need = max(need, required(p.i, n.i) - d)
            d += states(p.i); k -= 1
        return need
    def eff_cost(n):
        i = n.i
        if i.k in SCAL: return (0 if slot else 4) + (4 if i.cmt == "two" else 0)
        c = cost(i)
        if i.k in ("ds", "dsw", "vmem"):
            if last in VALUK: c += 8
            elif last in ("ds",) and i.k == "ds": c += 4
        return c
    def issue(n):
        nonlocal t, pipe, slot, last, cur, left, stall, tm, ta
        i = n.i
        if n.mate is not None and n.mate.t is None and n.mate.np == 0 and n.mate.rt <= t and t >= tm + 28 and haz_ok(n.mate):
            o = n.mate; f = Node(); f.i = i.fuse; f.i.st = t
            for x in (n, o):
                ready.remove(x); x.t = t; left -= 1
                for s_ in x.succ:
                    s_.np -= 1; s_.rt = max(s_.rt, t)
                    if s_.np == 0 and s_.mi is None: ready.append(s_)
            out.append(f); t += 4; slot = False; last = "valu"
            return
        if n.mi is not None:
            t0 = max(t, pipe, n.rt)
            if cur >= 0: stall += t0 - pipe
            n.t = t0; pipe = t0 + (32 if i.k == "mfma8" else 16); t = t0 + (12 if i.tag == "smf" else 8)
            slot = True; last = i.k; cur = n.mi; tm = t0
        else:
            ready.remove(n)
            c = eff_cost(n); t = max(t, n.rt); n.t = t; t += c
            if i.k == "vmem": ta = max(ta, n.t) + ta_cost(i)
            if i.k == "bar": t += 8
            if i.k == "vmem" and "store" in i.t: pipe = max(pipe, t + 16)
            slot = False
            if i.k not in SCAL: last = i.k
        i.st = n.t
        out.append(n); left -= 1
        for s in n.succ:
            s.np -= 1
            s.rt = max(s.rt, n.t + lat_cyc(i, s.i, s.pred[n]))
            if s.np == 0 and s.mi is None: ready.append(s)
    while left:
        m = ms[cur + 1] if cur + 1 < NM_ else None
        m_ok = m is not None and m.np == 0
        m_rdy = m_ok and m.rt <= max(t, pipe) and haz_ok(m)
        budget0 = budget = pipe - t
        if cur >= 0 and ms[cur].i.lg: budget = max(budget, tm + 16 + ms[cur].i.lg - t)
        cand = [n for n in ready if (n.i.nb is None or n.i.nb.mi <= cur or n.dl <= cur + 1) and n.rt <= t
                and not (n.i.k == "vmem" and ta - t > TA_LIM[0] and n.hard > cur + 1)]
        cand.sort(key=lambda n: (n.dl, n.idx))
        blocked = [n for n in ready if n.dl <= cur + NOPW[0] and n.rt <= t + 48 and (n.i.nb is None or n.i.nb.mi <= cur + 2)]
        cand = [n for n in cand[:60 if IMPR[0] & 4 else 24] if haz_ok(n)]
        pick = None
        atstart = last in ("mfma", "mfma8")
        if slot:
            sc = [n for n in cand if n.i.k in SCAL]
            if sc: pick = sc[0]
        if pick is None and (atstart or m is None):
            pr = [n for n in cand if n.i.cmt == "prio"]
            if pr: pick = pr[0]
        if pick is None and cand:
            fit = [n for n in cand if eff_cost(n) <= budget and not (n.i.k == "vmem" and "store" in n.i.t and not atstart)]
            top = cand[0]
            mem = [n for n in cand if n.i.k in ("ds", "dsw", "vmem")]
            if atstart and mem and (mem[0] is top or top.i.k == "valu" or top.i.k in SCAL or (mem[0].dl <= cur + 2)):
                x = mem[0]
                if eff_cost(x) <= budget or cost(x.i) > 8 or x.dl <= cur + 2 or not m_rdy:
                    if not (top.i.k == "valu" and cost(x.i) > 4 and top.dl <= cur + 2 and x.dl > cur + 4): pick = x
            if pick is None and fit: pick = fit[0]
            if pick is None and top.dl <= cur + 1 and top.i.k not in ("ds", "dsw", "vmem"): pick = top
            if pick is None and not m_rdy: pick = top
        if IMPR[0] & 2 and pick is not None and pick.mate is not None and pick.mate.t is None and (t < tm + 28 or pick.mate.np) and cand[0].dl <= cur + 1:
            alt = [n for n in cand if n.mate is None and n.i.k in VALUK and n.dl <= pick.dl + BW[0] and (eff_cost(n) <= budget or eff_cost(pick) > budget)]
            if alt: pick = alt[0]
        if pick is None and m_rdy and blocked and budget0 >= 4:
            need = max(haz_need(n) for n in sorted(blocked, key=lambda n: n.dl)[:2]) - 1
            k = min(need, (budget0 + (4 if slot else 0)) // 4)
            if k >= 1:
                f = Node(); f.i = nop(k); f.i.st = t; out.append(f)
                t += 4 * k - (4 if slot else 0); slot = False
                continue
        if pick is not None: issue(pick)
        elif m_rdy: issue(m)
        else:
            later = [n for n in ready if n.rt > t]
            if m_ok and m.rt <= max(t, pipe):
                issue(m)
            elif (m_ok or later) and t < max([n.rt for n in later] + [m.rt if m_ok else 0]):
                t += 4; slot = False
            else:
                r = sorted(ready, key=lambda n: (n.dl, n.idx))
                assert r, "deadlock"
                issue(r[0])
    if verbose: print(f"sched {name}: {len(N)} instrs, {NM_} mfma, est cycles {max(t,pipe)}, mfma stall {stall}")
    return [n.i for n in out]

def insert_waits(seq, lq=None, vq=None):
    lq = deque() if lq is None else lq; vq = deque() if vq is None else vq
    out = []
    def retire(w):
        if w.lg is not None:
            while len(lq) > w.lg: lq.popleft()
        if w.vm is not None:
            while len(vq) > w.vm: vq.popleft()
    for i in seq:
        if i.k == "wait":
            for q, a in ((lq, "lg"), (vq, "vm")):
                lastn = -1
                for n, (o, _) in enumerate(q):
                    if (o.w | o.wt) & i.need: lastn = n
                if lastn >= 0:
                    cnt = len(q) - 1 - lastn; cur = getattr(i, a)
                    setattr(i, a, cnt if cur is None else min(cur, cnt))
            retire(i); out.append(i); continue
        touch = i.r | i.w
        for q, a, mx in ((lq, "lg", 15), (vq, "vm", 63)):
            lastn = -1
            for n, (o, _) in enumerate(q):
                if o.w & touch: lastn = n
            isq = (i.k in ("ds", "dsw")) if a == "lg" else (i.k == "vmem")
            if lastn < 0 and isq and len(q) >= mx: lastn = 0
            if lastn < 0: continue
            opos = q[lastn][1]
            pos = len(out); k = len(out) - 1; tries = 0
            while k > opos and tries < 3:
                if ismf(out[k]):
                    tries += 1
                    nxt = out[k + 1] if k + 1 < len(out) else None
                    early_ok = tries == 1 or (a == "lg" and out[k].st - q[lastn][0].st >= 96)
                    if not early_ok: break
                    if nxt is None or nxt.k not in SCAL: pos = k + 1; break
                    if nxt.k == "wait" and not nxt.need: pos = -(k + 1); break
                if out[k].k in ("label", "br"): break
                k -= 1
            apos = abs(pos)
            tpos = out[apos - 1].st if apos > 0 and out[apos - 1].st is not None else None
            if a == "lg" and tpos is not None:
                for n in range(lastn + 1, len(q)):
                    if q[n][1] < apos and q[n][0].st is not None and tpos - q[n][0].st >= DS_LAT: lastn = n
            cnt = sum(1 for n in range(lastn + 1, len(q)) if q[n][1] < apos)
            if pos < 0:
                w = out[apos]; cur = getattr(w, a); setattr(w, a, cnt if cur is None else min(cur, cnt))
            else:
                w = wait(); setattr(w, a, cnt); w.st = tpos
                out.insert(apos, w)
                for qq in (lq, vq):
                    for n in range(len(qq)):
                        if qq[n][1] >= apos: qq[n] = (qq[n][0], qq[n][1] + 1)
            for _ in range(lastn + 1): q.popleft()
        if i.k in ("ds", "dsw"): lq.append((i, len(out)))
        elif i.k == "vmem": vq.append((i, len(out)))
        out.append(i)
    return out

def verify2(trace):
    lq = deque(); vq = deque(); errs = 0
    landed = {}; visible = {}; slotof = {}; readdone = {}; nbar = 0; privl = {}; arrived = False; snap = {}
    for i in trace:
        if i.k == "wait":
            if i.lg is not None:
                while len(lq) > i.lg:
                    o = lq.popleft()
                    if o.ring and o.cmt != "early": readdone[o.ring] = nbar + (1 if arrived else 0)
            if i.vm is not None:
                while len(vq) > i.vm:
                    o = vq.popleft()
                    if o.ring: landed[o.ring] = landed.get(o.ring, 0) + 1
                    if o.priv: privl[o.priv] = privl.get(o.priv, 0) + 1
            continue
        if i.k == "bar":
            nbar += 1; visible.update(landed); continue
        if i.cmt == "arrive":
            snap = dict(landed); arrived = True
            for o in lq:
                if o.ring: o.cmt = "early"; readdone[o.ring] = nbar
        if i.cmt == "check":
            nbar += 1; visible.update(snap); arrived = False; continue
        for q in (lq, vq):
            for o in q:
                if o.w & (i.r | i.w): print(f"  ERR pending load [{o.t}] vs [{i.t}]"); errs += 1
        if i.k in ("ds", "dsw"):
            if i.ring:
                kind, b = i.ring
                if visible.get(i.ring, 0) < 4: print(f"  ERR RAW {i.ring} not visible at [{i.t}]"); errs += 1
                if slotof.get((kind, b % 4)) != b: print(f"  ERR slot overwritten {i.ring} at [{i.t}]"); errs += 1
            if i.priv and privl.get(i.priv, 0) < 4: print(f"  ERR priv RAW {i.priv}"); errs += 1
            lq.append(i)
            if len(lq) > 15: print("  ERR lgkm overflow"); errs += 1
        elif i.k == "vmem":
            if i.ring:
                kind, b = i.ring; old = (kind, b - 4)
                if b >= 4:
                    if any(o.ring == old for o in lq) or old not in readdone or readdone[old] >= nbar:
                        print(f"  ERR WAR DMA {i.ring}"); errs += 1
                if any(o.priv and o.priv[1] == (kind, b % 4) for o in lq): print(f"  ERR WAR priv {i.ring}"); errs += 1
                slotof[(kind, b % 4)] = b
            if i.priv and any(o.priv and o.priv[1] == i.priv[1] for o in lq): print(f"  ERR WAR priv dma {i.priv}"); errs += 1
            vq.append(i)
            if len(vq) > 63: print("  ERR vm overflow"); errs += 1
    return errs
```

```python
from asmir import *
def text(G):
    R = G.Role("AA", "S")
    vG, vS, vNM, vQA, vP, vVA = G.vG, G.vS, G.vNM, G.vQA, G.vP, G.vVA
    sQ, sK, sV, sO = G.sQ, G.sK, G.sV, G.sO
    r0, r4, kb0, ko, cnt, t, ps = "s36", "s37", "s38", "s39", "s40", "s41", "s42"
    W0 = lambda: raw("s_waitcnt vmcnt(0) lgkmcnt(0)")
    T = G.vQB; M = T + 8; aLs = G.aQB; VOO = T + 14
    def row(n): return S("s_add_u32", t, r0, n * 4096) if n < 4 else S("s_mov_b32", t, r4)
    o = [label("Lslow"), W0(), S("s_mov_b32", ps, 0)]
    a, b, c = f"v{T}", f"v{T+1}", f"v{T+2}"
    d = f"v{T+3}"
    o += [V("v_mbcnt_lo_u32_b32", d, -1, 0), V("v_mbcnt_hi_u32_b32", d, -1, d),
          V("v_lshrrev_b32", a, 2, d), V("v_and_b32", b, 3, a), V("v_and_b32", c, 4, a), V("v_lshl_add_u32", b, c, 1, b), V("v_lshlrev_b32", b, 4, b),
          V("v_and_b32", c, 3, d), V("v_lshlrev_b32", c, 3, c), V("v_xor_b32", b, b, c), V("v_lshl_add_u32", b, a, 8, b), V("v_add_u32", b, G.sW4K, b), V("v_add_u32", f"v{vVA}", G.VB, b)]
    o += [V("v_xor_b32", f"v{vVA+dt}", 32 * dt, f"v{vVA}") for dt in range(1, 8)]
    o += [V("v_and_b32", a, 15, d), V("v_and_b32", b, 16, d), V("v_lshlrev_b32", b, 1, b), V("v_lshl_add_u32", a, a, 8, b), V("v_lshrrev_b32", b, 5, d), V("v_lshl_add_u32", f"v{VOO}", b, 4, a)]
    o += [V("v_and_b32", a, 15, d), V("v_and_b32", b, 16, d), V("v_lshlrev_b32", b, 2, b), V("v_lshl_add_u32", a, a, 8, b), V("v_lshrrev_b32", b, 5, d), V("v_lshl_add_u32", f"v{vG}", b, 4, a)]
    o += [label("Lsl_pass"), S("s_cmp_eq_u64", G.sBAD[0], 0), br("s_cbranch_scc1", "Lsl_next"),
          S("s_mov_b32", r0, G.sROW[0][0]), S("s_mov_b32", r4, G.sROW[0][1]), S("s_mul_i32", kb0, ps, G.HEADK)]
    for n in range(5):
        o += [row(n)] + [bload(G.Q(0, n, ks), f"v{vG}", sQ, t, G.KOFF(ks)) for ks in range(4)]
    o += [W0()]
    for r in range(80): o += R.scale(f"v{vQA+r}", f"v{vQA+r}", T + 2 * (r % 4))
    o += [V("v_mov_b32", f"v{M+n}", "0xff800000") for n in range(5)]
    o += [S("s_mov_b32", ko, kb0), S("s_mov_b32", cnt, 16), label("Lsl_max")]
    for tt in range(4):
        o += [bload(("a", 16 * tt + 4 * ks, 4), f"v{vG}", sK, ko, G.KOFF(ks)) for ks in range(4)] + [S("s_add_u32", ko, ko, 4096)]
    o += [W0()]
    for tt in range(4):
        for n in range(5): o += R.chain(0, n, G.Sx(n), lambda ks: ("a", 16 * tt + 4 * ks, 4), True)
        for n in range(5):
            x = vS + 4 * n
            o += [V("v_max3_f32", f"v{M+n}", f"v{M+n}", f"v{x}", f"v{x+1}"), V("v_max3_f32", f"v{M+n}", f"v{M+n}", f"v{x+2}", f"v{x+3}")]
    o += [nop(12), S("s_sub_u32", cnt, cnt, 1), S("s_cmp_lg_u32", cnt, 0), br("s_cbranch_scc1", "Lsl_max")]
    for n in range(5):
        m = f"v{M+n}"
        o += [V("v_mov_b32", b, m), swap("v_permlane16_swap_b32", m, b), V("v_max_f32", m, m, b), V("v_mov_b32", b, m), swap("v_permlane32_swap_b32", m, b), V("v_max_f32", m, m, b)]
    o += [V("v_accvgpr_write_b32", f"a{r}", 0) for r in list(range(160)) + list(range(aLs, aLs + 20))]
    KB = G.aV; VB = vP + 40
    o += [S("s_mov_b32", ko, kb0), S("s_mov_b32", cnt, 32), label("Lsl_pv")]
    for u in range(2):
        o += [bload(("a", KB + 16 * u + 4 * ks, 4), f"v{vG}", sK, ko, G.KOFF(ks)) for ks in range(4)]
        o += [S("s_add_u32", "m0", G.sW4K, G.VB + 16384 * u)]
        o += [dma(f"v{G.vDA if k % 2 == 0 else G.vDB}", sV, ko, k * 1024) for k in range(4)] + [S("s_add_u32", ko, ko, 4096)]
    o += [W0()]
    for dt in range(8):
        o += [ds_read("ds_read_b64_tr_b16", ("v", VB + 4 * dt + 2 * u, 2), f"v{vVA+dt}", u * 16384) for u in range(2)]
        if dt == 3: o += [W0()]
    for u in range(2):
        for n in range(5): o += R.chain(0, n, G.Sx(n), lambda ks: ("a", KB + 16 * u + 4 * ks, 4), True)
        for n in range(5):
            o += [V("v_sub_f32", f"v{vS+4*n+r}", f"v{vS+4*n+r}", f"v{M+n}") for r in range(4)] + R.expcvt(0, n, u, G.Sx(n))
    o += [W0()]
    for n in range(5):
        o += [mfma(("a", aLs + 4 * n, 4), G.ONE(0), G.P(0, n, 0), ("a", aLs + 4 * n, 4))]
        o += [mfma(G.O(n, dt), ("v", VB + 4 * dt, 4), G.P(0, n, 0), G.O(n, dt)) for dt in range(8)]
    o += [nop(12), S("s_sub_u32", cnt, cnt, 1), S("s_cmp_lg_u32", cnt, 0), br("s_cbranch_scc1", "Lsl_pv")]
    for n in range(5):
        o += [V("v_accvgpr_read_b32", a, f"a{aLs+4*n}"), V("v_rcp_f32", a, a), row(n)]
        for D in range(4):
            tb = T + 16; pk = T + 24 + 4 * (D % 2)
            o += [V("v_accvgpr_read_b32", f"v{tb+r}", f"a{32*n+8*D+r}") for r in range(8)]
            o += [V("v_mul_f32", f"v{tb+r}", f"v{tb+r}", a) for r in range(8)]
            o += [V("v_cvt_pk_bf16_f32", f"v{pk+r}", f"v{tb+2*r}", f"v{tb+2*r+1}") for r in range(4)]
            o += [swap("v_permlane16_swap_b32", f"v{pk}", f"v{pk+2}"), swap("v_permlane16_swap_b32", f"v{pk+1}", f"v{pk+3}")]
            o += [bstore(("v", pk, 4), f"v{VOO}", sO, t, D * 64, mod=G.MODS[G.OPT["o1"]])]
    o += [W0(), label("Lsl_next"), nop(12), S("s_mov_b64", G.sBAD[0], G.sBAD[1]), S("s_mov_b32", G.sROW[0][0], G.sROW[1][0]), S("s_mov_b32", G.sROW[0][1], G.sROW[1][1]),
          S("s_add_u32", ps, ps, 1), S("s_cmp_lt_u32", ps, 2), br("s_cbranch_scc1", "Lsl_pass"), raw("s_endpgm")]
    while fix_hazards(o, verbose=False): pass
    return "".join(i.text() for i in o)
```

```python
import sys, struct, math, re
from asmir import *
from sched import *

NAME = "standalone__mha_softmax__near_ridge"
OPT = dict(sp=1, es=1, dfr=0, po=0, im=7, bw=10, stc=64, gt=0, gp_=1, gr=0, nw=40, hl=30, df0=17, df1=2, tf=12, sm=0, to=0, pfix=0, eh=1, vb=0, c4=0, swp=1, gl=1, tl=0, h0=115, h1=30, h2=195, h3=30, hd=260, nost=0, nodsw=0, ep=0, epo=0, l0=40, l1=110, l2=90, l3=40, sv=0, sd=0, asap=1, kq=4, rb=3, kalt=1, sg0=1, sg1=140, vml=3500, tal=0, bp=0, bq=1, ob=1, kap=7, obias=0, dlt=10, olast=0, o2=0, one0=0, cz=0, nosnake=0, so=0, tch=0, u0=66, u1=19, u2=19, ov=1, ddl=130, cd=1, loopt=0, nowait=0, nosync=0, spf=0, spd=6144, sdl=24, tdl=16, fl=1, flr=20, stm=0, samekv=0, nosmf=0, nocvt=0, nodma=0, nobar=0, noxor=0, nolds=0, noexp=0, xd=0, thr=0x5f800000, lagc=50, lagmax=240, stamps=0, kv=1, kvy=1, q=1, o0=4, o1=4, ab=1, pf=1, e0=7, pk=1, pi=-1, pj=0, pk_=1, pall=0, verbose=0, compact=1, slow=1)
MODS = ["", " nt", " sc1", " sc1 nt", " sc0 sc1", " sc0 sc1 nt", " sc0", " sc0 nt"]
for a in sys.argv[2:]:
    k, v = a.split("="); assert k in OPT, k; OPT[k] = int(v)
vKA = 0; vVA = 4; vDA, vDB = 12, 13; vIDX = 14; vG = 15
vS = 16; vNM = 36; vQA = 56; vP = 136; vQB = 216; vT = 252
aO = 0; aL = 160; aONE = 172; aV = 180; aK = 196; aQB = 212
sQ, sK, sV, sO = 4, 8, 12, 16
sOFF = "s20"; sW4K = "s21"; sC = "s22"; sC2 = "s23"
sROW = [["s24", "s25"], ["s26", "s27"]]
sMASK = "s28"; sTHR = "s29"; sBAD = [("s", 30, 2), ("s", 32, 2)]; sFK = "s34"; sFV = "s35"; sD0 = "s3"; sD1 = "s2"
sOFV = "s43"; sB = ["s40", "s41"]
sTMP = [f"s{i}" for i in range(36, 40)]
HEADQ = 608 * 256; HEADK = 1024 * 256
CSCALE = struct.unpack("<I", struct.pack("<f", math.log2(math.e) / math.sqrt(128.0)))[0]
X1 = 0; X0 = 16384; KB = 32768; VB = 98304; FLAG = 1024
vFA, vFE = 254, 255
_st = [0]
def stmp():
    _st[0] = (_st[0] + 1) % len(sTMP); return sTMP[_st[0]]
def SS(op, d, *src):
    i = S(op, d, *src); i.w.discard("scc"); return i

def Sx(n): return ("v", vS + 4 * n, 4)
def NM(n): return ("v", vNM + 4 * n, 4)
def Q(p, n, ks):
    f = 4 * n + ks
    if p == 0: return ("v", vQA + 4 * f, 4)
    return ("a", aQB + 4 * f, 4) if f < 11 else ("v", vQB + 4 * (f - 11), 4)
def P(par, n, ks): return ("v", vP + 40 * par + 8 * n + 4 * ks, 4)
def O(n, dt): return ("a", aO + 32 * n + 4 * dt, 4)
def OP(p, n, dt):
    if p == 1 and n < 2 and OPT["ov"]: return ("v", vQA + 32 * n + 4 * dt, 4)
    return O(n, dt)
def mul2(d, a, m):
    if m[0] == "s": l = [V("v_mul_f32", f"v{d+k}", m, f"v{a+k}") for k in range(2)]; f = V("v_pk_mul_f32", ("v", d, 2), ("v", a, 2), ("s", 22, 2))
    else:
        r = int(m[1:]); l = [V("v_mul_f32", f"v{d+k}", f"v{a+k}", m) for k in range(2)]
        f = V("v_pk_mul_f32", ("v", d, 2), ("v", a, 2), ("v", r & ~1, 2), mod=" op_sel:[0,1] op_sel_hi:[1,1]" if r & 1 else " op_sel_hi:[1,0]")
        f.r.discard(f"v{r^1}")
    if OPT["pk"]: l[0].fuse = l[1].fuse = f
    return l
def f32(x): return hex(struct.unpack("<I", struct.pack("<f", float(x)))[0])
def fmap(d, a, m, c):
    l = [V("v_fma_f32", f"v{d+k}", f"v{a+k}", f"v{m+k}", f"v{c+k}") for k in range(2)]
    if OPT["pk"]: l[0].fuse = l[1].fuse = V("v_pk_fma_f32", ("v", d, 2), ("v", a, 2), ("v", m, 2), ("v", c, 2))
    return l
def colput(LW, slot, a, b, gate=()):
    i = I(f"ds_write2_b32 v{LW}, v{a}, v{b} offset0:{16*slot} offset1:{16*slot+16}", "dsw", r=[f"v{LW}", f"v{a}", f"v{b}"])
    i.xw = {f"Fq{slot}", f"Fq{slot+1}"}; i.xr = set(gate); return i
def rowget(d, LR, slot):
    i = ds_read("ds_read_b128", ("v", d, 4), f"v{LR}", 64 * slot); i.xr = {f"Fq{slot}"}; return i
def KOFF(ks): return (ks & 1) * 32 + (ks >> 1) * 128
def L(n): return ("a", aL + 4 * (n // 2), 4)
def Lr(n): return aL + 4 * (n // 2) + 2 * (n % 2)
def ONE(n): return ("a", aONE + 4 * (n % 2), 4)

class Role:
    def __init__(s, types, tag):
        s.half = [t == "B" for t in types]; s.tag = tag
        s.kst = [[s.half[0], 0] for _ in range(4)]; s.vst = [[s.half[0], 0] for _ in range(8)]
        s.prog = []; s.hints = []; s.nstamp = 0; s.epoch = 0; s.stubs = []
    def add(s, *l):
        for x in l:
            if isinstance(x, list): s.prog += x
            else: s.prog.append(x)
    def hint(s, i, m, off, attr="nb"): s.hints.append((i, m, off, attr)); return i
    def addr(s, st, reg, half, h, sflip):
        o = []
        if st[0] != half:
            if st[1]: o.append(V("v_xor_b32", reg, "0x2000", reg)); st[1] = 0
            o.append(V("v_xor_b32", reg, sflip, reg)); st[0] = half
        if not half: return o, h * 8192
        if st[1] != h: o.append(V("v_xor_b32", reg, "0x2000", reg)); st[1] = h
        return o, 0
    def kread(s, dst, b, t, ks):
        o, off = s.addr(s.kst[ks], f"v{vKA+ks}", s.half[b // 16], t >> 1, sFK)
        i = ds_read("ds_read_b128", dst, f"v{vKA+ks}", (b % 4) * 16384 + off + (t & 1) * 4096)
        i.ring = ("K", b); i.xr = {f"cK{b}", f"oK{b}"}; i.wt = {f"rK{b}"}
        return o + [i]
    def vread(s, dst, b, dt, ks):
        o, off = s.addr(s.vst[dt], f"v{vVA+dt}", s.half[b // 16], ks, sFV)
        for u in range(2):
            i = ds_read("ds_read_b64_tr_b16", (dst[0], dst[1] + 2 * u, 2), f"v{vVA+dt}", (b % 4) * 16384 + off + u * 4096)
            i.ring = ("V", b); i.xr = {f"cV{b}", f"oV{b}"}; i.wt = {f"rV{b}"}
            o.append(i)
        return o
    def vks(s, b, dt, pref):
        if s.half[b // 16] and s.vst[dt][0]: return [s.vst[dt][1], s.vst[dt][1] ^ 1]
        return pref
    def dma(s, kind, b, gate=None):
        o = []
        so = sOFF if kind == "K" else sOFV
        gl = OPT["gl"] and b >= 4; gp = 96 if kind == "K" else 98
        if gl:
            if b == 4:
                srd = sK if kind == "K" else sV
                o.append(raw(f"s_add_u32 s{gp}, s{srd}, {so}\n    s_addc_u32 s{gp+1}, s{srd+1}, 0", w=[f"s{gp}"], r=[so])); o[-1].cmt = "two"
            o.append(raw(f"s_add_u32 s{gp}, s{gp}, 16384\n    s_addc_u32 s{gp+1}, s{gp+1}, 0", w=[f"s{gp}"], r=[f"s{gp}"])); o[-1].cmt = "two"
        elif b > 0: o.append(SS("s_add_u32", so, so, 16384))
        o.append(SS("s_add_u32", "m0", sW4K, (b % 4) * 16384 + (VB if kind == "V" else KB)))
        for k in range(4):
            i = dma(f"v{vDA if k % 2 == 0 else vDB}", sK if kind == "K" else sV, so, k * 1024, mod=MODS[OPT["kvy" if s.tag == "Y" and b >= 3 else "kv"]])
            if gl:
                va = f"v{vDA if k % 2 == 0 else vDB}"
                i = I(f"global_load_lds_dwordx4 {va}, s[{gp}:{gp+1}] offset:{k*1024}{MODS[OPT['kv']]}", "vmem", r=[va, f"s{gp}", "m0"])
            i.ring = (kind, b); i.wt = {f"d{kind}{b}"}; i.xw = {f"i{kind}{b}"}
            if gate: i.xr = {gate}
            o.append(i)
        return o
    def barrier(s, close, opn, gate=None, extra_need=(), extra_w=(), extra_r=()):
        w = wait(need=[f"r{x}" for x in close] + [f"d{x}" for x in opn] + list(extra_need))
        w.xw = {f"c{x}" for x in close} | {"barseq"}; w.xr = {f"i{x}" for x in opn} | set(extra_r)
        b = bar(); b.xr = {"barseq"}; b.xw = {f"o{x}" for x in opn} | ({gate} if gate else set()) | set(extra_w)
        return [w, b]
    def sync(s, close, opn, m, gate=None, extra_need=(), extra_w=(), extra_r=(), off_bar=0, off_rd=0):
        if not OPT["fl"]:
            bl = s.barrier(close, opn, gate, extra_need, extra_w, extra_r); s.hint(bl[0], m, off_bar); return bl
        s.epoch += 1; e = s.epoch; tag = f"{s.tag}{e}"
        w = wait(need=[f"d{x}" for x in opn]); w.xr = {f"i{x}" for x in opn}; w.xw = {"flseq"}; s.hint(w, m, 0)
        a = ds_write("ds_write_b32", f"v{vFA}", f"v{vFE}", 0); a.xr = {"flseq"} | set(extra_r); a.xw = {f"c{x}" for x in close}; a.cmt = "arrive"
        r = ds_read("ds_read_b32", f"v{vFE}", f"v{vDA}", FLAG); s.hint(r, m, off_rd)
        c = V("v_cmp_gt_u32", "vcc", e, f"v{vFE}")
        b = I(f"s_cbranch_vccnz Ls{tag}\nLr{tag}:", "br", r=["vcc", f"v{vDA}"], w=["vcc", f"v{vFE}"]); b.cmt = "check"
        b.xw = {f"o{x}" for x in opn} | ({gate} if gate else set()) | set(extra_w)
        s.stubs += [label(f"Ls{tag}"), raw(f"ds_read_b32 v{vFE}, v{vDA} offset:{FLAG}"), raw("s_waitcnt lgkmcnt(0)"), raw(f"v_cmp_gt_u32 vcc, {e}, v{vFE}"), raw("s_nop 0"),
                    raw(f"s_cbranch_vccnz Ls{tag}")] + ([raw("s_add_u32 s95, s95, 1")] if OPT["stm"] == 4 else []) + [raw(f"s_branch Lr{tag}")]
        if OPT["cd"]: s.hint(b, m, off_rd + 8 + OPT["cd"])
        mv = V("v_mov_b32", f"v{vFE}", e)
        for i in (w, a): s.hint(i, m, max(0, off_rd - 10), "dlm")
        return ([w] if opn else []) + [mv, a, r, c, b]
    def chain(s, p, n, sq, kf, czero):
        order = [0, 1, 2, 3] if n % 2 == 0 or OPT["nosnake"] else [3, 2, 1, 0]
        return [mfma(sq, kf(ks), Q(p, n, ks), sq if k else ("0" if czero or OPT["cz"] else NM(n))) for k, ks in enumerate(order)]
    def rowmax(s, n, sq, a, b):
        x = [f"v{sq[1]+r}" for r in range(4)]
        l = [V("v_max3_f32", a, x[0], x[1], x[2]), V("v_max_f32", a, a, x[3])] + ([V("v_add_f32", a, hex(struct.unpack("<I", struct.pack("<f", OPT["dlt"] + OPT["dfr"] / 10.0))[0]), a)] if OPT["dlt"] else []) + [V("v_mov_b32", b, a),
             swap("v_permlane16_swap_b32", a, b), V("v_max_f32", a, a, b), V("v_mov_b32", b, a), swap("v_permlane32_swap_b32", a, b)]
        l += [V("v_min_f32", f"v{vNM+4*n+r}", "-" + a, "-" + b) for r in range(4)]
        l += [V("v_add_f32", x[r], x[r], f"v{vNM+4*n}") for r in range(4)]
        return l
    def expcvt(s, par, n, t, sq, pb=None):
        l = []
        if pb is None: pb = vP + 40 * par + 8 * n
        for h in range(2):
            x0, x1 = f"v{sq[1]+2*h}", f"v{sq[1]+2*h+1}"
            l += [V("v_exp_f32", x0, x0), V("v_exp_f32", x1, x1), V("v_cvt_pk_bf16_f32", f"v{pb+2*t+h}", x0, x1)]
        return l
    def smf(s, b, n, pb=None):
        if pb is None: pb = vP + 40 * (b % 2) + 8 * n
        if s.half[b // 16] and n == 4: return mfma(L(4), ONE(4), ("v", pb, 4), L(4))
        return smfmac(L(n), ONE(n), ("v", pb, 8), f"v{vIDX}")
    def scale(s, src, dst, ta, pk=False):
        a, b = f"v{ta}", f"v{ta+1}"
        l = [V("v_lshlrev_b32", a, 16, src), V("v_and_b32", b, sMASK, src)]
        l += mul2(ta, ta, sC)
        if dst[0] == "v": return l + [V("v_cvt_pk_bf16_f32", dst, a, b)]
        return l + [V("v_cvt_pk_bf16_f32", a, a, b), V("v_accvgpr_write_b32", dst, a)]
    def rowoff(s, p, n, extra=None):
        t = stmp()
        i = SS("s_add_u32", t, sROW[p][0], n * 4096) if n < 4 else SS("s_mov_b32", t, sROW[p][1])
        if extra is None: return t, [i]
        return t, [i, SS("s_add_u32", t, t, extra)]
    def stamp(s, m=None, off=0):
        if not OPT["stamps"]: return
        k = s.nstamp; s.nstamp += 1; assert k < 14
        a = raw(f"s_memtime s[{44+4*k}:{45+4*k}]"); b = raw(f"s_memrealtime s[{46+4*k}:{47+4*k}]")
        for i in (a, b):
            if m is not None: s.hint(i, m, off); s.hint(i, m, off + 2, "dlm")
            else: i.xw = {"seq"}
        s.add(a, b)

    QREG = [(KB + 32768, ("K", 2)), (VB + 16384, ("V", 1)), (VB + 32768, ("V", 2)), (KB + 49152, ("K", 3)), (X0, None)]
    TA = 236
    def qdma(s, n):
        t, o = s.rowoff(0, n)
        o.append(SS("s_add_u32", "m0", sW4K, s.QREG[n][0]))
        for k in range(4):
            i = dma(f"v{vDA if k % 2 == 0 else vDB}", sQ, t, k * 1024, mod=MODS[OPT["q"]])
            i.wt = {f"dQ{n}"}; i.priv = (n, s.QREG[n][1]); o.append(i)
        return o
    def start(s):
        half = s.half[0]; TA = s.TA
        def seq(l):
            for i in l:
                if i.k in ("vmem", "wait", "bar"): i.xw = i.xw | {"seq"}
                if OPT["asap"] and i.k in ("vmem", "salu"): i.cmt = "asap"
            return l
        KF = lambda b, t: (lambda ks: ("a", 96 + 16 * t + 4 * ks, 4) if b == 0 else Q(1, t, ks))
        s.KF = KF
        def kpart(bs, dm, order, sq):
            if OPT["stm"] == 1 and 0 in bs: s.stamp()
            bl = seq(s.barrier([], [f"K{b}" for b in bs], extra_need=["cw"]))
            s.add(bl[0], seq(dm), bl[1]) if not OPT["so"] else s.add(bl, seq(dm))
            if OPT["stm"] == 1 and 0 in bs: s.stamp()
            for k, (b, t) in enumerate(order):
                for ks in range(4):
                    l = s.kread(KF(b, t)(ks), b, t, ks)
                    if sq and k < OPT["kq"]: l[-1].xr = l[-1].xr | {"seq"}
                    s.add(l)
        if not OPT["so"]:
            kpart([0, 1], s.qdma(2) + (s.qdma(3) if OPT["sd"] else []), ((0, 0), (0, 1), (0, 2), (0, 3), (1, 2), (1, 3), (1, 0), (1, 1)), True)
        nxt = [s.qdma(3), s.qdma(4), s.dma("V", 0), s.dma("K", 2), s.dma("V", 1)]
        late = []; EP = {}
        if OPT["ep"]:
            nxt = [nxt[2], nxt[0], nxt[1], nxt[3], nxt[4]]
            EP = [{5: [0], 6: [1, 2], 7: [3]}, {6: [0, 1], 7: [2, 3]}, {5: [0, 1], 6: [2, 3]}, {6: [0, 1], 7: [2], 8: [3]}, {6: [0, 1], 8: [2, 3]}, {5: [0, 1], 7: [2, 3]}][OPT["epo"]]
        def grpA(q):
            rd, mm = s.pvgroup(0, q, [0, 1, 2], aK if q % 2 == 0 else aV, lambda n: ("a", 28, 4) if OPT["ob"] else "0")
            if q < 3: mm.append(s.smf(0, q))
            s.add(rd, mm); return mm
        if OPT["sv"] & 1: nxt[1], nxt[2] = nxt[2], nxt[1]
        if OPT["sv"] & 2: late = nxt[3] + nxt[4]; nxt[3] = []; nxt[4] = []
        if OPT["sv"] & 4: late = nxt[4]; nxt[4] = nxt[3]; nxt[3] = []
        if OPT["sd"]: nxt = nxt[1:] + [[]]
        if OPT["so"]: nxt[0] = s.qdma(1 + OPT["sd"])
        s.sc = 0
        for n in range(5):
            w = wait(need=[f"dQ{n}"]); w.xw = {"seq", f"oQ{n}"}; s.add(w)
            if n == 0 or n == 4 or OPT["stm"] == 1: s.stamp()
            base = TA + (4 if n in (1, 2, 3) else 0); off = s.QREG[n][0] - (KB + 49152 if n in (1, 2, 3) else X0)
            for ks in range(4):
                i = ds_read("ds_read_b128", Q(0, n, ks), f"v{base+ks}", off); i.xr = {f"oQ{n}", f"cQ{n}", "seq"}; i.priv = (n, s.QREG[n][1]); i.wt = {f"rQ{n}"}; s.add(i)
            s.add(seq(nxt[n]))
            for r in range(16):
                q = f"v{vQA+16*n+r}"; s.add(s.scale(q, q, TA + 8 + 2 * (r % 4), pk=OPT["pk"]))
            for q in EP.get(2 * n, []): grpA(q)
            if OPT["so"] == 1 and n == 0:
                s.prog[-1].xw = {"seq"}
                kpart([0, 1], s.qdma(2) + s.qdma(3), ((0, 0), (0, 1), (0, 2), (0, 3), (1, 2), (1, 3), (1, 0), (1, 1)), False)
            if OPT["so"] == 2 and n == 0:
                s.prog[-1].xw = {"seq"}
                kpart([0], s.qdma(2 + OPT["sd"]), ((0, 0), (0, 1), (0, 2), (0, 3)), False)
            for b in range(2 if n < 4 else 1):
                if OPT["so"] == 2 and n == 0 and b == 1:
                    ch[0].xw = {"seq"}
                    kpart([1], s.qdma(3 + OPT["sd"]), ((1, 0), (1, 1), (1, 2), (1, 3)), False)
                for t in range(2 if half and n == 4 else 4):
                    sq = Sx(s.sc % 5); s.sc += 1
                    ch = s.chain(0, n, sq, KF(b, t), t == 0 and b == 0); s.add(ch)
                    if t == 0 and b == 0:
                        s.add(s.rowmax(n, sq, f"v{TA+16}", f"v{TA+17}"))
                        if n == 4 and not OPT["ep"]:
                            ch[-1].xw = {"seq"}
                            s.add(seq(s.barrier(["K0", "K1"], ["V0"], gate="D-1")), seq(late))
                    s.add(s.expcvt(b, n, t, sq))
            if n < 4: ch[-1].xw = {"seq"}
            if OPT["ep"] and n == 2: s.add(seq(s.barrier(["K0", "K1"], ["V0"], gate="D-1")))
            for q in EP.get(2 * n + 1, []): grpA(q)[-1].xw = {"seq"}

    def nbr(s, p, d, rl):
        return [V("v_mul_f32_e64", f"v{d}", "-" + sB[p], f"v{rl}")] if OPT["ob"] else []
    def ep_l(s, p, n, rl, tmp):
        a, b = f"v{rl}", f"v{tmp}"
        o = [V("v_accvgpr_read_b32", a, f"a{Lr(n)}")]
        if not (s.half[p] and n == 4): o += [V("v_accvgpr_read_b32", b, f"a{Lr(n)+1}"), V("v_add_f32", a, a, b)]
        o += [V("v_cmp_nge_f32", ("s", 42, 2), sTHR, a), SS("s_or_b64", sBAD[p], sBAD[p], ("s", 42, 2))]
        if not (s.half[p] and n == 4): o += [V("v_rcp_f32", a, a)]
        return o
    def lane16(s, d):
        return [V("v_mbcnt_lo_u32_b32", d, -1, 0), V("v_mbcnt_hi_u32_b32", d, -1, d), V("v_lshlrev_b32", d, 4, d)]
    def cmb_pre(s, T, base):
        return s.lane16(f"v{T}") + [V("v_add_u32", f"v{T}", sW4K, f"v{T}"), V("v_add_u32", f"v{T}", base, f"v{T}"), V("v_xor_b32", f"v{T+1}", "0x1000", f"v{T}"),
             V("v_mov_b32", f"v{T+2}", f"v{vNM+16}")]
    def cmb_give(s, p, T, LW):
        o = s.ep_l(p, 4, T + 3, T + 4)
        w = [colput(LW, 12, T + 2, T + 3)] + [ds_write("ds_write_b128", f"v{T}", O(4, dt), 16384 + dt * 1024) for dt in range(4)]
        for i in w: i.wt = {"cw"}; i.xw = i.xw | {"cgive"}
        return o + w
    def cmb_col(s, p, T, LW):
        nm, l, nm2, l2, x, y = [f"v{T+k}" for k in (2, 3, 4, 5, 6, 7)]
        r = I(f"ds_read2_b32 v[{T+4}:{T+5}], {y} offset0:{16*12} offset1:{16*13}", "ds", w=[nm2, l2], r=[y]); r.xr = {"cmb"}
        return [V("v_xor_b32", y, "0x1000", f"v{LW}"), r, V("v_cmp_nge_f32", ("s", 42, 2), sTHR, l2), SS("s_or_b64", sBAD[p], sBAD[p], ("s", 42, 2)),
                V("v_min_f32", x, nm, nm2), V("v_sub_f32", nm, x, nm), V("v_sub_f32", nm2, x, nm2), V("v_exp_f32", nm, nm), V("v_exp_f32", nm2, nm2),
                V("v_mul_f32", x, l, nm), V("v_fma_f32", x, l2, nm2, x), V("v_rcp_f32", x, x), V("v_mul_f32", nm, nm, x), V("v_mul_f32", nm2, nm2, x),
                V("v_add_f32", y, nm, nm2), V("v_mul_f32_e64", y, "-" + sB[p], y), colput(LW, 8, T + 2, T + 7), colput(LW, 10, T + 4, T + 4)]
    def half_addr(s, WA, RA, GA, LW, LR, base, base2, t0, t1):
        t0, t1, wa, ra = f"v{t0}", f"v{t1}", f"v{WA}", f"v{RA}"
        t = stmp(); t2 = stmp()
        a = [SS("s_add_u32", t, sW4K, base), SS("s_add_u32", t2, sW4K, base2), V("v_mbcnt_lo_u32_b32", t0, -1, 0), V("v_mbcnt_hi_u32_b32", t0, -1, t0),
             V("v_and_b32", t1, 15, t0), V("v_lshl_add_u32", f"v{LW}", t1, 2, t2), V("v_lshl_add_u32", wa, t1, 3, t), V("v_lshrrev_b32", t1, 4, t0), V("v_lshl_add_u32", wa, t1, 9, wa),
             V("v_lshl_add_u32", f"v{LR}", t1, 4, t2),
             V("v_lshl_add_u32", ra, t1, 8, t), V("v_and_b32", t1, 3, t0), V("v_lshl_add_u32", ra, t1, 6, ra), V("v_and_b32", t1, 12, t0), V("v_lshl_add_u32", ra, t1, 1, ra),
             V("v_and_b32", t1, 7, t0), V("v_lshlrev_b32", t1, 4, t1), V("v_lshrrev_b32", t0, 3, t0), V("v_lshl_add_u32", f"v{GA}", t0, 8, t1)]
        return a
    def half_put(s, pk, r, WA, X, gate):
        w = ds_write("ds_write_b64", f"v{WA}", ("v", pk, 2), X + r * 128); w.xr = set(gate); w.xw = {f"Xd{X}_{r}"}; return [w]
    def half_wide(s, p, n, H, FR, FB, TB, WA, X, gate, part=None):
        o = []
        for r in (0, 2):
            tb = TB[r // 2]
            if OP(p, n, 0)[0] == "a":
                x = [tb + 2 * j for j in range(4)]
                o += [V("v_accvgpr_read_b32", f"v{tb+2*j+k}", f"a{OP(p, n, 4*H+j)[1]+r+k}") for j in range(4) for k in range(2)]
            else: x = [OP(p, n, 4 * H + j)[1] + r for j in range(4)]
            for j in range(4): o += fmap(x[j], x[j], FR + r, FB + r)
            if part:
                T, U, FA = part
                rr = [ds_read("ds_read_b64", ("v", U + 2 * j, 2), f"v{T+1}", 16384 + j * 1024 + r * 4) for j in range(4)]
                for i in rr: i.xr = {"cmb"}
                o += rr
                for j in range(4): o += fmap(x[j], U + 2 * j, FA + r, x[j])
            o += [V("v_cvt_pk_bf16_f32", f"v{tb+d}", f"v{x[ja]+k}", f"v{x[ja+1]+k}") for d, ja, k in ((0, 0, 0), (2, 0, 1), (1, 2, 0), (3, 2, 1))]
            o += s.half_put(tb, r, WA, X, gate) + s.half_put(tb + 2, r + 1, WA, X, gate)
        return o
    def half_slim(s, p, n, H, FR, FB, T4, WA, X):
        o = []
        for r in range(4):
            o += [V("v_accvgpr_read_b32", f"v{T4+j}", f"a{O(n, 4*H+j)[1]+r}") for j in range(4)]
            o += [V("v_fma_f32", f"v{T4+j}", f"v{T4+j}", f"v{FR+r}", f"v{FB+r}") for j in range(4)]
            o += [V("v_cvt_pk_bf16_f32", f"v{T4+k}", f"v{T4+2*k}", f"v{T4+2*k+1}") for k in range(2)] + s.half_put(T4, r, WA, X, [])
        return o
    def half_out(s, p, n, H, rb, RA, GA, X, mod):
        if s.half[p]: t, o = s.rowoff(p, n, sD1 if H else sD0); off = 0
        else: t, o = s.rowoff(p, n); off = 128 * H
        for k in range(2):
            for u in range(2):
                i = ds_read("ds_read_b64_tr_b16", ("v", rb[k] + 2 * u, 2), f"v{RA}", X + k * 1024 + u * 32); i.xr = {f"Xd{X}_{r}" for r in range(4)}; o.append(i)
            o.append(bstore(("v", rb[k], 4), f"v{GA}", sO, t, off + k * 2048, mod=MODS[mod]))
            if p == 1 and OPT["sp"]: o[-1].cmt = "prio"
        return o
    def plan_trans(s):
        hv = s.half[0]; E = vQA + 64
        WA, RA, GA, LR, FR, FB, T4 = E, E + 1, E + 2, E + 3, E + 4, E + 8, E + 12
        s.LW = LW = vQA + 24
        s.CT = CT = vQA + 56; TB = [vQA + 16, vQA + 16 if hv else vQA + 48]; XB = [0] if hv else [0, X0 - 2048, X0]; cnt = [0]
        def fin(l, dl):
            for i in l:
                if i.k == "vmem": s.hint(i, s.bstart[15], dl, "dlm")
            return l
        def wide(n, H, dl):
            X = XB[cnt[0] % len(XB)]; cnt[0] += 1
            rb = [vQA + 8, vQA + 12] if H == 0 else ([T4, vQA + 52] if hv else [vQA + 56, vQA + 60])
            l = [rowget(FR, LR, 2 * n), rowget(FB, LR, 2 * n + 1)]
            l += s.half_wide(0, n, H, FR, FB, TB, WA, X, []) + s.half_out(0, n, H, rb, RA, GA, X, OPT["o0"])
            if n == 2: l += [V("v_accvgpr_write_b32", f"a{O(2, 4*H+3)[1]+r}", sB[1]) for r in range(4)]
            return fin(l, dl)
        def comb(dl):
            l = [rowget(FR, LR, 8), rowget(FB, LR, 9), rowget(T4, LR, 10)]
            l += s.half_wide(0, 4, 1, FR, FB, TB, WA, 0, [], part=(CT, vQA + 48, T4)) + s.half_out(0, 4, 1, [T4, vQA + 60], RA, GA, 0, OPT["o0"])
            return fin(l, dl)
        def slim(n, H, newf, dl):
            return fin(([rowget(FR, LR, 2 * n), rowget(FB, LR, 2 * n + 1)] if newf else []) + s.half_slim(0, n, H, FR, FB, T4, WA, 0) + s.half_out(0, n, H, [T4, T4], RA, GA, 0, OPT["o0"]), dl)
        urg = [2, 3] if hv else [2, 3, 4]
        s.ins = {(15, 0, 0): lambda: [V("v_mov_b32", f"v{vQA+28+r}", sB[1]) for r in range(4)] + s.half_addr(WA, RA, GA, LW, LR, X1 + 2048, X1, vQA + 2, vQA + 3) + (s.cmb_pre(CT, X1) if hv else []),
                 (15, 0, 1): lambda: sum((s.ep_l(0, n, vQA + 4, vQA + 5) + s.nbr(0, vQA + 5, vQA + 4) + [colput(LW, 2 * n, vQA + 4, vQA + 5)] for n in urg + [0, 1]), []),
                 (15, 2, 0): lambda: sum((wide(n, 0, OPT["h0"] + OPT["h1"] * k) for k, n in enumerate(urg)), []),
                 (16, 0, 0): lambda: sum((wide(n, 1, OPT["h2"] + OPT["h3"] * k) for k, n in enumerate(urg)), []) + (comb(OPT["h2"] + OPT["h3"] * 2) if hv else [])
                                     + sum((slim(k // 2, k % 2, k % 2 == 0, 330 + (k + 1) * OPT["hd"]) for k in range(4)), [])}

    def pvgroup(s, j, q, tiles, vbuf, cinit):
        pv = j // 16; hv = s.half[pv]; rd = []; mm = []
        for h, pref in ((0, [0, 1]), (1, [0, 1] if hv else [1, 0])):
            for ks in s.vks(j, 2 * q + h, pref): rd += s.vread(("a", vbuf + 8 * h + 4 * ks, 4), j, 2 * q + h, ks)
        if OPT["po"] and j % 16 and j != 30:
            for n in tiles:
                hs = [0, 1] if n % 2 == 0 or OPT["po"] == 2 else [1, 0]
                for x, h in enumerate(hs):
                    for ks in ([0] if hv and n == 4 else ([0, 1] if x == 0 else [1, 0])):
                        mm.append(mfma(OP(pv, n, 2 * q + h), P(j % 2, n, ks), ("a", vbuf + 8 * h + 4 * ks, 4), OP(pv, n, 2 * q + h)))
            return rd, mm
        for h in range(2):
            dt = 2 * q + h
            for n in (tiles if h == 0 else reversed(tiles)):
                if OPT["c4"] and j % 16 != 0:
                    if h == 0:
                        seq4 = [(0, 0), (0, 1), (1, 0), (1, 1)][::1 if n % 2 == 0 else -1]
                        if hv and n == 4: seq4 = [(0, 0), (1, 0)]
                        for hh, ks in seq4:
                            d_ = OP(pv, n, 2 * q + (j % 2))
                            mm.append(mfma(d_, ("a", vbuf + 8 * hh + 4 * ks, 4), P(j % 2, n if hh == 0 else (n + 2) % 4, ks), d_))
                    continue
                kss = [0] if hv and n == 4 else ([0, 1] if (n + h) % 2 == 0 or OPT["nosnake"] else [1, 0])
                for k_, ks in enumerate(kss):
                    ab = [("a", vbuf + 8 * h + 4 * ks, 4), P(j % 2, n, ks)][::-1 if OPT["swp"] else 1]
                    mm.append(mfma(OP(pv, n, dt), ab[0], ab[1], cinit(n) if j % 16 == 0 and k_ == 0 else OP(pv, n, dt)))
        return rd, mm
    def tq(s, b, q): return q ^ 2 if (OPT["kalt"] and s.half[b // 16] and b % 2 == 1 and b != 31) else q
    def block(s, j):
        b = j + 1; p = b // 16; pv = j // 16
        hq, hv = s.half[p], s.half[pv]
        first = (j % 16 == 0); trans = (j == 15)
        smfs = [{0: [0], 1: [1], 2: [2, 3], 3: [4]}, {0: [0, 1], 1: [2, 3], 2: [4], 3: []}, {0: [0, 1, 2, 3, 4], 1: [], 2: [], 3: []}][OPT["sm"]]
        if j == 0 and OPT["ep"]: smfs = {0: [], 1: [], 2: [], 3: [3, 4]}
        MX = vQA; CT = s.CT
        if j == 30: s.tail_pre()
        for q in range(4):
            vbuf = aK if (j == 0 and q % 2 == 0) else aV
            def cinit(n):
                if not OPT["ob"]: return "0"
                if j == 0: return ("a", aQB, 4)
                return O(2, 3 if q < 2 else 7) if OP(1, n, 0)[0] == "a" else ("v", vQA + 28, 4)
            rd, pvm = s.pvgroup(j, q, [3, 4] if j == 0 and OPT["ep"] else [0, 1, 2, 3, 4], vbuf, cinit)
            s.add(rd)
            if (j, q, 0) in s.ins: s.add(s.ins[(j, q, 0)]())
            cz = (b % 16 == 0 and q == 0)
            if j == 0:
                work = [(4, t, s.KF(1, t), None) for t in ([[0, 1], [2], [3], []] if not hq else [[0, 1], [], [], []])[q]]
            elif j == 30:
                work = [(4, q, s.KT(q), s.PT[0])] if not (hq and q >= 2) else []
            else: work = [(n, s.tq(b, q), (lambda ks: ("a", aK + 4 * ks, 4)), None) for n in range(4 if hq and s.tq(b, q) >= 2 else 5)]
            ch = []; sqs = []
            for n, t, kf, pb in work:
                if j in (0, 30): sq = Sx(s.sc % 5); s.sc += 1
                else: sq = Sx(n)
                sqs.append(sq); ch += s.chain(p, n, sq, kf, cz)
            s.add(ch); m0 = (ch + pvm)[0]
            if OPT["vb"] and j not in (0, 30):
                for k, i in enumerate([x for x in rd if x.k == "ds"]): s.hint(i, m0, -6 + k); s.hint(i, m0, -5 + k, "dlm")
                for k, i in enumerate(getattr(s, "lastk", [])): s.hint(i, m0, -10 + k - (OPT["vb"] - 1)); s.hint(i, m0, -9 + k - (OPT["vb"] - 1), "dlm")
            if j == 0 and q == 0 and OPT["ob"]: s.add([V("v_accvgpr_write_b32", f"a{aQB+r}", sB[0]) for r in range(4)])
            if q == 0:
                s.bstart[j] = m0
                if j in s.stamp_at: s.stamp(m0)
                lag = 0
                if s.half[0] and not s.half[1]: lag = min(OPT["lagmax"], (16 * (j if j <= 15 else 31 - j) * OPT["lagc"]) // 100)
                bat = []
                if j == 0: bat.append((s.dma("K", 3, gate="D-1") + s.dma("V", 2, gate="D-1"), OPT["l0"])); lag = OPT["l1"]
                if j == 1: lag = OPT["l2"]
                if j == 2: lag = OPT["l3"]
                dl = []
                if j + 4 <= 31: dl += s.dma("K", j + 4, gate=f"D{j-1}")
                if j + 3 <= 31: dl += s.dma("V", j + 3, gate=f"D{j-1}")
                bat.append((dl, lag))
                for dl, lag in bat:
                    for k, i in enumerate([x for x in dl if x.k == "vmem"]):
                        s.hint(i, m0, lag + 30 + 2 * k, "dlm")
                        if lag: s.hint(i, m0, lag - 20)
                    s.add(dl)
            qlen = len(ch) + len(pvm) + 1
            if OPT["spf"] and (q == 1 or (OPT["spf"] > 1 and q == 3) or OPT["spf"] > 2):
                for i in (raw("s_getpc_b64 s[40:41]", w=["s40"]), raw(f"s_load_dword s42, s[40:41], {OPT['spd']}", r=["s40"])):
                    s.hint(i, m0, 8); s.hint(i, m0, 12, "dlm"); s.add(i)
            k = 0
            for (n, t, kf, pb), sq in zip(work, sqs):
                if cz: s.add(s.rowmax(n, sq, f"v{MX}", f"v{MX+1}"))
                l = s.expcvt(b % 2, n, t, sq, pb)
                for i in l:
                    if i.k == "trans" and j not in (0, 30) and OPT["eh"]: s.hint(i, m0, OPT["e0"] + (k * qlen) // (4 * len(work))); k += 1
                s.add(l)
            if q == 3 and j < 30:
                opn = [f"K{j+2}", f"V{j+1}"] + (["V31"] if j == 29 else [])
                cm = trans and hv
                kw = dict(gate=f"D{j}", extra_need=["cw"] if cm else [], extra_w=["cmb"] if cm else [], extra_r=["cgive"] if cm else [])
                if j == 0:
                    bl = s.barrier(["V0"], opn, **kw); s.hint(bl[0], m0, 0); s.add(bl)
                else: s.add(s.sync([f"K{b}", f"V{j}"], opn, m0, off_bar=len(ch) - 3, off_rd=OPT["flr"] - (20 - len(ch)), **kw))
                if cm: s.add(s.cmb_col(pv, CT, s.LW))
            n0 = len(s.prog)
            if j < 30:
                if q < 3 and j > 0:
                    for ks in range(4): s.add(s.kread(("a", aK + 4 * ks, 4), b, s.tq(b, q + 1), ks))
                elif q == 3:
                    for ks in range(4): s.add(s.kread(("a", aK + 4 * ks, 4), b + 1, s.tq(b + 1, 0), ks))
            s.lastk = [x for x in s.prog[n0:] if x.k == "ds"]
            if trans and q == 0:
                s.add([s.smf(j, n) for n in range(5)])
            if (j, q, 1) in s.ins: s.add(s.ins[(j, q, 1)]())
            s.add(pvm)
            if not trans: s.add([s.smf(j, n) for n in smfs[q]])
            if trans:
                if hv and q == 1: s.add(s.cmb_give(pv, CT, s.LW))
                if q == 1: s.add([V("v_accvgpr_write_b32", f"a{aL+r}", 0) for r in range(10)])
            if q == 1 and j in s.stage: s.add(s.stage[j](m0))

    def plan_stage(s):
        s.stage = {}
        def g(m):
            o = []
            def ld(f, dst, k=0):
                t, oo = s.rowoff(1, f // 4)
                i = bload(dst, f"v{vG}", sQ, t, KOFF(f % 4), mod=MODS[OPT["q"]]); i.cmt = "strided"; s.hint(i, m, (k // 2) * OPT["sg1"])
                return oo + [i]
            def sc(f, src):
                d = Q(1, f // 4, f % 4); l = []
                for r in range(4):
                    if src[0] == "a": l += [V("v_accvgpr_read_b32", f"v{vT+1}", f"a{src[1]+r}")] + s.scale(f"v{vT+1}", f"a{d[1]+r}", vT)
                    else: l += s.scale(f"v{src[1]+r}", f"{d[0]}{d[1]+r}", vT)
                return l
            land = lambda f: ("v", vQB + 4 * (f + 1), 4) if f < 8 else Q(1, f // 4, f % 4)
            for f in range(12): o += ld(f, land(f), f)
            for f in range(0, 8, 2): o += sc(f, land(f)) + sc(f + 1, land(f + 1)) + ld(12 + f, land(12 + f)) + ld(13 + f, land(13 + f))
            for f in range(8, 20): o += sc(f, land(f))
            return o
        s.stage[OPT["sg0"]] = g

    def tail_pre(s):
        hv = s.half[1]; Z = ("a", 0) if OPT["ov"] else ("v", vQA)
        s.KT = lambda t: (lambda ks: ("a", aK + 4 * ks, 4) if t == 0 else (("v", vP + 40 + 16 * (t - 1) + 4 * ks, 4) if t < 3 else (Z[0], Z[1] + 48 + 4 * ks, 4)))
        s.VT = lambda dt, ks: (Z[0], Z[1] + 8 * dt + 4 * ks, 4) if dt < 6 else ("a", aV + 8 * (dt - 6) + 4 * ks, 4)
        s.PT = [vP + 72, 236]
        for t in range(1, 4):
            for ks in range(4): s.add(s.kread(s.KT(t)(ks), 31, t, ks))
    def tail(s):
        j = 31; hv = s.half[1]
        for dt in range(8):
            for ks in s.vks(j, dt, [0, 1]): s.add(s.vread(s.VT(dt, ks), j, dt, ks))
        E = vQA + 64
        WA, RA, GA, LW, LR, RL, NC = E, E + 1, E + 2, E + 3, E + 4, E + 6, E + 7
        CT = 244; CU = 220
        F = vP
        TB = [F, F + 8]; FQ = [(E + 8, E + 12), (F + 16, F + 20)]; RB = [F + 24 + 4 * k for k in range(4)]
        a = s.half_addr(WA, RA, GA, LW, LR, VB, KB, RL, NC)
        for i in a: s.hint(i, s.bstart[28], 0)
        s.add(a)
        order = [4, 3, 2, 1, 0]; XB = [0, 2048, 16384, 18432]
        if hv: s.add(s.cmb_pre(CT, KB))
        k2 = 0
        for k, n in enumerate(order):
            pb = s.PT[k % 2]; hn = hv and n == 4; FR, FB = FQ[k % 2]
            ml = [[s.smf(j, n, pb)], [], [], []]
            for dt in range(8):
                kss = [0] if hn else ([0, 1] if dt % 2 == 0 else [1, 0])
                ml[dt // 2] += [mfma(OP(1, n, dt), ("v", pb + 4 * ks, 4), s.VT(dt, ks), OP(1, n, dt)) for ks in kss]
            if k == 0 and OPT["stm"] != 5: s.stamp(ml[0][0])
            if k == 0 and OPT["es"]: s.add(ml[0].pop(0))
            for t in range(4):
                if k < 4:
                    n2 = order[k + 1]; sq = Sx(s.sc % 5); s.sc += 1
                    s.add(s.chain(1, n2, sq, s.KT(t), False), s.expcvt(1, n2, t, sq, s.PT[(k + 1) % 2]))
                s.add(ml[t])
                if t == 0 and not hn: s.add(s.ep_l(1, n, RL, NC) + s.nbr(1, NC, RL) + [colput(LW, 2 * n, RL, NC, ["D29"]), rowget(FR, LR, 2 * n), rowget(FB, LR, 2 * n + 1)])
            if hn:
                s.add(s.cmb_give(1, CT, LW))
                s.add(s.sync([], [], ml[3][-1], extra_need=["cw"], extra_w=["cmb"], extra_r=["cgive"], off_bar=24, off_rd=OPT["tf"]))
                continue
            for H in range(2):
                X = XB[k2 % 4]
                ep = s.half_wide(1, n, H, FR, FB, TB, WA, X, ["D29"]) + s.half_out(1, n, H, RB[2 * (k2 % 2):], RA, GA, X, OPT["o1"]); k2 += 1
                for i in ep:
                    if i.k == "vmem": s.hint(i, ml[2 * H + 1][-1], OPT["tdl"], "dlm")
                s.add(ep)
            if hv and k == 1:
                X = XB[k2 % 4]
                s.add(s.cmb_col(1, CT, LW), rowget(FR, LR, 8), rowget(FB, LR, 9), rowget(CU + 8, LR, 10))
                s.add(s.half_wide(1, 4, 1, FR, FB, TB, WA, X, ["D29"], part=(CT, CU, CU + 8)), s.half_out(1, 4, 1, RB[2 * (k2 % 2):], RA, GA, X, OPT["o1"])); k2 += 1

    def build(s):
        s.bstart = {}; s.stamp_at = {0, 4, 8, 15, 16, 18, 24} if OPT["stamps"] else set()
        s.nstamp = 1
        if OPT["stm"] == 1: s.stamp_at = {0}; s.nstamp = 2
        if OPT["stm"] == 2: s.stamp_at = {0, 1, 2, 3, 4, 5, 6}
        if OPT["stm"] == 5: s.stamp_at = {0, 30}
        if OPT["stm"] == 4: s.stamp_at = {0, 22, 28}
        if OPT["stm"] == 3: s.stamp_at = {0, 15, 16, 17, 18, 19, 30}
        s.plan_stage(); s.plan_trans()
        s.start()
        for j in range(31): s.block(j)
        n0 = len(s.prog)
        s.tail()
        for k, m in enumerate([i for i in s.prog[n0:] if ismf(i)]): m.lg = OPT["gt"] if k % OPT["gp_"] == 0 else 0
        ms = [i for i in s.prog if ismf(i)]
        for m in ms[ms.index(s.bstart[15]):ms.index(s.bstart[17]) - 40]: m.lg = OPT["gr"]
        for k, m in enumerate(ms): m.mi = k
        for i, m, off, attr in s.hints: setattr(i, attr, ms[max(0, min(len(ms) - 1, m.mi + off))])
        out = schedule(s.prog, verbose=True, name=s.tag)
        if OPT["verbose"]:
            prev = None
            for j in sorted(s.bstart):
                if prev is not None: print(f"  blk {j-1}: {s.bstart[j].st - prev}", end="")
                prev = s.bstart[j].st
            print(f"\n  start {s.bstart[0].st}  tail from blk30 {out[-1].st - prev}")
        return out

def setup_common():
    t0, t1, w = "s34", "s35", "s3"
    R = Role("AA", "")
    l, m, g, a, b, c = "v16", "v17", "v18", "v19", "v20", "v21"
    o = [raw("s_cmp_lt_u32 s2, 256", w=["scc"]), br("s_cbranch_scc1", "Lgo"), raw("s_endpgm"), label("Lgo")]
    if OPT["stamps"]: o += [raw("s_memtime s[44:45]"), raw("s_memrealtime s[46:47]")]
    if OPT["rb"] != 3:
        o += [S("s_lshr_b32", t0, "s2", OPT["rb"] - 3), S("s_xor_b32", t0, t0, "s2"), S("s_and_b32", t0, t0, 8), S("s_mul_i32", t0, t0, 1 + (1 << (OPT["rb"] - 3))), S("s_xor_b32", "s2", "s2", t0)]
    o += [raw("s_load_dwordx4 s[8:11], s[0:1], 0"), raw("s_load_dwordx4 s[12:15], s[0:1], 16"),
          V("v_lshrrev_b32", "v1", 6, "v0"), V("v_and_b32", l, 63, "v0"), V("v_and_b32", m, 15, "v0"),
          V("v_readfirstlane_b32", w, "v1"), V("v_lshrrev_b32", g, 4, l)]
    if OPT["pf"]:
        o += [raw("s_getpc_b64 s[36:37]", w=["s36", "s37"]), label("Lpf"),
              S("s_lshr_b32", t0, "s2", 4), S("s_lshl_b32", t0, t0, 13), S("s_bitcmp1_b32", "s2", 3), S("s_cselect_b32", t1, "LroleY-Lpf", 0), S("s_add_u32", t0, t0, t1),
              V("v_lshl_add_u32", a, "v0", 5, t0), V("v_min_u32", a, "Lcodeend-Lpf", a), V("v_mov_b32", "v25", "s37"),
              I("v_add_co_u32 v24, vcc, s36, v19", "valu", w=["v24", "vcc"], r=["s36", "v19"]), I("v_addc_co_u32 v25, vcc, 0, v25, vcc", "valu", w=["v25", "vcc"], r=["v25", "vcc"]),
              I("global_load_dword v253, v[24:25], off", "vmem", w=["v253"], r=["v24", "v25"])]
    o += [V("v_xor_b32", a, g, m), V("v_lshlrev_b32", a, 4, a), V("v_lshl_add_u32", f"v{vDA}", g, 8, a), V("v_xor_b32", f"v{vDB}", 128, f"v{vDA}")]
    if OPT["ob"]: o += [V("v_and_b32", a, 31, l), V("v_lshlrev_b32", a, 4, a), V("v_lshrrev_b32", b, 5, l), V("v_lshl_add_u32", "v22", b, 18, a)]
    o += [S("s_lshl_b32", sW4K, w, 12), S("s_mov_b32", sOFF, sW4K), S("s_mov_b32", sOFV, sW4K)]
    o += [S("s_mul_i32", "s28", w, 5 * 4096), S("s_add_u32", "s29", "s28", 4 * 4096)]
    if OPT["ab"]: o += [S("s_lshl_b32", "s30", w, 14), S("s_add_u32", "s30", "s30", 20 * 4096), S("s_and_b32", "s31", sW4K, "0x2000"), S("s_lshr_b32", "s31", "s31", 1), S("s_add_u32", "s31", "s31", 36 * 4096)]
    else: o += [S("s_add_u32", "s30", "s28", 18 * 4096), S("s_add_u32", "s31", "s28", 22 * 4096)]
    o += [S("s_bitcmp1_b32", "s2", 3), S("s_cselect_b64", ("s", 24, 2), ("s", 30, 2), ("s", 28, 2)), S("s_cselect_b64", ("s", 26, 2), ("s", 28, 2), ("s", 30, 2))]
    o += [S("s_and_b32", t0, "s2", 7), S("s_lshr_b32", t1, "s2", 4), S("s_lshl_b32", t0, t0, 4), S("s_add_u32", t0, t0, t1),
          S("s_mul_i32", t1, t0, 2 * HEADQ), S("s_lshl_b32", t0, t0, 19), S("s_mov_b32", "s6", 2 * HEADQ), S("s_mov_b32", "s7", "0x00020000")]
    o += [raw("s_waitcnt lgkmcnt(0)", k="salu")]
    if OPT["stamps"] and OPT["stm"] == 1: o += [raw("s_memtime s[48:49]"), raw("s_memrealtime s[50:51]")]
    o += [S("s_add_u32", "s4", "s8", t1), S("s_addc_u32", "s5", "s9", 0),
          S("s_add_u32", "s8", "s10", t0), S("s_addc_u32", "s9", "s11", 0), S("s_mov_b32", "s10", 2 * HEADK), S("s_mov_b32", "s11", "0x00020000")]
    srd2 = [S("s_add_u32", "s16", "s14", t1), S("s_addc_u32", "s17", "s15", 0), S("s_mov_b32", "s18", 2 * HEADQ), S("s_mov_b32", "s19", "0x00020000"),
          S("s_add_u32", "s12", "s12", t0), S("s_addc_u32", "s13", "s13", 0), S("s_mov_b32", "s14", 2 * HEADK), S("s_mov_b32", "s15", "0x00020000")]
    vl = [bload(("v", 24 + 4 * k, 4), "v22", sV, 0, 512 * k, mod=" nt") for k in range(2)] if OPT["ob"] else []
    parts = [R.qdma(0), R.dma("K", 0), R.dma("K", 1)] if OPT["so"] else [R.dma("K", 0), R.dma("K", 1), R.qdma(0)]
    parts.insert(OPT["bp"], srd2 + vl)
    for x in parts: o += x
    if OPT["stamps"]: o += [S("s_lshl_b32", "s100", "s2", 2), S("s_add_u32", "s100", "s100", w), S("s_mov_b32", "s101", "s2")] + ([S("s_mov_b32", "s95", 0)] if OPT["stm"] == 4 else [])
    o += [S("s_add_u32", "s26", "s26", HEADQ), S("s_add_u32", "s27", "s27", HEADQ)]
    o += [S("s_add_u32", "s33", sW4K, X0), V("v_and_b32", a, 1, g), V("v_lshlrev_b32", a, 6, a), V("v_lshrrev_b32", b, 1, g), V("v_lshl_add_u32", a, b, 4, a), V("v_lshl_add_u32", f"v{vG}", m, 8, a)]
    o += [V("v_and_b32", a, 3, m), V("v_and_b32", b, 4, m), V("v_lshl_add_u32", a, b, 1, a), V("v_lshlrev_b32", a, 4, a), V("v_xor_b32", a, a, f"v{vG}")]
    for ks in range(4):
        o += [V("v_xor_b32", b, KOFF(ks), a), V("v_add_u32", f"v{vKA+ks}", KB, b), V("v_add_u32", f"v{R.TA+ks}", "s33", b), V("v_add_u32", f"v{R.TA+4+ks}", KB + 49152 - X0, f"v{R.TA+ks}")]
    o += [V("v_lshrrev_b32", a, 2, l), V("v_and_b32", b, 3, a), V("v_and_b32", c, 4, a), V("v_lshl_add_u32", b, c, 1, b), V("v_and_b32", c, 2, l), V("v_lshl_add_u32", b, c, 1, b),
          V("v_lshlrev_b32", b, 4, b), V("v_and_b32", c, 1, l), V("v_lshl_add_u32", b, c, 3, b), V("v_lshl_add_u32", b, a, 8, b), V("v_add_u32", f"v{vVA}", VB, b)]
    o += [V("v_xor_b32", f"v{vVA+dt}", (dt & 3) * 16 + (dt >> 2) * 128, f"v{vVA}") for dt in range(1, 8)]
    o += [S("s_lshl_b32", t0, w, 8), S("s_add_u32", t0, t0, FLAG), V("v_lshl_add_u32", f"v{vFA}", l, 2, t0), V("v_mov_b32", f"v{vFE}", 0)]
    fi = ds_write("ds_write_b32", f"v{vFA}", f"v{vFE}", 0); fi.wt = {"cw"}; o.append(fi)
    o += [V("v_accvgpr_write_b32", f"a{aL+r}", 0) for r in range(12)]
    o += [V("v_and_b32", a, 2, m), V("v_cmp_eq_u32", "vcc", 0, a), V("v_mov_b32", b, "0x3f803f80"), V("v_cndmask_b32", a, 0, b, "vcc"), V("v_xor_b32", b, a, b)]
    if OPT["one0"]: o += [V("v_cmp_gt_u32", "vcc", 4, m), nop(2), V("v_cndmask_b32", a, 0, a, "vcc"), V("v_cndmask_b32", b, 0, b, "vcc")]
    o += [V("v_accvgpr_write_b32", f"a{aONE+i}", a) for i in range(4)] + [V("v_accvgpr_write_b32", f"a{aONE+4+i}", b) for i in range(4)]
    o += [V("v_and_b32", a, 1, m), V("v_cmp_eq_u32", "vcc", 1, a), V("v_mov_b32", b, "0x44444444"), V("v_mov_b32", c, "0xeeeeeeee"), V("v_cndmask_b32", f"v{vIDX}", b, c, "vcc")]
    o += [S("s_mov_b32", sC, hex(CSCALE)), S("s_mov_b32", sC2, hex(CSCALE)), S("s_mov_b32", sMASK, "0xffff0000"), S("s_mov_b32", sTHR, hex(OPT["thr"])),
          S("s_mov_b64", sBAD[0], 0), S("s_mov_b64", sBAD[1], 0)]
    o += [S("s_and_b32", sD0, w, 1), S("s_lshl_b32", sFK, sD0, 13), S("s_lshl_b32", sD0, sD0, 7), S("s_or_b32", sFV, sFK, sD0)]
    if OPT["ob"]:
        x = [f"v{24+k}" for k in range(8)]; y = [f"v{32+k}" for k in range(8)]
        bo = [wait(need=x)] + [V("v_max_f32_e64", y[k], f"|{x[k]}|", f"|{x[4+k]}|") for k in range(4)]
        bo += [V("v_lshlrev_b32", x[k], 16, x[k]) for k in range(8)] + [V("v_max_f32_e64", y[4+k], f"|{x[k]}|", f"|{x[4+k]}|") for k in range(4)]
        bo += [swap("v_permlane16_swap_b32", y[k], y[4+k]) for k in range(4)] + [V("v_max_f32", y[k], y[k], y[4+k]) for k in range(4)]
        bo += [V("v_min3_f32", y[0], y[0], y[1], y[2]), V("v_min_f32", y[0], y[0], y[3])]
        bo += [V("v_min_f32_dpp", y[0], y[0], y[0], mod=f" row_ror:{k} row_mask:0xf bank_mask:0xf") for k in (8, 4, 2, 1)]
        bo += [V("v_and_b32", y[0], "0x7f800000", y[0]), V("v_min_f32", y[0], f32(2.0 ** 100), y[0]), V("v_mul_f32", y[0], f32(1.5 * 2.0 ** (OPT["kap"] - OPT["dlt"])), y[0]), nop(1)]
        bo += [V("v_readlane_b32", "s40", y[0], 0), V("v_readlane_b32", "s36", y[0], 16), V("v_readlane_b32", "s41", y[0], 32), V("v_readlane_b32", "s37", y[0], 48), nop(2),
               S("s_min_u32", "s40", "s40", "s36"), S("s_min_u32", "s41", "s41", "s37")]
    else: bo = []
    if OPT["bq"]: o += bo
    if not OPT["so"] or OPT["sd"]: o += R.qdma(1)
    if not OPT["bq"]: o += bo
    o += [S("s_bitcmp1_b32", "s2", 3), br("s_cbranch_scc1", "LroleY")]
    return o

def setup_role(R, k):
    o = [S("s_xor_b32", sD1, sD0, 128)]
    if R.half[0]:
        o += [V("v_xor_b32", f"v{vKA+ks}", sFK, f"v{vKA+ks}") for ks in range(4)] + [V("v_xor_b32", f"v{vVA+dt}", sFV, f"v{vVA+dt}") for dt in range(8)]
    return o

def finish(R, k):
    o = []
    if OPT["stamps"]:
        n = R.nstamp
        o += [raw(f"s_memtime s[{44+4*n}:{45+4*n}]"), raw(f"s_memrealtime s[{46+4*n}:{47+4*n}]"), raw("s_waitcnt vmcnt(0) lgkmcnt(0)")]; n += 1
        o += [raw(f"s_memtime s[{44+4*n}:{45+4*n}]"), raw(f"s_memrealtime s[{46+4*n}:{47+4*n}]"), raw("s_waitcnt lgkmcnt(0)")]; n += 1
        assert n <= 13
        if OPT["pi"] >= 0:
            i, j, kk = OPT["pi"], OPT["pj"], OPT["pk_"]
            if not OPT["pall"]: o += [raw("s_and_b32 s101, s101, 0xf7"), raw("s_cmp_lg_u32 s101, 100"), raw(f"s_cbranch_scc1 Lfin{k}")]
            o += [raw(f"s_sub_u32 s36, s{44+4*j+2*kk}, s{44+4*i+2*kk}"), raw("s_mul_i32 s36, s36, 10") if kk else raw("s_lshr_b32 s36, s36, 1"),
                  raw("s_min_u32 s36, s36, 200000"), raw("s_memrealtime s[38:39]"), raw("s_waitcnt lgkmcnt(0)")] + ([raw(f"s_mov_b32 s36, {OPT['pfix']}"), raw("s_mov_b32 s38, s46")] if OPT["pfix"] else []) + [label(f"Lspin{k}"), raw("s_memrealtime s[40:41]"), raw("s_waitcnt lgkmcnt(0)"),
                  raw("s_sub_u32 s37, s40, s38"), raw("s_cmp_lt_u32 s37, s36"), raw(f"s_cbranch_scc1 Lspin{k}")]
        else:
            o += [raw("; STAMPS"), raw("s_load_dwordx2 s[40:41], s[0:1], 40"), raw("v_mov_b32 v16, 0")]
            for x in range(n): o += [raw(f"v_writelane_b32 v16, s{44+4*x}, {2*x}"), raw(f"v_writelane_b32 v16, s{46+4*x}, {2*x+1}")]
            o += [raw(f"v_writelane_b32 v16, {n}, 63"), raw("v_writelane_b32 v16, s95, 62"), raw("s_lshl_b32 s100, s100, 8"), raw("v_mbcnt_lo_u32_b32 v17, -1, 0"), raw("v_mbcnt_hi_u32_b32 v17, -1, v17"), raw("v_lshlrev_b32 v17, 2, v17"),
                  raw("s_waitcnt lgkmcnt(0)"), raw("s_mov_b32 s42, 0x100000"), raw("s_mov_b32 s43, 0x00020000"), raw("buffer_store_dword v16, v17, s[40:43], s100 offen"), raw("s_waitcnt vmcnt(0)")]
    o += [label(f"Lfin{k}")]
    if OPT["slow"]: o += [raw("s_or_b64 s[36:37], s[30:31], s[32:33]"), raw("s_cbranch_scc1 Lslow")]
    o += [raw("s_endpgm")] + R.stubs
    return o

MACROS = """.macro qa d,a,b,c
v_mfma_f32_16x16x32_bf16 v[\\d:\\d+3], a[\\a:\\a+3], v[\\b:\\b+3], v[\\c:\\c+3]
.endm
.macro qb d,a,b,c
v_mfma_f32_16x16x32_bf16 v[\\d:\\d+3], a[\\a:\\a+3], a[\\b:\\b+3], v[\\c:\\c+3]
.endm
.macro pv d,a,b
v_mfma_f32_16x16x32_bf16 a[\\d:\\d+3], a[\\a:\\a+3], v[\\b:\\b+3], a[\\d:\\d+3]
.endm
.macro pw d,a,b
v_mfma_f32_16x16x32_bf16 v[\\d:\\d+3], a[\\a:\\a+3], v[\\b:\\b+3], v[\\d:\\d+3]
.endm
.macro pa d,a,b
v_mfma_f32_16x16x32_bf16 a[\\d:\\d+3], v[\\a:\\a+3], a[\\b:\\b+3], a[\\d:\\d+3]
.endm
.macro pb d,a,b
v_mfma_f32_16x16x32_bf16 v[\\d:\\d+3], v[\\a:\\a+3], a[\\b:\\b+3], v[\\d:\\d+3]
.endm
.macro ex r
v_exp_f32 v\\r, v\\r
.endm
.macro cv d,a,b
v_cvt_pk_bf16_f32 v\\d, v\\a, v\\b
.endm
.macro lk d,a,o
ds_read_b128 a[\\d:\\d+3], v\\a offset:\\o
.endm
.macro lv d,a,o
ds_read_b64_tr_b16 a[\\d:\\d+1], v\\a offset:\\o
.endm
"""
def compact(txt):
    M = "    v_mfma_f32_16x16x32_bf16 "
    txt = re.sub(M + r"v\[(\d+):\d+\], a\[(\d+):\d+\], v\[(\d+):\d+\], v\[\1:\d+\]", r"pw \1,\2,\3", txt)
    txt = re.sub(M + r"v\[(\d+):\d+\], a\[(\d+):\d+\], v\[(\d+):\d+\], v\[(\d+):\d+\]", r"qa \1,\2,\3,\4", txt)
    txt = re.sub(M + r"v\[(\d+):\d+\], a\[(\d+):\d+\], a\[(\d+):\d+\], v\[(\d+):\d+\]", r"qb \1,\2,\3,\4", txt)
    txt = re.sub(M + r"a\[(\d+):\d+\], a\[(\d+):\d+\], v\[(\d+):\d+\], a\[\1:\d+\]", r"pv \1,\2,\3", txt)
    txt = re.sub(M + r"a\[(\d+):\d+\], v\[(\d+):\d+\], a\[(\d+):\d+\], a\[\1:\d+\]", r"pa \1,\2,\3", txt)
    txt = re.sub(M + r"v\[(\d+):\d+\], v\[(\d+):\d+\], a\[(\d+):\d+\], v\[\1:\d+\]", r"pb \1,\2,\3", txt)
    txt = re.sub(r"    v_exp_f32 v(\d+), v\1\n", r"ex \1\n", txt)
    txt = re.sub(r"    v_cvt_pk_bf16_f32 v(\d+), v(\d+), v(\d+)", r"cv \1,\2,\3", txt)
    txt = re.sub(r"    ds_read_b128 a\[(\d+):\d+\], v(\d+) offset:(\d+)", r"lk \1,\2,\3", txt)
    txt = re.sub(r"    ds_read_b64_tr_b16 a\[(\d+):\d+\], v(\d+) offset:(\d+)", r"lv \1,\2,\3", txt)
    return txt.replace("\n    ", "\n")

def build():
    STC[0] = OPT["stc"]; IMPR[0] = OPT["im"]; BW[0] = OPT["bw"]; NOPW[0] = OPT["nw"]; TA_LIM[0] = OPT["tal"]; VM_LAT[0] = OPT["vml"]
    com = setup_common()
    body = ""
    txt = []
    for k, types in enumerate((("AB", "BA") if OPT["ab"] else ("AA", "AA"))):
        R = Role(types, "XY"[k])
        main = R.build()
        su = setup_role(R, k)
        for i in com + su: i.st = -1000
        tr = insert_waits(com + su + main)
        while fix_hazards(tr, verbose=OPT["verbose"] > 1): pass
        e = verify2(tr); assert e == 0, e
        nc = len(com)
        if OPT["loopt"]:
            tr = [i for i in tr if i.cmt != "check"]; R.stubs = []
            i0 = tr.index(R.bstart[23]); i1 = tr.index(R.bstart[27])
            tr = tr[:i0] + [raw(f"s_mov_b32 s42, {OPT['loopt']}"), label(f"Llt{k}")] + tr[i0:i1] + [raw("s_sub_u32 s20, s20, 65536"), raw("s_sub_u32 s43, s43, 65536"), raw("s_sub_u32 s42, s42, 1"), raw("s_cmp_lg_u32 s42, 0"), raw(f"s_cbranch_scc1 Llt{k}")] + tr[i1:]
        if OPT["nost"]: tr = [i for i in tr if not (i.k == "vmem" and "store" in i.t and i.st > 75000)]
        if OPT["nodsw"]: tr = [i for i in tr if not (i.k == "dsw" and "b64" in i.t and i.st > 75000)]
        if OPT["nowait"]: tr = [i for i in tr if not (i.k == "wait" and i.st > 20000)]
        if OPT["nosync"]: tr = [i for i in tr if not ("v255" in i.t and i.st > 20000)]
        if OPT["nodma"]: tr = [i for i in tr if not (i.k == "vmem" and i.ring and i.ring[1] >= 4)]
        if OPT["samekv"]:
            for i in tr:
                if i.t == "s_add_u32 s20, s20, 16384": i.t = "s_xor_b32 s20, s20, 16384"
        if OPT["nosmf"]: tr = [i for i in tr if i.tag != "smf"]
        if OPT["nocvt"]: tr = [i for i in tr if not (i.t.startswith("v_cvt_pk") and 136 <= int(i.t.split()[1][1:-1]) < 216 and i.st > 8000)]
        if OPT["nobar"]: tr = [i for i in tr if i.k != "bar"]
        if OPT["noxor"]: tr = [i for i in tr if "0x2000, " not in i.t]
        if OPT["nolds"]: tr = [i for i in tr if not (i.k == "ds" and i.ring and i.ring[1] >= 2)]
        if OPT["noexp"]: tr = [i for i in tr if "v_exp" not in i.t]
        assert all(a is b for a, b in zip(tr[:nc], com))
        txt.append("".join(i.text() for i in tr[nc:] + finish(R, k)))
        if OPT["verbose"]: print("  nops:", sum(i.nop for i in tr), "waits:", sum(i.k == "wait" for i in tr))
    slow = ""
    if OPT["slow"]:
        import slowpath4 as slowpath
        slow = slowpath.text(sys.modules[__name__])
    body = "".join(i.text() for i in com) + txt[0] + slow + ".p2align 6\nLroleY:\n" + txt[1] + "Lcodeend:\n    s_endpgm\n" + (".fill 4096, 4, 0xbf810000\n" if OPT["spf"] else "")
    return compact(body) if OPT["compact"] else body

HEAD = f"""; flash-attention forward, B8 H32 Sq608 Sk1024 D128 bf16 (emitted by my own scheduling script)
; @launch grid=(256,1,1) block=(256,1,1) lds=163840
.amdgcn_target "amdgcn-amd-amdhsa--gfx950"
{MACROS}.text
.globl {NAME}_kernel
.p2align 8
.type {NAME}_kernel,@function
{NAME}_kernel:
"""
TAIL = f""".section .rodata,"a"
.p2align 6
.amdhsa_kernel {NAME}_kernel
  .amdhsa_next_free_vgpr 512
  .amdhsa_next_free_sgpr 102
  .amdhsa_accum_offset 256
  .amdhsa_group_segment_fixed_size 0
  .amdhsa_kernarg_size 48
  .amdhsa_user_sgpr_count 2
  .amdhsa_user_sgpr_kernarg_segment_ptr 1
  .amdhsa_system_sgpr_workgroup_id_x 1
  .amdhsa_float_denorm_mode_32 3
.end_amdhsa_kernel
"""
if __name__ == "__main__":
    open(sys.argv[1], "w").write(HEAD + build() + TAIL)
```

```python
import sys, struct, math, re
from asmir import *
from sched import *

NAME = "standalone__mha_softmax__near_ridge"
OPT = dict(sp=0, es=1, dfr=0, po=0, im=7, bw=10, stc=64, gt=0, gp_=1, gr=0, nw=40, hl=30, df0=17, df1=2, tf=12, sm=0, to=0, pfix=0, eh=1, vb=0, c4=0, swp=1, gl=1, tl=0, h0=115, h1=30, h2=195, h3=30, hd=260, nost=0, nodsw=0, ep=0, epo=0, l0=40, l1=110, l2=90, l3=40, sv=0, sd=0, asap=1, kq=4, rb=3, kalt=1, sg0=1, sg1=140, vml=3500, tal=0, bp=0, bq=1, ob=1, kap=7, obias=0, dlt=10, olast=0, o2=0, one0=0, cz=0, nosnake=0, so=0, tch=0, u0=66, u1=19, u2=19, ov=1, ddl=130, cd=1, loopt=0, nowait=0, nosync=0, spf=0, spd=6144, sdl=24, tdl=16, fl=1, flr=20, stm=0, samekv=0, nosmf=0, nocvt=0, nodma=0, nobar=0, noxor=0, nolds=0, noexp=0, xd=0, thr=0x5f800000, lagc=50, lagmax=240, stamps=0, kv=1, kvy=1, q=1, o0=4, o1=4, ab=1, pf=1, e0=7, pk=1, pi=-1, pj=0, pk_=1, pall=0, verbose=0, compact=1, slow=1)
MODS = ["", " nt", " sc1", " sc1 nt", " sc0 sc1", " sc0 sc1 nt", " sc0", " sc0 nt"]
for a in sys.argv[2:]:
    k, v = a.split("="); assert k in OPT, k; OPT[k] = int(v)
vKA = 0; vVA = 4; vDA, vDB = 12, 13; vIDX = 14; vG = 15
vS = 16; vNM = 36; vQA = 56; vP = 136; vQB = 216; vT = 252
aO = 0; aL = 160; aONE = 172; aV = 180; aK = 196; aQB = 212
sQ, sK, sV, sO = 4, 8, 12, 16
sOFF = "s20"; sW4K = "s21"; sC = "s22"; sC2 = "s23"
sROW = [["s24", "s25"], ["s26", "s27"]]
sMASK = "s28"; sTHR = "s29"; sBAD = [("s", 30, 2), ("s", 32, 2)]; sFK = "s34"; sFV = "s35"; sD0 = "s3"; sD1 = "s2"
sOFV = "s43"; sB = ["s40", "s41"]
sTMP = [f"s{i}" for i in range(36, 40)]
HEADQ = 608 * 256; HEADK = 1024 * 256
CSCALE = struct.unpack("<I", struct.pack("<f", math.log2(math.e) / math.sqrt(128.0)))[0]
X1 = 0; X0 = 16384; KB = 32768; VB = 98304; FLAG = 1024
vFA, vFE = 254, 255
_st = [0]
def stmp():
    _st[0] = (_st[0] + 1) % len(sTMP); return sTMP[_st[0]]
def SS(op, d, *src):
    i = S(op, d, *src); i.w.discard("scc"); return i

def Sx(n): return ("v", vS + 4 * n, 4)
def NM(n): return ("v", vNM + 4 * n, 4)
def Q(p, n, ks):
    f = 4 * n + ks
    if p == 0: return ("v", vQA + 4 * f, 4)
    return ("a", aQB + 4 * f, 4) if f < 11 else ("v", vQB + 4 * (f - 11), 4)
def P(par, n, ks): return ("v", vP + 40 * par + 8 * n + 4 * ks, 4)
def O(n, dt): return ("a", aO + 32 * n + 4 * dt, 4)
def OP(p, n, dt):
    if p == 1 and n < 2 and OPT["ov"]: return ("v", vQA + 32 * n + 4 * dt, 4)
    return O(n, dt)
def mul2(d, a, m):
    if m[0] == "s": l = [V("v_mul_f32", f"v{d+k}", m, f"v{a+k}") for k in range(2)]; f = V("v_pk_mul_f32", ("v", d, 2), ("v", a, 2), ("s", 22, 2))
    else:
        r = int(m[1:]); l = [V("v_mul_f32", f"v{d+k}", f"v{a+k}", m) for k in range(2)]
        f = V("v_pk_mul_f32", ("v", d, 2), ("v", a, 2), ("v", r & ~1, 2), mod=" op_sel:[0,1] op_sel_hi:[1,1]" if r & 1 else " op_sel_hi:[1,0]")
        f.r.discard(f"v{r^1}")
    if OPT["pk"]: l[0].fuse = l[1].fuse = f
    return l
def f32(x): return hex(struct.unpack("<I", struct.pack("<f", float(x)))[0])
def fmap(d, a, m, c):
    l = [V("v_fma_f32", f"v{d+k}", f"v{a+k}", f"v{m+k}", f"v{c+k}") for k in range(2)]
    if OPT["pk"]: l[0].fuse = l[1].fuse = V("v_pk_fma_f32", ("v", d, 2), ("v", a, 2), ("v", m, 2), ("v", c, 2))
    return l
def colput(LW, slot, a, b, gate=()):
    i = I(f"ds_write2_b32 v{LW}, v{a}, v{b} offset0:{16*slot} offset1:{16*slot+16}", "dsw", r=[f"v{LW}", f"v{a}", f"v{b}"])
    i.xw = {f"Fq{slot}", f"Fq{slot+1}"}; i.xr = set(gate); return i
def rowget(d, LR, slot):
    i = ds_read("ds_read_b128", ("v", d, 4), f"v{LR}", 64 * slot); i.xr = {f"Fq{slot}"}; return i
def KOFF(ks): return (ks & 1) * 32 + (ks >> 1) * 128
def L(n): return ("a", aL + 4 * (n // 2), 4)
def Lr(n): return aL + 4 * (n // 2) + 2 * (n % 2)
def ONE(n): return ("a", aONE + 4 * (n % 2), 4)

class Role:
    def __init__(s, types, tag):
        s.half = [t == "B" for t in types]; s.tag = tag
        s.kst = [[s.half[0], 0] for _ in range(4)]; s.vst = [[s.half[0], 0] for _ in range(8)]
        s.prog = []; s.hints = []; s.nstamp = 0; s.epoch = 0; s.stubs = []
    def add(s, *l):
        for x in l:
            if isinstance(x, list): s.prog += x
            else: s.prog.append(x)
    def hint(s, i, m, off, attr="nb"): s.hints.append((i, m, off, attr)); return i
    def addr(s, st, reg, half, h, sflip):
        o = []
        if st[0] != half:
            if st[1]: o.append(V("v_xor_b32", reg, "0x2000", reg)); st[1] = 0
            o.append(V("v_xor_b32", reg, sflip, reg)); st[0] = half
        if not half: return o, h * 8192
        if st[1] != h: o.append(V("v_xor_b32", reg, "0x2000", reg)); st[1] = h
        return o, 0
    def kread(s, dst, b, t, ks):
        o, off = s.addr(s.kst[ks], f"v{vKA+ks}", s.half[b // 16], t >> 1, sFK)
        i = ds_read("ds_read_b128", dst, f"v{vKA+ks}", (b % 4) * 16384 + off + (t & 1) * 4096)
        i.ring = ("K", b); i.xr = {f"cK{b}", f"oK{b}"}; i.wt = {f"rK{b}"}
        return o + [i]
    def vread(s, dst, b, dt, ks):
        o, off = s.addr(s.vst[dt], f"v{vVA+dt}", s.half[b // 16], ks, sFV)
        for u in range(2):
            i = ds_read("ds_read_b64_tr_b16", (dst[0], dst[1] + 2 * u, 2), f"v{vVA+dt}", (b % 4) * 16384 + off + u * 4096)
            i.ring = ("V", b); i.xr = {f"cV{b}", f"oV{b}"}; i.wt = {f"rV{b}"}
            o.append(i)
        return o
    def vks(s, b, dt, pref):
        if s.half[b // 16] and s.vst[dt][0]: return [s.vst[dt][1], s.vst[dt][1] ^ 1]
        return pref
    def dma(s, kind, b, gate=None):
        o = []
        so = sOFF if kind == "K" else sOFV
        gl = OPT["gl"] and b >= 4; gp = 96 if kind == "K" else 98
        if gl:
            if b == 4:
                srd = sK if kind == "K" else sV
                o.append(raw(f"s_add_u32 s{gp}, s{srd}, {so}\n    s_addc_u32 s{gp+1}, s{srd+1}, 0", w=[f"s{gp}"], r=[so])); o[-1].cmt = "two"
            o.append(raw(f"s_add_u32 s{gp}, s{gp}, 16384\n    s_addc_u32 s{gp+1}, s{gp+1}, 0", w=[f"s{gp}"], r=[f"s{gp}"])); o[-1].cmt = "two"
        elif b > 0: o.append(SS("s_add_u32", so, so, 16384))
        o.append(SS("s_add_u32", "m0", sW4K, (b % 4) * 16384 + (VB if kind == "V" else KB)))
        for k in range(4):
            i = dma(f"v{vDA if k % 2 == 0 else vDB}", sK if kind == "K" else sV, so, k * 1024, mod=MODS[OPT["kvy" if s.tag == "Y" and b >= 3 else "kv"]])
            if gl:
                va = f"v{vDA if k % 2 == 0 else vDB}"
                i = I(f"global_load_lds_dwordx4 {va}, s[{gp}:{gp+1}] offset:{k*1024}{MODS[OPT['kv']]}", "vmem", r=[va, f"s{gp}", "m0"])
            i.ring = (kind, b); i.wt = {f"d{kind}{b}"}; i.xw = {f"i{kind}{b}"}
            if gate: i.xr = {gate}
            o.append(i)
        return o
    def barrier(s, close, opn, gate=None, extra_need=(), extra_w=(), extra_r=()):
        w = wait(need=[f"r{x}" for x in close] + [f"d{x}" for x in opn] + list(extra_need))
        w.xw = {f"c{x}" for x in close} | {"barseq"}; w.xr = {f"i{x}" for x in opn} | set(extra_r)
        b = bar(); b.xr = {"barseq"}; b.xw = {f"o{x}" for x in opn} | ({gate} if gate else set()) | set(extra_w)
        return [w, b]
    def sync(s, close, opn, m, gate=None, extra_need=(), extra_w=(), extra_r=(), off_bar=0, off_rd=0):
        if not OPT["fl"]:
            bl = s.barrier(close, opn, gate, extra_need, extra_w, extra_r); s.hint(bl[0], m, off_bar); return bl
        s.epoch += 1; e = s.epoch; tag = f"{s.tag}{e}"
        w = wait(need=[f"d{x}" for x in opn]); w.xr = {f"i{x}" for x in opn}; w.xw = {"flseq"}; s.hint(w, m, 0)
        a = ds_write("ds_write_b32", f"v{vFA}", f"v{vFE}", 0); a.xr = {"flseq"} | set(extra_r); a.xw = {f"c{x}" for x in close}; a.cmt = "arrive"
        r = ds_read("ds_read_b32", f"v{vFE}", f"v{vDA}", FLAG); s.hint(r, m, off_rd)
        c = V("v_cmp_gt_u32", "vcc", e, f"v{vFE}")
        b = I(f"s_cbranch_vccnz Ls{tag}\nLr{tag}:", "br", r=["vcc", f"v{vDA}"], w=["vcc", f"v{vFE}"]); b.cmt = "check"
        b.xw = {f"o{x}" for x in opn} | ({gate} if gate else set()) | set(extra_w)
        s.stubs += [label(f"Ls{tag}"), raw(f"ds_read_b32 v{vFE}, v{vDA} offset:{FLAG}"), raw("s_waitcnt lgkmcnt(0)"), raw(f"v_cmp_gt_u32 vcc, {e}, v{vFE}"), raw("s_nop 0"),
                    raw(f"s_cbranch_vccnz Ls{tag}")] + ([raw("s_add_u32 s95, s95, 1")] if OPT["stm"] == 4 else []) + [raw(f"s_branch Lr{tag}")]
        if OPT["cd"]: s.hint(b, m, off_rd + 8 + OPT["cd"])
        mv = V("v_mov_b32", f"v{vFE}", e)
        for i in (w, a): s.hint(i, m, max(0, off_rd - 10), "dlm")
        return ([w] if opn else []) + [mv, a, r, c, b]
    def chain(s, p, n, sq, kf, czero):
        order = [0, 1, 2, 3] if n % 2 == 0 or OPT["nosnake"] else [3, 2, 1, 0]
        return [mfma(sq, kf(ks), Q(p, n, ks), sq if k else ("0" if czero or OPT["cz"] else NM(n))) for k, ks in enumerate(order)]
    def rowmax(s, n, sq, a, b):
        x = [f"v{sq[1]+r}" for r in range(4)]
        l = [V("v_max3_f32", a, x[0], x[1], x[2]), V("v_max_f32", a, a, x[3])] + ([V("v_add_f32", a, hex(struct.unpack("<I", struct.pack("<f", OPT["dlt"] + OPT["dfr"] / 10.0))[0]), a)] if OPT["dlt"] else []) + [V("v_mov_b32", b, a),
             swap("v_permlane16_swap_b32", a, b), V("v_max_f32", a, a, b), V("v_mov_b32", b, a), swap("v_permlane32_swap_b32", a, b)]
        l += [V("v_min_f32", f"v{vNM+4*n+r}", "-" + a, "-" + b) for r in range(4)]
        l += [V("v_add_f32", x[r], x[r], f"v{vNM+4*n}") for r in range(4)]
        return l
    def expcvt(s, par, n, t, sq, pb=None):
        l = []
        if pb is None: pb = vP + 40 * par + 8 * n
        for h in range(2):
            x0, x1 = f"v{sq[1]+2*h}", f"v{sq[1]+2*h+1}"
            l += [V("v_exp_f32", x0, x0), V("v_exp_f32", x1, x1), V("v_cvt_pk_bf16_f32", f"v{pb+2*t+h}", x0, x1)]
        return l
    def smf(s, b, n, pb=None):
        if pb is None: pb = vP + 40 * (b % 2) + 8 * n
        if s.half[b // 16] and n == 4: return mfma(L(4), ONE(4), ("v", pb, 4), L(4))
        return smfmac(L(n), ONE(n), ("v", pb, 8), f"v{vIDX}")
    def scale(s, src, dst, ta, pk=False):
        a, b = f"v{ta}", f"v{ta+1}"
        l = [V("v_lshlrev_b32", a, 16, src), V("v_and_b32", b, sMASK, src)]
        l += mul2(ta, ta, sC)
        if dst[0] == "v": return l + [V("v_cvt_pk_bf16_f32", dst, a, b)]
        return l + [V("v_cvt_pk_bf16_f32", a, a, b), V("v_accvgpr_write_b32", dst, a)]
    def rowoff(s, p, n, extra=None):
        t = stmp()
        i = SS("s_add_u32", t, sROW[p][0], n * 4096) if n < 4 else SS("s_mov_b32", t, sROW[p][1])
        if extra is None: return t, [i]
        return t, [i, SS("s_add_u32", t, t, extra)]
    def stamp(s, m=None, off=0):
        if not OPT["stamps"]: return
        k = s.nstamp; s.nstamp += 1; assert k < 14
        a = raw(f"s_memtime s[{44+4*k}:{45+4*k}]"); b = raw(f"s_memrealtime s[{46+4*k}:{47+4*k}]")
        for i in (a, b):
            if m is not None: s.hint(i, m, off); s.hint(i, m, off + 2, "dlm")
            else: i.xw = {"seq"}
        s.add(a, b)

    QREG = [(KB + 32768, ("K", 2)), (VB + 16384, ("V", 1)), (VB + 32768, ("V", 2)), (KB + 49152, ("K", 3)), (X0, None)]
    TA = 236
    def qdma(s, n):
        t, o = s.rowoff(0, n)
        o.append(SS("s_add_u32", "m0", sW4K, s.QREG[n][0]))
        for k in range(4):
            i = dma(f"v{vDA if k % 2 == 0 else vDB}", sQ, t, k * 1024, mod=MODS[OPT["q"]])
            i.wt = {f"dQ{n}"}; i.priv = (n, s.QREG[n][1]); o.append(i)
        return o
    def start(s):
        half = s.half[0]; TA = s.TA
        def seq(l):
            for i in l:
                if i.k in ("vmem", "wait", "bar"): i.xw = i.xw | {"seq"}
                if OPT["asap"] and i.k in ("vmem", "salu"): i.cmt = "asap"
            return l
        KF = lambda b, t: (lambda ks: ("a", 96 + 16 * t + 4 * ks, 4) if b == 0 else Q(1, t, ks))
        s.KF = KF
        def kpart(bs, dm, order, sq):
            if OPT["stm"] == 1 and 0 in bs: s.stamp()
            bl = seq(s.barrier([], [f"K{b}" for b in bs], extra_need=["cw"]))
            s.add(bl[0], seq(dm), bl[1]) if not OPT["so"] else s.add(bl, seq(dm))
            if OPT["stm"] == 1 and 0 in bs: s.stamp()
            for k, (b, t) in enumerate(order):
                for ks in range(4):
                    l = s.kread(KF(b, t)(ks), b, t, ks)
                    if sq and k < OPT["kq"]: l[-1].xr = l[-1].xr | {"seq"}
                    s.add(l)
        if not OPT["so"]:
            kpart([0, 1], s.qdma(2) + (s.qdma(3) if OPT["sd"] else []), ((0, 0), (0, 1), (0, 2), (0, 3), (1, 2), (1, 3), (1, 0), (1, 1)), True)
        nxt = [s.qdma(3), s.qdma(4), s.dma("V", 0), s.dma("K", 2), s.dma("V", 1)]
        late = []; EP = {}
        if OPT["ep"]:
            nxt = [nxt[2], nxt[0], nxt[1], nxt[3], nxt[4]]
            EP = [{5: [0], 6: [1, 2], 7: [3]}, {6: [0, 1], 7: [2, 3]}, {5: [0, 1], 6: [2, 3]}, {6: [0, 1], 7: [2], 8: [3]}, {6: [0, 1], 8: [2, 3]}, {5: [0, 1], 7: [2, 3]}][OPT["epo"]]
        def grpA(q):
            rd, mm = s.pvgroup(0, q, [0, 1, 2], aK if q % 2 == 0 else aV, lambda n: ("a", 28, 4) if OPT["ob"] else "0")
            if q < 3: mm.append(s.smf(0, q))
            s.add(rd, mm); return mm
        if OPT["sv"] & 1: nxt[1], nxt[2] = nxt[2], nxt[1]
        if OPT["sv"] & 2: late = nxt[3] + nxt[4]; nxt[3] = []; nxt[4] = []
        if OPT["sv"] & 4: late = nxt[4]; nxt[4] = nxt[3]; nxt[3] = []
        if OPT["sd"]: nxt = nxt[1:] + [[]]
        if OPT["so"]: nxt[0] = s.qdma(1 + OPT["sd"])
        s.sc = 0
        for n in range(5):
            w = wait(need=[f"dQ{n}"]); w.xw = {"seq", f"oQ{n}"}; s.add(w)
            if n == 0 or n == 4 or OPT["stm"] == 1: s.stamp()
            base = TA + (4 if n in (1, 2, 3) else 0); off = s.QREG[n][0] - (KB + 49152 if n in (1, 2, 3) else X0)
            for ks in range(4):
                i = ds_read("ds_read_b128", Q(0, n, ks), f"v{base+ks}", off); i.xr = {f"oQ{n}", f"cQ{n}", "seq"}; i.priv = (n, s.QREG[n][1]); i.wt = {f"rQ{n}"}; s.add(i)
            s.add(seq(nxt[n]))
            for r in range(16):
                q = f"v{vQA+16*n+r}"; s.add(s.scale(q, q, TA + 8 + 2 * (r % 4), pk=OPT["pk"]))
            for q in EP.get(2 * n, []): grpA(q)
            if OPT["so"] == 1 and n == 0:
                s.prog[-1].xw = {"seq"}
                kpart([0, 1], s.qdma(2) + s.qdma(3), ((0, 0), (0, 1), (0, 2), (0, 3), (1, 2), (1, 3), (1, 0), (1, 1)), False)
            if OPT["so"] == 2 and n == 0:
                s.prog[-1].xw = {"seq"}
                kpart([0], s.qdma(2 + OPT["sd"]), ((0, 0), (0, 1), (0, 2), (0, 3)), False)
            for b in range(2 if n < 4 else 1):
                if OPT["so"] == 2 and n == 0 and b == 1:
                    ch[0].xw = {"seq"}
                    kpart([1], s.qdma(3 + OPT["sd"]), ((1, 0), (1, 1), (1, 2), (1, 3)), False)
                for t in range(2 if half and n == 4 else 4):
                    sq = Sx(s.sc % 5); s.sc += 1
                    ch = s.chain(0, n, sq, KF(b, t), t == 0 and b == 0); s.add(ch)
                    if t == 0 and b == 0:
                        s.add(s.rowmax(n, sq, f"v{TA+16}", f"v{TA+17}"))
                        if n == 4 and not OPT["ep"]:
                            ch[-1].xw = {"seq"}
                            s.add(seq(s.barrier(["K0", "K1"], ["V0"], gate="D-1")), seq(late))
                    s.add(s.expcvt(b, n, t, sq))
            if n < 4: ch[-1].xw = {"seq"}
            if OPT["ep"] and n == 2: s.add(seq(s.barrier(["K0", "K1"], ["V0"], gate="D-1")))
            for q in EP.get(2 * n + 1, []): grpA(q)[-1].xw = {"seq"}

    def nbr(s, p, d, rl):
        return [V("v_mul_f32_e64", f"v{d}", "-" + sB[p], f"v{rl}")] if OPT["ob"] else []
    def ep_l(s, p, n, rl, tmp):
        a, b = f"v{rl}", f"v{tmp}"
        o = [V("v_accvgpr_read_b32", a, f"a{Lr(n)}")]
        if not (s.half[p] and n == 4): o += [V("v_accvgpr_read_b32", b, f"a{Lr(n)+1}"), V("v_add_f32", a, a, b)]
        o += [V("v_cmp_nge_f32", ("s", 42, 2), sTHR, a), SS("s_or_b64", sBAD[p], sBAD[p], ("s", 42, 2))]
        if not (s.half[p] and n == 4): o += [V("v_rcp_f32", a, a)]
        return o
    def lane16(s, d):
        return [V("v_mbcnt_lo_u32_b32", d, -1, 0), V("v_mbcnt_hi_u32_b32", d, -1, d), V("v_lshlrev_b32", d, 4, d)]
    def cmb_pre(s, T, base):
        return s.lane16(f"v{T}") + [V("v_add_u32", f"v{T}", sW4K, f"v{T}"), V("v_add_u32", f"v{T}", base, f"v{T}"), V("v_xor_b32", f"v{T+1}", "0x1000", f"v{T}"),
             V("v_mov_b32", f"v{T+2}", f"v{vNM+16}")]
    def cmb_give(s, p, T, LW):
        o = s.ep_l(p, 4, T + 3, T + 4)
        w = [colput(LW, 12, T + 2, T + 3)] + [ds_write("ds_write_b128", f"v{T}", O(4, dt), 16384 + dt * 1024) for dt in range(4)]
        for i in w: i.wt = {"cw"}; i.xw = i.xw | {"cgive"}
        return o + w
    def cmb_col(s, p, T, LW):
        nm, l, nm2, l2, x, y = [f"v{T+k}" for k in (2, 3, 4, 5, 6, 7)]
        r = I(f"ds_read2_b32 v[{T+4}:{T+5}], {y} offset0:{16*12} offset1:{16*13}", "ds", w=[nm2, l2], r=[y]); r.xr = {"cmb"}
        return [V("v_xor_b32", y, "0x1000", f"v{LW}"), r, V("v_cmp_nge_f32", ("s", 42, 2), sTHR, l2), SS("s_or_b64", sBAD[p], sBAD[p], ("s", 42, 2)),
                V("v_min_f32", x, nm, nm2), V("v_sub_f32", nm, x, nm), V("v_sub_f32", nm2, x, nm2), V("v_exp_f32", nm, nm), V("v_exp_f32", nm2, nm2),
                V("v_mul_f32", x, l, nm), V("v_fma_f32", x, l2, nm2, x), V("v_rcp_f32", x, x), V("v_mul_f32", nm, nm, x), V("v_mul_f32", nm2, nm2, x),
                V("v_add_f32", y, nm, nm2), V("v_mul_f32_e64", y, "-" + sB[p], y), colput(LW, 8, T + 2, T + 7), colput(LW, 10, T + 4, T + 4)]
    def half_addr(s, WA, RA, GA, LW, LR, base, base2, t0, t1):
        t0, t1, wa, ra = f"v{t0}", f"v{t1}", f"v{WA}", f"v{RA}"
        t = stmp(); t2 = stmp()
        a = [SS("s_add_u32", t, sW4K, base), SS("s_add_u32", t2, sW4K, base2), V("v_mbcnt_lo_u32_b32", t0, -1, 0), V("v_mbcnt_hi_u32_b32", t0, -1, t0),
             V("v_and_b32", t1, 15, t0), V("v_lshl_add_u32", f"v{LW}", t1, 2, t2), V("v_lshl_add_u32", wa, t1, 3, t), V("v_lshrrev_b32", t1, 4, t0), V("v_lshl_add_u32", wa, t1, 9, wa),
             V("v_lshl_add_u32", f"v{LR}", t1, 4, t2),
             V("v_lshl_add_u32", ra, t1, 8, t), V("v_and_b32", t1, 3, t0), V("v_lshl_add_u32", ra, t1, 6, ra), V("v_and_b32", t1, 12, t0), V("v_lshl_add_u32", ra, t1, 1, ra),
             V("v_and_b32", t1, 7, t0), V("v_lshlrev_b32", t1, 4, t1), V("v_lshrrev_b32", t0, 3, t0), V("v_lshl_add_u32", f"v{GA}", t0, 8, t1)]
        return a
    def half_put(s, pk, r, WA, X, gate):
        w = ds_write("ds_write_b64", f"v{WA}", ("v", pk, 2), X + r * 128); w.xr = set(gate); w.xw = {f"Xd{X}_{r}"}; return [w]
    def half_wide(s, p, n, H, FR, FB, TB, WA, X, gate, part=None):
        o = []
        for r in (0, 2):
            tb = TB[r // 2]
            if OP(p, n, 0)[0] == "a":
                x = [tb + 2 * j for j in range(4)]
                o += [V("v_accvgpr_read_b32", f"v{tb+2*j+k}", f"a{OP(p, n, 4*H+j)[1]+r+k}") for j in range(4) for k in range(2)]
            else: x = [OP(p, n, 4 * H + j)[1] + r for j in range(4)]
            for j in range(4): o += fmap(x[j], x[j], FR + r, FB + r)
            if part:
                T, U, FA = part
                rr = [ds_read("ds_read_b64", ("v", U + 2 * j, 2), f"v{T+1}", 16384 + j * 1024 + r * 4) for j in range(4)]
                for i in rr: i.xr = {"cmb"}
                o += rr
                for j in range(4): o += fmap(x[j], U + 2 * j, FA + r, x[j])
            o += [V("v_cvt_pk_bf16_f32", f"v{tb+d}", f"v{x[ja]+k}", f"v{x[ja+1]+k}") for d, ja, k in ((0, 0, 0), (2, 0, 1), (1, 2, 0), (3, 2, 1))]
            o += s.half_put(tb, r, WA, X, gate) + s.half_put(tb + 2, r + 1, WA, X, gate)
        return o
    def half_slim(s, p, n, H, FR, FB, T4, WA, X):
        o = []
        for r in range(4):
            o += [V("v_accvgpr_read_b32", f"v{T4+j}", f"a{O(n, 4*H+j)[1]+r}") for j in range(4)]
            o += [V("v_fma_f32", f"v{T4+j}", f"v{T4+j}", f"v{FR+r}", f"v{FB+r}") for j in range(4)]
            o += [V("v_cvt_pk_bf16_f32", f"v{T4+k}", f"v{T4+2*k}", f"v{T4+2*k+1}") for k in range(2)] + s.half_put(T4, r, WA, X, [])
        return o
    def half_out(s, p, n, H, rb, RA, GA, X, mod):
        if s.half[p]: t, o = s.rowoff(p, n, sD1 if H else sD0); off = 0
        else: t, o = s.rowoff(p, n); off = 128 * H
        for k in range(2):
            for u in range(2):
                i = ds_read("ds_read_b64_tr_b16", ("v", rb[k] + 2 * u, 2), f"v{RA}", X + k * 1024 + u * 32); i.xr = {f"Xd{X}_{r}" for r in range(4)}; o.append(i)
            o.append(bstore(("v", rb[k], 4), f"v{GA}", sO, t, off + k * 2048, mod=MODS[mod]))
            if p == 1 and OPT["sp"]: o[-1].cmt = "prio"
        return o
    def plan_trans(s):
        hv = s.half[0]; E = vQA + 64
        WA, RA, GA, LR, FR, FB, T4 = E, E + 1, E + 2, E + 3, E + 4, E + 8, E + 12
        s.LW = LW = vQA + 24
        s.CT = CT = vQA + 56; TB = [vQA + 16, vQA + 16 if hv else vQA + 48]; XB = [0] if hv else [0, X0 - 2048, X0]; cnt = [0]
        def fin(l, dl):
            for i in l:
                if i.k == "vmem": s.hint(i, s.bstart[15], dl, "dlm")
            return l
        def wide(n, H, dl):
            X = XB[cnt[0] % len(XB)]; cnt[0] += 1
            rb = [vQA + 8, vQA + 12] if H == 0 else ([T4, vQA + 52] if hv else [vQA + 56, vQA + 60])
            l = [rowget(FR, LR, 2 * n), rowget(FB, LR, 2 * n + 1)]
            l += s.half_wide(0, n, H, FR, FB, TB, WA, X, []) + s.half_out(0, n, H, rb, RA, GA, X, OPT["o0"])
            if n == 2: l += [V("v_accvgpr_write_b32", f"a{O(2, 4*H+3)[1]+r}", sB[1]) for r in range(4)]
            return fin(l, dl)
        def comb(dl):
            l = [rowget(FR, LR, 8), rowget(FB, LR, 9), rowget(T4, LR, 10)]
            l += s.half_wide(0, 4, 1, FR, FB, TB, WA, 0, [], part=(CT, vQA + 48, T4)) + s.half_out(0, 4, 1, [T4, vQA + 60], RA, GA, 0, OPT["o0"])
            return fin(l, dl)
        def slim(n, H, newf, dl):
            return fin(([rowget(FR, LR, 2 * n), rowget(FB, LR, 2 * n + 1)] if newf else []) + s.half_slim(0, n, H, FR, FB, T4, WA, 0) + s.half_out(0, n, H, [T4, T4], RA, GA, 0, OPT["o0"]), dl)
        urg = [2, 3] if hv else [2, 3, 4]
        s.ins = {(15, 0, 0): lambda: [V("v_mov_b32", f"v{vQA+28+r}", sB[1]) for r in range(4)] + s.half_addr(WA, RA, GA, LW, LR, X1 + 2048, X1, vQA + 2, vQA + 3) + (s.cmb_pre(CT, X1) if hv else []),
                 (15, 0, 1): lambda: sum((s.ep_l(0, n, vQA + 4, vQA + 5) + s.nbr(0, vQA + 5, vQA + 4) + [colput(LW, 2 * n, vQA + 4, vQA + 5)] for n in urg + [0, 1]), []),
                 (15, 2, 0): lambda: sum((wide(n, 0, OPT["h0"] + OPT["h1"] * k) for k, n in enumerate(urg)), []),
                 (16, 0, 0): lambda: sum((wide(n, 1, OPT["h2"] + OPT["h3"] * k) for k, n in enumerate(urg)), []) + (comb(OPT["h2"] + OPT["h3"] * 2) if hv else [])
                                     + sum((slim(k // 2, k % 2, k % 2 == 0, 330 + (k + 1) * OPT["hd"]) for k in range(4)), [])}

    def pvgroup(s, j, q, tiles, vbuf, cinit):
        pv = j // 16; hv = s.half[pv]; rd = []; mm = []
        for h, pref in ((0, [0, 1]), (1, [0, 1] if hv else [1, 0])):
            for ks in s.vks(j, 2 * q + h, pref): rd += s.vread(("a", vbuf + 8 * h + 4 * ks, 4), j, 2 * q + h, ks)
        if OPT["po"] and j % 16 and j != 30:
            for n in tiles:
                hs = [0, 1] if n % 2 == 0 or OPT["po"] == 2 else [1, 0]
                for x, h in enumerate(hs):
                    for ks in ([0] if hv and n == 4 else ([0, 1] if x == 0 else [1, 0])):
                        mm.append(mfma(OP(pv, n, 2 * q + h), P(j % 2, n, ks), ("a", vbuf + 8 * h + 4 * ks, 4), OP(pv, n, 2 * q + h)))
            return rd, mm
        for h in range(2):
            dt = 2 * q + h
            for n in (tiles if h == 0 else reversed(tiles)):
                if OPT["c4"] and j % 16 != 0:
                    if h == 0:
                        seq4 = [(0, 0), (0, 1), (1, 0), (1, 1)][::1 if n % 2 == 0 else -1]
                        if hv and n == 4: seq4 = [(0, 0), (1, 0)]
                        for hh, ks in seq4:
                            d_ = OP(pv, n, 2 * q + (j % 2))
                            mm.append(mfma(d_, ("a", vbuf + 8 * hh + 4 * ks, 4), P(j % 2, n if hh == 0 else (n + 2) % 4, ks), d_))
                    continue
                kss = [0] if hv and n == 4 else ([0, 1] if (n + h) % 2 == 0 or OPT["nosnake"] else [1, 0])
                for k_, ks in enumerate(kss):
                    ab = [("a", vbuf + 8 * h + 4 * ks, 4), P(j % 2, n, ks)][::-1 if OPT["swp"] else 1]
                    mm.append(mfma(OP(pv, n, dt), ab[0], ab[1], cinit(n) if j % 16 == 0 and k_ == 0 else OP(pv, n, dt)))
        return rd, mm
    def tq(s, b, q): return q ^ 2 if (OPT["kalt"] and s.half[b // 16] and b % 2 == 1 and b != 31) else q
    def block(s, j):
        b = j + 1; p = b // 16; pv = j // 16
        hq, hv = s.half[p], s.half[pv]
        first = (j % 16 == 0); trans = (j == 15)
        smfs = [{0: [0], 1: [1], 2: [2, 3], 3: [4]}, {0: [0, 1], 1: [2, 3], 2: [4], 3: []}, {0: [0, 1, 2, 3, 4], 1: [], 2: [], 3: []}][OPT["sm"]]
        if j == 0 and OPT["ep"]: smfs = {0: [], 1: [], 2: [], 3: [3, 4]}
        MX = vQA; CT = s.CT
        if j == 30: s.tail_pre()
        for q in range(4):
            vbuf = aK if (j == 0 and q % 2 == 0) else aV
            def cinit(n):
                if not OPT["ob"]: return "0"
                if j == 0: return ("a", aQB, 4)
                return O(2, 3 if q < 2 else 7) if OP(1, n, 0)[0] == "a" else ("v", vQA + 28, 4)
            rd, pvm = s.pvgroup(j, q, [3, 4] if j == 0 and OPT["ep"] else [0, 1, 2, 3, 4], vbuf, cinit)
            s.add(rd)
            if (j, q, 0) in s.ins: s.add(s.ins[(j, q, 0)]())
            cz = (b % 16 == 0 and q == 0)
            if j == 0:
                work = [(4, t, s.KF(1, t), None) for t in ([[0, 1], [2], [3], []] if not hq else [[0, 1], [], [], []])[q]]
            elif j == 30:
                work = [(4, q, s.KT(q), s.PT[0])] if not (hq and q >= 2) else []
            else: work = [(n, s.tq(b, q), (lambda ks: ("a", aK + 4 * ks, 4)), None) for n in range(4 if hq and s.tq(b, q) >= 2 else 5)]
            ch = []; sqs = []
            for n, t, kf, pb in work:
                if j in (0, 30): sq = Sx(s.sc % 5); s.sc += 1
                else: sq = Sx(n)
                sqs.append(sq); ch += s.chain(p, n, sq, kf, cz)
            s.add(ch); m0 = (ch + pvm)[0]
            if OPT["vb"] and j not in (0, 30):
                for k, i in enumerate([x for x in rd if x.k == "ds"]): s.hint(i, m0, -6 + k); s.hint(i, m0, -5 + k, "dlm")
                for k, i in enumerate(getattr(s, "lastk", [])): s.hint(i, m0, -10 + k - (OPT["vb"] - 1)); s.hint(i, m0, -9 + k - (OPT["vb"] - 1), "dlm")
            if j == 0 and q == 0 and OPT["ob"]: s.add([V("v_accvgpr_write_b32", f"a{aQB+r}", sB[0]) for r in range(4)])
            if q == 0:
                s.bstart[j] = m0
                if j in s.stamp_at: s.stamp(m0)
                lag = 0
                if s.half[0] and not s.half[1]: lag = min(OPT["lagmax"], (16 * (j if j <= 15 else 31 - j) * OPT["lagc"]) // 100)
                bat = []
                if j == 0: bat.append((s.dma("K", 3, gate="D-1") + s.dma("V", 2, gate="D-1"), OPT["l0"])); lag = OPT["l1"]
                if j == 1: lag = OPT["l2"]
                if j == 2: lag = OPT["l3"]
                dl = []
                if j + 4 <= 31: dl += s.dma("K", j + 4, gate=f"D{j-1}")
                if j + 3 <= 31: dl += s.dma("V", j + 3, gate=f"D{j-1}")
                bat.append((dl, lag))
                for dl, lag in bat:
                    for k, i in enumerate([x for x in dl if x.k == "vmem"]):
                        s.hint(i, m0, lag + 30 + 2 * k, "dlm")
                        if lag: s.hint(i, m0, lag - 20)
                    s.add(dl)
            qlen = len(ch) + len(pvm) + 1
            if OPT["spf"] and (q == 1 or (OPT["spf"] > 1 and q == 3) or OPT["spf"] > 2):
                for i in (raw("s_getpc_b64 s[40:41]", w=["s40"]), raw(f"s_load_dword s42, s[40:41], {OPT['spd']}", r=["s40"])):
                    s.hint(i, m0, 8); s.hint(i, m0, 12, "dlm"); s.add(i)
            k = 0
            for (n, t, kf, pb), sq in zip(work, sqs):
                if cz: s.add(s.rowmax(n, sq, f"v{MX}", f"v{MX+1}"))
                l = s.expcvt(b % 2, n, t, sq, pb)
                for i in l:
                    if i.k == "trans" and j not in (0, 30) and OPT["eh"]: s.hint(i, m0, OPT["e0"] + (k * qlen) // (4 * len(work))); k += 1
                s.add(l)
            if q == 3 and j < 30:
                opn = [f"K{j+2}", f"V{j+1}"] + (["V31"] if j == 29 else [])
                cm = trans and hv
                kw = dict(gate=f"D{j}", extra_need=["cw"] if cm else [], extra_w=["cmb"] if cm else [], extra_r=["cgive"] if cm else [])
                if j == 0:
                    bl = s.barrier(["V0"], opn, **kw); s.hint(bl[0], m0, 0); s.add(bl)
                else: s.add(s.sync([f"K{b}", f"V{j}"], opn, m0, off_bar=len(ch) - 3, off_rd=OPT["flr"] - (20 - len(ch)), **kw))
                if cm: s.add(s.cmb_col(pv, CT, s.LW))
            n0 = len(s.prog)
            if j < 30:
                if q < 3 and j > 0:
                    for ks in range(4): s.add(s.kread(("a", aK + 4 * ks, 4), b, s.tq(b, q + 1), ks))
                elif q == 3:
                    for ks in range(4): s.add(s.kread(("a", aK + 4 * ks, 4), b + 1, s.tq(b + 1, 0), ks))
            s.lastk = [x for x in s.prog[n0:] if x.k == "ds"]
            if trans and q == 0:
                s.add([s.smf(j, n) for n in range(5)])
            if (j, q, 1) in s.ins: s.add(s.ins[(j, q, 1)]())
            s.add(pvm)
            if not trans: s.add([s.smf(j, n) for n in smfs[q]])
            if trans:
                if hv and q == 1: s.add(s.cmb_give(pv, CT, s.LW))
                if q == 1: s.add([V("v_accvgpr_write_b32", f"a{aL+r}", 0) for r in range(10)])
            if q == 1 and j in s.stage: s.add(s.stage[j](m0))

    def plan_stage(s):
        s.stage = {}
        def g(m):
            o = []
            def ld(f, dst, k=0):
                t, oo = s.rowoff(1, f // 4)
                i = bload(dst, f"v{vG}", sQ, t, KOFF(f % 4), mod=MODS[OPT["q"]]); i.cmt = "strided"; s.hint(i, m, (k // 2) * OPT["sg1"])
                return oo + [i]
            def sc(f, src):
                d = Q(1, f // 4, f % 4); l = []
                for r in range(4):
                    if src[0] == "a": l += [V("v_accvgpr_read_b32", f"v{vT+1}", f"a{src[1]+r}")] + s.scale(f"v{vT+1}", f"a{d[1]+r}", vT)
                    else: l += s.scale(f"v{src[1]+r}", f"{d[0]}{d[1]+r}", vT)
                return l
            land = lambda f: ("v", vQB + 4 * (f + 1), 4) if f < 8 else Q(1, f // 4, f % 4)
            for f in range(12): o += ld(f, land(f), f)
            for f in range(0, 8, 2): o += sc(f, land(f)) + sc(f + 1, land(f + 1)) + ld(12 + f, land(12 + f)) + ld(13 + f, land(13 + f))
            for f in range(8, 20): o += sc(f, land(f))
            return o
        s.stage[OPT["sg0"]] = g

    def tail_pre(s):
        hv = s.half[1]; Z = ("a", 0) if OPT["ov"] else ("v", vQA)
        s.KT = lambda t: (lambda ks: ("a", aK + 4 * ks, 4) if t == 0 else (("v", vP + 40 + 16 * (t - 1) + 4 * ks, 4) if t < 3 else (Z[0], Z[1] + 48 + 4 * ks, 4)))
        s.VT = lambda dt, ks: (Z[0], Z[1] + 8 * dt + 4 * ks, 4) if dt < 6 else ("a", aV + 8 * (dt - 6) + 4 * ks, 4)
        s.PT = [vP + 72, 236]
        for t in range(1, 4):
            for ks in range(4): s.add(s.kread(s.KT(t)(ks), 31, t, ks))
    def tail(s):
        j = 31; hv = s.half[1]
        for dt in range(8):
            for ks in s.vks(j, dt, [0, 1]): s.add(s.vread(s.VT(dt, ks), j, dt, ks))
        E = vQA + 64
        WA, RA, GA, LW, LR, RL, NC = E, E + 1, E + 2, E + 3, E + 4, E + 6, E + 7
        CT = 244; CU = 220
        F = vP
        TB = [F, F + 8]; FQ = [(E + 8, E + 12), (F + 16, F + 20)]; RB = [F + 24 + 4 * k for k in range(4)]
        a = s.half_addr(WA, RA, GA, LW, LR, VB, KB, RL, NC)
        for i in a: s.hint(i, s.bstart[28], 0)
        s.add(a)
        order = [4, 3, 2, 1, 0]; XB = [0, 2048, 16384, 18432]
        if hv: s.add(s.cmb_pre(CT, KB))
        k2 = 0
        for k, n in enumerate(order):
            pb = s.PT[k % 2]; hn = hv and n == 4; FR, FB = FQ[k % 2]
            ml = [[s.smf(j, n, pb)], [], [], []]
            for dt in range(8):
                kss = [0] if hn else ([0, 1] if dt % 2 == 0 else [1, 0])
                ml[dt // 2] += [mfma(OP(1, n, dt), ("v", pb + 4 * ks, 4), s.VT(dt, ks), OP(1, n, dt)) for ks in kss]
            if k == 0 and OPT["stm"] != 5: s.stamp(ml[0][0])
            if k == 0 and OPT["es"]: s.add(ml[0].pop(0))
            for t in range(4):
                if k < 4:
                    n2 = order[k + 1]; sq = Sx(s.sc % 5); s.sc += 1
                    s.add(s.chain(1, n2, sq, s.KT(t), False), s.expcvt(1, n2, t, sq, s.PT[(k + 1) % 2]))
                s.add(ml[t])
                if t == 0 and not hn: s.add(s.ep_l(1, n, RL, NC) + s.nbr(1, NC, RL) + [colput(LW, 2 * n, RL, NC, ["D29"]), rowget(FR, LR, 2 * n), rowget(FB, LR, 2 * n + 1)])
            if hn:
                s.add(s.cmb_give(1, CT, LW))
                s.add(s.sync([], [], ml[3][-1], extra_need=["cw"], extra_w=["cmb"], extra_r=["cgive"], off_bar=24, off_rd=OPT["tf"]))
                continue
            for H in range(2):
                X = XB[k2 % 4]
                ep = s.half_wide(1, n, H, FR, FB, TB, WA, X, ["D29"]) + s.half_out(1, n, H, RB[2 * (k2 % 2):], RA, GA, X, OPT["o1"]); k2 += 1
                for i in ep:
                    if i.k == "vmem": s.hint(i, ml[2 * H + 1][-1], OPT["tdl"], "dlm")
                s.add(ep)
            if hv and k == 1:
                X = XB[k2 % 4]
                s.add(s.cmb_col(1, CT, LW), rowget(FR, LR, 8), rowget(FB, LR, 9), rowget(CU + 8, LR, 10))
                s.add(s.half_wide(1, 4, 1, FR, FB, TB, WA, X, ["D29"], part=(CT, CU, CU + 8)), s.half_out(1, 4, 1, RB[2 * (k2 % 2):], RA, GA, X, OPT["o1"])); k2 += 1

    def build(s):
        s.bstart = {}; s.stamp_at = {0, 4, 8, 15, 16, 18, 24} if OPT["stamps"] else set()
        s.nstamp = 1
        if OPT["stm"] == 1: s.stamp_at = {0}; s.nstamp = 2
        if OPT["stm"] == 2: s.stamp_at = {0, 1, 2, 3, 4, 5, 6}
        if OPT["stm"] == 5: s.stamp_at = {0, 30}
        if OPT["stm"] == 4: s.stamp_at = {0, 22, 28}
        if OPT["stm"] == 3: s.stamp_at = {0, 15, 16, 17, 18, 19, 30}
        s.plan_stage(); s.plan_trans()
        s.start()
        for j in range(31): s.block(j)
        n0 = len(s.prog)
        s.tail()
        for k, m in enumerate([i for i in s.prog[n0:] if ismf(i)]): m.lg = OPT["gt"] if k % OPT["gp_"] == 0 else 0
        ms = [i for i in s.prog if ismf(i)]
        for m in ms[ms.index(s.bstart[15]):ms.index(s.bstart[17]) - 40]: m.lg = OPT["gr"]
        for k, m in enumerate(ms): m.mi = k
        for i, m, off, attr in s.hints: setattr(i, attr, ms[max(0, min(len(ms) - 1, m.mi + off))])
        out = schedule(s.prog, verbose=True, name=s.tag)
        if OPT["verbose"]:
            prev = None
            for j in sorted(s.bstart):
                if prev is not None: print(f"  blk {j-1}: {s.bstart[j].st - prev}", end="")
                prev = s.bstart[j].st
            print(f"\n  start {s.bstart[0].st}  tail from blk30 {out[-1].st - prev}")
        return out

def setup_common():
    t0, t1, w = "s34", "s35", "s3"
    R = Role("AA", "")
    l, m, g, a, b, c = "v16", "v17", "v18", "v19", "v20", "v21"
    o = [raw("s_cmp_lt_u32 s2, 256", w=["scc"]), br("s_cbranch_scc1", "Lgo"), raw("s_endpgm"), label("Lgo")]
    if OPT["stamps"]: o += [raw("s_memtime s[44:45]"), raw("s_memrealtime s[46:47]")]
    if OPT["rb"] != 3:
        o += [S("s_lshr_b32", t0, "s2", OPT["rb"] - 3), S("s_xor_b32", t0, t0, "s2"), S("s_and_b32", t0, t0, 8), S("s_mul_i32", t0, t0, 1 + (1 << (OPT["rb"] - 3))), S("s_xor_b32", "s2", "s2", t0)]
    o += [raw("s_load_dwordx4 s[8:11], s[0:1], 0"), raw("s_load_dwordx4 s[12:15], s[0:1], 16"),
          V("v_lshrrev_b32", "v1", 6, "v0"), V("v_and_b32", l, 63, "v0"), V("v_and_b32", m, 15, "v0"),
          V("v_readfirstlane_b32", w, "v1"), V("v_lshrrev_b32", g, 4, l)]
    if OPT["pf"]:
        o += [raw("s_getpc_b64 s[36:37]", w=["s36", "s37"]), label("Lpf"),
              S("s_lshr_b32", t0, "s2", 4), S("s_lshl_b32", t0, t0, 13), S("s_bitcmp1_b32", "s2", 3), S("s_cselect_b32", t1, "LroleY-Lpf", 0), S("s_add_u32", t0, t0, t1),
              V("v_lshl_add_u32", a, "v0", 5, t0), V("v_min_u32", a, "Lcodeend-Lpf", a), V("v_mov_b32", "v25", "s37"),
              I("v_add_co_u32 v24, vcc, s36, v19", "valu", w=["v24", "vcc"], r=["s36", "v19"]), I("v_addc_co_u32 v25, vcc, 0, v25, vcc", "valu", w=["v25", "vcc"], r=["v25", "vcc"]),
              I("global_load_dword v253, v[24:25], off", "vmem", w=["v253"], r=["v24", "v25"])]
    o += [V("v_xor_b32", a, g, m), V("v_lshlrev_b32", a, 4, a), V("v_lshl_add_u32", f"v{vDA}", g, 8, a), V("v_xor_b32", f"v{vDB}", 128, f"v{vDA}")]
    if OPT["ob"]: o += [V("v_and_b32", a, 31, l), V("v_lshlrev_b32", a, 4, a), V("v_lshrrev_b32", b, 5, l), V("v_lshl_add_u32", "v22", b, 18, a)]
    o += [S("s_lshl_b32", sW4K, w, 12), S("s_mov_b32", sOFF, sW4K), S("s_mov_b32", sOFV, sW4K)]
    o += [S("s_mul_i32", "s28", w, 5 * 4096), S("s_add_u32", "s29", "s28", 4 * 4096)]
    if OPT["ab"]: o += [S("s_lshl_b32", "s30", w, 14), S("s_add_u32", "s30", "s30", 20 * 4096), S("s_and_b32", "s31", sW4K, "0x2000"), S("s_lshr_b32", "s31", "s31", 1), S("s_add_u32", "s31", "s31", 36 * 4096)]
    else: o += [S("s_add_u32", "s30", "s28", 18 * 4096), S("s_add_u32", "s31", "s28", 22 * 4096)]
    o += [S("s_bitcmp1_b32", "s2", 3), S("s_cselect_b64", ("s", 24, 2), ("s", 30, 2), ("s", 28, 2)), S("s_cselect_b64", ("s", 26, 2), ("s", 28, 2), ("s", 30, 2))]
    o += [S("s_and_b32", t0, "s2", 7), S("s_lshr_b32", t1, "s2", 4), S("s_lshl_b32", t0, t0, 4), S("s_add_u32", t0, t0, t1),
          S("s_mul_i32", t1, t0, 2 * HEADQ), S("s_lshl_b32", t0, t0, 19), S("s_mov_b32", "s6", 2 * HEADQ), S("s_mov_b32", "s7", "0x00020000")]
    o += [raw("s_waitcnt lgkmcnt(0)", k="salu")]
    if OPT["stamps"] and OPT["stm"] == 1: o += [raw("s_memtime s[48:49]"), raw("s_memrealtime s[50:51]")]
    o += [S("s_add_u32", "s4", "s8", t1), S("s_addc_u32", "s5", "s9", 0),
          S("s_add_u32", "s8", "s10", t0), S("s_addc_u32", "s9", "s11", 0), S("s_mov_b32", "s10", 2 * HEADK), S("s_mov_b32", "s11", "0x00020000")]
    srd2 = [S("s_add_u32", "s16", "s14", t1), S("s_addc_u32", "s17", "s15", 0), S("s_mov_b32", "s18", 2 * HEADQ), S("s_mov_b32", "s19", "0x00020000"),
          S("s_add_u32", "s12", "s12", t0), S("s_addc_u32", "s13", "s13", 0), S("s_mov_b32", "s14", 2 * HEADK), S("s_mov_b32", "s15", "0x00020000")]
    vl = [bload(("v", 24 + 4 * k, 4), "v22", sV, 0, 512 * k, mod=" nt") for k in range(2)] if OPT["ob"] else []
    parts = [R.qdma(0), R.dma("K", 0), R.dma("K", 1)] if OPT["so"] else [R.dma("K", 0), R.dma("K", 1), R.qdma(0)]
    parts.insert(OPT["bp"], srd2 + vl)
    for x in parts: o += x
    if OPT["stamps"]: o += [S("s_lshl_b32", "s100", "s2", 2), S("s_add_u32", "s100", "s100", w), S("s_mov_b32", "s101", "s2")] + ([S("s_mov_b32", "s95", 0)] if OPT["stm"] == 4 else [])
    o += [S("s_add_u32", "s26", "s26", HEADQ), S("s_add_u32", "s27", "s27", HEADQ)]
    o += [S("s_add_u32", "s33", sW4K, X0), V("v_and_b32", a, 1, g), V("v_lshlrev_b32", a, 6, a), V("v_lshrrev_b32", b, 1, g), V("v_lshl_add_u32", a, b, 4, a), V("v_lshl_add_u32", f"v{vG}", m, 8, a)]
    o += [V("v_and_b32", a, 3, m), V("v_and_b32", b, 4, m), V("v_lshl_add_u32", a, b, 1, a), V("v_lshlrev_b32", a, 4, a), V("v_xor_b32", a, a, f"v{vG}")]
    for ks in range(4):
        o += [V("v_xor_b32", b, KOFF(ks), a), V("v_add_u32", f"v{vKA+ks}", KB, b), V("v_add_u32", f"v{R.TA+ks}", "s33", b), V("v_add_u32", f"v{R.TA+4+ks}", KB + 49152 - X0, f"v{R.TA+ks}")]
    o += [V("v_lshrrev_b32", a, 2, l), V("v_and_b32", b, 3, a), V("v_and_b32", c, 4, a), V("v_lshl_add_u32", b, c, 1, b), V("v_and_b32", c, 2, l), V("v_lshl_add_u32", b, c, 1, b),
          V("v_lshlrev_b32", b, 4, b), V("v_and_b32", c, 1, l), V("v_lshl_add_u32", b, c, 3, b), V("v_lshl_add_u32", b, a, 8, b), V("v_add_u32", f"v{vVA}", VB, b)]
    o += [V("v_xor_b32", f"v{vVA+dt}", (dt & 3) * 16 + (dt >> 2) * 128, f"v{vVA}") for dt in range(1, 8)]
    o += [S("s_lshl_b32", t0, w, 8), S("s_add_u32", t0, t0, FLAG), V("v_lshl_add_u32", f"v{vFA}", l, 2, t0), V("v_mov_b32", f"v{vFE}", 0)]
    fi = ds_write("ds_write_b32", f"v{vFA}", f"v{vFE}", 0); fi.wt = {"cw"}; o.append(fi)
    o += [V("v_accvgpr_write_b32", f"a{aL+r}", 0) for r in range(12)]
    o += [V("v_and_b32", a, 2, m), V("v_cmp_eq_u32", "vcc", 0, a), V("v_mov_b32", b, "0x3f803f80"), V("v_cndmask_b32", a, 0, b, "vcc"), V("v_xor_b32", b, a, b)]
    if OPT["one0"]: o += [V("v_cmp_gt_u32", "vcc", 4, m), nop(2), V("v_cndmask_b32", a, 0, a, "vcc"), V("v_cndmask_b32", b, 0, b, "vcc")]
    o += [V("v_accvgpr_write_b32", f"a{aONE+i}", a) for i in range(4)] + [V("v_accvgpr_write_b32", f"a{aONE+4+i}", b) for i in range(4)]
    o += [V("v_and_b32", a, 1, m), V("v_cmp_eq_u32", "vcc", 1, a), V("v_mov_b32", b, "0x44444444"), V("v_mov_b32", c, "0xeeeeeeee"), V("v_cndmask_b32", f"v{vIDX}", b, c, "vcc")]
    o += [S("s_mov_b32", sC, hex(CSCALE)), S("s_mov_b32", sC2, hex(CSCALE)), S("s_mov_b32", sMASK, "0xffff0000"), S("s_mov_b32", sTHR, hex(OPT["thr"])),
          S("s_mov_b64", sBAD[0], 0), S("s_mov_b64", sBAD[1], 0)]
    o += [S("s_and_b32", sD0, w, 1), S("s_lshl_b32", sFK, sD0, 13), S("s_lshl_b32", sD0, sD0, 7), S("s_or_b32", sFV, sFK, sD0)]
    if OPT["ob"]:
        x = [f"v{24+k}" for k in range(8)]; y = [f"v{32+k}" for k in range(8)]
        bo = [wait(need=x)] + [V("v_max_f32_e64", y[k], f"|{x[k]}|", f"|{x[4+k]}|") for k in range(4)]
        bo += [V("v_lshlrev_b32", x[k], 16, x[k]) for k in range(8)] + [V("v_max_f32_e64", y[4+k], f"|{x[k]}|", f"|{x[4+k]}|") for k in range(4)]
        bo += [swap("v_permlane16_swap_b32", y[k], y[4+k]) for k in range(4)] + [V("v_max_f32", y[k], y[k], y[4+k]) for k in range(4)]
        bo += [V("v_min3_f32", y[0], y[0], y[1], y[2]), V("v_min_f32", y[0], y[0], y[3])]
        bo += [V("v_min_f32_dpp", y[0], y[0], y[0], mod=f" row_ror:{k} row_mask:0xf bank_mask:0xf") for k in (8, 4, 2, 1)]
        bo += [V("v_and_b32", y[0], "0x7f800000", y[0]), V("v_min_f32", y[0], f32(2.0 ** 100), y[0]), V("v_mul_f32", y[0], f32(1.5 * 2.0 ** (OPT["kap"] - OPT["dlt"])), y[0]), nop(1)]
        bo += [V("v_readlane_b32", "s40", y[0], 0), V("v_readlane_b32", "s36", y[0], 16), V("v_readlane_b32", "s41", y[0], 32), V("v_readlane_b32", "s37", y[0], 48), nop(2),
               S("s_min_u32", "s40", "s40", "s36"), S("s_min_u32", "s41", "s41", "s37")]
    else: bo = []
    if OPT["bq"]: o += bo
    if not OPT["so"] or OPT["sd"]: o += R.qdma(1)
    if not OPT["bq"]: o += bo
    o += [S("s_bitcmp1_b32", "s2", 3), br("s_cbranch_scc1", "LroleY")]
    return o

def setup_role(R, k):
    o = [S("s_xor_b32", sD1, sD0, 128)]
    if R.half[0]:
        o += [V("v_xor_b32", f"v{vKA+ks}", sFK, f"v{vKA+ks}") for ks in range(4)] + [V("v_xor_b32", f"v{vVA+dt}", sFV, f"v{vVA+dt}") for dt in range(8)]
    return o

def finish(R, k):
    o = []
    if OPT["stamps"]:
        n = R.nstamp
        o += [raw(f"s_memtime s[{44+4*n}:{45+4*n}]"), raw(f"s_memrealtime s[{46+4*n}:{47+4*n}]"), raw("s_waitcnt vmcnt(0) lgkmcnt(0)")]; n += 1
        o += [raw(f"s_memtime s[{44+4*n}:{45+4*n}]"), raw(f"s_memrealtime s[{46+4*n}:{47+4*n}]"), raw("s_waitcnt lgkmcnt(0)")]; n += 1
        assert n <= 13
        if OPT["pi"] >= 0:
            i, j, kk = OPT["pi"], OPT["pj"], OPT["pk_"]
            if not OPT["pall"]: o += [raw("s_and_b32 s101, s101, 0xf7"), raw("s_cmp_lg_u32 s101, 100"), raw(f"s_cbranch_scc1 Lfin{k}")]
            o += [raw(f"s_sub_u32 s36, s{44+4*j+2*kk}, s{44+4*i+2*kk}"), raw("s_mul_i32 s36, s36, 10") if kk else raw("s_lshr_b32 s36, s36, 1"),
                  raw("s_min_u32 s36, s36, 200000"), raw("s_memrealtime s[38:39]"), raw("s_waitcnt lgkmcnt(0)")] + ([raw(f"s_mov_b32 s36, {OPT['pfix']}"), raw("s_mov_b32 s38, s46")] if OPT["pfix"] else []) + [label(f"Lspin{k}"), raw("s_memrealtime s[40:41]"), raw("s_waitcnt lgkmcnt(0)"),
                  raw("s_sub_u32 s37, s40, s38"), raw("s_cmp_lt_u32 s37, s36"), raw(f"s_cbranch_scc1 Lspin{k}")]
        else:
            o += [raw("; STAMPS"), raw("s_load_dwordx2 s[40:41], s[0:1], 40"), raw("v_mov_b32 v16, 0")]
            for x in range(n): o += [raw(f"v_writelane_b32 v16, s{44+4*x}, {2*x}"), raw(f"v_writelane_b32 v16, s{46+4*x}, {2*x+1}")]
            o += [raw(f"v_writelane_b32 v16, {n}, 63"), raw("v_writelane_b32 v16, s95, 62"), raw("s_lshl_b32 s100, s100, 8"), raw("v_mbcnt_lo_u32_b32 v17, -1, 0"), raw("v_mbcnt_hi_u32_b32 v17, -1, v17"), raw("v_lshlrev_b32 v17, 2, v17"),
                  raw("s_waitcnt lgkmcnt(0)"), raw("s_mov_b32 s42, 0x100000"), raw("s_mov_b32 s43, 0x00020000"), raw("buffer_store_dword v16, v17, s[40:43], s100 offen"), raw("s_waitcnt vmcnt(0)")]
    o += [label(f"Lfin{k}")]
    if OPT["slow"]: o += [raw("s_or_b64 s[36:37], s[30:31], s[32:33]"), raw("s_cbranch_scc1 Lslow")]
    o += [raw("s_endpgm")] + R.stubs
    return o

MACROS = """.macro qa d,a,b,c
v_mfma_f32_16x16x32_bf16 v[\\d:\\d+3], a[\\a:\\a+3], v[\\b:\\b+3], v[\\c:\\c+3]
.endm
.macro qb d,a,b,c
v_mfma_f32_16x16x32_bf16 v[\\d:\\d+3], a[\\a:\\a+3], a[\\b:\\b+3], v[\\c:\\c+3]
.endm
.macro pv d,a,b
v_mfma_f32_16x16x32_bf16 a[\\d:\\d+3], a[\\a:\\a+3], v[\\b:\\b+3], a[\\d:\\d+3]
.endm
.macro pw d,a,b
v_mfma_f32_16x16x32_bf16 v[\\d:\\d+3], a[\\a:\\a+3], v[\\b:\\b+3], v[\\d:\\d+3]
.endm
.macro pa d,a,b
v_mfma_f32_16x16x32_bf16 a[\\d:\\d+3], v[\\a:\\a+3], a[\\b:\\b+3], a[\\d:\\d+3]
.endm
.macro pb d,a,b
v_mfma_f32_16x16x32_bf16 v[\\d:\\d+3], v[\\a:\\a+3], a[\\b:\\b+3], v[\\d:\\d+3]
.endm
.macro ex r
v_exp_f32 v\\r, v\\r
.endm
.macro cv d,a,b
v_cvt_pk_bf16_f32 v\\d, v\\a, v\\b
.endm
.macro lk d,a,o
ds_read_b128 a[\\d:\\d+3], v\\a offset:\\o
.endm
.macro lv d,a,o
ds_read_b64_tr_b16 a[\\d:\\d+1], v\\a offset:\\o
.endm
"""
def compact(txt):
    M = "    v_mfma_f32_16x16x32_bf16 "
    txt = re.sub(M + r"v\[(\d+):\d+\], a\[(\d+):\d+\], v\[(\d+):\d+\], v\[\1:\d+\]", r"pw \1,\2,\3", txt)
    txt = re.sub(M + r"v\[(\d+):\d+\], a\[(\d+):\d+\], v\[(\d+):\d+\], v\[(\d+):\d+\]", r"qa \1,\2,\3,\4", txt)
    txt = re.sub(M + r"v\[(\d+):\d+\], a\[(\d+):\d+\], a\[(\d+):\d+\], v\[(\d+):\d+\]", r"qb \1,\2,\3,\4", txt)
    txt = re.sub(M + r"a\[(\d+):\d+\], a\[(\d+):\d+\], v\[(\d+):\d+\], a\[\1:\d+\]", r"pv \1,\2,\3", txt)
    txt = re.sub(M + r"a\[(\d+):\d+\], v\[(\d+):\d+\], a\[(\d+):\d+\], a\[\1:\d+\]", r"pa \1,\2,\3", txt)
    txt = re.sub(M + r"v\[(\d+):\d+\], v\[(\d+):\d+\], a\[(\d+):\d+\], v\[\1:\d+\]", r"pb \1,\2,\3", txt)
    txt = re.sub(r"    v_exp_f32 v(\d+), v\1\n", r"ex \1\n", txt)
    txt = re.sub(r"    v_cvt_pk_bf16_f32 v(\d+), v(\d+), v(\d+)", r"cv \1,\2,\3", txt)
    txt = re.sub(r"    ds_read_b128 a\[(\d+):\d+\], v(\d+) offset:(\d+)", r"lk \1,\2,\3", txt)
    txt = re.sub(r"    ds_read_b64_tr_b16 a\[(\d+):\d+\], v(\d+) offset:(\d+)", r"lv \1,\2,\3", txt)
    return txt.replace("\n    ", "\n")

def build():
    STC[0] = OPT["stc"]; IMPR[0] = OPT["im"]; BW[0] = OPT["bw"]; NOPW[0] = OPT["nw"]; TA_LIM[0] = OPT["tal"]; VM_LAT[0] = OPT["vml"]
    com = setup_common()
    body = ""
    txt = []
    for k, types in enumerate((("AB", "BA") if OPT["ab"] else ("AA", "AA"))):
        R = Role(types, "XY"[k])
        main = R.build()
        su = setup_role(R, k)
        for i in com + su: i.st = -1000
        tr = insert_waits(com + su + main)
        while fix_hazards(tr, verbose=OPT["verbose"] > 1): pass
        e = verify2(tr); assert e == 0, e
        nc = len(com)
        if OPT["loopt"]:
            tr = [i for i in tr if i.cmt != "check"]; R.stubs = []
            i0 = tr.index(R.bstart[23]); i1 = tr.index(R.bstart[27])
            tr = tr[:i0] + [raw(f"s_mov_b32 s42, {OPT['loopt']}"), label(f"Llt{k}")] + tr[i0:i1] + [raw("s_sub_u32 s20, s20, 65536"), raw("s_sub_u32 s43, s43, 65536"), raw("s_sub_u32 s42, s42, 1"), raw("s_cmp_lg_u32 s42, 0"), raw(f"s_cbranch_scc1 Llt{k}")] + tr[i1:]
        if OPT["nost"]: tr = [i for i in tr if not (i.k == "vmem" and "store" in i.t and i.st > 75000)]
        if OPT["nodsw"]: tr = [i for i in tr if not (i.k == "dsw" and "b64" in i.t and i.st > 75000)]
        if OPT["nowait"]: tr = [i for i in tr if not (i.k == "wait" and i.st > 20000)]
        if OPT["nosync"]: tr = [i for i in tr if not ("v255" in i.t and i.st > 20000)]
        if OPT["nodma"]: tr = [i for i in tr if not (i.k == "vmem" and i.ring and i.ring[1] >= 4)]
        if OPT["samekv"]:
            for i in tr:
                if i.t == "s_add_u32 s20, s20, 16384": i.t = "s_xor_b32 s20, s20, 16384"
        if OPT["nosmf"]: tr = [i for i in tr if i.tag != "smf"]
        if OPT["nocvt"]: tr = [i for i in tr if not (i.t.startswith("v_cvt_pk") and 136 <= int(i.t.split()[1][1:-1]) < 216 and i.st > 8000)]
        if OPT["nobar"]: tr = [i for i in tr if i.k != "bar"]
        if OPT["noxor"]: tr = [i for i in tr if "0x2000, " not in i.t]
        if OPT["nolds"]: tr = [i for i in tr if not (i.k == "ds" and i.ring and i.ring[1] >= 2)]
        if OPT["noexp"]: tr = [i for i in tr if "v_exp" not in i.t]
        assert all(a is b for a, b in zip(tr[:nc], com))
        txt.append("".join(i.text() for i in tr[nc:] + finish(R, k)))
        if OPT["verbose"]: print("  nops:", sum(i.nop for i in tr), "waits:", sum(i.k == "wait" for i in tr))
    slow = ""
    if OPT["slow"]:
        import slowpath4 as slowpath
        slow = slowpath.text(sys.modules[__name__])
    body = "".join(i.text() for i in com) + txt[0] + slow + ".p2align 6\nLroleY:\n" + txt[1] + "Lcodeend:\n    s_endpgm\n" + (".fill 4096, 4, 0xbf810000\n" if OPT["spf"] else "")
    return compact(body) if OPT["compact"] else body

HEAD = f"""; softmax(Q K^T / sqrt(128)) V, B8 H32 Sq608 Sk1024 D128, bf16 in / bf16 out. Hand-designed; the instruction order is emitted by my own list-scheduling script.
; One workgroup (4 waves, 512 registers each) per CU. Workgroups 16i+x and 16i+8+x share two heads (one after the other), each taking about half of the
; ring (LDS-DMA); waves synchronise through epoch flags in LDS. S^T = K Q'^T with Q' = bf16(Q * log2(e)/sqrt(128)), P = exp2(S - m), O += P V, l += P 1.
; Softmax guard: m = (true maximum of the row's first 16 keys) + 10, so m never exceeds the row's true maximum by more than 10 (nothing extra underflows).
; Every row sum l is checked at run time (l <= 2^64, not NaN); a wave that fails the check recomputes its rows at Lslow with the true row maximum.
; The fp32 output accumulators start from a small constant B (tied to the smallest column scale of V) that is subtracted again in the epilogue.
; @launch grid=(256,1,1) block=(256,1,1) lds=163840
.amdgcn_target "amdgcn-amd-amdhsa--gfx950"
{MACROS}.text
.globl {NAME}_kernel
.p2align 8
.type {NAME}_kernel,@function
{NAME}_kernel:
"""
TAIL = f""".section .rodata,"a"
.p2align 6
.amdhsa_kernel {NAME}_kernel
  .amdhsa_next_free_vgpr 512
  .amdhsa_next_free_sgpr 102
  .amdhsa_accum_offset 256
  .amdhsa_group_segment_fixed_size 0
  .amdhsa_kernarg_size 48
  .amdhsa_user_sgpr_count 2
  .amdhsa_user_sgpr_kernarg_segment_ptr 1
  .amdhsa_system_sgpr_workgroup_id_x 1
  .amdhsa_float_denorm_mode_32 3
.end_amdhsa_kernel
"""
if __name__ == "__main__":
    open(sys.argv[1], "w").write(HEAD + build() + TAIL)
```

```python
import sys, struct, math, re
from asmir import *
from sched import *

NAME = "standalone__mha_softmax__near_ridge"
OPT = dict(al=0, wu=1, wu1=14, wu2=0, wd=0, wg=512, fin=1, pf2=0, rot=0, sp=0, es=1, dfr=0, po=0, im=7, bw=10, stc=64, gt=0, gp_=1, gr=0, nw=40, hl=30, df0=17, df1=2, tf=12, sm=0, to=0, pfix=0, eh=1, vb=0, c4=0, swp=1, gl=1, tl=0, h0=115, h1=30, h2=195, h3=30, hd=260, nost=0, nodsw=0, ep=0, epo=0, l0=40, l1=110, l2=90, l3=40, sv=0, sd=0, asap=1, kq=4, rb=3, kalt=1, sg0=1, sg1=140, vml=3500, tal=0, bp=0, bq=1, ob=1, kap=7, obias=0, dlt=10, olast=0, o2=0, one0=0, cz=0, nosnake=0, so=0, tch=0, u0=66, u1=19, u2=19, ov=1, ddl=130, cd=1, loopt=0, nowait=0, nosync=0, spf=0, spd=6144, sdl=24, tdl=16, fl=1, flr=20, stm=0, samekv=0, nosmf=0, nocvt=0, nodma=0, nobar=0, noxor=0, nolds=0, noexp=0, xd=0, thr=0x5f800000, lagc=50, lagmax=240, stamps=0, kv=1, kvy=1, q=1, o0=4, o1=4, ab=1, pf=1, e0=7, pk=1, pi=-1, pj=0, pk_=1, pall=0, verbose=0, compact=1, slow=1)
MODS = ["", " nt", " sc1", " sc1 nt", " sc0 sc1", " sc0 sc1 nt", " sc0", " sc0 nt"]
for a in sys.argv[2:]:
    k, v = a.split("="); assert k in OPT, k; OPT[k] = int(v)
vKA = 0; vVA = 4; vDA, vDB = 12, 13; vIDX = 14; vG = 15
vS = 16; vNM = 36; vQA = 56; vP = 136; vQB = 216; vT = 252
aO = 0; aL = 160; aONE = 172; aV = 180; aK = 196; aQB = 212
sQ, sK, sV, sO = 4, 8, 12, 16
sOFF = "s20"; sW4K = "s21"; sC = "s22"; sC2 = "s23"
sROW = [["s24", "s25"], ["s26", "s27"]]
sMASK = "s28"; sTHR = "s29"; sBAD = [("s", 30, 2), ("s", 32, 2)]; sFK = "s34"; sFV = "s35"; sD0 = "s3"; sD1 = "s2"
sOFV = "s94" if OPT["rot"] else "s43"; sB = ["s40", "s41"]
sTMP = [f"s{i}" for i in range(36, 40)]
HEADQ = 608 * 256; HEADK = 1024 * 256
CSCALE = struct.unpack("<I", struct.pack("<f", math.log2(math.e) / math.sqrt(128.0)))[0]
X1 = 0; X0 = 16384; KB = 32768; VB = 98304; FLAG = 1024
vFA, vFE = 254, 255
_st = [0]
def stmp():
    _st[0] = (_st[0] + 1) % len(sTMP); return sTMP[_st[0]]
def SS(op, d, *src):
    i = S(op, d, *src); i.w.discard("scc"); return i

def Sx(n): return ("v", vS + 4 * n, 4)
def NM(n): return ("v", vNM + 4 * n, 4)
def Q(p, n, ks):
    f = 4 * n + ks
    if p == 0: return ("v", vQA + 4 * f, 4)
    return ("a", aQB + 4 * f, 4) if f < 11 else ("v", vQB + 4 * (f - 11), 4)
def P(par, n, ks): return ("v", vP + 40 * par + 8 * n + 4 * ks, 4)
def O(n, dt): return ("a", aO + 32 * n + 4 * dt, 4)
def OP(p, n, dt):
    if p == 1 and n < 2 and OPT["ov"]: return ("v", vQA + 32 * n + 4 * dt, 4)
    return O(n, dt)
def mul2(d, a, m):
    if m[0] == "s": l = [V("v_mul_f32", f"v{d+k}", m, f"v{a+k}") for k in range(2)]; f = V("v_pk_mul_f32", ("v", d, 2), ("v", a, 2), ("s", 22, 2))
    else:
        r = int(m[1:]); l = [V("v_mul_f32", f"v{d+k}", f"v{a+k}", m) for k in range(2)]
        f = V("v_pk_mul_f32", ("v", d, 2), ("v", a, 2), ("v", r & ~1, 2), mod=" op_sel:[0,1] op_sel_hi:[1,1]" if r & 1 else " op_sel_hi:[1,0]")
        f.r.discard(f"v{r^1}")
    if OPT["pk"]: l[0].fuse = l[1].fuse = f
    return l
def f32(x): return hex(struct.unpack("<I", struct.pack("<f", float(x)))[0])
def fmap(d, a, m, c):
    l = [V("v_fma_f32", f"v{d+k}", f"v{a+k}", f"v{m+k}", f"v{c+k}") for k in range(2)]
    if OPT["pk"]: l[0].fuse = l[1].fuse = V("v_pk_fma_f32", ("v", d, 2), ("v", a, 2), ("v", m, 2), ("v", c, 2))
    return l
def colput(LW, slot, a, b, gate=()):
    i = I(f"ds_write2_b32 v{LW}, v{a}, v{b} offset0:{16*slot} offset1:{16*slot+16}", "dsw", r=[f"v{LW}", f"v{a}", f"v{b}"])
    i.xw = {f"Fq{slot}", f"Fq{slot+1}"}; i.xr = set(gate); return i
def rowget(d, LR, slot):
    i = ds_read("ds_read_b128", ("v", d, 4), f"v{LR}", 64 * slot); i.xr = {f"Fq{slot}"}; return i
def KOFF(ks): return (ks & 1) * 32 + (ks >> 1) * 128
def L(n): return ("a", aL + 4 * (n // 2), 4)
def Lr(n): return aL + 4 * (n // 2) + 2 * (n % 2)
def ONE(n): return ("a", aONE + 4 * (n % 2), 4)

class Role:
    def __init__(s, types, tag):
        s.half = [t == "B" for t in types]; s.tag = tag
        s.kst = [[s.half[0], 0] for _ in range(4)]; s.vst = [[s.half[0], 0] for _ in range(8)]
        s.prog = []; s.hints = []; s.nstamp = 0; s.epoch = 0; s.stubs = []
    def add(s, *l):
        for x in l:
            if isinstance(x, list): s.prog += x
            else: s.prog.append(x)
    def hint(s, i, m, off, attr="nb"): s.hints.append((i, m, off, attr)); return i
    def addr(s, st, reg, half, h, sflip):
        o = []
        if st[0] != half:
            if st[1]: o.append(V("v_xor_b32", reg, "0x2000", reg)); st[1] = 0
            o.append(V("v_xor_b32", reg, sflip, reg)); st[0] = half
        if not half: return o, h * 8192
        if st[1] != h: o.append(V("v_xor_b32", reg, "0x2000", reg)); st[1] = h
        return o, 0
    def kread(s, dst, b, t, ks):
        o, off = s.addr(s.kst[ks], f"v{vKA+ks}", s.half[b // 16], t >> 1, sFK)
        i = ds_read("ds_read_b128", dst, f"v{vKA+ks}", (b % 4) * 16384 + off + (t & 1) * 4096)
        i.ring = ("K", b); i.xr = {f"cK{b}", f"oK{b}"}; i.wt = {f"rK{b}"}
        return o + [i]
    def vread(s, dst, b, dt, ks):
        o, off = s.addr(s.vst[dt], f"v{vVA+dt}", s.half[b // 16], ks, sFV)
        for u in range(2):
            i = ds_read("ds_read_b64_tr_b16", (dst[0], dst[1] + 2 * u, 2), f"v{vVA+dt}", (b % 4) * 16384 + off + u * 4096)
            i.ring = ("V", b); i.xr = {f"cV{b}", f"oV{b}"}; i.wt = {f"rV{b}"}
            o.append(i)
        return o
    def vks(s, b, dt, pref):
        if s.half[b // 16] and s.vst[dt][0]: return [s.vst[dt][1], s.vst[dt][1] ^ 1]
        return pref
    def dma(s, kind, b, gate=None):
        o = []
        so = sOFF if kind == "K" else sOFV
        gl = OPT["gl"] and b >= 4; gp = 96 if kind == "K" else 98
        srd = sK if kind == "K" else sV
        if OPT["rot"]:
            if b > 0: o += [SS("s_add_u32", so, so, 16384), SS("s_bitset1_b32" if b >= 16 else "s_bitset0_b32", so, 18)] + ([SS("s_bitset0_b32", so, 19)] if b > 16 else [])
            if gl: o.append(raw(f"s_add_u32 s{gp}, s{srd}, {so}\n    s_addc_u32 s{gp+1}, s{srd+1}, 0", w=[f"s{gp}"], r=[so])); o[-1].cmt = "two"
        elif gl:
            if b == 4:
                o.append(raw(f"s_add_u32 s{gp}, s{srd}, {so}\n    s_addc_u32 s{gp+1}, s{srd+1}, 0", w=[f"s{gp}"], r=[so])); o[-1].cmt = "two"
            o.append(raw(f"s_add_u32 s{gp}, s{gp}, 16384\n    s_addc_u32 s{gp+1}, s{gp+1}, 0", w=[f"s{gp}"], r=[f"s{gp}"])); o[-1].cmt = "two"
        elif b > 0: o.append(SS("s_add_u32", so, so, 16384))
        o.append(SS("s_add_u32", "m0", sW4K, (b % 4) * 16384 + (VB if kind == "V" else KB)))
        for k in range(4):
            i = dma(f"v{vDA if k % 2 == 0 else vDB}", sK if kind == "K" else sV, so, k * 1024, mod=MODS[OPT["kvy" if s.tag == "Y" and b >= 3 else "kv"]])
            if gl:
                va = f"v{vDA if k % 2 == 0 else vDB}"
                i = I(f"global_load_lds_dwordx4 {va}, s[{gp}:{gp+1}] offset:{k*1024}{MODS[OPT['kv']]}", "vmem", r=[va, f"s{gp}", "m0"])
            i.ring = (kind, b); i.wt = {f"d{kind}{b}"}; i.xw = {f"i{kind}{b}"}
            if gate: i.xr = {gate}
            o.append(i)
        return o
    def barrier(s, close, opn, gate=None, extra_need=(), extra_w=(), extra_r=()):
        w = wait(need=[f"r{x}" for x in close] + [f"d{x}" for x in opn] + list(extra_need))
        w.xw = {f"c{x}" for x in close} | {"barseq"}; w.xr = {f"i{x}" for x in opn} | set(extra_r)
        b = bar(); b.xr = {"barseq"}; b.xw = {f"o{x}" for x in opn} | ({gate} if gate else set()) | set(extra_w)
        return [w, b]
    def sync(s, close, opn, m, gate=None, extra_need=(), extra_w=(), extra_r=(), off_bar=0, off_rd=0):
        if not OPT["fl"]:
            bl = s.barrier(close, opn, gate, extra_need, extra_w, extra_r); s.hint(bl[0], m, off_bar); return bl
        s.epoch += 1; e = s.epoch; tag = f"{s.tag}{e}"
        w = wait(need=[f"d{x}" for x in opn]); w.xr = {f"i{x}" for x in opn}; w.xw = {"flseq"}; s.hint(w, m, 0)
        a = ds_write("ds_write_b32", f"v{vFA}", f"v{vFE}", 0); a.xr = {"flseq"} | set(extra_r); a.xw = {f"c{x}" for x in close}; a.cmt = "arrive"
        r = ds_read("ds_read_b32", f"v{vFE}", f"v{vDA}", FLAG); s.hint(r, m, off_rd)
        c = V("v_cmp_gt_u32", "vcc", e, f"v{vFE}")
        b = I(f"s_cbranch_vccnz Ls{tag}\nLr{tag}:", "br", r=["vcc", f"v{vDA}"], w=["vcc", f"v{vFE}"]); b.cmt = "check"
        b.xw = {f"o{x}" for x in opn} | ({gate} if gate else set()) | set(extra_w)
        s.stubs += [label(f"Ls{tag}"), raw(f"ds_read_b32 v{vFE}, v{vDA} offset:{FLAG}"), raw("s_waitcnt lgkmcnt(0)"), raw(f"v_cmp_gt_u32 vcc, {e}, v{vFE}"), raw("s_nop 0"),
                    raw(f"s_cbranch_vccnz Ls{tag}")] + ([raw("s_add_u32 s95, s95, 1")] if OPT["stm"] == 4 else []) + [raw(f"s_branch Lr{tag}")]
        if OPT["cd"]: s.hint(b, m, off_rd + 8 + OPT["cd"])
        mv = V("v_mov_b32", f"v{vFE}", e)
        for i in (w, a): s.hint(i, m, max(0, off_rd - 10), "dlm")
        return ([w] if opn else []) + [mv, a, r, c, b]
    def chain(s, p, n, sq, kf, czero):
        order = [0, 1, 2, 3] if n % 2 == 0 or OPT["nosnake"] else [3, 2, 1, 0]
        return [mfma(sq, kf(ks), Q(p, n, ks), sq if k else ("0" if czero or OPT["cz"] else NM(n))) for k, ks in enumerate(order)]
    def rowmax(s, n, sq, a, b):
        x = [f"v{sq[1]+r}" for r in range(4)]
        l = [V("v_max3_f32", a, x[0], x[1], x[2]), V("v_max_f32", a, a, x[3])] + ([V("v_add_f32", a, hex(struct.unpack("<I", struct.pack("<f", OPT["dlt"] + OPT["dfr"] / 10.0))[0]), a)] if OPT["dlt"] else []) + [V("v_mov_b32", b, a),
             swap("v_permlane16_swap_b32", a, b), V("v_max_f32", a, a, b), V("v_mov_b32", b, a), swap("v_permlane32_swap_b32", a, b)]
        l += [V("v_min_f32", f"v{vNM+4*n+r}", "-" + a, "-" + b) for r in range(4)]
        l += [V("v_add_f32", x[r], x[r], f"v{vNM+4*n}") for r in range(4)]
        return l
    def expcvt(s, par, n, t, sq, pb=None):
        l = []
        if pb is None: pb = vP + 40 * par + 8 * n
        for h in range(2):
            x0, x1 = f"v{sq[1]+2*h}", f"v{sq[1]+2*h+1}"
            l += [V("v_exp_f32", x0, x0), V("v_exp_f32", x1, x1), V("v_cvt_pk_bf16_f32", f"v{pb+2*t+h}", x0, x1)]
        return l
    def smf(s, b, n, pb=None):
        if pb is None: pb = vP + 40 * (b % 2) + 8 * n
        if s.half[b // 16] and n == 4: return mfma(L(4), ONE(4), ("v", pb, 4), L(4))
        return smfmac(L(n), ONE(n), ("v", pb, 8), f"v{vIDX}")
    def scale(s, src, dst, ta, pk=False):
        a, b = f"v{ta}", f"v{ta+1}"
        l = [V("v_lshlrev_b32", a, 16, src), V("v_and_b32", b, sMASK, src)]
        l += mul2(ta, ta, sC)
        if dst[0] == "v": return l + [V("v_cvt_pk_bf16_f32", dst, a, b)]
        return l + [V("v_cvt_pk_bf16_f32", a, a, b), V("v_accvgpr_write_b32", dst, a)]
    def rowoff(s, p, n, extra=None):
        t = stmp()
        i = SS("s_add_u32", t, sROW[p][0], n * 4096) if n < 4 else SS("s_mov_b32", t, sROW[p][1])
        if extra is None: return t, [i]
        return t, [i, SS("s_add_u32", t, t, extra)]
    def stamp(s, m=None, off=0):
        if not OPT["stamps"]: return
        k = s.nstamp; s.nstamp += 1; assert k < 14
        a = raw(f"s_memtime s[{44+4*k}:{45+4*k}]"); b = raw(f"s_memrealtime s[{46+4*k}:{47+4*k}]")
        for i in (a, b):
            if m is not None: s.hint(i, m, off); s.hint(i, m, off + 2, "dlm")
            else: i.xw = {"seq"}
        s.add(a, b)

    QREG = [(KB + 32768, ("K", 2)), (VB + 16384, ("V", 1)), (VB + 32768, ("V", 2)), (KB + 49152, ("K", 3)), (X0, None)]
    TA = 236
    def qdma(s, n):
        t, o = s.rowoff(0, n)
        o.append(SS("s_add_u32", "m0", sW4K, s.QREG[n][0]))
        for k in range(4):
            i = dma(f"v{vDA if k % 2 == 0 else vDB}", sQ, t, k * 1024, mod=MODS[OPT["q"]])
            i.wt = {f"dQ{n}"}; i.priv = (n, s.QREG[n][1]); o.append(i)
        return o
    def start(s):
        half = s.half[0]; TA = s.TA
        def seq(l):
            for i in l:
                if i.k in ("vmem", "wait", "bar"): i.xw = i.xw | {"seq"}
                if OPT["asap"] and i.k in ("vmem", "salu"): i.cmt = "asap"
            return l
        KF = lambda b, t: (lambda ks: ("a", 96 + 16 * t + 4 * ks, 4) if b == 0 else Q(1, t, ks))
        s.KF = KF
        def kpart(bs, dm, order, sq):
            if OPT["stm"] == 1 and 0 in bs: s.stamp()
            bl = seq(s.barrier([], [f"K{b}" for b in bs], extra_need=["cw"]))
            s.add(bl[0], seq(dm), bl[1]) if not OPT["so"] else s.add(bl, seq(dm))
            if OPT["stm"] == 1 and 0 in bs: s.stamp()
            for k, (b, t) in enumerate(order):
                for ks in range(4):
                    l = s.kread(KF(b, t)(ks), b, t, ks)
                    if sq and k < OPT["kq"]: l[-1].xr = l[-1].xr | {"seq"}
                    s.add(l)
        if not OPT["so"]:
            kpart([0, 1], s.qdma(2) + (s.qdma(3) if OPT["sd"] else []), ((0, 0), (0, 1), (0, 2), (0, 3), (1, 2), (1, 3), (1, 0), (1, 1)), True)
        nxt = [s.qdma(3), s.qdma(4), s.dma("V", 0), s.dma("K", 2), s.dma("V", 1)]
        late = []; EP = {}
        if OPT["ep"]:
            nxt = [nxt[2], nxt[0], nxt[1], nxt[3], nxt[4]]
            EP = [{5: [0], 6: [1, 2], 7: [3]}, {6: [0, 1], 7: [2, 3]}, {5: [0, 1], 6: [2, 3]}, {6: [0, 1], 7: [2], 8: [3]}, {6: [0, 1], 8: [2, 3]}, {5: [0, 1], 7: [2, 3]}][OPT["epo"]]
        def grpA(q):
            rd, mm = s.pvgroup(0, q, [0, 1, 2], aK if q % 2 == 0 else aV, lambda n: ("a", 28, 4) if OPT["ob"] else "0")
            if q < 3: mm.append(s.smf(0, q))
            s.add(rd, mm); return mm
        if OPT["sv"] & 1: nxt[1], nxt[2] = nxt[2], nxt[1]
        if OPT["sv"] & 2: late = nxt[3] + nxt[4]; nxt[3] = []; nxt[4] = []
        if OPT["sv"] & 4: late = nxt[4]; nxt[4] = nxt[3]; nxt[3] = []
        if OPT["sd"]: nxt = nxt[1:] + [[]]
        if OPT["so"]: nxt[0] = s.qdma(1 + OPT["sd"])
        s.sc = 0
        for n in range(5):
            w = wait(need=[f"dQ{n}"]); w.xw = {"seq", f"oQ{n}"}; s.add(w)
            if n == 0 or n == 4 or OPT["stm"] == 1: s.stamp()
            base = TA + (4 if n in (1, 2, 3) else 0); off = s.QREG[n][0] - (KB + 49152 if n in (1, 2, 3) else X0)
            for ks in range(4):
                i = ds_read("ds_read_b128", Q(0, n, ks), f"v{base+ks}", off); i.xr = {f"oQ{n}", f"cQ{n}", "seq"}; i.priv = (n, s.QREG[n][1]); i.wt = {f"rQ{n}"}; s.add(i)
            s.add(seq(nxt[n]))
            if OPT["pf2"] and n == OPT["pf2"]:
                s.add(V("v_accvgpr_read_b32", f"v{TA+8}", "a0"), V("v_accvgpr_read_b32", f"v{TA+9}", "a1"),
                      seq([I(f"global_load_dword a{aQB+43}, v[{TA+8}:{TA+9}], off" if 0 else f"global_load_dword a95, v[{TA+8}:{TA+9}], off", "vmem", w=["a95"], r=[f"v{TA+8}", f"v{TA+9}"])]))
            for r in range(16):
                q = f"v{vQA+16*n+r}"; s.add(s.scale(q, q, TA + 8 + 2 * (r % 4), pk=OPT["pk"]))
            for q in EP.get(2 * n, []): grpA(q)
            if OPT["so"] == 1 and n == 0:
                s.prog[-1].xw = {"seq"}
                kpart([0, 1], s.qdma(2) + s.qdma(3), ((0, 0), (0, 1), (0, 2), (0, 3), (1, 2), (1, 3), (1, 0), (1, 1)), False)
            if OPT["so"] == 2 and n == 0:
                s.prog[-1].xw = {"seq"}
                kpart([0], s.qdma(2 + OPT["sd"]), ((0, 0), (0, 1), (0, 2), (0, 3)), False)
            for b in range(2 if n < 4 else 1):
                if OPT["so"] == 2 and n == 0 and b == 1:
                    ch[0].xw = {"seq"}
                    kpart([1], s.qdma(3 + OPT["sd"]), ((1, 0), (1, 1), (1, 2), (1, 3)), False)
                for t in range(2 if half and n == 4 else 4):
                    sq = Sx(s.sc % 5); s.sc += 1
                    ch = s.chain(0, n, sq, KF(b, t), t == 0 and b == 0); s.add(ch)
                    if t == 0 and b == 0:
                        s.add(s.rowmax(n, sq, f"v{TA+16}", f"v{TA+17}"))
                        if n == 4 and not OPT["ep"]:
                            ch[-1].xw = {"seq"}
                            s.add(seq(s.barrier(["K0", "K1"], ["V0"], gate="D-1")), seq(late))
                    s.add(s.expcvt(b, n, t, sq))
            if n < 4: ch[-1].xw = {"seq"}
            if OPT["ep"] and n == 2: s.add(seq(s.barrier(["K0", "K1"], ["V0"], gate="D-1")))
            for q in EP.get(2 * n + 1, []): grpA(q)[-1].xw = {"seq"}

    def nbr(s, p, d, rl):
        return [V("v_mul_f32_e64", f"v{d}", "-" + sB[p], f"v{rl}")] if OPT["ob"] else []
    def ep_l(s, p, n, rl, tmp):
        a, b = f"v{rl}", f"v{tmp}"
        o = [V("v_accvgpr_read_b32", a, f"a{Lr(n)}")]
        if not (s.half[p] and n == 4): o += [V("v_accvgpr_read_b32", b, f"a{Lr(n)+1}"), V("v_add_f32", a, a, b)]
        o += [V("v_cmp_nge_f32", ("s", 42, 2), sTHR, a), SS("s_or_b64", sBAD[p], sBAD[p], ("s", 42, 2))]
        if not (s.half[p] and n == 4): o += [V("v_rcp_f32", a, a)]
        return o
    def lane16(s, d):
        return [V("v_mbcnt_lo_u32_b32", d, -1, 0), V("v_mbcnt_hi_u32_b32", d, -1, d), V("v_lshlrev_b32", d, 4, d)]
    def cmb_pre(s, T, base):
        return s.lane16(f"v{T}") + [V("v_add_u32", f"v{T}", sW4K, f"v{T}"), V("v_add_u32", f"v{T}", base, f"v{T}"), V("v_xor_b32", f"v{T+1}", "0x1000", f"v{T}"),
             V("v_mov_b32", f"v{T+2}", f"v{vNM+16}")]
    def cmb_give(s, p, T, LW):
        o = s.ep_l(p, 4, T + 3, T + 4)
        w = [colput(LW, 12, T + 2, T + 3)] + [ds_write("ds_write_b128", f"v{T}", O(4, dt), 16384 + dt * 1024) for dt in range(4)]
        for i in w: i.wt = {"cw"}; i.xw = i.xw | {"cgive"}
        return o + w
    def cmb_col(s, p, T, LW):
        nm, l, nm2, l2, x, y = [f"v{T+k}" for k in (2, 3, 4, 5, 6, 7)]
        r = I(f"ds_read2_b32 v[{T+4}:{T+5}], {y} offset0:{16*12} offset1:{16*13}", "ds", w=[nm2, l2], r=[y]); r.xr = {"cmb"}
        return [V("v_xor_b32", y, "0x1000", f"v{LW}"), r, V("v_cmp_nge_f32", ("s", 42, 2), sTHR, l2), SS("s_or_b64", sBAD[p], sBAD[p], ("s", 42, 2)),
                V("v_min_f32", x, nm, nm2), V("v_sub_f32", nm, x, nm), V("v_sub_f32", nm2, x, nm2), V("v_exp_f32", nm, nm), V("v_exp_f32", nm2, nm2),
                V("v_mul_f32", x, l, nm), V("v_fma_f32", x, l2, nm2, x), V("v_rcp_f32", x, x), V("v_mul_f32", nm, nm, x), V("v_mul_f32", nm2, nm2, x),
                V("v_add_f32", y, nm, nm2), V("v_mul_f32_e64", y, "-" + sB[p], y), colput(LW, 8, T + 2, T + 7), colput(LW, 10, T + 4, T + 4)]
    def half_addr(s, WA, RA, GA, LW, LR, base, base2, t0, t1):
        t0, t1, wa, ra = f"v{t0}", f"v{t1}", f"v{WA}", f"v{RA}"
        t = stmp(); t2 = stmp()
        a = [SS("s_add_u32", t, sW4K, base), SS("s_add_u32", t2, sW4K, base2), V("v_mbcnt_lo_u32_b32", t0, -1, 0), V("v_mbcnt_hi_u32_b32", t0, -1, t0),
             V("v_and_b32", t1, 15, t0), V("v_lshl_add_u32", f"v{LW}", t1, 2, t2), V("v_lshl_add_u32", wa, t1, 3, t), V("v_lshrrev_b32", t1, 4, t0), V("v_lshl_add_u32", wa, t1, 9, wa),
             V("v_lshl_add_u32", f"v{LR}", t1, 4, t2),
             V("v_lshl_add_u32", ra, t1, 8, t), V("v_and_b32", t1, 3, t0), V("v_lshl_add_u32", ra, t1, 6, ra), V("v_and_b32", t1, 12, t0), V("v_lshl_add_u32", ra, t1, 1, ra),
             V("v_and_b32", t1, 7, t0), V("v_lshlrev_b32", t1, 4, t1), V("v_lshrrev_b32", t0, 3, t0), V("v_lshl_add_u32", f"v{GA}", t0, 8, t1)]
        return a
    def half_put(s, pk, r, WA, X, gate):
        w = ds_write("ds_write_b64", f"v{WA}", ("v", pk, 2), X + r * 128); w.xr = set(gate); w.xw = {f"Xd{X}_{r}"}; return [w]
    def half_wide(s, p, n, H, FR, FB, TB, WA, X, gate, part=None):
        o = []
        for r in (0, 2):
            tb = TB[r // 2]
            if OP(p, n, 0)[0] == "a":
                x = [tb + 2 * j for j in range(4)]
                o += [V("v_accvgpr_read_b32", f"v{tb+2*j+k}", f"a{OP(p, n, 4*H+j)[1]+r+k}") for j in range(4) for k in range(2)]
            else: x = [OP(p, n, 4 * H + j)[1] + r for j in range(4)]
            for j in range(4): o += fmap(x[j], x[j], FR + r, FB + r)
            if part:
                T, U, FA = part
                rr = [ds_read("ds_read_b64", ("v", U + 2 * j, 2), f"v{T+1}", 16384 + j * 1024 + r * 4) for j in range(4)]
                for i in rr: i.xr = {"cmb"}
                o += rr
                for j in range(4): o += fmap(x[j], U + 2 * j, FA + r, x[j])
            o += [V("v_cvt_pk_bf16_f32", f"v{tb+d}", f"v{x[ja]+k}", f"v{x[ja+1]+k}") for d, ja, k in ((0, 0, 0), (2, 0, 1), (1, 2, 0), (3, 2, 1))]
            o += s.half_put(tb, r, WA, X, gate) + s.half_put(tb + 2, r + 1, WA, X, gate)
        return o
    def half_slim(s, p, n, H, FR, FB, T4, WA, X):
        o = []
        for r in range(4):
            o += [V("v_accvgpr_read_b32", f"v{T4+j}", f"a{O(n, 4*H+j)[1]+r}") for j in range(4)]
            o += [V("v_fma_f32", f"v{T4+j}", f"v{T4+j}", f"v{FR+r}", f"v{FB+r}") for j in range(4)]
            o += [V("v_cvt_pk_bf16_f32", f"v{T4+k}", f"v{T4+2*k}", f"v{T4+2*k+1}") for k in range(2)] + s.half_put(T4, r, WA, X, [])
        return o
    def half_out(s, p, n, H, rb, RA, GA, X, mod):
        if s.half[p]: t, o = s.rowoff(p, n, sD1 if H else sD0); off = 0
        else: t, o = s.rowoff(p, n); off = 128 * H
        for k in range(2):
            for u in range(2):
                i = ds_read("ds_read_b64_tr_b16", ("v", rb[k] + 2 * u, 2), f"v{RA}", X + k * 1024 + u * 32); i.xr = {f"Xd{X}_{r}" for r in range(4)}; o.append(i)
            o.append(bstore(("v", rb[k], 4), f"v{GA}", sO, t, off + k * 2048, mod=MODS[mod]))
            if p == 1 and OPT["sp"]: o[-1].cmt = "prio"
        return o
    def plan_trans(s):
        hv = s.half[0]; E = vQA + 64
        WA, RA, GA, LR, FR, FB, T4 = E, E + 1, E + 2, E + 3, E + 4, E + 8, E + 12
        s.LW = LW = vQA + 24
        s.CT = CT = vQA + 56; TB = [vQA + 16, vQA + 16 if hv else vQA + 48]; XB = [0] if hv else [0, X0 - 2048, X0]; cnt = [0]
        def fin(l, dl):
            for i in l:
                if i.k == "vmem": s.hint(i, s.bstart[15], dl, "dlm")
            return l
        def wide(n, H, dl):
            X = XB[cnt[0] % len(XB)]; cnt[0] += 1
            rb = [vQA + 8, vQA + 12] if H == 0 else ([T4, vQA + 52] if hv else [vQA + 56, vQA + 60])
            l = [rowget(FR, LR, 2 * n), rowget(FB, LR, 2 * n + 1)]
            l += s.half_wide(0, n, H, FR, FB, TB, WA, X, []) + s.half_out(0, n, H, rb, RA, GA, X, OPT["o0"])
            if n == 2: l += [V("v_accvgpr_write_b32", f"a{O(2, 4*H+3)[1]+r}", sB[1]) for r in range(4)]
            return fin(l, dl)
        def comb(dl):
            l = [rowget(FR, LR, 8), rowget(FB, LR, 9), rowget(T4, LR, 10)]
            l += s.half_wide(0, 4, 1, FR, FB, TB, WA, 0, [], part=(CT, vQA + 48, T4)) + s.half_out(0, 4, 1, [T4, vQA + 60], RA, GA, 0, OPT["o0"])
            return fin(l, dl)
        def slim(n, H, newf, dl):
            return fin(([rowget(FR, LR, 2 * n), rowget(FB, LR, 2 * n + 1)] if newf else []) + s.half_slim(0, n, H, FR, FB, T4, WA, 0) + s.half_out(0, n, H, [T4, T4], RA, GA, 0, OPT["o0"]), dl)
        urg = [2, 3] if hv else [2, 3, 4]
        s.ins = {(15, 0, 0): lambda: [V("v_mov_b32", f"v{vQA+28+r}", sB[1]) for r in range(4)] + s.half_addr(WA, RA, GA, LW, LR, X1 + 2048, X1, vQA + 2, vQA + 3) + (s.cmb_pre(CT, X1) if hv else []),
                 (15, 0, 1): lambda: sum((s.ep_l(0, n, vQA + 4, vQA + 5) + s.nbr(0, vQA + 5, vQA + 4) + [colput(LW, 2 * n, vQA + 4, vQA + 5)] for n in urg + [0, 1]), []),
                 (15, 2, 0): lambda: sum((wide(n, 0, OPT["h0"] + OPT["h1"] * k) for k, n in enumerate(urg)), []),
                 (16, 0, 0): lambda: sum((wide(n, 1, OPT["h2"] + OPT["h3"] * k) for k, n in enumerate(urg)), []) + (comb(OPT["h2"] + OPT["h3"] * 2) if hv else [])
                                     + sum((slim(k // 2, k % 2, k % 2 == 0, 330 + (k + 1) * OPT["hd"]) for k in range(4)), [])}

    def pvgroup(s, j, q, tiles, vbuf, cinit):
        pv = j // 16; hv = s.half[pv]; rd = []; mm = []
        for h, pref in ((0, [0, 1]), (1, [0, 1] if hv else [1, 0])):
            for ks in s.vks(j, 2 * q + h, pref): rd += s.vread(("a", vbuf + 8 * h + 4 * ks, 4), j, 2 * q + h, ks)
        if OPT["po"] and j % 16 and j != 30:
            for n in tiles:
                hs = [0, 1] if n % 2 == 0 or OPT["po"] == 2 else [1, 0]
                for x, h in enumerate(hs):
                    for ks in ([0] if hv and n == 4 else ([0, 1] if x == 0 else [1, 0])):
                        mm.append(mfma(OP(pv, n, 2 * q + h), P(j % 2, n, ks), ("a", vbuf + 8 * h + 4 * ks, 4), OP(pv, n, 2 * q + h)))
            return rd, mm
        for h in range(2):
            dt = 2 * q + h
            for n in (tiles if h == 0 else reversed(tiles)):
                if OPT["c4"] and j % 16 != 0:
                    if h == 0:
                        seq4 = [(0, 0), (0, 1), (1, 0), (1, 1)][::1 if n % 2 == 0 else -1]
                        if hv and n == 4: seq4 = [(0, 0), (1, 0)]
                        for hh, ks in seq4:
                            d_ = OP(pv, n, 2 * q + (j % 2))
                            mm.append(mfma(d_, ("a", vbuf + 8 * hh + 4 * ks, 4), P(j % 2, n if hh == 0 else (n + 2) % 4, ks), d_))
                    continue
                kss = [0] if hv and n == 4 else ([0, 1] if (n + h) % 2 == 0 or OPT["nosnake"] else [1, 0])
                for k_, ks in enumerate(kss):
                    ab = [("a", vbuf + 8 * h + 4 * ks, 4), P(j % 2, n, ks)][::-1 if OPT["swp"] else 1]
                    mm.append(mfma(OP(pv, n, dt), ab[0], ab[1], cinit(n) if j % 16 == 0 and k_ == 0 else OP(pv, n, dt)))
        return rd, mm
    def tq(s, b, q): return q ^ 2 if (OPT["kalt"] and s.half[b // 16] and b % 2 == 1 and b != 31) else q
    def block(s, j):
        b = j + 1; p = b // 16; pv = j // 16
        hq, hv = s.half[p], s.half[pv]
        first = (j % 16 == 0); trans = (j == 15)
        smfs = [{0: [0], 1: [1], 2: [2, 3], 3: [4]}, {0: [0, 1], 1: [2, 3], 2: [4], 3: []}, {0: [0, 1, 2, 3, 4], 1: [], 2: [], 3: []}][OPT["sm"]]
        if j == 0 and OPT["ep"]: smfs = {0: [], 1: [], 2: [], 3: [3, 4]}
        MX = vQA; CT = s.CT
        if j == 30: s.tail_pre()
        for q in range(4):
            vbuf = aK if (j == 0 and q % 2 == 0) else aV
            def cinit(n):
                if not OPT["ob"]: return "0"
                if j == 0: return ("a", aQB, 4)
                return O(2, 3 if q < 2 else 7) if OP(1, n, 0)[0] == "a" else ("v", vQA + 28, 4)
            rd, pvm = s.pvgroup(j, q, [3, 4] if j == 0 and OPT["ep"] else [0, 1, 2, 3, 4], vbuf, cinit)
            s.add(rd)
            if (j, q, 0) in s.ins: s.add(s.ins[(j, q, 0)]())
            cz = (b % 16 == 0 and q == 0)
            if j == 0:
                work = [(4, t, s.KF(1, t), None) for t in ([[0, 1], [2], [3], []] if not hq else [[0, 1], [], [], []])[q]]
            elif j == 30:
                work = [(4, q, s.KT(q), s.PT[0])] if not (hq and q >= 2) else []
            else: work = [(n, s.tq(b, q), (lambda ks: ("a", aK + 4 * ks, 4)), None) for n in range(4 if hq and s.tq(b, q) >= 2 else 5)]
            ch = []; sqs = []
            for n, t, kf, pb in work:
                if j in (0, 30): sq = Sx(s.sc % 5); s.sc += 1
                else: sq = Sx(n)
                sqs.append(sq); ch += s.chain(p, n, sq, kf, cz)
            s.add(ch); m0 = (ch + pvm)[0]
            if OPT["vb"] and j not in (0, 30):
                for k, i in enumerate([x for x in rd if x.k == "ds"]): s.hint(i, m0, -6 + k); s.hint(i, m0, -5 + k, "dlm")
                for k, i in enumerate(getattr(s, "lastk", [])): s.hint(i, m0, -10 + k - (OPT["vb"] - 1)); s.hint(i, m0, -9 + k - (OPT["vb"] - 1), "dlm")
            if j == 0 and q == 0 and OPT["ob"]: s.add([V("v_accvgpr_write_b32", f"a{aQB+r}", sB[0]) for r in range(4)])
            if q == 0:
                s.bstart[j] = m0
                if j in s.stamp_at: s.stamp(m0)
                lag = 0
                if s.half[0] and not s.half[1]: lag = min(OPT["lagmax"], (16 * (j if j <= 15 else 31 - j) * OPT["lagc"]) // 100)
                bat = []
                if j == 0: bat.append((s.dma("K", 3, gate="D-1") + s.dma("V", 2, gate="D-1"), OPT["l0"])); lag = OPT["l1"]
                if j == 1: lag = OPT["l2"]
                if j == 2: lag = OPT["l3"]
                dl = []
                if j + 4 <= 31: dl += s.dma("K", j + 4, gate=f"D{j-1}")
                if j + 3 <= 31: dl += s.dma("V", j + 3, gate=f"D{j-1}")
                bat.append((dl, lag))
                for dl, lag in bat:
                    for k, i in enumerate([x for x in dl if x.k == "vmem"]):
                        s.hint(i, m0, lag + 30 + 2 * k, "dlm")
                        if lag: s.hint(i, m0, lag - 20)
                    s.add(dl)
            qlen = len(ch) + len(pvm) + 1
            if OPT["spf"] and (q == 1 or (OPT["spf"] > 1 and q == 3) or OPT["spf"] > 2):
                for i in (raw("s_getpc_b64 s[40:41]", w=["s40"]), raw(f"s_load_dword s42, s[40:41], {OPT['spd']}", r=["s40"])):
                    s.hint(i, m0, 8); s.hint(i, m0, 12, "dlm"); s.add(i)
            k = 0
            for (n, t, kf, pb), sq in zip(work, sqs):
                if cz: s.add(s.rowmax(n, sq, f"v{MX}", f"v{MX+1}"))
                l = s.expcvt(b % 2, n, t, sq, pb)
                for i in l:
                    if i.k == "trans" and j not in (0, 30) and OPT["eh"]: s.hint(i, m0, OPT["e0"] + (k * qlen) // (4 * len(work))); k += 1
                s.add(l)
            if q == 3 and j < 30:
                opn = [f"K{j+2}", f"V{j+1}"] + (["V31"] if j == 29 else [])
                cm = trans and hv
                kw = dict(gate=f"D{j}", extra_need=["cw"] if cm else [], extra_w=["cmb"] if cm else [], extra_r=["cgive"] if cm else [])
                if j == 0:
                    bl = s.barrier(["V0"], opn, **kw); s.hint(bl[0], m0, 0); s.add(bl)
                else: s.add(s.sync([f"K{b}", f"V{j}"], opn, m0, off_bar=len(ch) - 3, off_rd=OPT["flr"] - (20 - len(ch)), **kw))
                if cm: s.add(s.cmb_col(pv, CT, s.LW))
            n0 = len(s.prog)
            if j < 30:
                if q < 3 and j > 0:
                    for ks in range(4): s.add(s.kread(("a", aK + 4 * ks, 4), b, s.tq(b, q + 1), ks))
                elif q == 3:
                    for ks in range(4): s.add(s.kread(("a", aK + 4 * ks, 4), b + 1, s.tq(b + 1, 0), ks))
            s.lastk = [x for x in s.prog[n0:] if x.k == "ds"]
            if trans and q == 0:
                s.add([s.smf(j, n) for n in range(5)])
            if (j, q, 1) in s.ins: s.add(s.ins[(j, q, 1)]())
            s.add(pvm)
            if not trans: s.add([s.smf(j, n) for n in smfs[q]])
            if trans:
                if hv and q == 1: s.add(s.cmb_give(pv, CT, s.LW))
                if q == 1: s.add([V("v_accvgpr_write_b32", f"a{aL+r}", 0) for r in range(10)])
            if q == 1 and j in s.stage: s.add(s.stage[j](m0))

    def plan_stage(s):
        s.stage = {}
        def g(m):
            o = []
            def ld(f, dst, k=0):
                t, oo = s.rowoff(1, f // 4)
                i = bload(dst, f"v{vG}", sQ, t, KOFF(f % 4), mod=MODS[OPT["q"]]); i.cmt = "strided"; s.hint(i, m, (k // 2) * OPT["sg1"])
                return oo + [i]
            def sc(f, src):
                d = Q(1, f // 4, f % 4); l = []
                for r in range(4):
                    if src[0] == "a": l += [V("v_accvgpr_read_b32", f"v{vT+1}", f"a{src[1]+r}")] + s.scale(f"v{vT+1}", f"a{d[1]+r}", vT)
                    else: l += s.scale(f"v{src[1]+r}", f"{d[0]}{d[1]+r}", vT)
                return l
            land = lambda f: ("v", vQB + 4 * (f + 1), 4) if f < 8 else Q(1, f // 4, f % 4)
            for f in range(12): o += ld(f, land(f), f)
            for f in range(0, 8, 2): o += sc(f, land(f)) + sc(f + 1, land(f + 1)) + ld(12 + f, land(12 + f)) + ld(13 + f, land(13 + f))
            for f in range(8, 20): o += sc(f, land(f))
            return o
        s.stage[OPT["sg0"]] = g

    def tail_pre(s):
        hv = s.half[1]; Z = ("a", 0) if OPT["ov"] else ("v", vQA)
        s.KT = lambda t: (lambda ks: ("a", aK + 4 * ks, 4) if t == 0 else (("v", vP + 40 + 16 * (t - 1) + 4 * ks, 4) if t < 3 else (Z[0], Z[1] + 48 + 4 * ks, 4)))
        s.VT = lambda dt, ks: (Z[0], Z[1] + 8 * dt + 4 * ks, 4) if dt < 6 else ("a", aV + 8 * (dt - 6) + 4 * ks, 4)
        s.PT = [vP + 72, 236]
        for t in range(1, 4):
            for ks in range(4): s.add(s.kread(s.KT(t)(ks), 31, t, ks))
    def tail(s):
        j = 31; hv = s.half[1]
        for dt in range(8):
            for ks in s.vks(j, dt, [0, 1]): s.add(s.vread(s.VT(dt, ks), j, dt, ks))
        E = vQA + 64
        WA, RA, GA, LW, LR, RL, NC = E, E + 1, E + 2, E + 3, E + 4, E + 6, E + 7
        CT = 244; CU = 220
        F = vP
        TB = [F, F + 8]; FQ = [(E + 8, E + 12), (F + 16, F + 20)]; RB = [F + 24 + 4 * k for k in range(4)]
        a = s.half_addr(WA, RA, GA, LW, LR, VB, KB, RL, NC)
        for i in a: s.hint(i, s.bstart[28], 0)
        s.add(a)
        order = [4, 3, 2, 1, 0]; XB = [0, 2048, 16384, 18432]
        if hv: s.add(s.cmb_pre(CT, KB))
        k2 = 0
        for k, n in enumerate(order):
            pb = s.PT[k % 2]; hn = hv and n == 4; FR, FB = FQ[k % 2]
            ml = [[s.smf(j, n, pb)], [], [], []]
            for dt in range(8):
                kss = [0] if hn else ([0, 1] if dt % 2 == 0 else [1, 0])
                ml[dt // 2] += [mfma(OP(1, n, dt), ("v", pb + 4 * ks, 4), s.VT(dt, ks), OP(1, n, dt)) for ks in kss]
            if k == 0 and OPT["stm"] != 5: s.stamp(ml[0][0])
            if k == 0 and OPT["es"]: s.add(ml[0].pop(0))
            for t in range(4):
                if k < 4:
                    n2 = order[k + 1]; sq = Sx(s.sc % 5); s.sc += 1
                    s.add(s.chain(1, n2, sq, s.KT(t), False), s.expcvt(1, n2, t, sq, s.PT[(k + 1) % 2]))
                s.add(ml[t])
                if t == 0 and not hn: s.add(s.ep_l(1, n, RL, NC) + s.nbr(1, NC, RL) + [colput(LW, 2 * n, RL, NC, ["D29"]), rowget(FR, LR, 2 * n), rowget(FB, LR, 2 * n + 1)])
            if hn:
                s.add(s.cmb_give(1, CT, LW))
                s.add(s.sync([], [], ml[3][-1], extra_need=["cw"], extra_w=["cmb"], extra_r=["cgive"], off_bar=24, off_rd=OPT["tf"]))
                continue
            for H in range(2):
                X = XB[k2 % 4]
                ep = s.half_wide(1, n, H, FR, FB, TB, WA, X, ["D29"]) + s.half_out(1, n, H, RB[2 * (k2 % 2):], RA, GA, X, OPT["o1"]); k2 += 1
                for i in ep:
                    if i.k == "vmem": s.hint(i, ml[2 * H + 1][-1], OPT["tdl"], "dlm")
                s.add(ep)
            if hv and k == 1:
                X = XB[k2 % 4]
                s.add(s.cmb_col(1, CT, LW), rowget(FR, LR, 8), rowget(FB, LR, 9), rowget(CU + 8, LR, 10))
                s.add(s.half_wide(1, 4, 1, FR, FB, TB, WA, X, ["D29"], part=(CT, CU, CU + 8)), s.half_out(1, 4, 1, RB[2 * (k2 % 2):], RA, GA, X, OPT["o1"])); k2 += 1

    def final(s):
        hv = s.half[1]
        s.tail_pre()
        E = vQA + 64; F = vP; CT = 244
        WA, RA, GA, LW, LR, RL, NC = E, E + 1, E + 2, E + 3, E + 4, E + 6, E + 7
        a = s.half_addr(WA, RA, GA, LW, LR, VB, KB, RL, NC)
        for i in a: s.hint(i, s.bstart[28], 0)
        s.add(a)
        PT = {4: vP + 72, 3: 236, 2: 220, 1: vP + 72, 0: 236}
        XB = [0, 2048, 16384, 18432]; st = dict(k2=0, late=False, fq={}, nf=0); vdone = set(); last = [None]
        std = lambda n: f"q{n-1}0 l{n} p{n}0 q{n-1}1 p{n}1 e{n}0 q{n-1}2 p{n}2 q{n-1}3 p{n}3 e{n}1 " if n else "l0 p00 p01 e00 p02 p03 e01"
        if not hv:
            sc = ["q40 P0 q41 q42 q43 P1 s4 l4 q30 p40 q31 p41 e40 q32 q33 P2 s3 l3 p30 p31 e30 P3 s0 s1 s2 p42 q20 p32 q21 p43 e41 q22 p33 e31 q23 ",
                  "q40 P0 q41 q42 q43 P1 s4 l4 p40 p41 e40 q30 q31 P2 q32 q33 P3 s3 s0 s1 s2 p42 l3 p30 q20 p43 e41 p31 e30 q21 p32 q22 p33 e31 q23 "][OPT["fin"] - 1]
        else:
            sc = ["q40 P0 q41 q30 q31 P1 s4 l4 p40 p41 g q32 q33 P2 s3 l3 p30 p31 e30 P3 s0 s1 s2 p42 p32 q20 q21 p43 p33 e31 c q22 q23 ",
                  "q40 P0 q41 q30 q31 q32 P1 s4 l4 p40 p41 g q33 s3 P2 l3 p30 p31 e30 P3 s0 s1 s2 p42 p32 q20 p43 c q21 p33 e31 q22 q23 "][OPT["fin"] - 1]
        sc += "l2 p20 q10 p21 e20 q11 p22 q12 p23 e21 q13 l1 p10 q00 p11 e10 q01 p12 q02 p13 e11 q03 l0 p00 p01 e00 p02 p03 e01" if OPT["to"] else std(2) + std(1) + std(0)
        def mm(l):
            if 30 not in s.bstart:
                s.bstart[30] = l[0]
                if 30 in s.stamp_at: s.stamp(l[0])
            s.add(l); last[0] = l[-1]
        def temps():
            k2 = st["k2"]; st["k2"] += 1
            if st["late"]: return XB[k2 % 4], [F, F + 8], [F + 24 + 8 * (k2 % 2), F + 28 + 8 * (k2 % 2)]
            return (XB[k2 % 4], [220, 220], [228, 232]) if hv else (XB[k2 % 4], [244, 244], [vNM + 16, 244] if k2 == 0 else [228, 232])
        def fq(key, slots):
            for q_, k_ in st["fq"].items():
                if k_ == key: return q_, []
            q_ = (F + 16) if st["late"] and st["nf"] % 2 else (E + 8); st["nf"] += 1; st["fq"][q_] = key
            return q_, [rowget(q_, LR, slots[0]), rowget(q_ + 4, LR, slots[1])]
        def dls(l):
            for i in l:
                if i.k == "vmem": s.hint(i, last[0], OPT["tdl"], "dlm")
            return l
        for x in sc.split():
            c = x[0]; n = int(x[1]) if len(x) > 1 else 4; hn = hv and n == 4
            if c == "q":
                t = int(x[2]); sq = Sx(s.sc % 5); s.sc += 1
                mm(s.chain(1, n, sq, s.KT(t), False)); s.add(s.expcvt(1, n, t, sq, PT[n]))
            elif c == "P":
                rd, m_ = s.pvgroup(30, n, [0, 1, 2, 3, 4], aV, None); s.add(rd); mm(m_)
                for dt in (2 * n, 2 * n + 1):
                    for ks in s.vks(31, dt, [0, 1]): s.add(s.vread(s.VT(dt, ks), 31, dt, ks))
            elif c == "s":
                mm([s.smf(30, n)])
                if n == 2: st["late"] = True
            elif c == "l":
                mm([s.smf(31, n, PT[n])])
                if not hn: s.add(s.ep_l(1, n, RL, NC) + s.nbr(1, NC, RL) + [colput(LW, 2 * n, RL, NC, ["D29"])])
            elif c == "p":
                l = []
                for dt in (2 * int(x[2]), 2 * int(x[2]) + 1):
                    l += [mfma(OP(1, n, dt), ("v", PT[n] + 4 * ks, 4), s.VT(dt, ks), OP(1, n, dt)) for ks in ([0] if hn else ([0, 1] if dt % 2 == 0 else [1, 0]))]
                mm(l)
            elif c == "e":
                H = int(x[2]); X, TB, RB = temps(); FR, l = fq(n, (2 * n, 2 * n + 1))
                s.add(dls(l + s.half_wide(1, n, H, FR, FR + 4, TB, WA, X, ["D29"]) + s.half_out(1, n, H, RB, RA, GA, X, OPT["o1"])))
            elif c == "g":
                s.add(s.cmb_pre(CT, KB), s.cmb_give(1, CT, LW))
                s.add(s.sync([], [], last[0], extra_need=["cw"], extra_w=["cmb"], extra_r=["cgive"], off_bar=24, off_rd=30))
            elif c == "c":
                X, TB, RB = temps(); s.add(s.cmb_col(1, CT, LW)); FR, l = fq("c", (8, 9))
                s.add(dls(l + [rowget(228, LR, 10)] + s.half_wide(1, 4, 1, FR, FR + 4, TB, WA, X, ["D29"], part=(CT, vNM + 12, 228)) + s.half_out(1, 4, 1, RB, RA, GA, X, OPT["o1"])))

    def build(s):
        s.bstart = {}; s.stamp_at = {0, 4, 8, 15, 16, 18, 24} if OPT["stamps"] else set()
        s.nstamp = 1
        if OPT["stm"] == 1: s.stamp_at = {0}; s.nstamp = 2
        if OPT["stm"] == 2: s.stamp_at = set(range(OPT["pj"], OPT["pj"] + 8))
        if OPT["stm"] == 5: s.stamp_at = {0, 30}
        if OPT["stm"] == 4: s.stamp_at = {0, 22, 28}
        if OPT["stm"] == 3: s.stamp_at = {0, 15, 16, 17, 18, 19, 30}
        s.plan_stage(); s.plan_trans()
        s.start()
        for j in range(30 if OPT["fin"] else 31): s.block(j)
        n0 = len(s.prog)
        s.final() if OPT["fin"] else s.tail()
        for k, m in enumerate([i for i in s.prog[n0:] if ismf(i)]): m.lg = OPT["gt"] if k % OPT["gp_"] == 0 else 0
        ms = [i for i in s.prog if ismf(i)]
        for m in ms[ms.index(s.bstart[15]):ms.index(s.bstart[17]) - 40]: m.lg = OPT["gr"]
        for k, m in enumerate(ms): m.mi = k
        for i, m, off, attr in s.hints: setattr(i, attr, ms[max(0, min(len(ms) - 1, m.mi + off))])
        out = schedule(s.prog, verbose=True, name=s.tag)
        if OPT["verbose"]:
            prev = None
            for j in sorted(s.bstart):
                if prev is not None: print(f"  blk {j-1}: {s.bstart[j].st - prev}", end="")
                prev = s.bstart[j].st
            print(f"\n  start {s.bstart[0].st}  tail from blk30 {out[-1].st - prev}")
        return out

def setup_common():
    t0, t1, w = "s34", "s35", "s3"
    R = Role("AA", "")
    l, m, g, a, b, c = "v16", "v17", "v18", "v19", "v20", "v21"
    o = [raw("s_cmp_lt_u32 s2, 256", w=["scc"]), br("s_cbranch_scc1", "Lgo"), raw("s_endpgm"), label("Lgo")]
    if OPT["stamps"]: o += [raw("s_memtime s[44:45]"), raw("s_memrealtime s[46:47]")]
    if OPT["rb"] != 3:
        o += [S("s_lshr_b32", t0, "s2", OPT["rb"] - 3), S("s_xor_b32", t0, t0, "s2"), S("s_and_b32", t0, t0, 8), S("s_mul_i32", t0, t0, 1 + (1 << (OPT["rb"] - 3))), S("s_xor_b32", "s2", "s2", t0)]
    o += [raw("s_load_dwordx4 s[8:11], s[0:1], 0"), raw("s_load_dwordx4 s[12:15], s[0:1], 16"),
          V("v_lshrrev_b32", "v1", 6, "v0"), V("v_and_b32", l, 63, "v0"), V("v_and_b32", m, 15, "v0"),
          V("v_readfirstlane_b32", w, "v1"), V("v_lshrrev_b32", g, 4, l)]
    if OPT["pf"]:
        o += [raw("s_getpc_b64 s[36:37]", w=["s36", "s37"]), label("Lpf"),
              S("s_lshr_b32", t0, "s2", 4), S("s_lshl_b32", t0, t0, 13), S("s_bitcmp1_b32", "s2", 3), S("s_cselect_b32", t1, "LroleY-Lpf", 0), S("s_add_u32", t0, t0, t1),
              V("v_lshl_add_u32", a, "v0", 5, t0), V("v_min_u32", a, "Lcodeend-Lpf", a), V("v_mov_b32", "v25", "s37"),
              I("v_add_co_u32 v24, vcc, s36, v19", "valu", w=["v24", "vcc"], r=["s36", "v19"]), I("v_addc_co_u32 v25, vcc, 0, v25, vcc", "valu", w=["v25", "vcc"], r=["v25", "vcc"]),
              I("global_load_dword v253, v[24:25], off", "vmem", w=["v253"], r=["v24", "v25"])]
        if OPT["pf2"]:
            o = o[:-1] + [V("v_accvgpr_write_b32", "a0", "v24"), V("v_accvgpr_write_b32", "a1", "v25"),
                  S("s_lshr_b32", t0, "s2", 4), S("s_lshl_b32", t0, t0, 10), S("s_add_u32", t0, t0, t1), V("v_lshl_add_u32", a, "v0", 2, t0), V("v_mov_b32", "v25", "s37"),
                  I("v_add_co_u32 v24, vcc, s36, v19", "valu", w=["v24", "vcc"], r=["s36", "v19"]), I("v_addc_co_u32 v25, vcc, 0, v25, vcc", "valu", w=["v25", "vcc"], r=["v25", "vcc"]), o[-1]]
    o += [V("v_xor_b32", a, g, m), V("v_lshlrev_b32", a, 4, a), V("v_lshl_add_u32", f"v{vDA}", g, 8, a), V("v_xor_b32", f"v{vDB}", 128, f"v{vDA}")]
    if OPT["ob"]: o += [V("v_and_b32", a, 31, l), V("v_lshlrev_b32", a, 4, a), V("v_lshrrev_b32", b, 5, l), V("v_lshl_add_u32", "v22", b, 18, a)]
    o += [S("s_lshl_b32", sW4K, w, 12), S("s_mov_b32", sOFF, sW4K), S("s_mov_b32", sOFV, sW4K)]
    if OPT["rot"]:
        o += [S("s_lshr_b32", t0, "s2", 4)] + ([S("s_lshl_b32", t1, "s2", 1), S("s_and_b32", t1, t1, 14), S("s_add_u32", t0, t0, t1)] if OPT["rot"] == 2 else []) + ([S("s_lshl_b32", t0, t0, 1)] if OPT["rot"] == 3 else [])
        o += [S("s_and_b32", t0, t0, 15), S("s_lshl_b32", t0, t0, 14), S("s_add_u32", sOFF, sOFF, t0), S("s_mov_b32", sOFV, sOFF)]
    o += [S("s_mul_i32", "s28", w, 5 * 4096), S("s_add_u32", "s29", "s28", 4 * 4096)]
    if OPT["ab"]: o += [S("s_lshl_b32", "s30", w, 14), S("s_add_u32", "s30", "s30", 20 * 4096), S("s_and_b32", "s31", sW4K, "0x2000"), S("s_lshr_b32", "s31", "s31", 1), S("s_add_u32", "s31", "s31", 36 * 4096)]
    else: o += [S("s_add_u32", "s30", "s28", 18 * 4096), S("s_add_u32", "s31", "s28", 22 * 4096)]
    o += [S("s_bitcmp1_b32", "s2", 3), S("s_cselect_b64", ("s", 24, 2), ("s", 30, 2), ("s", 28, 2)), S("s_cselect_b64", ("s", 26, 2), ("s", 28, 2), ("s", 30, 2))]
    o += [S("s_and_b32", t0, "s2", 7), S("s_lshr_b32", t1, "s2", 4), S("s_lshl_b32", t0, t0, 4), S("s_add_u32", t0, t0, t1),
          S("s_mul_i32", t1, t0, 2 * HEADQ), S("s_lshl_b32", t0, t0, 19), S("s_mov_b32", "s6", 2 * HEADQ), S("s_mov_b32", "s7", "0x00020000")]
    o += [raw("s_waitcnt lgkmcnt(0)", k="salu")]
    if OPT["stamps"] and OPT["stm"] == 1: o += [raw("s_memtime s[48:49]"), raw("s_memrealtime s[50:51]")]
    o += [S("s_add_u32", "s4", "s8", t1), S("s_addc_u32", "s5", "s9", 0),
          S("s_add_u32", "s8", "s10", t0), S("s_addc_u32", "s9", "s11", 0), S("s_mov_b32", "s10", 2 * HEADK), S("s_mov_b32", "s11", "0x00020000")]
    srd2 = [S("s_add_u32", "s16", "s14", t1), S("s_addc_u32", "s17", "s15", 0), S("s_mov_b32", "s18", 2 * HEADQ), S("s_mov_b32", "s19", "0x00020000"),
          S("s_add_u32", "s12", "s12", t0), S("s_addc_u32", "s13", "s13", 0), S("s_mov_b32", "s14", 2 * HEADK), S("s_mov_b32", "s15", "0x00020000")]
    vl = [bload(("v", 24 + 4 * k, 4), "v22", sV, 0, 512 * k, mod=" nt") for k in range(2)] if OPT["ob"] else []
    parts = [R.qdma(0), R.dma("K", 0), R.dma("K", 1)] if OPT["so"] else [R.dma("K", 0), R.dma("K", 1), R.qdma(0)]
    parts.insert(OPT["bp"], srd2 + vl)
    for x in parts: o += x
    if OPT["stamps"]: o += [S("s_lshl_b32", "s100", "s2", 2), S("s_add_u32", "s100", "s100", w), S("s_mov_b32", "s101", "s2")] + ([S("s_mov_b32", "s95", 0)] if OPT["stm"] == 4 else [])
    if OPT["wu"]: o += [S("s_mov_b64", ("s", 96, 2), ("s", 8, 2)), S("s_mov_b64", ("s", 98, 2), ("s", 12, 2)), V("v_mov_b32", f"v{vQA+66}", 0)]
    o += [S("s_add_u32", "s26", "s26", HEADQ), S("s_add_u32", "s27", "s27", HEADQ)]
    o += [S("s_add_u32", "s33", sW4K, X0), V("v_and_b32", a, 1, g), V("v_lshlrev_b32", a, 6, a), V("v_lshrrev_b32", b, 1, g), V("v_lshl_add_u32", a, b, 4, a), V("v_lshl_add_u32", f"v{vG}", m, 8, a)]
    o += [V("v_and_b32", a, 3, m), V("v_and_b32", b, 4, m), V("v_lshl_add_u32", a, b, 1, a), V("v_lshlrev_b32", a, 4, a), V("v_xor_b32", a, a, f"v{vG}")]
    for ks in range(4):
        o += [V("v_xor_b32", b, KOFF(ks), a), V("v_add_u32", f"v{vKA+ks}", KB, b), V("v_add_u32", f"v{R.TA+ks}", "s33", b), V("v_add_u32", f"v{R.TA+4+ks}", KB + 49152 - X0, f"v{R.TA+ks}")]
    o += [V("v_lshrrev_b32", a, 2, l), V("v_and_b32", b, 3, a), V("v_and_b32", c, 4, a), V("v_lshl_add_u32", b, c, 1, b), V("v_and_b32", c, 2, l), V("v_lshl_add_u32", b, c, 1, b),
          V("v_lshlrev_b32", b, 4, b), V("v_and_b32", c, 1, l), V("v_lshl_add_u32", b, c, 3, b), V("v_lshl_add_u32", b, a, 8, b), V("v_add_u32", f"v{vVA}", VB, b)]
    o += [V("v_xor_b32", f"v{vVA+dt}", (dt & 3) * 16 + (dt >> 2) * 128, f"v{vVA}") for dt in range(1, 8)]
    o += [S("s_lshl_b32", t0, w, 8), S("s_add_u32", t0, t0, FLAG), V("v_lshl_add_u32", f"v{vFA}", l, 2, t0), V("v_mov_b32", f"v{vFE}", 0)]
    fi = ds_write("ds_write_b32", f"v{vFA}", f"v{vFE}", 0); fi.wt = {"cw"}; o.append(fi)
    o += [V("v_accvgpr_write_b32", f"a{aL+r}", 0) for r in range(12)]
    o += [V("v_and_b32", a, 2, m), V("v_cmp_eq_u32", "vcc", 0, a), V("v_mov_b32", b, "0x3f803f80"), V("v_cndmask_b32", a, 0, b, "vcc"), V("v_xor_b32", b, a, b)]
    if OPT["one0"]: o += [V("v_cmp_gt_u32", "vcc", 4, m), nop(2), V("v_cndmask_b32", a, 0, a, "vcc"), V("v_cndmask_b32", b, 0, b, "vcc")]
    o += [V("v_accvgpr_write_b32", f"a{aONE+i}", a) for i in range(4)] + [V("v_accvgpr_write_b32", f"a{aONE+4+i}", b) for i in range(4)]
    o += [V("v_and_b32", a, 1, m), V("v_cmp_eq_u32", "vcc", 1, a), V("v_mov_b32", b, "0x44444444"), V("v_mov_b32", c, "0xeeeeeeee"), V("v_cndmask_b32", f"v{vIDX}", b, c, "vcc")]
    o += [S("s_mov_b32", sC, hex(CSCALE)), S("s_mov_b32", sC2, hex(CSCALE)), S("s_mov_b32", sMASK, "0xffff0000"), S("s_mov_b32", sTHR, hex(OPT["thr"])),
          S("s_mov_b64", sBAD[0], 0), S("s_mov_b64", sBAD[1], 0)]
    o += [S("s_and_b32", sD0, w, 1), S("s_lshl_b32", sFK, sD0, 13), S("s_lshl_b32", sD0, sD0, 7), S("s_or_b32", sFV, sFK, sD0)]
    if OPT["ob"]:
        x = [f"v{24+k}" for k in range(8)]; y = [f"v{32+k}" for k in range(8)]
        bo = [wait(need=x)] + [V("v_max_f32_e64", y[k], f"|{x[k]}|", f"|{x[4+k]}|") for k in range(4)]
        bo += [V("v_lshlrev_b32", x[k], 16, x[k]) for k in range(8)] + [V("v_max_f32_e64", y[4+k], f"|{x[k]}|", f"|{x[4+k]}|") for k in range(4)]
        bo += [swap("v_permlane16_swap_b32", y[k], y[4+k]) for k in range(4)] + [V("v_max_f32", y[k], y[k], y[4+k]) for k in range(4)]
        bo += [V("v_min3_f32", y[0], y[0], y[1], y[2]), V("v_min_f32", y[0], y[0], y[3])]
        bo += [V("v_min_f32_dpp", y[0], y[0], y[0], mod=f" row_ror:{k} row_mask:0xf bank_mask:0xf") for k in (8, 4, 2, 1)]
        bo += [V("v_and_b32", y[0], "0x7f800000", y[0]), V("v_min_f32", y[0], f32(2.0 ** 100), y[0]), V("v_mul_f32", y[0], f32(1.5 * 2.0 ** (OPT["kap"] - OPT["dlt"])), y[0]), nop(1)]
        bo += [V("v_readlane_b32", "s40", y[0], 0), V("v_readlane_b32", "s36", y[0], 16), V("v_readlane_b32", "s41", y[0], 32), V("v_readlane_b32", "s37", y[0], 48), nop(2),
               S("s_min_u32", "s40", "s40", "s36"), S("s_min_u32", "s41", "s41", "s37")]
    else: bo = []
    if OPT["bq"]: o += bo
    if not OPT["so"] or OPT["sd"]: o += R.qdma(1)
    if not OPT["bq"]: o += bo
    o += [S("s_bitcmp1_b32", "s2", 3), br("s_cbranch_scc1", "LroleY")]
    return o

def setup_role(R, k):
    o = [S("s_xor_b32", sD1, sD0, 128)]
    if R.half[0]:
        o += [V("v_xor_b32", f"v{vKA+ks}", sFK, f"v{vKA+ks}") for ks in range(4)] + [V("v_xor_b32", f"v{vVA+dt}", sFV, f"v{vVA+dt}") for dt in range(8)]
    return o

def finish(R, k):
    o = []
    if OPT["stamps"]:
        n = R.nstamp
        o += [raw(f"s_memtime s[{44+4*n}:{45+4*n}]"), raw(f"s_memrealtime s[{46+4*n}:{47+4*n}]"), raw("s_waitcnt vmcnt(0) lgkmcnt(0)")]; n += 1
        o += [raw(f"s_memtime s[{44+4*n}:{45+4*n}]"), raw(f"s_memrealtime s[{46+4*n}:{47+4*n}]"), raw("s_waitcnt lgkmcnt(0)")]; n += 1
        assert n <= 13
        if OPT["pi"] >= 0:
            i, j, kk = OPT["pi"], OPT["pj"], OPT["pk_"]
            if not OPT["pall"]: o += [raw("s_and_b32 s101, s101, 0xf7"), raw("s_cmp_lg_u32 s101, 100"), raw(f"s_cbranch_scc1 Lfin{k}")]
            o += [raw(f"s_sub_u32 s36, s{44+4*j+2*kk}, s{44+4*i+2*kk}"), raw("s_mul_i32 s36, s36, 10") if kk else raw("s_lshr_b32 s36, s36, 1"),
                  raw("s_min_u32 s36, s36, 200000"), raw("s_memrealtime s[38:39]"), raw("s_waitcnt lgkmcnt(0)")] + ([raw(f"s_mov_b32 s36, {OPT['pfix']}"), raw("s_mov_b32 s38, s46")] if OPT["pfix"] else []) + [label(f"Lspin{k}"), raw("s_memrealtime s[40:41]"), raw("s_waitcnt lgkmcnt(0)"),
                  raw("s_sub_u32 s37, s40, s38"), raw("s_cmp_lt_u32 s37, s36"), raw(f"s_cbranch_scc1 Lspin{k}")]
        else:
            o += [raw("; STAMPS"), raw("s_load_dwordx2 s[40:41], s[0:1], 40"), raw("v_mov_b32 v16, 0")]
            for x in range(n): o += [raw(f"v_writelane_b32 v16, s{44+4*x}, {2*x}"), raw(f"v_writelane_b32 v16, s{46+4*x}, {2*x+1}")]
            o += [raw(f"v_writelane_b32 v16, {n}, 63"), raw("v_writelane_b32 v16, s95, 62"), raw("s_lshl_b32 s100, s100, 8"), raw("v_mbcnt_lo_u32_b32 v17, -1, 0"), raw("v_mbcnt_hi_u32_b32 v17, -1, v17"), raw("v_lshlrev_b32 v17, 2, v17"),
                  raw("s_waitcnt lgkmcnt(0)"), raw("s_mov_b32 s42, 0x100000"), raw("s_mov_b32 s43, 0x00020000"), raw("buffer_store_dword v16, v17, s[40:43], s100 offen"), raw("s_waitcnt vmcnt(0)")]
    o += [label(f"Lfin{k}")]
    if OPT["slow"]: o += [raw("s_or_b64 s[36:37], s[30:31], s[32:33]"), raw("s_cbranch_scc1 Lslow")]
    o += [raw("s_endpgm")] + R.stubs
    return o

MACROS = """.macro qa d,a,b,c
v_mfma_f32_16x16x32_bf16 v[\\d:\\d+3], a[\\a:\\a+3], v[\\b:\\b+3], v[\\c:\\c+3]
.endm
.macro qb d,a,b,c
v_mfma_f32_16x16x32_bf16 v[\\d:\\d+3], a[\\a:\\a+3], a[\\b:\\b+3], v[\\c:\\c+3]
.endm
.macro pv d,a,b
v_mfma_f32_16x16x32_bf16 a[\\d:\\d+3], a[\\a:\\a+3], v[\\b:\\b+3], a[\\d:\\d+3]
.endm
.macro pw d,a,b
v_mfma_f32_16x16x32_bf16 v[\\d:\\d+3], a[\\a:\\a+3], v[\\b:\\b+3], v[\\d:\\d+3]
.endm
.macro pa d,a,b
v_mfma_f32_16x16x32_bf16 a[\\d:\\d+3], v[\\a:\\a+3], a[\\b:\\b+3], a[\\d:\\d+3]
.endm
.macro pb d,a,b
v_mfma_f32_16x16x32_bf16 v[\\d:\\d+3], v[\\a:\\a+3], a[\\b:\\b+3], v[\\d:\\d+3]
.endm
.macro ex r
v_exp_f32 v\\r, v\\r
.endm
.macro cv d,a,b
v_cvt_pk_bf16_f32 v\\d, v\\a, v\\b
.endm
.macro lk d,a,o
ds_read_b128 a[\\d:\\d+3], v\\a offset:\\o
.endm
.macro lv d,a,o
ds_read_b64_tr_b16 a[\\d:\\d+1], v\\a offset:\\o
.endm
"""
def compact(txt):
    M = "    v_mfma_f32_16x16x32_bf16 "
    txt = re.sub(M + r"v\[(\d+):\d+\], a\[(\d+):\d+\], v\[(\d+):\d+\], v\[\1:\d+\]", r"pw \1,\2,\3", txt)
    txt = re.sub(M + r"v\[(\d+):\d+\], a\[(\d+):\d+\], v\[(\d+):\d+\], v\[(\d+):\d+\]", r"qa \1,\2,\3,\4", txt)
    txt = re.sub(M + r"v\[(\d+):\d+\], a\[(\d+):\d+\], a\[(\d+):\d+\], v\[(\d+):\d+\]", r"qb \1,\2,\3,\4", txt)
    txt = re.sub(M + r"a\[(\d+):\d+\], a\[(\d+):\d+\], v\[(\d+):\d+\], a\[\1:\d+\]", r"pv \1,\2,\3", txt)
    txt = re.sub(M + r"a\[(\d+):\d+\], v\[(\d+):\d+\], a\[(\d+):\d+\], a\[\1:\d+\]", r"pa \1,\2,\3", txt)
    txt = re.sub(M + r"v\[(\d+):\d+\], v\[(\d+):\d+\], a\[(\d+):\d+\], v\[\1:\d+\]", r"pb \1,\2,\3", txt)
    txt = re.sub(r"    v_exp_f32 v(\d+), v\1\n", r"ex \1\n", txt)
    txt = re.sub(r"    v_cvt_pk_bf16_f32 v(\d+), v(\d+), v(\d+)", r"cv \1,\2,\3", txt)
    txt = re.sub(r"    ds_read_b128 a\[(\d+):\d+\], v(\d+) offset:(\d+)", r"lk \1,\2,\3", txt)
    txt = re.sub(r"    ds_read_b64_tr_b16 a\[(\d+):\d+\], v(\d+) offset:(\d+)", r"lv \1,\2,\3", txt)
    return txt.replace("\n    ", "\n")

def sizes(l):
    import subprocess, tempfile, os
    d = tempfile.mkdtemp()
    t = "".join(f"Z{k}:\n" + re.sub(r"(s_c?branch\w*) \w+", r"\1 Z0", re.sub(r"(?m)^L\w+:\n", "", i.text())) for k, i in enumerate(l)) + f"Z{len(l)}:\ns_endpgm\n"
    open(d + "/a.s", "w").write(t)
    subprocess.run(["clang", "-x", "assembler", "-target", "amdgcn-amd-amdhsa", "-mcpu=gfx950", "-c", d + "/a.s", "-o", d + "/a.o"], check=True)
    out = subprocess.run(["llvm-objdump", "-t", d + "/a.o"], capture_output=True, text=True).stdout
    ad = {x.split()[-1]: int(x.split()[0], 16) for x in out.splitlines() if re.search(r" Z\d+$", x)}
    return [ad[f"Z{k+1}"] - ad[f"Z{k}"] for k in range(len(l))]
def warmup(l, tag, dense):
    def entry(r):
        o = [raw("s_mov_b64 vcc, -1")]
        for w in range(3): o += [raw(f"s_cmp_eq_u32 {sW4K}, {4096*w}"), raw(f"s_cbranch_scc1 Lw{tag}{r}_{w}")]
        return o + [raw(f"s_branch Lw{tag}{r}_3"), label(f"Lwr{tag}{r}"), raw("s_mov_b64 vcc, 0")]
    l = entry(0) + l
    sz = sizes(l); esz = sum(sizes(entry(1))); total = sum(sz)
    idx = {id(x): k for k, x in enumerate(l)}
    isd = [False] * len(l)
    for a, b in dense:
        for k in range(idx[id(a)] if a is not None else 0, idx[id(b)] if b is not None else len(l)): isd[k] = True
    ends = [e * 4096 + 1024 for e in (OPT["wu1"], OPT["wu2"]) if e]
    out = []; pos = 0; win = False; pads = [[]]; nxt = OPT["wg"] if isd[0] else 4096
    for k, (i, z) in enumerate(zip(l, sz)):
        prev = l[k - 1] if k else None
        free = prev is not None and ismf(prev) and i.k not in SCAL and not i.nop
        if isd[k]: nxt = min(nxt, (pos // OPT["wg"] + 1) * OPT["wg"])
        if pos >= nxt and not win and (free or pos >= nxt + 40) and sum(sz[k:k + 40]) >= 128:
            p = raw(""); pads[-1].append(p); out.append(p); pos += 4
            nxt = (pos // 4096 + 1) * 4096
        elif ends and pos >= ends[0] and not win and free:
            out += entry(len(pads)); pos += esz; pads.append([]); ends.pop(0)
        if i.t.startswith("v_cmp") and "vcc" in i.w: win = True
        if i.cmt == "check": win = False
        out.append(i); pos += z
    for r, pl in enumerate(pads):
        assert len(pl) >= 4, (r, len(pl))
        for k, p in enumerate(pl):
            p.t = f"\nLw{tag}{r}_{k}:\n    s_cbranch_vccnz " + (f"Lw{tag}{r}_{k+4}" if k + 4 < len(pl) else f"Lwr{tag}{r}")
    if OPT["verbose"]: print("  pads per round:", [len(x) for x in pads])
    return out
def build():
    STC[0] = OPT["stc"]; IMPR[0] = OPT["im"]; BW[0] = OPT["bw"]; NOPW[0] = OPT["nw"]; TA_LIM[0] = OPT["tal"]; VM_LAT[0] = OPT["vml"]
    com = setup_common()
    body = ""
    txt = []
    for k, types in enumerate((("AB", "BA") if OPT["ab"] else ("AA", "AA"))):
        R = Role(types, "XY"[k])
        main = R.build()
        su = setup_role(R, k)
        for i in com + su: i.st = -1000
        tr = insert_waits(com + su + main)
        while fix_hazards(tr, verbose=OPT["verbose"] > 1): pass
        e = verify2(tr); assert e == 0, e
        nc = len(com)
        if OPT["loopt"]:
            tr = [i for i in tr if i.cmt != "check"]; R.stubs = []
            i0 = tr.index(R.bstart[23]); i1 = tr.index(R.bstart[27])
            tr = tr[:i0] + [raw(f"s_mov_b32 s42, {OPT['loopt']}"), label(f"Llt{k}")] + tr[i0:i1] + [raw("s_sub_u32 s20, s20, 65536"), raw("s_sub_u32 s43, s43, 65536"), raw("s_sub_u32 s42, s42, 1"), raw("s_cmp_lg_u32 s42, 0"), raw(f"s_cbranch_scc1 Llt{k}")] + tr[i1:]
        if OPT["nost"]: tr = [i for i in tr if not (i.k == "vmem" and "store" in i.t and i.st > 75000)]
        if OPT["nodsw"]: tr = [i for i in tr if not (i.k == "dsw" and "b64" in i.t and i.st > 75000)]
        if OPT["nowait"]: tr = [i for i in tr if not (i.k == "wait" and i.st > 20000)]
        if OPT["nosync"]: tr = [i for i in tr if not ("v255" in i.t and i.st > 20000)]
        if OPT["nodma"]: tr = [i for i in tr if not (i.k == "vmem" and i.ring and i.ring[1] >= 4)]
        if OPT["samekv"]:
            for i in tr:
                if i.t == "s_add_u32 s20, s20, 16384": i.t = "s_xor_b32 s20, s20, 16384"
        if OPT["nosmf"]: tr = [i for i in tr if i.tag != "smf"]
        if OPT["nocvt"]: tr = [i for i in tr if not (i.t.startswith("v_cvt_pk") and 136 <= int(i.t.split()[1][1:-1]) < 216 and i.st > 8000)]
        if OPT["nobar"]: tr = [i for i in tr if i.k != "bar"]
        if OPT["noxor"]: tr = [i for i in tr if "0x2000, " not in i.t]
        if OPT["nolds"]: tr = [i for i in tr if not (i.k == "ds" and i.ring and i.ring[1] >= 2)]
        if OPT["noexp"]: tr = [i for i in tr if "v_exp" not in i.t]
        assert all(a is b for a, b in zip(tr[:nc], com))
        code = tr[nc:]
        if OPT["wu"]: code = warmup(code, "XY"[k], [x for b_, x in enumerate([(R.bstart[30], None), (None, R.bstart[0]), (R.bstart[15], R.bstart[17])]) if OPT["wd"] >> b_ & 1])
        txt.append("".join(i.text() for i in code + finish(R, k)))
        if OPT["verbose"]: print("  nops:", sum(i.nop for i in tr), "waits:", sum(i.k == "wait" for i in tr))
    slow = ""
    if OPT["slow"]:
        import slowpath4 as slowpath
        slow = slowpath.text(sys.modules[__name__])
    al = ".p2align 12" if OPT["wu"] or OPT["al"] else ".p2align 6"
    body = "".join(i.text() for i in com) + ("    s_branch LroleX\n" + al + "\nLroleX:\n" if OPT["wu"] or OPT["al"] else "") + txt[0] + slow + al + "\nLroleY:\n" + txt[1] + "Lcodeend:\n    s_endpgm\n" + (".fill 4096, 4, 0xbf810000\n" if OPT["spf"] else "")
    return compact(body) if OPT["compact"] else body

HEAD = f"""; softmax(Q K^T / sqrt(128)) V, B8 H32 Sq608 Sk1024 D128, bf16 in / bf16 out. Hand-designed; the instruction order is emitted by my own list-scheduling script.
; One workgroup (4 waves, 512 registers each) per CU. Workgroups 16i+x and 16i+8+x share two heads (one after the other), each taking about half of the
; ring (LDS-DMA); waves synchronise through epoch flags in LDS. S^T = K Q'^T with Q' = bf16(Q * log2(e)/sqrt(128)), P = exp2(S - m), O += P V, l += P 1.
; Softmax guard: m = (true maximum of the row's first 16 keys) + 10, so m never exceeds the row's true maximum by more than 10 (nothing extra underflows).
; Every row sum l is checked at run time (l <= 2^64, not NaN); a wave that fails the check recomputes its rows at Lslow with the true row maximum.
; The fp32 output accumulators start from a small constant B (tied to the smallest column scale of V) that is subtracted again in the epilogue.
; The Lw* branches are never taken in normal flow (vcc = 0); twice per launch a wave sets vcc and hops through them to pull the first line of each code page into the I-cache.
; @launch grid=(256,1,1) block=(256,1,1) lds=163840
.amdgcn_target "amdgcn-amd-amdhsa--gfx950"
{MACROS}.text
.globl {NAME}_kernel
.p2align 8
.type {NAME}_kernel,@function
{NAME}_kernel:
"""
TAIL = f""".section .rodata,"a"
.p2align 6
.amdhsa_kernel {NAME}_kernel
  .amdhsa_next_free_vgpr 512
  .amdhsa_next_free_sgpr 102
  .amdhsa_accum_offset 256
  .amdhsa_group_segment_fixed_size 0
  .amdhsa_kernarg_size 48
  .amdhsa_user_sgpr_count 2
  .amdhsa_user_sgpr_kernarg_segment_ptr 1
  .amdhsa_system_sgpr_workgroup_id_x 1
  .amdhsa_float_denorm_mode_32 3
.end_amdhsa_kernel
"""
if __name__ == "__main__":
    open(sys.argv[1], "w").write(HEAD + build() + TAIL)
```

```python
import sys, struct, math, re
from asmir import *
from sched import *

NAME = "standalone__mha_softmax__near_ridge"
OPT = dict(qd=0, qs=10, q0=1, qlin=0, sgx=1, dsp=15, dw=10, dx=-14, dy=0, dc=85, al=0, wu=1, wu1=14, wu2=0, wd=0, wg=512, fin=1, pf2=0, rot=0, sp=0, es=1, dfr=0, po=0, im=7, bw=10, stc=64, gt=0, gp_=1, gr=0, nw=40, hl=30, df0=17, df1=2, tf=12, sm=0, to=0, pfix=0, eh=1, vb=0, c4=0, swp=1, gl=1, tl=0, h0=115, h1=30, h2=195, h3=30, hd=260, nost=0, nodsw=0, ep=0, epo=0, l0=40, l1=110, l2=90, l3=40, sv=0, sd=0, asap=1, kq=4, rb=3, kalt=1, sg0=1, sg1=140, vml=3500, tal=0, bp=0, bq=1, ob=1, kap=7, obias=0, dlt=10, olast=0, o2=0, one0=0, cz=0, nosnake=0, so=0, tch=0, u0=66, u1=19, u2=19, ov=1, ddl=130, cd=1, loopt=0, nowait=0, nosync=0, spf=0, spd=6144, sdl=24, tdl=16, fl=1, flr=20, stm=0, samekv=0, nosmf=0, nocvt=0, nodma=0, nobar=0, noxor=0, nolds=0, noexp=0, xd=0, thr=0x5f800000, lagc=50, lagmax=240, stamps=0, kv=1, kvy=1, q=1, o0=4, o1=4, ab=1, pf=1, e0=7, pk=1, pi=-1, pj=0, pk_=1, pall=0, verbose=0, compact=1, slow=1)
MODS = ["", " nt", " sc1", " sc1 nt", " sc0 sc1", " sc0 sc1 nt", " sc0", " sc0 nt"]
for a in sys.argv[2:]:
    k, v = a.split("="); assert k in OPT, k; OPT[k] = int(v)
vKA = 0; vVA = 4; vDA, vDB = 12, 13; vIDX = 14; vG = 15
vS = 16; vNM = 36; vQA = 56; vP = 136; vQB = 216; vT = 252
aO = 0; aL = 160; aONE = 172; aV = 180; aK = 196; aQB = 212
sQ, sK, sV, sO = 4, 8, 12, 16
sOFF = "s20"; sW4K = "s21"; sC = "s22"; sC2 = "s23"
sROW = [["s24", "s25"], ["s26", "s27"]]
sMASK = "s28"; sTHR = "s29"; sBAD = [("s", 30, 2), ("s", 32, 2)]; sFK = "s34"; sFV = "s35"; sD0 = "s3"; sD1 = "s2"
sOFV = "s94" if OPT["rot"] else "s43"; sB = ["s40", "s41"]
sTMP = [f"s{i}" for i in range(36, 40)]
HEADQ = 608 * 256; HEADK = 1024 * 256
CSCALE = struct.unpack("<I", struct.pack("<f", math.log2(math.e) / math.sqrt(128.0)))[0]
X1 = 0; X0 = 16384; KB = 32768; VB = 98304; FLAG = 1024
vFA, vFE = 254, 255
_st = [0]
def stmp():
    _st[0] = (_st[0] + 1) % len(sTMP); return sTMP[_st[0]]
def SS(op, d, *src):
    i = S(op, d, *src); i.w.discard("scc"); return i

def Sx(n): return ("v", vS + 4 * n, 4)
def NM(n): return ("v", vNM + 4 * n, 4)
def Q(p, n, ks):
    f = 4 * n + ks
    if p == 0: return ("v", vQA + 4 * f, 4)
    return ("a", aQB + 4 * f, 4) if f < 11 else ("v", vQB + 4 * (f - 11), 4)
def P(par, n, ks): return ("v", vP + 40 * par + 8 * n + 4 * ks, 4)
def O(n, dt): return ("a", aO + 32 * n + 4 * dt, 4)
def OP(p, n, dt):
    if p == 1 and n < 2 and OPT["ov"]: return ("v", vQA + 32 * n + 4 * dt, 4)
    return O(n, dt)
def mul2(d, a, m):
    if m[0] == "s": l = [V("v_mul_f32", f"v{d+k}", m, f"v{a+k}") for k in range(2)]; f = V("v_pk_mul_f32", ("v", d, 2), ("v", a, 2), ("s", 22, 2))
    else:
        r = int(m[1:]); l = [V("v_mul_f32", f"v{d+k}", f"v{a+k}", m) for k in range(2)]
        f = V("v_pk_mul_f32", ("v", d, 2), ("v", a, 2), ("v", r & ~1, 2), mod=" op_sel:[0,1] op_sel_hi:[1,1]" if r & 1 else " op_sel_hi:[1,0]")
        f.r.discard(f"v{r^1}")
    if OPT["pk"]: l[0].fuse = l[1].fuse = f
    return l
def f32(x): return hex(struct.unpack("<I", struct.pack("<f", float(x)))[0])
def fmap(d, a, m, c):
    l = [V("v_fma_f32", f"v{d+k}", f"v{a+k}", f"v{m+k}", f"v{c+k}") for k in range(2)]
    if OPT["pk"]: l[0].fuse = l[1].fuse = V("v_pk_fma_f32", ("v", d, 2), ("v", a, 2), ("v", m, 2), ("v", c, 2))
    return l
def colput(LW, slot, a, b, gate=()):
    i = I(f"ds_write2_b32 v{LW}, v{a}, v{b} offset0:{16*slot} offset1:{16*slot+16}", "dsw", r=[f"v{LW}", f"v{a}", f"v{b}"])
    i.xw = {f"Fq{slot}", f"Fq{slot+1}"}; i.xr = set(gate); return i
def rowget(d, LR, slot):
    i = ds_read("ds_read_b128", ("v", d, 4), f"v{LR}", 64 * slot); i.xr = {f"Fq{slot}"}; return i
def KOFF(ks): return (ks & 1) * 32 + (ks >> 1) * 128
def L(n): return ("a", aL + 4 * (n // 2), 4)
def Lr(n): return aL + 4 * (n // 2) + 2 * (n % 2)
def ONE(n): return ("a", aONE + 4 * (n % 2), 4)

LEAD = {}
class Role:
    def __init__(s, types, tag):
        s.half = [t == "B" for t in types]; s.tag = tag
        s.kst = [[s.half[0], 0] for _ in range(4)]; s.vst = [[s.half[0], 0] for _ in range(8)]
        s.prog = []; s.hints = []; s.nstamp = 0; s.epoch = 0; s.stubs = []
    def add(s, *l):
        for x in l:
            if isinstance(x, list): s.prog += x
            else: s.prog.append(x)
    def hint(s, i, m, off, attr="nb"): s.hints.append((i, m, off, attr)); return i
    def addr(s, st, reg, half, h, sflip):
        o = []
        if st[0] != half:
            if st[1]: o.append(V("v_xor_b32", reg, "0x2000", reg)); st[1] = 0
            o.append(V("v_xor_b32", reg, sflip, reg)); st[0] = half
        if not half: return o, h * 8192
        if st[1] != h: o.append(V("v_xor_b32", reg, "0x2000", reg)); st[1] = h
        return o, 0
    def kread(s, dst, b, t, ks):
        o, off = s.addr(s.kst[ks], f"v{vKA+ks}", s.half[b // 16], t >> 1, sFK)
        i = ds_read("ds_read_b128", dst, f"v{vKA+ks}", (b % 4) * 16384 + off + (t & 1) * 4096)
        i.ring = ("K", b); i.xr = {f"cK{b}", f"oK{b}"}; i.wt = {f"rK{b}"}
        return o + [i]
    def vread(s, dst, b, dt, ks):
        o, off = s.addr(s.vst[dt], f"v{vVA+dt}", s.half[b // 16], ks, sFV)
        for u in range(2):
            i = ds_read("ds_read_b64_tr_b16", (dst[0], dst[1] + 2 * u, 2), f"v{vVA+dt}", (b % 4) * 16384 + off + u * 4096)
            i.ring = ("V", b); i.xr = {f"cV{b}", f"oV{b}"}; i.wt = {f"rV{b}"}
            o.append(i)
        return o
    def vks(s, b, dt, pref):
        if s.half[b // 16] and s.vst[dt][0]: return [s.vst[dt][1], s.vst[dt][1] ^ 1]
        return pref
    def dma(s, kind, b, gate=None):
        o = []
        so = sOFF if kind == "K" else sOFV
        gl = OPT["gl"] and b >= 4; gp = 96 if kind == "K" else 98
        srd = sK if kind == "K" else sV
        if OPT["rot"]:
            if b > 0: o += [SS("s_add_u32", so, so, 16384), SS("s_bitset1_b32" if b >= 16 else "s_bitset0_b32", so, 18)] + ([SS("s_bitset0_b32", so, 19)] if b > 16 else [])
            if gl: o.append(raw(f"s_add_u32 s{gp}, s{srd}, {so}\n    s_addc_u32 s{gp+1}, s{srd+1}, 0", w=[f"s{gp}"], r=[so])); o[-1].cmt = "two"
        elif gl:
            if b == 4:
                o.append(raw(f"s_add_u32 s{gp}, s{srd}, {so}\n    s_addc_u32 s{gp+1}, s{srd+1}, 0", w=[f"s{gp}"], r=[so])); o[-1].cmt = "two"
            o.append(raw(f"s_add_u32 s{gp}, s{gp}, 16384\n    s_addc_u32 s{gp+1}, s{gp+1}, 0", w=[f"s{gp}"], r=[f"s{gp}"])); o[-1].cmt = "two"
        elif b > 0: o.append(SS("s_add_u32", so, so, 16384))
        o.append(SS("s_add_u32", "m0", sW4K, (b % 4) * 16384 + (VB if kind == "V" else KB)))
        for k in range(4):
            i = dma(f"v{vDA if k % 2 == 0 else vDB}", sK if kind == "K" else sV, so, k * 1024, mod=MODS[OPT["kvy" if s.tag == "Y" and b >= 3 else "kv"]])
            if gl:
                va = f"v{vDA if k % 2 == 0 else vDB}"
                i = I(f"global_load_lds_dwordx4 {va}, s[{gp}:{gp+1}] offset:{k*1024}{MODS[OPT['kv']]}", "vmem", r=[va, f"s{gp}", "m0"])
            i.ring = (kind, b); i.wt = {f"d{kind}{b}"}; i.xw = {f"i{kind}{b}"}
            if gate: i.xr = {gate}
            o.append(i)
        return o
    def barrier(s, close, opn, gate=None, extra_need=(), extra_w=(), extra_r=()):
        w = wait(need=[f"r{x}" for x in close] + [f"d{x}" for x in opn] + list(extra_need))
        w.xw = {f"c{x}" for x in close} | {"barseq"}; w.xr = {f"i{x}" for x in opn} | set(extra_r)
        b = bar(); b.xr = {"barseq"}; b.xw = {f"o{x}" for x in opn} | ({gate} if gate else set()) | set(extra_w)
        return [w, b]
    def sync(s, close, opn, m, gate=None, extra_need=(), extra_w=(), extra_r=(), off_bar=0, off_rd=0):
        if not OPT["fl"]:
            bl = s.barrier(close, opn, gate, extra_need, extra_w, extra_r); s.hint(bl[0], m, off_bar); return bl
        s.epoch += 1; e = s.epoch; tag = f"{s.tag}{e}"
        w = wait(need=[f"d{x}" for x in opn]); w.xr = {f"i{x}" for x in opn}; w.xw = {"flseq"}; s.hint(w, m, 0)
        a = ds_write("ds_write_b32", f"v{vFA}", f"v{vFE}", 0); a.xr = {"flseq"} | set(extra_r); a.xw = {f"c{x}" for x in close}; a.cmt = "arrive"
        r = ds_read("ds_read_b32", f"v{vFE}", f"v{vDA}", FLAG); s.hint(r, m, off_rd)
        c = V("v_cmp_gt_u32", "vcc", e, f"v{vFE}")
        b = I(f"s_cbranch_vccnz Ls{tag}\nLr{tag}:", "br", r=["vcc", f"v{vDA}"], w=["vcc", f"v{vFE}"]); b.cmt = "check"
        b.xw = {f"o{x}" for x in opn} | ({gate} if gate else set()) | set(extra_w)
        s.stubs += [label(f"Ls{tag}"), raw(f"ds_read_b32 v{vFE}, v{vDA} offset:{FLAG}"), raw("s_waitcnt lgkmcnt(0)"), raw(f"v_cmp_gt_u32 vcc, {e}, v{vFE}"), raw("s_nop 0"),
                    raw(f"s_cbranch_vccnz Ls{tag}")] + ([raw("s_add_u32 s95, s95, 1")] if OPT["stm"] == 4 else []) + [raw(f"s_branch Lr{tag}")]
        if OPT["cd"]: s.hint(b, m, off_rd + 8 + OPT["cd"])
        mv = V("v_mov_b32", f"v{vFE}", e)
        for i in (w, a): s.hint(i, m, max(0, off_rd - 10), "dlm")
        return ([w] if opn else []) + [mv, a, r, c, b]
    def chain(s, p, n, sq, kf, czero):
        order = [0, 1, 2, 3] if n % 2 == 0 or OPT["nosnake"] else [3, 2, 1, 0]
        return [mfma(sq, kf(ks), Q(p, n, ks), sq if k else ("0" if czero or OPT["cz"] else NM(n))) for k, ks in enumerate(order)]
    def rowmax(s, n, sq, a, b):
        x = [f"v{sq[1]+r}" for r in range(4)]
        l = [V("v_max3_f32", a, x[0], x[1], x[2]), V("v_max_f32", a, a, x[3])] + ([V("v_add_f32", a, hex(struct.unpack("<I", struct.pack("<f", OPT["dlt"] + OPT["dfr"] / 10.0))[0]), a)] if OPT["dlt"] else []) + [V("v_mov_b32", b, a),
             swap("v_permlane16_swap_b32", a, b), V("v_max_f32", a, a, b), V("v_mov_b32", b, a), swap("v_permlane32_swap_b32", a, b)]
        l += [V("v_min_f32", f"v{vNM+4*n+r}", "-" + a, "-" + b) for r in range(4)]
        l += [V("v_add_f32", x[r], x[r], f"v{vNM+4*n}") for r in range(4)]
        return l
    def expcvt(s, par, n, t, sq, pb=None):
        l = []
        if pb is None: pb = vP + 40 * par + 8 * n
        for h in range(2):
            x0, x1 = f"v{sq[1]+2*h}", f"v{sq[1]+2*h+1}"
            l += [V("v_exp_f32", x0, x0), V("v_exp_f32", x1, x1), V("v_cvt_pk_bf16_f32", f"v{pb+2*t+h}", x0, x1)]
        return l
    def smf(s, b, n, pb=None):
        if pb is None: pb = vP + 40 * (b % 2) + 8 * n
        if s.half[b // 16] and n == 4: return mfma(L(4), ONE(4), ("v", pb, 4), L(4))
        return smfmac(L(n), ONE(n), ("v", pb, 8), f"v{vIDX}")
    def scale(s, src, dst, ta, pk=False):
        a, b = f"v{ta}", f"v{ta+1}"
        l = [V("v_lshlrev_b32", a, 16, src), V("v_and_b32", b, sMASK, src)]
        l += mul2(ta, ta, sC)
        if dst[0] == "v": return l + [V("v_cvt_pk_bf16_f32", dst, a, b)]
        return l + [V("v_cvt_pk_bf16_f32", a, a, b), V("v_accvgpr_write_b32", dst, a)]
    def rowoff(s, p, n, extra=None):
        t = stmp()
        i = SS("s_add_u32", t, sROW[p][0], n * 4096) if n < 4 else SS("s_mov_b32", t, sROW[p][1])
        if extra is None: return t, [i]
        return t, [i, SS("s_add_u32", t, t, extra)]
    def stamp(s, m=None, off=0):
        if not OPT["stamps"]: return
        k = s.nstamp; s.nstamp += 1; assert k < 14
        a = raw(f"s_memtime s[{44+4*k}:{45+4*k}]"); b = raw(f"s_memrealtime s[{46+4*k}:{47+4*k}]")
        for i in (a, b):
            if m is not None: s.hint(i, m, off); s.hint(i, m, off + 2, "dlm")
            else: i.xw = {"seq"}
        s.add(a, b)

    QREG = [(KB + 32768, ("K", 2)), (VB + 16384, ("V", 1)), (VB + 32768, ("V", 2)), (KB + 49152, ("K", 3)), (X0, "X0")]
    TA = 236
    def qdma(s, n):
        t, o = s.rowoff(0, n)
        o.append(SS("s_add_u32", "m0", sW4K, s.QREG[n][0]))
        for k in range(4):
            i = dma(f"v{vDA if k % 2 == 0 else vDB}", sQ, t, k * 1024, mod=MODS[OPT["q"]])
            i.wt = {f"dQ{n}"}; i.priv = (n, s.QREG[n][1]); o.append(i)
        return o
    def start(s):
        half = s.half[0]; TA = s.TA
        def seq(l):
            for i in l:
                if i.k in ("vmem", "wait", "bar"): i.xw = i.xw | {"seq"}
                if OPT["asap"] and i.k in ("vmem", "salu"): i.cmt = "asap"
            return l
        KF = lambda b, t: (lambda ks: ("a", 96 + 16 * t + 4 * ks, 4) if b == 0 else Q(1, t, ks))
        s.KF = KF
        def kpart(bs, dm, order, sq):
            if OPT["stm"] == 1 and 0 in bs: s.stamp()
            bl = seq(s.barrier([], [f"K{b}" for b in bs], extra_need=["cw"]))
            s.add(bl[0], seq(dm), bl[1]) if not OPT["so"] else s.add(bl, seq(dm))
            if OPT["stm"] == 1 and 0 in bs: s.stamp()
            for k, (b, t) in enumerate(order):
                for ks in range(4):
                    l = s.kread(KF(b, t)(ks), b, t, ks)
                    if sq and k < OPT["kq"]: l[-1].xr = l[-1].xr | {"seq"}
                    s.add(l)
        if not OPT["so"]:
            kpart([0, 1], s.qdma(2) + (s.qdma(3) if OPT["sd"] else []), ((0, 0), (0, 1), (0, 2), (0, 3), (1, 2), (1, 3), (1, 0), (1, 1)), True)
        nxt = [s.qdma(3), s.qdma(4), s.dma("V", 0), s.dma("K", 2), s.dma("V", 1)]
        late = []; EP = {}
        if OPT["ep"]:
            nxt = [nxt[2], nxt[0], nxt[1], nxt[3], nxt[4]]
            EP = [{5: [0], 6: [1, 2], 7: [3]}, {6: [0, 1], 7: [2, 3]}, {5: [0, 1], 6: [2, 3]}, {6: [0, 1], 7: [2], 8: [3]}, {6: [0, 1], 8: [2, 3]}, {5: [0, 1], 7: [2, 3]}][OPT["epo"]]
        def grpA(q):
            rd, mm = s.pvgroup(0, q, [0, 1, 2], aK if q % 2 == 0 else aV, lambda n: ("a", 28, 4) if OPT["ob"] else "0")
            if q < 3: mm.append(s.smf(0, q))
            s.add(rd, mm); return mm
        if OPT["sv"] & 1: nxt[1], nxt[2] = nxt[2], nxt[1]
        if OPT["sv"] & 2: late = nxt[3] + nxt[4]; nxt[3] = []; nxt[4] = []
        if OPT["sv"] & 4: late = nxt[4]; nxt[4] = nxt[3]; nxt[3] = []
        if OPT["sd"]: nxt = nxt[1:] + [[]]
        if OPT["so"]: nxt[0] = s.qdma(1 + OPT["sd"])
        s.sc = 0
        for n in range(5):
            w = wait(need=[f"dQ{n}"]); w.xw = {"seq", f"oQ{n}"}; s.add(w)
            if n == 0 or n == 4 or OPT["stm"] == 1: s.stamp()
            base = TA + (4 if n in (1, 2, 3) else 0); off = s.QREG[n][0] - (KB + 49152 if n in (1, 2, 3) else X0)
            for ks in range(4):
                i = ds_read("ds_read_b128", Q(0, n, ks), f"v{base+ks}", off); i.xr = {f"oQ{n}", f"cQ{n}", "seq"}; i.priv = (n, s.QREG[n][1]); i.wt = {f"rQ{n}"}; s.add(i)
            s.add(seq(nxt[n]))
            if OPT["pf2"] and n == OPT["pf2"]:
                s.add(V("v_accvgpr_read_b32", f"v{TA+8}", "a0"), V("v_accvgpr_read_b32", f"v{TA+9}", "a1"),
                      seq([I(f"global_load_dword a{aQB+43}, v[{TA+8}:{TA+9}], off" if 0 else f"global_load_dword a95, v[{TA+8}:{TA+9}], off", "vmem", w=["a95"], r=[f"v{TA+8}", f"v{TA+9}"])]))
            for r in range(16):
                q = f"v{vQA+16*n+r}"; s.add(s.scale(q, q, TA + 8 + 2 * (r % 4), pk=OPT["pk"]))
            for q in EP.get(2 * n, []): grpA(q)
            if OPT["so"] == 1 and n == 0:
                s.prog[-1].xw = {"seq"}
                kpart([0, 1], s.qdma(2) + s.qdma(3), ((0, 0), (0, 1), (0, 2), (0, 3), (1, 2), (1, 3), (1, 0), (1, 1)), False)
            if OPT["so"] == 2 and n == 0:
                s.prog[-1].xw = {"seq"}
                kpart([0], s.qdma(2 + OPT["sd"]), ((0, 0), (0, 1), (0, 2), (0, 3)), False)
            for b in range(2 if n < 4 else 1):
                if OPT["so"] == 2 and n == 0 and b == 1:
                    ch[0].xw = {"seq"}
                    kpart([1], s.qdma(3 + OPT["sd"]), ((1, 0), (1, 1), (1, 2), (1, 3)), False)
                for t in range(2 if half and n == 4 else 4):
                    sq = Sx(s.sc % 5); s.sc += 1
                    ch = s.chain(0, n, sq, KF(b, t), t == 0 and b == 0); s.add(ch)
                    if t == 0 and b == 0:
                        s.add(s.rowmax(n, sq, f"v{TA+16}", f"v{TA+17}"))
                        if n == 4 and not OPT["ep"]:
                            ch[-1].xw = {"seq"}
                            s.add(seq(s.barrier(["K0", "K1"], ["V0"], gate="D-1")), seq(late))
                    s.add(s.expcvt(b, n, t, sq))
            if n < 4: ch[-1].xw = {"seq"}
            if OPT["ep"] and n == 2: s.add(seq(s.barrier(["K0", "K1"], ["V0"], gate="D-1")))
            for q in EP.get(2 * n + 1, []): grpA(q)[-1].xw = {"seq"}

    def nbr(s, p, d, rl):
        return [V("v_mul_f32_e64", f"v{d}", "-" + sB[p], f"v{rl}")] if OPT["ob"] else []
    def ep_l(s, p, n, rl, tmp):
        a, b = f"v{rl}", f"v{tmp}"
        o = [V("v_accvgpr_read_b32", a, f"a{Lr(n)}")]
        if not (s.half[p] and n == 4): o += [V("v_accvgpr_read_b32", b, f"a{Lr(n)+1}"), V("v_add_f32", a, a, b)]
        o += [V("v_cmp_nge_f32", ("s", 42, 2), sTHR, a), SS("s_or_b64", sBAD[p], sBAD[p], ("s", 42, 2))]
        if not (s.half[p] and n == 4): o += [V("v_rcp_f32", a, a)]
        return o
    def lane16(s, d):
        return [V("v_mbcnt_lo_u32_b32", d, -1, 0), V("v_mbcnt_hi_u32_b32", d, -1, d), V("v_lshlrev_b32", d, 4, d)]
    def cmb_pre(s, T, base):
        return s.lane16(f"v{T}") + [V("v_add_u32", f"v{T}", sW4K, f"v{T}"), V("v_add_u32", f"v{T}", base, f"v{T}"), V("v_xor_b32", f"v{T+1}", "0x1000", f"v{T}"),
             V("v_mov_b32", f"v{T+2}", f"v{vNM+16}")]
    def cmb_give(s, p, T, LW):
        o = s.ep_l(p, 4, T + 3, T + 4)
        w = [colput(LW, 12, T + 2, T + 3)] + [ds_write("ds_write_b128", f"v{T}", O(4, dt), 16384 + dt * 1024) for dt in range(4)]
        for i in w: i.wt = {"cw"}; i.xw = i.xw | {"cgive", "cQ8"}
        return o + w
    def cmb_col(s, p, T, LW):
        nm, l, nm2, l2, x, y = [f"v{T+k}" for k in (2, 3, 4, 5, 6, 7)]
        r = I(f"ds_read2_b32 v[{T+4}:{T+5}], {y} offset0:{16*12} offset1:{16*13}", "ds", w=[nm2, l2], r=[y]); r.xr = {"cmb"}
        return [V("v_xor_b32", y, "0x1000", f"v{LW}"), r, V("v_cmp_nge_f32", ("s", 42, 2), sTHR, l2), SS("s_or_b64", sBAD[p], sBAD[p], ("s", 42, 2)),
                V("v_min_f32", x, nm, nm2), V("v_sub_f32", nm, x, nm), V("v_sub_f32", nm2, x, nm2), V("v_exp_f32", nm, nm), V("v_exp_f32", nm2, nm2),
                V("v_mul_f32", x, l, nm), V("v_fma_f32", x, l2, nm2, x), V("v_rcp_f32", x, x), V("v_mul_f32", nm, nm, x), V("v_mul_f32", nm2, nm2, x),
                V("v_add_f32", y, nm, nm2), V("v_mul_f32_e64", y, "-" + sB[p], y), colput(LW, 8, T + 2, T + 7), colput(LW, 10, T + 4, T + 4)]
    def half_addr(s, WA, RA, GA, LW, LR, base, base2, t0, t1):
        t0, t1, wa, ra = f"v{t0}", f"v{t1}", f"v{WA}", f"v{RA}"
        t = stmp(); t2 = stmp()
        a = [SS("s_add_u32", t, sW4K, base), SS("s_add_u32", t2, sW4K, base2), V("v_mbcnt_lo_u32_b32", t0, -1, 0), V("v_mbcnt_hi_u32_b32", t0, -1, t0),
             V("v_and_b32", t1, 15, t0), V("v_lshl_add_u32", f"v{LW}", t1, 2, t2), V("v_lshl_add_u32", wa, t1, 3, t), V("v_lshrrev_b32", t1, 4, t0), V("v_lshl_add_u32", wa, t1, 9, wa),
             V("v_lshl_add_u32", f"v{LR}", t1, 4, t2),
             V("v_lshl_add_u32", ra, t1, 8, t), V("v_and_b32", t1, 3, t0), V("v_lshl_add_u32", ra, t1, 6, ra), V("v_and_b32", t1, 12, t0), V("v_lshl_add_u32", ra, t1, 1, ra),
             V("v_and_b32", t1, 7, t0), V("v_lshlrev_b32", t1, 4, t1), V("v_lshrrev_b32", t0, 3, t0), V("v_lshl_add_u32", f"v{GA}", t0, 8, t1)]
        return a
    def half_put(s, pk, r, WA, X, gate):
        w = ds_write("ds_write_b64", f"v{WA}", ("v", pk, 2), X + r * 128); w.xr = set(gate); w.xw = {f"Xd{X}_{r}"}; return [w]
    def half_wide(s, p, n, H, FR, FB, TB, WA, X, gate, part=None):
        o = []
        for r in (0, 2):
            tb = TB[r // 2]
            if OP(p, n, 0)[0] == "a":
                x = [tb + 2 * j for j in range(4)]
                o += [V("v_accvgpr_read_b32", f"v{tb+2*j+k}", f"a{OP(p, n, 4*H+j)[1]+r+k}") for j in range(4) for k in range(2)]
            else: x = [OP(p, n, 4 * H + j)[1] + r for j in range(4)]
            for j in range(4): o += fmap(x[j], x[j], FR + r, FB + r)
            if part:
                T, U, FA = part
                rr = [ds_read("ds_read_b64", ("v", U + 2 * j, 2), f"v{T+1}", 16384 + j * 1024 + r * 4) for j in range(4)]
                for i in rr: i.xr = {"cmb"}
                o += rr
                for j in range(4): o += fmap(x[j], U + 2 * j, FA + r, x[j])
            o += [V("v_cvt_pk_bf16_f32", f"v{tb+d}", f"v{x[ja]+k}", f"v{x[ja+1]+k}") for d, ja, k in ((0, 0, 0), (2, 0, 1), (1, 2, 0), (3, 2, 1))]
            o += s.half_put(tb, r, WA, X, gate) + s.half_put(tb + 2, r + 1, WA, X, gate)
        return o
    def half_slim(s, p, n, H, FR, FB, T4, WA, X):
        o = []
        for r in range(4):
            o += [V("v_accvgpr_read_b32", f"v{T4+j}", f"a{O(n, 4*H+j)[1]+r}") for j in range(4)]
            o += [V("v_fma_f32", f"v{T4+j}", f"v{T4+j}", f"v{FR+r}", f"v{FB+r}") for j in range(4)]
            o += [V("v_cvt_pk_bf16_f32", f"v{T4+k}", f"v{T4+2*k}", f"v{T4+2*k+1}") for k in range(2)] + s.half_put(T4, r, WA, X, [])
        return o
    def half_out(s, p, n, H, rb, RA, GA, X, mod):
        if s.half[p]: t, o = s.rowoff(p, n, sD1 if H else sD0); off = 0
        else: t, o = s.rowoff(p, n); off = 128 * H
        for k in range(2):
            for u in range(2):
                i = ds_read("ds_read_b64_tr_b16", ("v", rb[k] + 2 * u, 2), f"v{RA}", X + k * 1024 + u * 32); i.xr = {f"Xd{X}_{r}" for r in range(4)}; o.append(i)
            o.append(bstore(("v", rb[k], 4), f"v{GA}", sO, t, off + k * 2048, mod=MODS[mod]))
            if p == 1 and OPT["sp"]: o[-1].cmt = "prio"
        return o
    def plan_trans(s):
        hv = s.half[0]; E = vQA + 64
        WA, RA, GA, LR, FR, FB, T4 = E, E + 1, E + 2, E + 3, E + 4, E + 8, E + 12
        s.LW = LW = vQA + 24
        s.CT = CT = vQA + 56; TB = [vQA + 16, vQA + 16 if hv else vQA + 48]; XB = [0] if hv else [0, X0 - 2048, X0]; cnt = [0]
        def fin(l, dl):
            for i in l:
                if i.k == "vmem": s.hint(i, s.bstart[15], dl, "dlm")
            return l
        def wide(n, H, dl):
            X = XB[cnt[0] % len(XB)]; cnt[0] += 1
            rb = [vQA + 8, vQA + 12] if H == 0 else ([T4, vQA + 52] if hv else [vQA + 56, vQA + 60])
            l = [rowget(FR, LR, 2 * n), rowget(FB, LR, 2 * n + 1)]
            l += s.half_wide(0, n, H, FR, FB, TB, WA, X, []) + s.half_out(0, n, H, rb, RA, GA, X, OPT["o0"])
            if n == 2: l += [V("v_accvgpr_write_b32", f"a{O(2, 4*H+3)[1]+r}", sB[1]) for r in range(4)]
            return fin(l, dl)
        def comb(dl):
            l = [rowget(FR, LR, 8), rowget(FB, LR, 9), rowget(T4, LR, 10)]
            l += s.half_wide(0, 4, 1, FR, FB, TB, WA, 0, [], part=(CT, vQA + 48, T4)) + s.half_out(0, 4, 1, [T4, vQA + 60], RA, GA, 0, OPT["o0"])
            return fin(l, dl)
        def slim(n, H, newf, dl):
            return fin(([rowget(FR, LR, 2 * n), rowget(FB, LR, 2 * n + 1)] if newf else []) + s.half_slim(0, n, H, FR, FB, T4, WA, 0) + s.half_out(0, n, H, [T4, T4], RA, GA, 0, OPT["o0"]), dl)
        urg = [2, 3] if hv else [2, 3, 4]
        s.ins = {(15, 0, 0): lambda: [V("v_mov_b32", f"v{vQA+28+r}", sB[1]) for r in range(4)] + s.half_addr(WA, RA, GA, LW, LR, X1 + 2048, X1, vQA + 2, vQA + 3) + (s.cmb_pre(CT, X1) if hv else []),
                 (15, 0, 1): lambda: sum((s.ep_l(0, n, vQA + 4, vQA + 5) + s.nbr(0, vQA + 5, vQA + 4) + [colput(LW, 2 * n, vQA + 4, vQA + 5)] for n in urg + [0, 1]), []),
                 (15, 2, 0): lambda: sum((wide(n, 0, OPT["h0"] + OPT["h1"] * k) for k, n in enumerate(urg)), []),
                 (16, 0, 0): lambda: sum((wide(n, 1, OPT["h2"] + OPT["h3"] * k) for k, n in enumerate(urg)), []) + (comb(OPT["h2"] + OPT["h3"] * 2) if hv else [])
                                     + sum((slim(k // 2, k % 2, k % 2 == 0, 330 + (k + 1) * OPT["hd"]) for k in range(4)), [])}

    def pvgroup(s, j, q, tiles, vbuf, cinit):
        pv = j // 16; hv = s.half[pv]; rd = []; mm = []
        for h, pref in ((0, [0, 1]), (1, [0, 1] if hv else [1, 0])):
            for ks in s.vks(j, 2 * q + h, pref): rd += s.vread(("a", vbuf + 8 * h + 4 * ks, 4), j, 2 * q + h, ks)
        if OPT["po"] and j % 16 and j != 30:
            for n in tiles:
                hs = [0, 1] if n % 2 == 0 or OPT["po"] == 2 else [1, 0]
                for x, h in enumerate(hs):
                    for ks in ([0] if hv and n == 4 else ([0, 1] if x == 0 else [1, 0])):
                        mm.append(mfma(OP(pv, n, 2 * q + h), P(j % 2, n, ks), ("a", vbuf + 8 * h + 4 * ks, 4), OP(pv, n, 2 * q + h)))
            return rd, mm
        for h in range(2):
            dt = 2 * q + h
            for n in (tiles if h == 0 else reversed(tiles)):
                if OPT["c4"] and j % 16 != 0:
                    if h == 0:
                        seq4 = [(0, 0), (0, 1), (1, 0), (1, 1)][::1 if n % 2 == 0 else -1]
                        if hv and n == 4: seq4 = [(0, 0), (1, 0)]
                        for hh, ks in seq4:
                            d_ = OP(pv, n, 2 * q + (j % 2))
                            mm.append(mfma(d_, ("a", vbuf + 8 * hh + 4 * ks, 4), P(j % 2, n if hh == 0 else (n + 2) % 4, ks), d_))
                    continue
                kss = [0] if hv and n == 4 else ([0, 1] if (n + h) % 2 == 0 or OPT["nosnake"] else [1, 0])
                for k_, ks in enumerate(kss):
                    ab = [("a", vbuf + 8 * h + 4 * ks, 4), P(j % 2, n, ks)][::-1 if OPT["swp"] else 1]
                    mm.append(mfma(OP(pv, n, dt), ab[0], ab[1], cinit(n) if j % 16 == 0 and k_ == 0 else OP(pv, n, dt)))
        return rd, mm
    def tq(s, b, q): return q ^ 2 if (OPT["kalt"] and s.half[b // 16] and b % 2 == 1 and b != 31) else q
    def block(s, j):
        b = j + 1; p = b // 16; pv = j // 16
        hq, hv = s.half[p], s.half[pv]
        first = (j % 16 == 0); trans = (j == 15)
        smfs = [{0: [0], 1: [1], 2: [2, 3], 3: [4]}, {0: [0, 1], 1: [2, 3], 2: [4], 3: []}, {0: [0, 1, 2, 3, 4], 1: [], 2: [], 3: []}][OPT["sm"]]
        if j == 0 and OPT["ep"]: smfs = {0: [], 1: [], 2: [], 3: [3, 4]}
        MX = vQA; CT = s.CT
        if j == 30: s.tail_pre()
        for q in range(4):
            vbuf = aK if (j == 0 and q % 2 == 0) else aV
            def cinit(n):
                if not OPT["ob"]: return "0"
                if j == 0: return ("a", aQB, 4)
                return O(2, 3 if q < 2 else 7) if OP(1, n, 0)[0] == "a" else ("v", vQA + 28, 4)
            rd, pvm = s.pvgroup(j, q, [3, 4] if j == 0 and OPT["ep"] else [0, 1, 2, 3, 4], vbuf, cinit)
            s.add(rd)
            if (j, q, 0) in s.ins: s.add(s.ins[(j, q, 0)]())
            cz = (b % 16 == 0 and q == 0)
            if j == 0:
                work = [(4, t, s.KF(1, t), None) for t in ([[0, 1], [2], [3], []] if not hq else [[0, 1], [], [], []])[q]]
            elif j == 30:
                work = [(4, q, s.KT(q), s.PT[0])] if not (hq and q >= 2) else []
            else: work = [(n, s.tq(b, q), (lambda ks: ("a", aK + 4 * ks, 4)), None) for n in range(4 if hq and s.tq(b, q) >= 2 else 5)]
            ch = []; sqs = []
            for n, t, kf, pb in work:
                if j in (0, 30): sq = Sx(s.sc % 5); s.sc += 1
                else: sq = Sx(n)
                sqs.append(sq); ch += s.chain(p, n, sq, kf, cz)
            s.add(ch); m0 = (ch + pvm)[0]
            if OPT["vb"] and j not in (0, 30):
                for k, i in enumerate([x for x in rd if x.k == "ds"]): s.hint(i, m0, -6 + k); s.hint(i, m0, -5 + k, "dlm")
                for k, i in enumerate(getattr(s, "lastk", [])): s.hint(i, m0, -10 + k - (OPT["vb"] - 1)); s.hint(i, m0, -9 + k - (OPT["vb"] - 1), "dlm")
            if j == 0 and q == 0 and OPT["ob"]: s.add([V("v_accvgpr_write_b32", f"a{aQB+r}", sB[0]) for r in range(4)])
            if q == 0:
                s.bstart[j] = m0
                if j in s.stamp_at: s.stamp(m0)
                lag = 0
                if s.half[0] and not s.half[1]: lag = min(OPT["lagmax"], (16 * (j if j <= 15 else 31 - j) * OPT["lagc"]) // 100)
                bat = []
                if j == 0: bat.append((s.dma("K", 3, gate="D-1") + s.dma("V", 2, gate="D-1"), OPT["l0"])); lag = OPT["l1"]
                if j == 1: lag = OPT["l2"]
                if j == 2: lag = OPT["l3"]
                dl = []
                if j + 4 <= 31: dl += s.dma("K", j + 4, gate=f"D{j-1}")
                if j + 3 <= 31: dl += s.dma("V", j + 3, gate=f"D{j-1}")
                bat.append((dl, lag))
                for dl, lag in bat:
                    for k, i in enumerate([x for x in dl if x.k == "vmem"]):
                        if OPT["dw"] and j >= 3:
                            L = OPT["dx"] + max(0, min(OPT["lagmax"], LEAD.get(j, 0) * OPT["dc"] // 100 + OPT["dy"])) * (s.tag == "Y") + OPT["dsp"] * k
                            s.hint(i, m0, L); s.hint(i, m0, L + OPT["dw"], "dlm"); continue
                        s.hint(i, m0, lag + 30 + 2 * k, "dlm")
                        if lag: s.hint(i, m0, lag - 20)
                        L = lag + 30 + 2 * k
                    s.add(dl)
                if j in s.qst: s.add(s.qst[j](m0, L + 12))
            qlen = len(ch) + len(pvm) + 1
            if OPT["spf"] and (q == 1 or (OPT["spf"] > 1 and q == 3) or OPT["spf"] > 2):
                for i in (raw("s_getpc_b64 s[40:41]", w=["s40"]), raw(f"s_load_dword s42, s[40:41], {OPT['spd']}", r=["s40"])):
                    s.hint(i, m0, 8); s.hint(i, m0, 12, "dlm"); s.add(i)
            k = 0
            for (n, t, kf, pb), sq in zip(work, sqs):
                if cz: s.add(s.rowmax(n, sq, f"v{MX}", f"v{MX+1}"))
                l = s.expcvt(b % 2, n, t, sq, pb)
                for i in l:
                    if i.k == "trans" and j not in (0, 30) and OPT["eh"]: s.hint(i, m0, OPT["e0"] + (k * qlen) // (4 * len(work))); k += 1
                s.add(l)
            if q == 3 and j < 30:
                opn = [f"K{j+2}", f"V{j+1}"] + (["V31"] if j == 29 else [])
                cm = trans and hv
                kw = dict(gate=f"D{j}", extra_need=["cw"] if cm else [], extra_w=["cmb"] if cm else [], extra_r=["cgive"] if cm else [])
                if j == 0:
                    bl = s.barrier(["V0"], opn, **kw); s.hint(bl[0], m0, 0); s.add(bl)
                else: s.add(s.sync([f"K{b}", f"V{j}"], opn, m0, off_bar=len(ch) - 3, off_rd=OPT["flr"] - (20 - len(ch)), **kw))
                if cm: s.add(s.cmb_col(pv, CT, s.LW))
            n0 = len(s.prog)
            if j < 30:
                if q < 3 and j > 0:
                    for ks in range(4): s.add(s.kread(("a", aK + 4 * ks, 4), b, s.tq(b, q + 1), ks))
                elif q == 3:
                    for ks in range(4): s.add(s.kread(("a", aK + 4 * ks, 4), b + 1, s.tq(b + 1, 0), ks))
            s.lastk = [x for x in s.prog[n0:] if x.k == "ds"]
            if trans and q == 0:
                s.add([s.smf(j, n) for n in range(5)])
            if (j, q, 1) in s.ins: s.add(s.ins[(j, q, 1)]())
            s.add(pvm)
            if not trans: s.add([s.smf(j, n) for n in smfs[q]])
            if trans:
                if hv and q == 1: s.add(s.cmb_give(pv, CT, s.LW))
                if q == 1: s.add([V("v_accvgpr_write_b32", f"a{aL+r}", 0) for r in range(10)])
            if q == 1 and j in s.stage: s.add(s.stage[j](m0))

    def plan_stage(s):
        s.stage = {}
        def g(m):
            o = []
            def ld(f, dst, k=0):
                t, oo = s.rowoff(1, f // 4)
                i = bload(dst, f"v{vDA if OPT['qlin'] else vG}", sQ, t, (f % 4) * 1024 if OPT["qlin"] else KOFF(f % 4), mod=MODS[OPT["q"]]); i.cmt = "strided"; s.hint(i, m, (k // 2) * OPT["sg1"])
                return oo + [i]
            def sc(f, src):
                d = Q(1, f // 4, f % 4); l = []
                for r in range(4):
                    if src[0] == "a": l += [V("v_accvgpr_read_b32", f"v{vT+1}", f"a{src[1]+r}")] + s.scale(f"v{vT+1}", f"a{d[1]+r}", vT)
                    else: l += s.scale(f"v{src[1]+r}", f"{d[0]}{d[1]+r}", vT)
                return l
            land = lambda f: ("v", vQB + 4 * (f + 1), 4) if f < 8 else Q(1, f // 4, f % 4)
            for f in range(12): o += ld(f, land(f), f)
            for f in range(0, 8, 2): o += sc(f, land(f)) + sc(f + 1, land(f + 1)) + ld(12 + f, land(12 + f)) + ld(13 + f, land(13 + f))
            for f in range(8, 20): o += sc(f, land(f))
            return o
        if not OPT["qd"]: s.stage[OPT["sg0"] if s.half[0] else OPT["sgx"]] = g
        s.qst = {}
        def tile(n, prev):
            def h(m, L):
                t, o = s.rowoff(1, n)
                w = wait(need=[f"rQ{prev}"]); w.xw = {f"cQ{prev}", "qbuf"}; s.hint(w, m, L - 2)
                o += [w, SS("s_add_u32", "m0", sW4K, X0)]
                for k in range(4):
                    i = dma(f"v{vDA if k % 2 == 0 else vDB}", sQ, t, k * 1024, mod=MODS[OPT["q"]])
                    i.wt = {f"dQ{n+5}"}; i.priv = (n + 5, "X0"); i.xr = {"qbuf"}; i.xw = {f"iQ{n+5}"}; i.cmt = "slow"
                    s.hint(i, m, L + OPT["qs"] * k); s.hint(i, m, L + OPT["qs"] * k + 6, "dlm"); o.append(i)
                w = wait(need=[f"dQ{n+5}"]); w.xr = {f"iQ{n+5}"}; w.xw = {f"oQ{n+5}"}; o.append(w)
                land = lambda f: vQB + 4 * (f % 8 + 1) if f < 11 else Q(1, f // 4, f % 4)[1]
                for ks in range(4):
                    d = land(4 * n + ks); a = f"v{vG}"
                    if ks: a = f"v{d}"; o.append(V("v_xor_b32", a, KOFF(ks), f"v{vG}"))
                    i = ds_read("ds_read_b128", ("v", d, 4), a, 0); i.xr = {f"oQ{n+5}", f"cQ{n+5}"}; i.priv = (n + 5, "X0"); i.wt = {f"rQ{n+5}"}; o.append(i)
                for ks in range(4):
                    d = Q(1, n, ks)
                    for r in range(4): o += s.scale(f"v{land(4*n+ks)+r}", f"{d[0]}{d[1]+r}", vT)
                return o
            return h
        if OPT["qd"]:
            for j, n, prev in zip((0, 2, 4, 6, 8), (0, 1, 2, 4, 3), (4, 5, 6, 7, 9)): s.qst[j + OPT["q0"] if j or OPT["q0"] else 1] = tile(n, prev)

    def tail_pre(s):
        hv = s.half[1]; Z = ("a", 0) if OPT["ov"] else ("v", vQA)
        s.KT = lambda t: (lambda ks: ("a", aK + 4 * ks, 4) if t == 0 else (("v", vP + 40 + 16 * (t - 1) + 4 * ks, 4) if t < 3 else (Z[0], Z[1] + 48 + 4 * ks, 4)))
        s.VT = lambda dt, ks: (Z[0], Z[1] + 8 * dt + 4 * ks, 4) if dt < 6 else ("a", aV + 8 * (dt - 6) + 4 * ks, 4)
        s.PT = [vP + 72, 236]
        for t in range(1, 4):
            for ks in range(4): s.add(s.kread(s.KT(t)(ks), 31, t, ks))
    def tail(s):
        j = 31; hv = s.half[1]
        for dt in range(8):
            for ks in s.vks(j, dt, [0, 1]): s.add(s.vread(s.VT(dt, ks), j, dt, ks))
        E = vQA + 64
        WA, RA, GA, LW, LR, RL, NC = E, E + 1, E + 2, E + 3, E + 4, E + 6, E + 7
        CT = 244; CU = 220
        F = vP
        TB = [F, F + 8]; FQ = [(E + 8, E + 12), (F + 16, F + 20)]; RB = [F + 24 + 4 * k for k in range(4)]
        a = s.half_addr(WA, RA, GA, LW, LR, VB, KB, RL, NC)
        for i in a: s.hint(i, s.bstart[28], 0)
        s.add(a)
        order = [4, 3, 2, 1, 0]; XB = [0, 2048, 16384, 18432]
        if hv: s.add(s.cmb_pre(CT, KB))
        k2 = 0
        for k, n in enumerate(order):
            pb = s.PT[k % 2]; hn = hv and n == 4; FR, FB = FQ[k % 2]
            ml = [[s.smf(j, n, pb)], [], [], []]
            for dt in range(8):
                kss = [0] if hn else ([0, 1] if dt % 2 == 0 else [1, 0])
                ml[dt // 2] += [mfma(OP(1, n, dt), ("v", pb + 4 * ks, 4), s.VT(dt, ks), OP(1, n, dt)) for ks in kss]
            if k == 0 and OPT["stm"] != 5: s.stamp(ml[0][0])
            if k == 0 and OPT["es"]: s.add(ml[0].pop(0))
            for t in range(4):
                if k < 4:
                    n2 = order[k + 1]; sq = Sx(s.sc % 5); s.sc += 1
                    s.add(s.chain(1, n2, sq, s.KT(t), False), s.expcvt(1, n2, t, sq, s.PT[(k + 1) % 2]))
                s.add(ml[t])
                if t == 0 and not hn: s.add(s.ep_l(1, n, RL, NC) + s.nbr(1, NC, RL) + [colput(LW, 2 * n, RL, NC, ["D29"]), rowget(FR, LR, 2 * n), rowget(FB, LR, 2 * n + 1)])
            if hn:
                s.add(s.cmb_give(1, CT, LW))
                s.add(s.sync([], [], ml[3][-1], extra_need=["cw"], extra_w=["cmb"], extra_r=["cgive"], off_bar=24, off_rd=OPT["tf"]))
                continue
            for H in range(2):
                X = XB[k2 % 4]
                ep = s.half_wide(1, n, H, FR, FB, TB, WA, X, ["D29"]) + s.half_out(1, n, H, RB[2 * (k2 % 2):], RA, GA, X, OPT["o1"]); k2 += 1
                for i in ep:
                    if i.k == "vmem": s.hint(i, ml[2 * H + 1][-1], OPT["tdl"], "dlm")
                s.add(ep)
            if hv and k == 1:
                X = XB[k2 % 4]
                s.add(s.cmb_col(1, CT, LW), rowget(FR, LR, 8), rowget(FB, LR, 9), rowget(CU + 8, LR, 10))
                s.add(s.half_wide(1, 4, 1, FR, FB, TB, WA, X, ["D29"], part=(CT, CU, CU + 8)), s.half_out(1, 4, 1, RB[2 * (k2 % 2):], RA, GA, X, OPT["o1"])); k2 += 1

    def final(s):
        hv = s.half[1]
        s.tail_pre()
        E = vQA + 64; F = vP; CT = 244
        WA, RA, GA, LW, LR, RL, NC = E, E + 1, E + 2, E + 3, E + 4, E + 6, E + 7
        a = s.half_addr(WA, RA, GA, LW, LR, VB, KB, RL, NC)
        for i in a: s.hint(i, s.bstart[28], 0)
        s.add(a)
        PT = {4: vP + 72, 3: 236, 2: 220, 1: vP + 72, 0: 236}
        XB = [0, 2048, 16384, 18432]; st = dict(k2=0, late=False, fq={}, nf=0); vdone = set(); last = [None]
        std = lambda n: f"q{n-1}0 l{n} p{n}0 q{n-1}1 p{n}1 e{n}0 q{n-1}2 p{n}2 q{n-1}3 p{n}3 e{n}1 " if n else "l0 p00 p01 e00 p02 p03 e01"
        if not hv:
            sc = ["q40 P0 q41 q42 q43 P1 s4 l4 q30 p40 q31 p41 e40 q32 q33 P2 s3 l3 p30 p31 e30 P3 s0 s1 s2 p42 q20 p32 q21 p43 e41 q22 p33 e31 q23 ",
                  "q40 P0 q41 q42 q43 P1 s4 l4 p40 p41 e40 q30 q31 P2 q32 q33 P3 s3 s0 s1 s2 p42 l3 p30 q20 p43 e41 p31 e30 q21 p32 q22 p33 e31 q23 "][OPT["fin"] - 1]
        else:
            sc = ["q40 P0 q41 q30 q31 P1 s4 l4 p40 p41 g q32 q33 P2 s3 l3 p30 p31 e30 P3 s0 s1 s2 p42 p32 q20 q21 p43 p33 e31 c q22 q23 ",
                  "q40 P0 q41 q30 q31 q32 P1 s4 l4 p40 p41 g q33 s3 P2 l3 p30 p31 e30 P3 s0 s1 s2 p42 p32 q20 p43 c q21 p33 e31 q22 q23 "][OPT["fin"] - 1]
        sc += "l2 p20 q10 p21 e20 q11 p22 q12 p23 e21 q13 l1 p10 q00 p11 e10 q01 p12 q02 p13 e11 q03 l0 p00 p01 e00 p02 p03 e01" if OPT["to"] else std(2) + std(1) + std(0)
        def mm(l):
            if 30 not in s.bstart:
                s.bstart[30] = l[0]
                if 30 in s.stamp_at: s.stamp(l[0])
            s.add(l); last[0] = l[-1]
        def temps():
            k2 = st["k2"]; st["k2"] += 1
            if st["late"]: return XB[k2 % 4], [F, F + 8], [F + 24 + 8 * (k2 % 2), F + 28 + 8 * (k2 % 2)]
            return (XB[k2 % 4], [220, 220], [228, 232]) if hv else (XB[k2 % 4], [244, 244], [vNM + 16, 244] if k2 == 0 else [228, 232])
        def fq(key, slots):
            for q_, k_ in st["fq"].items():
                if k_ == key: return q_, []
            q_ = (F + 16) if st["late"] and st["nf"] % 2 else (E + 8); st["nf"] += 1; st["fq"][q_] = key
            return q_, [rowget(q_, LR, slots[0]), rowget(q_ + 4, LR, slots[1])]
        def dls(l):
            for i in l:
                if i.k == "vmem": s.hint(i, last[0], OPT["tdl"], "dlm")
            return l
        for x in sc.split():
            c = x[0]; n = int(x[1]) if len(x) > 1 else 4; hn = hv and n == 4
            if c == "q":
                t = int(x[2]); sq = Sx(s.sc % 5); s.sc += 1
                mm(s.chain(1, n, sq, s.KT(t), False)); s.add(s.expcvt(1, n, t, sq, PT[n]))
            elif c == "P":
                rd, m_ = s.pvgroup(30, n, [0, 1, 2, 3, 4], aV, None); s.add(rd); mm(m_)
                for dt in (2 * n, 2 * n + 1):
                    for ks in s.vks(31, dt, [0, 1]): s.add(s.vread(s.VT(dt, ks), 31, dt, ks))
            elif c == "s":
                mm([s.smf(30, n)])
                if n == 2: st["late"] = True
            elif c == "l":
                mm([s.smf(31, n, PT[n])])
                if not hn: s.add(s.ep_l(1, n, RL, NC) + s.nbr(1, NC, RL) + [colput(LW, 2 * n, RL, NC, ["D29"])])
            elif c == "p":
                l = []
                for dt in (2 * int(x[2]), 2 * int(x[2]) + 1):
                    l += [mfma(OP(1, n, dt), ("v", PT[n] + 4 * ks, 4), s.VT(dt, ks), OP(1, n, dt)) for ks in ([0] if hn else ([0, 1] if dt % 2 == 0 else [1, 0]))]
                mm(l)
            elif c == "e":
                H = int(x[2]); X, TB, RB = temps(); FR, l = fq(n, (2 * n, 2 * n + 1))
                s.add(dls(l + s.half_wide(1, n, H, FR, FR + 4, TB, WA, X, ["D29"]) + s.half_out(1, n, H, RB, RA, GA, X, OPT["o1"])))
            elif c == "g":
                s.add(s.cmb_pre(CT, KB), s.cmb_give(1, CT, LW))
                s.add(s.sync([], [], last[0], extra_need=["cw"], extra_w=["cmb"], extra_r=["cgive"], off_bar=24, off_rd=30))
            elif c == "c":
                X, TB, RB = temps(); s.add(s.cmb_col(1, CT, LW)); FR, l = fq("c", (8, 9))
                s.add(dls(l + [rowget(228, LR, 10)] + s.half_wide(1, 4, 1, FR, FR + 4, TB, WA, X, ["D29"], part=(CT, vNM + 12, 228)) + s.half_out(1, 4, 1, RB, RA, GA, X, OPT["o1"])))

    def build(s):
        s.bstart = {}; s.stamp_at = {0, 4, 8, 15, 16, 18, 24} if OPT["stamps"] else set()
        s.nstamp = 1
        if OPT["stm"] == 1: s.stamp_at = {0}; s.nstamp = 2
        if OPT["stm"] == 2: s.stamp_at = set(range(OPT["pj"], OPT["pj"] + 8))
        if OPT["stm"] == 5: s.stamp_at = {0, 30}
        if OPT["stm"] == 4: s.stamp_at = {0, 22, 28}
        if OPT["stm"] == 3: s.stamp_at = {0, 15, 16, 17, 18, 19, 30}
        s.plan_stage(); s.plan_trans()
        s.start()
        for j in range(30 if OPT["fin"] else 31): s.block(j)
        n0 = len(s.prog)
        s.final() if OPT["fin"] else s.tail()
        for k, m in enumerate([i for i in s.prog[n0:] if ismf(i)]): m.lg = OPT["gt"] if k % OPT["gp_"] == 0 else 0
        ms = [i for i in s.prog if ismf(i)]
        for m in ms[ms.index(s.bstart[15]):ms.index(s.bstart[17]) - 40]: m.lg = OPT["gr"]
        for k, m in enumerate(ms): m.mi = k
        for i, m, off, attr in s.hints: setattr(i, attr, ms[max(0, min(len(ms) - 1, m.mi + off))])
        out = schedule(s.prog, verbose=True, name=s.tag)
        if OPT["verbose"]:
            prev = None
            for j in sorted(s.bstart):
                if prev is not None: print(f"  blk {j-1}: {s.bstart[j].st - prev}", end="")
                prev = s.bstart[j].st
            print(f"\n  start {s.bstart[0].st}  tail from blk30 {out[-1].st - prev}")
        return out

def setup_common():
    t0, t1, w = "s34", "s35", "s3"
    R = Role("AA", "")
    l, m, g, a, b, c = "v16", "v17", "v18", "v19", "v20", "v21"
    o = [raw("s_cmp_lt_u32 s2, 256", w=["scc"]), br("s_cbranch_scc1", "Lgo"), raw("s_endpgm"), label("Lgo")]
    if OPT["stamps"]: o += [raw("s_memtime s[44:45]"), raw("s_memrealtime s[46:47]")]
    if OPT["rb"] != 3:
        o += [S("s_lshr_b32", t0, "s2", OPT["rb"] - 3), S("s_xor_b32", t0, t0, "s2"), S("s_and_b32", t0, t0, 8), S("s_mul_i32", t0, t0, 1 + (1 << (OPT["rb"] - 3))), S("s_xor_b32", "s2", "s2", t0)]
    o += [raw("s_load_dwordx4 s[8:11], s[0:1], 0"), raw("s_load_dwordx4 s[12:15], s[0:1], 16"),
          V("v_lshrrev_b32", "v1", 6, "v0"), V("v_and_b32", l, 63, "v0"), V("v_and_b32", m, 15, "v0"),
          V("v_readfirstlane_b32", w, "v1"), V("v_lshrrev_b32", g, 4, l)]
    if OPT["pf"]:
        o += [raw("s_getpc_b64 s[36:37]", w=["s36", "s37"]), label("Lpf"),
              S("s_lshr_b32", t0, "s2", 4), S("s_lshl_b32", t0, t0, 13), S("s_bitcmp1_b32", "s2", 3), S("s_cselect_b32", t1, "LroleY-Lpf", 0), S("s_add_u32", t0, t0, t1),
              V("v_lshl_add_u32", a, "v0", 5, t0), V("v_min_u32", a, "Lcodeend-Lpf", a), V("v_mov_b32", "v25", "s37"),
              I("v_add_co_u32 v24, vcc, s36, v19", "valu", w=["v24", "vcc"], r=["s36", "v19"]), I("v_addc_co_u32 v25, vcc, 0, v25, vcc", "valu", w=["v25", "vcc"], r=["v25", "vcc"]),
              I("global_load_dword v253, v[24:25], off", "vmem", w=["v253"], r=["v24", "v25"])]
        if OPT["pf2"]:
            o = o[:-1] + [V("v_accvgpr_write_b32", "a0", "v24"), V("v_accvgpr_write_b32", "a1", "v25"),
                  S("s_lshr_b32", t0, "s2", 4), S("s_lshl_b32", t0, t0, 10), S("s_add_u32", t0, t0, t1), V("v_lshl_add_u32", a, "v0", 2, t0), V("v_mov_b32", "v25", "s37"),
                  I("v_add_co_u32 v24, vcc, s36, v19", "valu", w=["v24", "vcc"], r=["s36", "v19"]), I("v_addc_co_u32 v25, vcc, 0, v25, vcc", "valu", w=["v25", "vcc"], r=["v25", "vcc"]), o[-1]]
    o += [V("v_xor_b32", a, g, m), V("v_lshlrev_b32", a, 4, a), V("v_lshl_add_u32", f"v{vDA}", g, 8, a), V("v_xor_b32", f"v{vDB}", 128, f"v{vDA}")]
    if OPT["ob"]: o += [V("v_and_b32", a, 31, l), V("v_lshlrev_b32", a, 4, a), V("v_lshrrev_b32", b, 5, l), V("v_lshl_add_u32", "v22", b, 18, a)]
    o += [S("s_lshl_b32", sW4K, w, 12), S("s_mov_b32", sOFF, sW4K), S("s_mov_b32", sOFV, sW4K)]
    if OPT["rot"]:
        o += [S("s_lshr_b32", t0, "s2", 4)] + ([S("s_lshl_b32", t1, "s2", 1), S("s_and_b32", t1, t1, 14), S("s_add_u32", t0, t0, t1)] if OPT["rot"] == 2 else []) + ([S("s_lshl_b32", t0, t0, 1)] if OPT["rot"] == 3 else [])
        o += [S("s_and_b32", t0, t0, 15), S("s_lshl_b32", t0, t0, 14), S("s_add_u32", sOFF, sOFF, t0), S("s_mov_b32", sOFV, sOFF)]
    o += [S("s_mul_i32", "s28", w, 5 * 4096), S("s_add_u32", "s29", "s28", 4 * 4096)]
    if OPT["ab"]: o += [S("s_lshl_b32", "s30", w, 14), S("s_add_u32", "s30", "s30", 20 * 4096), S("s_and_b32", "s31", sW4K, "0x2000"), S("s_lshr_b32", "s31", "s31", 1), S("s_add_u32", "s31", "s31", 36 * 4096)]
    else: o += [S("s_add_u32", "s30", "s28", 18 * 4096), S("s_add_u32", "s31", "s28", 22 * 4096)]
    o += [S("s_bitcmp1_b32", "s2", 3), S("s_cselect_b64", ("s", 24, 2), ("s", 30, 2), ("s", 28, 2)), S("s_cselect_b64", ("s", 26, 2), ("s", 28, 2), ("s", 30, 2))]
    o += [S("s_and_b32", t0, "s2", 7), S("s_lshr_b32", t1, "s2", 4), S("s_lshl_b32", t0, t0, 4), S("s_add_u32", t0, t0, t1),
          S("s_mul_i32", t1, t0, 2 * HEADQ), S("s_lshl_b32", t0, t0, 19), S("s_mov_b32", "s6", 2 * HEADQ), S("s_mov_b32", "s7", "0x00020000")]
    o += [raw("s_waitcnt lgkmcnt(0)", k="salu")]
    if OPT["stamps"] and OPT["stm"] == 1: o += [raw("s_memtime s[48:49]"), raw("s_memrealtime s[50:51]")]
    o += [S("s_add_u32", "s4", "s8", t1), S("s_addc_u32", "s5", "s9", 0),
          S("s_add_u32", "s8", "s10", t0), S("s_addc_u32", "s9", "s11", 0), S("s_mov_b32", "s10", 2 * HEADK), S("s_mov_b32", "s11", "0x00020000")]
    srd2 = [S("s_add_u32", "s16", "s14", t1), S("s_addc_u32", "s17", "s15", 0), S("s_mov_b32", "s18", 2 * HEADQ), S("s_mov_b32", "s19", "0x00020000"),
          S("s_add_u32", "s12", "s12", t0), S("s_addc_u32", "s13", "s13", 0), S("s_mov_b32", "s14", 2 * HEADK), S("s_mov_b32", "s15", "0x00020000")]
    vl = [bload(("v", 24 + 4 * k, 4), "v22", sV, 0, 512 * k, mod=" nt") for k in range(2)] if OPT["ob"] else []
    parts = [R.qdma(0), R.dma("K", 0), R.dma("K", 1)] if OPT["so"] else [R.dma("K", 0), R.dma("K", 1), R.qdma(0)]
    parts.insert(OPT["bp"], srd2 + vl)
    for x in parts: o += x
    if OPT["stamps"]: o += [S("s_lshl_b32", "s100", "s2", 2), S("s_add_u32", "s100", "s100", w), S("s_mov_b32", "s101", "s2")] + ([S("s_mov_b32", "s95", 0)] if OPT["stm"] == 4 else [])
    if OPT["wu"]: o += [S("s_mov_b64", ("s", 96, 2), ("s", 8, 2)), S("s_mov_b64", ("s", 98, 2), ("s", 12, 2)), V("v_mov_b32", f"v{vQA+66}", 0)]
    o += [S("s_add_u32", "s26", "s26", HEADQ), S("s_add_u32", "s27", "s27", HEADQ)]
    o += [S("s_add_u32", "s33", sW4K, X0), V("v_and_b32", a, 1, g), V("v_lshlrev_b32", a, 6, a), V("v_lshrrev_b32", b, 1, g), V("v_lshl_add_u32", a, b, 4, a), V("v_lshl_add_u32", f"v{vG}", m, 8, a)]
    o += [V("v_and_b32", a, 3, m), V("v_and_b32", b, 4, m), V("v_lshl_add_u32", a, b, 1, a), V("v_lshlrev_b32", a, 4, a), V("v_xor_b32", a, a, f"v{vG}")]
    for ks in range(4):
        o += [V("v_xor_b32", b, KOFF(ks), a), V("v_add_u32", f"v{vKA+ks}", KB, b), V("v_add_u32", f"v{R.TA+ks}", "s33", b), V("v_add_u32", f"v{R.TA+4+ks}", KB + 49152 - X0, f"v{R.TA+ks}")]
    if OPT["qd"]: o += [V("v_mov_b32", f"v{vG}", f"v{R.TA}")]
    o += [V("v_lshrrev_b32", a, 2, l), V("v_and_b32", b, 3, a), V("v_and_b32", c, 4, a), V("v_lshl_add_u32", b, c, 1, b), V("v_and_b32", c, 2, l), V("v_lshl_add_u32", b, c, 1, b),
          V("v_lshlrev_b32", b, 4, b), V("v_and_b32", c, 1, l), V("v_lshl_add_u32", b, c, 3, b), V("v_lshl_add_u32", b, a, 8, b), V("v_add_u32", f"v{vVA}", VB, b)]
    o += [V("v_xor_b32", f"v{vVA+dt}", (dt & 3) * 16 + (dt >> 2) * 128, f"v{vVA}") for dt in range(1, 8)]
    o += [S("s_lshl_b32", t0, w, 8), S("s_add_u32", t0, t0, FLAG), V("v_lshl_add_u32", f"v{vFA}", l, 2, t0), V("v_mov_b32", f"v{vFE}", 0)]
    fi = ds_write("ds_write_b32", f"v{vFA}", f"v{vFE}", 0); fi.wt = {"cw"}; o.append(fi)
    o += [V("v_accvgpr_write_b32", f"a{aL+r}", 0) for r in range(12)]
    o += [V("v_and_b32", a, 2, m), V("v_cmp_eq_u32", "vcc", 0, a), V("v_mov_b32", b, "0x3f803f80"), V("v_cndmask_b32", a, 0, b, "vcc"), V("v_xor_b32", b, a, b)]
    if OPT["one0"]: o += [V("v_cmp_gt_u32", "vcc", 4, m), nop(2), V("v_cndmask_b32", a, 0, a, "vcc"), V("v_cndmask_b32", b, 0, b, "vcc")]
    o += [V("v_accvgpr_write_b32", f"a{aONE+i}", a) for i in range(4)] + [V("v_accvgpr_write_b32", f"a{aONE+4+i}", b) for i in range(4)]
    o += [V("v_and_b32", a, 1, m), V("v_cmp_eq_u32", "vcc", 1, a), V("v_mov_b32", b, "0x44444444"), V("v_mov_b32", c, "0xeeeeeeee"), V("v_cndmask_b32", f"v{vIDX}", b, c, "vcc")]
    o += [S("s_mov_b32", sC, hex(CSCALE)), S("s_mov_b32", sC2, hex(CSCALE)), S("s_mov_b32", sMASK, "0xffff0000"), S("s_mov_b32", sTHR, hex(OPT["thr"])),
          S("s_mov_b64", sBAD[0], 0), S("s_mov_b64", sBAD[1], 0)]
    o += [S("s_and_b32", sD0, w, 1), S("s_lshl_b32", sFK, sD0, 13), S("s_lshl_b32", sD0, sD0, 7), S("s_or_b32", sFV, sFK, sD0)]
    if OPT["ob"]:
        x = [f"v{24+k}" for k in range(8)]; y = [f"v{32+k}" for k in range(8)]
        bo = [wait(need=x)] + [V("v_max_f32_e64", y[k], f"|{x[k]}|", f"|{x[4+k]}|") for k in range(4)]
        bo += [V("v_lshlrev_b32", x[k], 16, x[k]) for k in range(8)] + [V("v_max_f32_e64", y[4+k], f"|{x[k]}|", f"|{x[4+k]}|") for k in range(4)]
        bo += [swap("v_permlane16_swap_b32", y[k], y[4+k]) for k in range(4)] + [V("v_max_f32", y[k], y[k], y[4+k]) for k in range(4)]
        bo += [V("v_min3_f32", y[0], y[0], y[1], y[2]), V("v_min_f32", y[0], y[0], y[3])]
        bo += [V("v_min_f32_dpp", y[0], y[0], y[0], mod=f" row_ror:{k} row_mask:0xf bank_mask:0xf") for k in (8, 4, 2, 1)]
        bo += [V("v_and_b32", y[0], "0x7f800000", y[0]), V("v_min_f32", y[0], f32(2.0 ** 100), y[0]), V("v_mul_f32", y[0], f32(1.5 * 2.0 ** (OPT["kap"] - OPT["dlt"])), y[0]), nop(1)]
        bo += [V("v_readlane_b32", "s40", y[0], 0), V("v_readlane_b32", "s36", y[0], 16), V("v_readlane_b32", "s41", y[0], 32), V("v_readlane_b32", "s37", y[0], 48), nop(2),
               S("s_min_u32", "s40", "s40", "s36"), S("s_min_u32", "s41", "s41", "s37")]
    else: bo = []
    if OPT["bq"]: o += bo
    if not OPT["so"] or OPT["sd"]: o += R.qdma(1)
    if not OPT["bq"]: o += bo
    o += [S("s_bitcmp1_b32", "s2", 3), br("s_cbranch_scc1", "LroleY")]
    return o

def setup_role(R, k):
    o = [S("s_xor_b32", sD1, sD0, 128)]
    if R.half[0]:
        o += [V("v_xor_b32", f"v{vKA+ks}", sFK, f"v{vKA+ks}") for ks in range(4)] + [V("v_xor_b32", f"v{vVA+dt}", sFV, f"v{vVA+dt}") for dt in range(8)]
    return o

def finish(R, k):
    o = []
    if OPT["stamps"]:
        n = R.nstamp
        o += [raw(f"s_memtime s[{44+4*n}:{45+4*n}]"), raw(f"s_memrealtime s[{46+4*n}:{47+4*n}]"), raw("s_waitcnt vmcnt(0) lgkmcnt(0)")]; n += 1
        o += [raw(f"s_memtime s[{44+4*n}:{45+4*n}]"), raw(f"s_memrealtime s[{46+4*n}:{47+4*n}]"), raw("s_waitcnt lgkmcnt(0)")]; n += 1
        assert n <= 13
        if OPT["pi"] >= 0:
            i, j, kk = OPT["pi"], OPT["pj"], OPT["pk_"]
            if not OPT["pall"]: o += [raw("s_and_b32 s101, s101, 0xf7"), raw("s_cmp_lg_u32 s101, 100"), raw(f"s_cbranch_scc1 Lfin{k}")]
            o += [raw(f"s_sub_u32 s36, s{44+4*j+2*kk}, s{44+4*i+2*kk}"), raw("s_mul_i32 s36, s36, 10") if kk else raw("s_lshr_b32 s36, s36, 1"),
                  raw("s_min_u32 s36, s36, 200000"), raw("s_memrealtime s[38:39]"), raw("s_waitcnt lgkmcnt(0)")] + ([raw(f"s_mov_b32 s36, {OPT['pfix']}"), raw("s_mov_b32 s38, s46")] if OPT["pfix"] else []) + [label(f"Lspin{k}"), raw("s_memrealtime s[40:41]"), raw("s_waitcnt lgkmcnt(0)"),
                  raw("s_sub_u32 s37, s40, s38"), raw("s_cmp_lt_u32 s37, s36"), raw(f"s_cbranch_scc1 Lspin{k}")]
        else:
            o += [raw("; STAMPS"), raw("s_load_dwordx2 s[40:41], s[0:1], 40"), raw("v_mov_b32 v16, 0")]
            for x in range(n): o += [raw(f"v_writelane_b32 v16, s{44+4*x}, {2*x}"), raw(f"v_writelane_b32 v16, s{46+4*x}, {2*x+1}")]
            o += [raw(f"v_writelane_b32 v16, {n}, 63"), raw("v_writelane_b32 v16, s95, 62"), raw("s_lshl_b32 s100, s100, 8"), raw("v_mbcnt_lo_u32_b32 v17, -1, 0"), raw("v_mbcnt_hi_u32_b32 v17, -1, v17"), raw("v_lshlrev_b32 v17, 2, v17"),
                  raw("s_waitcnt lgkmcnt(0)"), raw("s_mov_b32 s42, 0x100000"), raw("s_mov_b32 s43, 0x00020000"), raw("buffer_store_dword v16, v17, s[40:43], s100 offen"), raw("s_waitcnt vmcnt(0)")]
    o += [label(f"Lfin{k}")]
    if OPT["slow"]: o += [raw("s_or_b64 s[36:37], s[30:31], s[32:33]"), raw("s_cbranch_scc1 Lslow")]
    o += [raw("s_endpgm")] + R.stubs
    return o

MACROS = """.macro qa d,a,b,c
v_mfma_f32_16x16x32_bf16 v[\\d:\\d+3], a[\\a:\\a+3], v[\\b:\\b+3], v[\\c:\\c+3]
.endm
.macro qb d,a,b,c
v_mfma_f32_16x16x32_bf16 v[\\d:\\d+3], a[\\a:\\a+3], a[\\b:\\b+3], v[\\c:\\c+3]
.endm
.macro pv d,a,b
v_mfma_f32_16x16x32_bf16 a[\\d:\\d+3], a[\\a:\\a+3], v[\\b:\\b+3], a[\\d:\\d+3]
.endm
.macro pw d,a,b
v_mfma_f32_16x16x32_bf16 v[\\d:\\d+3], a[\\a:\\a+3], v[\\b:\\b+3], v[\\d:\\d+3]
.endm
.macro pa d,a,b
v_mfma_f32_16x16x32_bf16 a[\\d:\\d+3], v[\\a:\\a+3], a[\\b:\\b+3], a[\\d:\\d+3]
.endm
.macro pb d,a,b
v_mfma_f32_16x16x32_bf16 v[\\d:\\d+3], v[\\a:\\a+3], a[\\b:\\b+3], v[\\d:\\d+3]
.endm
.macro ex r
v_exp_f32 v\\r, v\\r
.endm
.macro cv d,a,b
v_cvt_pk_bf16_f32 v\\d, v\\a, v\\b
.endm
.macro lk d,a,o
ds_read_b128 a[\\d:\\d+3], v\\a offset:\\o
.endm
.macro lv d,a,o
ds_read_b64_tr_b16 a[\\d:\\d+1], v\\a offset:\\o
.endm
"""
def compact(txt):
    M = "    v_mfma_f32_16x16x32_bf16 "
    txt = re.sub(M + r"v\[(\d+):\d+\], a\[(\d+):\d+\], v\[(\d+):\d+\], v\[\1:\d+\]", r"pw \1,\2,\3", txt)
    txt = re.sub(M + r"v\[(\d+):\d+\], a\[(\d+):\d+\], v\[(\d+):\d+\], v\[(\d+):\d+\]", r"qa \1,\2,\3,\4", txt)
    txt = re.sub(M + r"v\[(\d+):\d+\], a\[(\d+):\d+\], a\[(\d+):\d+\], v\[(\d+):\d+\]", r"qb \1,\2,\3,\4", txt)
    txt = re.sub(M + r"a\[(\d+):\d+\], a\[(\d+):\d+\], v\[(\d+):\d+\], a\[\1:\d+\]", r"pv \1,\2,\3", txt)
    txt = re.sub(M + r"a\[(\d+):\d+\], v\[(\d+):\d+\], a\[(\d+):\d+\], a\[\1:\d+\]", r"pa \1,\2,\3", txt)
    txt = re.sub(M + r"v\[(\d+):\d+\], v\[(\d+):\d+\], a\[(\d+):\d+\], v\[\1:\d+\]", r"pb \1,\2,\3", txt)
    txt = re.sub(r"    v_exp_f32 v(\d+), v\1\n", r"ex \1\n", txt)
    txt = re.sub(r"    v_cvt_pk_bf16_f32 v(\d+), v(\d+), v(\d+)", r"cv \1,\2,\3", txt)
    txt = re.sub(r"    ds_read_b128 a\[(\d+):\d+\], v(\d+) offset:(\d+)", r"lk \1,\2,\3", txt)
    txt = re.sub(r"    ds_read_b64_tr_b16 a\[(\d+):\d+\], v(\d+) offset:(\d+)", r"lv \1,\2,\3", txt)
    return txt.replace("\n    ", "\n")

def sizes(l):
    import subprocess, tempfile, os
    d = tempfile.mkdtemp()
    t = "".join(f"Z{k}:\n" + re.sub(r"(s_c?branch\w*) \w+", r"\1 Z0", re.sub(r"(?m)^L\w+:\n", "", i.text())) for k, i in enumerate(l)) + f"Z{len(l)}:\ns_endpgm\n"
    open(d + "/a.s", "w").write(t)
    subprocess.run(["clang", "-x", "assembler", "-target", "amdgcn-amd-amdhsa", "-mcpu=gfx950", "-c", d + "/a.s", "-o", d + "/a.o"], check=True)
    out = subprocess.run(["llvm-objdump", "-t", d + "/a.o"], capture_output=True, text=True).stdout
    ad = {x.split()[-1]: int(x.split()[0], 16) for x in out.splitlines() if re.search(r" Z\d+$", x)}
    return [ad[f"Z{k+1}"] - ad[f"Z{k}"] for k in range(len(l))]
def warmup(l, tag, dense):
    def entry(r):
        o = [raw("s_mov_b64 vcc, -1")]
        for w in range(3): o += [raw(f"s_cmp_eq_u32 {sW4K}, {4096*w}"), raw(f"s_cbranch_scc1 Lw{tag}{r}_{w}")]
        return o + [raw(f"s_branch Lw{tag}{r}_3"), label(f"Lwr{tag}{r}"), raw("s_mov_b64 vcc, 0")]
    l = entry(0) + l
    sz = sizes(l); esz = sum(sizes(entry(1))); total = sum(sz)
    idx = {id(x): k for k, x in enumerate(l)}
    isd = [False] * len(l)
    for a, b in dense:
        for k in range(idx[id(a)] if a is not None else 0, idx[id(b)] if b is not None else len(l)): isd[k] = True
    ends = [e * 4096 + 1024 for e in (OPT["wu1"], OPT["wu2"]) if e]
    out = []; pos = 0; win = False; pads = [[]]; nxt = OPT["wg"] if isd[0] else 4096
    for k, (i, z) in enumerate(zip(l, sz)):
        prev = l[k - 1] if k else None
        free = prev is not None and ismf(prev) and i.k not in SCAL and not i.nop
        if isd[k]: nxt = min(nxt, (pos // OPT["wg"] + 1) * OPT["wg"])
        if pos >= nxt and not win and (free or pos >= nxt + 40) and sum(sz[k:k + 40]) >= 128:
            p = raw(""); pads[-1].append(p); out.append(p); pos += 4
            nxt = (pos // 4096 + 1) * 4096
        elif ends and pos >= ends[0] and not win and free:
            out += entry(len(pads)); pos += esz; pads.append([]); ends.pop(0)
        if i.t.startswith("v_cmp") and "vcc" in i.w: win = True
        if i.cmt == "check": win = False
        out.append(i); pos += z
    for r, pl in enumerate(pads):
        assert len(pl) >= 4, (r, len(pl))
        for k, p in enumerate(pl):
            p.t = f"\nLw{tag}{r}_{k}:\n    s_cbranch_vccnz " + (f"Lw{tag}{r}_{k+4}" if k + 4 < len(pl) else f"Lwr{tag}{r}")
    if OPT["verbose"]: print("  pads per round:", [len(x) for x in pads])
    return out
def build():
    STC[0] = OPT["stc"]; IMPR[0] = OPT["im"]; BW[0] = OPT["bw"]; NOPW[0] = OPT["nw"]; TA_LIM[0] = OPT["tal"]; VM_LAT[0] = OPT["vml"]
    if OPT["dw"]:
        import bisect
        sv = _st[0]; RX = Role("AB", "X"); RX.build(); RY = Role("BA", "Y"); RY.build(); _st[0] = sv
        ty = [i.st - RY.bstart[0].st for i in RY.prog if ismf(i)]
        for j in range(3, 30): LEAD[j] = bisect.bisect_left(ty, RX.bstart[j].st - RX.bstart[0].st) - RY.bstart[j].mi
        if OPT["verbose"]: print("  lead:", LEAD)
    com = setup_common()
    body = ""
    txt = []
    for k, types in enumerate((("AB", "BA") if OPT["ab"] else ("AA", "AA"))):
        R = Role(types, "XY"[k])
        main = R.build()
        su = setup_role(R, k)
        for i in com + su: i.st = -1000
        tr = insert_waits(com + su + main)
        while fix_hazards(tr, verbose=OPT["verbose"] > 1): pass
        e = verify2(tr); assert e == 0, e
        nc = len(com)
        if OPT["loopt"]:
            tr = [i for i in tr if i.cmt != "check"]; R.stubs = []
            i0 = tr.index(R.bstart[23]); i1 = tr.index(R.bstart[27])
            tr = tr[:i0] + [raw(f"s_mov_b32 s42, {OPT['loopt']}"), label(f"Llt{k}")] + tr[i0:i1] + [raw("s_sub_u32 s20, s20, 65536"), raw("s_sub_u32 s43, s43, 65536"), raw("s_sub_u32 s42, s42, 1"), raw("s_cmp_lg_u32 s42, 0"), raw(f"s_cbranch_scc1 Llt{k}")] + tr[i1:]
        if OPT["nost"]: tr = [i for i in tr if not (i.k == "vmem" and "store" in i.t and i.st > 75000)]
        if OPT["nodsw"]: tr = [i for i in tr if not (i.k == "dsw" and "b64" in i.t and i.st > 75000)]
        if OPT["nowait"]: tr = [i for i in tr if not (i.k == "wait" and i.st > 20000)]
        if OPT["nosync"]: tr = [i for i in tr if not ("v255" in i.t and i.st > 20000)]
        if OPT["nodma"]: tr = [i for i in tr if not (i.k == "vmem" and i.ring and i.ring[1] >= 4)]
        if OPT["samekv"]:
            for i in tr:
                if i.t == "s_add_u32 s20, s20, 16384": i.t = "s_xor_b32 s20, s20, 16384"
        if OPT["nosmf"]: tr = [i for i in tr if i.tag != "smf"]
        if OPT["nocvt"]: tr = [i for i in tr if not (i.t.startswith("v_cvt_pk") and 136 <= int(i.t.split()[1][1:-1]) < 216 and i.st > 8000)]
        if OPT["nobar"]: tr = [i for i in tr if i.k != "bar"]
        if OPT["noxor"]: tr = [i for i in tr if "0x2000, " not in i.t]
        if OPT["nolds"]: tr = [i for i in tr if not (i.k == "ds" and i.ring and i.ring[1] >= 2)]
        if OPT["noexp"]: tr = [i for i in tr if "v_exp" not in i.t]
        assert all(a is b for a, b in zip(tr[:nc], com))
        code = tr[nc:]
        if OPT["wu"]: code = warmup(code, "XY"[k], [x for b_, x in enumerate([(R.bstart[30], None), (None, R.bstart[0]), (R.bstart[15], R.bstart[17])]) if OPT["wd"] >> b_ & 1])
        txt.append("".join(i.text() for i in code + finish(R, k)))
        if OPT["verbose"]: print("  nops:", sum(i.nop for i in tr), "waits:", sum(i.k == "wait" for i in tr))
    slow = ""
    if OPT["slow"]:
        import slowpath4 as slowpath
        slow = slowpath.text(sys.modules[__name__])
    al = ".p2align 12" if OPT["wu"] or OPT["al"] else ".p2align 6"
    body = "".join(i.text() for i in com) + ("    s_branch LroleX\n" + al + "\nLroleX:\n" if OPT["wu"] or OPT["al"] else "") + txt[0] + slow + al + "\nLroleY:\n" + txt[1] + "Lcodeend:\n    s_endpgm\n" + (".fill 4096, 4, 0xbf810000\n" if OPT["spf"] else "")
    return compact(body) if OPT["compact"] else body

HEAD = f"""; softmax(Q K^T / sqrt(128)) V, B8 H32 Sq608 Sk1024 D128, bf16 in / bf16 out. Hand-designed; the instruction order is emitted by my own list-scheduling script.
; One workgroup (4 waves, 512 registers each) per CU. Workgroups 16i+x and 16i+8+x share two heads (one after the other), each taking about half of the
; ring (LDS-DMA); waves synchronise through epoch flags in LDS. S^T = K Q'^T with Q' = bf16(Q * log2(e)/sqrt(128)), P = exp2(S - m), O += P V, l += P 1.
; Softmax guard: m = (true maximum of the row's first 16 keys) + 10, so m never exceeds the row's true maximum by more than 10 (nothing extra underflows).
; Every row sum l is checked at run time (l <= 2^64, not NaN); a wave that fails the check recomputes its rows at Lslow with the true row maximum.
; The fp32 output accumulators start from a small constant B (tied to the smallest column scale of V) that is subtracted again in the epilogue.
; The Lw* branches are never taken in normal flow (vcc = 0); twice per launch a wave sets vcc and hops through them to pull the first line of each code page into the I-cache.
; @launch grid=(256,1,1) block=(256,1,1) lds=163840
.amdgcn_target "amdgcn-amd-amdhsa--gfx950"
{MACROS}.text
.globl {NAME}_kernel
.p2align 8
.type {NAME}_kernel,@function
{NAME}_kernel:
"""
TAIL = f""".section .rodata,"a"
.p2align 6
.amdhsa_kernel {NAME}_kernel
  .amdhsa_next_free_vgpr 512
  .amdhsa_next_free_sgpr 102
  .amdhsa_accum_offset 256
  .amdhsa_group_segment_fixed_size 0
  .amdhsa_kernarg_size 48
  .amdhsa_user_sgpr_count 2
  .amdhsa_user_sgpr_kernarg_segment_ptr 1
  .amdhsa_system_sgpr_workgroup_id_x 1
  .amdhsa_float_denorm_mode_32 3
.end_amdhsa_kernel
"""
if __name__ == "__main__":
    open(sys.argv[1], "w").write(HEAD + build() + TAIL)
```

```python
import heapq
from collections import deque
from asmir import *

SCAL = ("salu", "wait", "bar", "nop", "br")
DS_LAT = 112
def cost(i):
    if i.k == "valu": return 4
    if i.k in ("trans", "perm"): return 8
    if i.k == "ds": return 4
    if i.k == "dsw": return 22 if "b128" in i.t else (8 if "write_b32" in i.t else 12)
    if i.k == "vmem": return 4 if "store" in i.t or "global" in i.t else 8
    return 4
DWP = [0]; IMPR = [0]; BW = [4]; NOPW = [-1000]; TA_LIM = [10**9]; VM_LAT = [0]
STC = [64]
def ta_cost(i): return 256 if i.cmt == "strided" else (STC[0] if "store" in i.t else 64)
def lat_cyc(p, c, raw):
    if p.k == "ds" and raw: return DS_LAT
    if p.k == "vmem" and raw and (p.w & c.r or (p.cmt == "slow" and c.k == "wait")): return VM_LAT[0]
    if ismf(p) and raw and not ismf(c): return 36
    return 0

class Node:
    __slots__ = ("i", "idx", "pred", "succ", "np", "dl", "rt", "t", "pos", "mi", "mate", "hard")

def schedule(prog, verbose=False, name=""):
    N = []
    lastw = {}; readers = {}
    lastm = None; lastv = {}; lastseq = None
    mi = 0; fz = {}
    for idx, i in enumerate(prog):
        n = Node(); n.i = i; n.idx = idx; n.pred = {}; n.succ = []; n.t = None; n.pos = None; n.mi = None
        R_ = i.r | i.xr; W_ = i.w | i.xw
        for r in R_:
            p = lastw.get(r)
            if p is not None: n.pred[p] = True
        for r in W_:
            p = lastw.get(r)
            if p is not None: n.pred[p] = True
            for p in readers.get(r, ()):
                if p is not n: n.pred.setdefault(p, p.i.k == "ds" and i.k == "wait")
        for r in R_: readers.setdefault(r, []).append(n)
        for r in W_: lastw[r] = n; readers[r] = []
        if ismf(i):
            if lastm is not None: n.pred.setdefault(lastm, False)
            lastm = n; n.mi = mi; i.mi = mi; mi += 1
        if i.k == "vmem":
            cl = "st" if "store" in i.t else ("dma" if "lds" in i.t else "ld")
            if cl in lastv: n.pred.setdefault(lastv[cl], False)
            lastv[cl] = n
        n.pred.pop(n, None)
        for p in n.pred: p.succ.append(n)
        n.np = len(n.pred); n.rt = 0
        n.mate = None
        if i.fuse is not None:
            o = fz.pop(id(i.fuse), None)
            if o is None: fz[id(i.fuse)] = n
            else: n.mate = o; o.mate = n
        N.append(n)
    NM_ = mi
    for n in N: n.dl = None
    for n in list(reversed(N)) * (3 if IMPR[0] & 1 else 1):
        if n.mi is not None: n.dl = n.hard = n.mi; continue
        d = h = NM_ + n.idx * 1e-6
        if n.i.dlm is not None: d = min(d, n.i.dlm.mi)
        for s in n.succ:
            l = cost(n.i) / 8.0 + lat_cyc(n.i, s.i, s.pred[n]) / 16.0
            if n.i.k in SCAL: l = 1.0
            d = min(d, s.dl - l); h = min(h, s.hard - l)
        if n.i.cmt == "asap": d = h = -1000 + n.idx * 1e-3
        if IMPR[0] & 1 and n.mate is not None and n.mate.dl is not None: d = min(d, n.mate.dl)
        n.dl = d; n.hard = h
    ms = [n for n in N if n.mi is not None]
    ready = [n for n in N if n.np == 0 and n.mi is None]
    out = []
    t = 0; pipe = 0; slot = False; last = None; cur = -1
    left = len(N); stall = 0; tm = -100; ta = 0; dwf = 0
    def haz_ok(n):
        d = 0; k = len(out) - 1
        while k >= 0 and d < 12:
            p = out[k]
            if required(p.i, n.i) > d: return False
            d += states(p.i); k -= 1
        return True
    def haz_need(n):
        d = 0; k = len(out) - 1; need = 0
        while k >= 0 and d < 12:
            p = out[k]
            need = max(need, required(p.i, n.i) - d)
            d += states(p.i); k -= 1
        return need
    def eff_cost(n):
        i = n.i
        if i.k in SCAL: return (0 if slot else 4) + (4 if i.cmt == "two" else 0)
        c = cost(i)
        if i.k in ("ds", "dsw", "vmem"):
            if last in VALUK: c += 8
            elif last in ("ds",) and i.k == "ds": c += 4
        return c
    def issue(n):
        nonlocal t, pipe, slot, last, cur, left, stall, tm, ta, dwf
        i = n.i
        if n.mate is not None and n.mate.t is None and n.mate.np == 0 and n.mate.rt <= t and t >= tm + 28 and haz_ok(n.mate):
            o = n.mate; f = Node(); f.i = i.fuse; f.i.st = t
            for x in (n, o):
                ready.remove(x); x.t = t; left -= 1
                for s_ in x.succ:
                    s_.np -= 1; s_.rt = max(s_.rt, t)
                    if s_.np == 0 and s_.mi is None: ready.append(s_)
            out.append(f); t += 4; slot = False; last = "valu"
            return
        if n.mi is not None:
            t0 = max(t, pipe, n.rt)
            if cur >= 0: stall += t0 - pipe
            n.t = t0; pipe = t0 + (32 if i.k == "mfma8" else 16); t = t0 + (12 if i.tag == "smf" else 8)
            slot = True; last = i.k; cur = n.mi; tm = t0
        else:
            ready.remove(n)
            c = eff_cost(n); t = max(t, n.rt); n.t = t; t += c
            if i.k == "vmem": ta = max(ta, n.t) + ta_cost(i)
            if i.k == "dsw" and DWP[0]:
                dwf = t - cost(i) + (52 if "b128" in i.t else DWP[0]); pipe = max(pipe, dwf - 8)
            if i.k == "bar": t += 8
            if i.k == "vmem" and "store" in i.t: pipe = max(pipe, t + 16)
            slot = False
            if i.k not in SCAL: last = i.k
        i.st = n.t
        out.append(n); left -= 1
        for s in n.succ:
            s.np -= 1
            s.rt = max(s.rt, n.t + lat_cyc(i, s.i, s.pred[n]))
            if s.np == 0 and s.mi is None: ready.append(s)
    while left:
        m = ms[cur + 1] if cur + 1 < NM_ else None
        m_ok = m is not None and m.np == 0
        m_rdy = m_ok and m.rt <= max(t, pipe) and haz_ok(m)
        budget0 = budget = pipe - t
        if cur >= 0 and ms[cur].i.lg: budget = max(budget, tm + 16 + ms[cur].i.lg - t)
        cand = [n for n in ready if (n.i.nb is None or n.i.nb.mi <= cur or n.dl <= cur + 1) and n.rt <= t
                and not (n.i.k == "vmem" and ta - t > TA_LIM[0] and n.hard > cur + 1)]
        cand.sort(key=lambda n: (n.dl, n.idx))
        blocked = [n for n in ready if n.dl <= cur + NOPW[0] and n.rt <= t + 48 and (n.i.nb is None or n.i.nb.mi <= cur + 2)]
        cand = [n for n in cand[:60 if IMPR[0] & 4 else 24] if haz_ok(n)]
        pick = None
        atstart = last in ("mfma", "mfma8")
        if slot:
            sc = [n for n in cand if n.i.k in SCAL]
            if sc: pick = sc[0]
        if pick is None and (atstart or m is None):
            pr = [n for n in cand if n.i.cmt == "prio"]
            if pr: pick = pr[0]
        if pick is None and cand:
            fit = [n for n in cand if eff_cost(n) <= budget and not (n.i.k == "vmem" and "store" in n.i.t and not atstart)]
            top = cand[0]
            mem = [n for n in cand if n.i.k in ("ds", "dsw", "vmem")]
            if atstart and mem and (mem[0] is top or top.i.k == "valu" or top.i.k in SCAL or (mem[0].dl <= cur + 2)):
                x = mem[0]
                if eff_cost(x) <= budget or cost(x.i) > 8 or x.dl <= cur + 2 or not m_rdy:
                    if not (top.i.k == "valu" and cost(x.i) > 4 and top.dl <= cur + 2 and x.dl > cur + 4): pick = x
            if pick is None and fit: pick = fit[0]
            if pick is None and top.dl <= cur + 1 and top.i.k not in ("ds", "dsw", "vmem"): pick = top
            if pick is None and not m_rdy: pick = top
        if IMPR[0] & 2 and pick is not None and pick.mate is not None and pick.mate.t is None and (t < tm + 28 or pick.mate.np) and cand[0].dl <= cur + 1:
            alt = [n for n in cand if n.mate is None and n.i.k in VALUK and n.dl <= pick.dl + BW[0] and (eff_cost(n) <= budget or eff_cost(pick) > budget)]
            if alt: pick = alt[0]
        if pick is not None and pick.i.k == "dsw" and t < dwf:
            alt = [n for n in cand if n.i.k in VALUK]
            if alt and not atstart: pick = alt[0]
        if pick is None and m_rdy and blocked and budget0 >= 4:
            need = max(haz_need(n) for n in sorted(blocked, key=lambda n: n.dl)[:2]) - 1
            k = min(need, (budget0 + (4 if slot else 0)) // 4)
            if k >= 1:
                f = Node(); f.i = nop(k); f.i.st = t; out.append(f)
                t += 4 * k - (4 if slot else 0); slot = False
                continue
        if pick is not None: issue(pick)
        elif m_rdy: issue(m)
        else:
            later = [n for n in ready if n.rt > t]
            if m_ok and m.rt <= max(t, pipe):
                issue(m)
            elif (m_ok or later) and t < max([n.rt for n in later] + [m.rt if m_ok else 0]):
                t += 4; slot = False
            else:
                r = sorted(ready, key=lambda n: (n.dl, n.idx))
                assert r, "deadlock"
                issue(r[0])
    if verbose: print(f"sched {name}: {len(N)} instrs, {NM_} mfma, est cycles {max(t,pipe)}, mfma stall {stall}")
    return [n.i for n in out]

def insert_waits(seq, lq=None, vq=None):
    lq = deque() if lq is None else lq; vq = deque() if vq is None else vq
    out = []
    def retire(w):
        if w.lg is not None:
            while len(lq) > w.lg: lq.popleft()
        if w.vm is not None:
            while len(vq) > w.vm: vq.popleft()
    for i in seq:
        if i.k == "wait":
            for q, a in ((lq, "lg"), (vq, "vm")):
                lastn = -1
                for n, (o, _) in enumerate(q):
                    if (o.w | o.wt) & i.need: lastn = n
                if lastn >= 0:
                    cnt = len(q) - 1 - lastn; cur = getattr(i, a)
                    setattr(i, a, cnt if cur is None else min(cur, cnt))
            retire(i); out.append(i); continue
        touch = i.r | i.w
        for q, a, mx in ((lq, "lg", 15), (vq, "vm", 63)):
            lastn = -1
            for n, (o, _) in enumerate(q):
                if o.w & touch: lastn = n
            isq = (i.k in ("ds", "dsw")) if a == "lg" else (i.k == "vmem")
            if lastn < 0 and isq and len(q) >= mx: lastn = 0
            if lastn < 0: continue
            opos = q[lastn][1]
            pos = len(out); k = len(out) - 1; tries = 0
            while k > opos and tries < 3:
                if ismf(out[k]):
                    tries += 1
                    nxt = out[k + 1] if k + 1 < len(out) else None
                    early_ok = tries == 1 or (a == "lg" and out[k].st - q[lastn][0].st >= 96)
                    if not early_ok: break
                    if nxt is None or nxt.k not in SCAL: pos = k + 1; break
                    if nxt.k == "wait" and not nxt.need: pos = -(k + 1); break
                if out[k].k in ("label", "br"): break
                k -= 1
            apos = abs(pos)
            tpos = out[apos - 1].st if apos > 0 and out[apos - 1].st is not None else None
            if a == "lg" and tpos is not None:
                for n in range(lastn + 1, len(q)):
                    if q[n][1] < apos and q[n][0].st is not None and tpos - q[n][0].st >= DS_LAT: lastn = n
            cnt = sum(1 for n in range(lastn + 1, len(q)) if q[n][1] < apos)
            if pos < 0:
                w = out[apos]; cur = getattr(w, a); setattr(w, a, cnt if cur is None else min(cur, cnt))
            else:
                w = wait(); setattr(w, a, cnt); w.st = tpos
                out.insert(apos, w)
                for qq in (lq, vq):
                    for n in range(len(qq)):
                        if qq[n][1] >= apos: qq[n] = (qq[n][0], qq[n][1] + 1)
            for _ in range(lastn + 1): q.popleft()
        if i.k in ("ds", "dsw"): lq.append((i, len(out)))
        elif i.k == "vmem": vq.append((i, len(out)))
        out.append(i)
    return out

def verify2(trace):
    lq = deque(); vq = deque(); errs = 0
    landed = {}; visible = {}; slotof = {}; readdone = {}; nbar = 0; privl = {}; arrived = False; snap = {}
    for i in trace:
        if i.k == "wait":
            if i.lg is not None:
                while len(lq) > i.lg:
                    o = lq.popleft()
                    if o.ring and o.cmt != "early": readdone[o.ring] = nbar + (1 if arrived else 0)
            if i.vm is not None:
                while len(vq) > i.vm:
                    o = vq.popleft()
                    if o.ring: landed[o.ring] = landed.get(o.ring, 0) + 1
                    if o.priv: privl[o.priv] = privl.get(o.priv, 0) + 1
            continue
        if i.k == "bar":
            nbar += 1; visible.update(landed); continue
        if i.cmt == "arrive":
            snap = dict(landed); arrived = True
            for o in lq:
                if o.ring: o.cmt = "early"; readdone[o.ring] = nbar
        if i.cmt == "check":
            nbar += 1; visible.update(snap); arrived = False; continue
        for q in (lq, vq):
            for o in q:
                if o.w & (i.r | i.w): print(f"  ERR pending load [{o.t}] vs [{i.t}]"); errs += 1
        if i.k in ("ds", "dsw"):
            if i.ring:
                kind, b = i.ring
                if visible.get(i.ring, 0) < 4: print(f"  ERR RAW {i.ring} not visible at [{i.t}]"); errs += 1
                if slotof.get((kind, b % 4)) != b: print(f"  ERR slot overwritten {i.ring} at [{i.t}]"); errs += 1
            if i.priv and privl.get(i.priv, 0) < 4: print(f"  ERR priv RAW {i.priv}"); errs += 1
            lq.append(i)
            if len(lq) > 15: print("  ERR lgkm overflow"); errs += 1
        elif i.k == "vmem":
            if i.ring:
                kind, b = i.ring; old = (kind, b - 4)
                if b >= 4:
                    if any(o.ring == old for o in lq) or old not in readdone or readdone[old] >= nbar:
                        print(f"  ERR WAR DMA {i.ring}"); errs += 1
                if any(o.priv and o.priv[1] == (kind, b % 4) for o in lq): print(f"  ERR WAR priv {i.ring}"); errs += 1
                slotof[(kind, b % 4)] = b
            if i.priv and any(o.priv and o.priv[1] == i.priv[1] for o in lq): print(f"  ERR WAR priv dma {i.priv}"); errs += 1
            vq.append(i)
            if len(vq) > 63: print("  ERR vm overflow"); errs += 1
    return errs
```

```python
import sys, struct, math, re
from asmir import *
from sched import *

NAME = "standalone__mha_softmax__near_ridge"
OPT = dict(lfix=0, me=0x3333, mo=0xcccc, mi_=0xaaaa, dwp=0, dlin=0, qd=0, qs=10, q0=1, qlin=0, sgx=1, dsp=15, dw=10, dx=-14, dy=0, dc=85, al=0, wu=1, wu1=14, wu2=0, wd=0, wg=512, fin=1, pf2=0, rot=0, sp=0, es=1, dfr=0, po=0, im=7, bw=10, stc=64, gt=0, gp_=1, gr=0, nw=40, hl=30, df0=17, df1=2, tf=12, sm=0, to=0, pfix=0, eh=1, vb=0, c4=0, swp=1, gl=1, tl=0, h0=115, h1=30, h2=195, h3=30, hd=260, nost=0, nodsw=0, ep=0, epo=0, l0=40, l1=110, l2=90, l3=40, sv=0, sd=0, asap=1, kq=4, rb=3, kalt=1, sg0=1, sg1=140, vml=3500, tal=0, bp=0, bq=1, ob=1, kap=7, obias=0, dlt=10, olast=0, o2=0, one0=0, cz=0, nosnake=0, so=0, tch=0, u0=66, u1=19, u2=19, ov=1, ddl=130, cd=1, loopt=0, nowait=0, nosync=0, spf=0, spd=6144, sdl=24, tdl=16, fl=1, flr=20, stm=0, samekv=0, nosmf=0, nocvt=0, nodma=0, nobar=0, noxor=0, nolds=0, noexp=0, xd=0, thr=0x53800000, lagc=50, lagmax=240, stamps=0, kv=1, kvy=1, q=1, o0=4, o1=4, ab=1, pf=1, e0=7, pk=1, pi=-1, pj=0, pk_=1, pall=0, verbose=0, compact=1, slow=1)
MODS = ["", " nt", " sc1", " sc1 nt", " sc0 sc1", " sc0 sc1 nt", " sc0", " sc0 nt"]
for a in sys.argv[2:]:
    k, v = a.split("="); assert k in OPT, k; OPT[k] = int(v, 0)
vKA = 0; vVA = 4; vDA, vDB = 12, 13; vIDX = 14; vG = 15
vS = 16; vNM = 36; vQA = 56; vP = 136; vQB = 216; vT = 252
aO = 0; aL = 160; aONE = 172; aV = 180; aK = 196; aQB = 212
sQ, sK, sV, sO = 4, 8, 12, 16
sOFF = "s20"; sW4K = "s21"; sC = "s22"; sC2 = "s23"
sROW = [["s24", "s25"], ["s26", "s27"]]
sMASK = "s28"; sTHR = "s29"; sBAD = [("s", 30, 2), ("s", 32, 2)]; sFK = "s34"; sFV = "s35"; sD0 = "s3"; sD1 = "s2"
sOFV = "s94" if OPT["rot"] else "s43"; sB = ["s40", "s41"]
sTMP = [f"s{i}" for i in range(36, 40)]
HEADQ = 608 * 256; HEADK = 1024 * 256
CSCALE = struct.unpack("<I", struct.pack("<f", math.log2(math.e) / math.sqrt(128.0)))[0]
X1 = 0; X0 = 16384; KB = 32768; VB = 98304; FLAG = 1024
vFA, vFE = 254, 255
_st = [0]
def stmp():
    _st[0] = (_st[0] + 1) % len(sTMP); return sTMP[_st[0]]
def SS(op, d, *src):
    i = S(op, d, *src); i.w.discard("scc"); return i

def Sx(n): return ("v", vS + 4 * n, 4)
def NM(n): return ("v", vNM + 4 * n, 4)
def Q(p, n, ks):
    f = 4 * n + ks
    if p == 0: return ("v", vQA + 4 * f, 4)
    return ("a", aQB + 4 * f, 4) if f < 11 else ("v", vQB + 4 * (f - 11), 4)
def P(par, n, ks): return ("v", vP + 40 * par + 8 * n + 4 * ks, 4)
def O(n, dt): return ("a", aO + 32 * n + 4 * dt, 4)
def OP(p, n, dt):
    if p == 1 and n < 2 and OPT["ov"]: return ("v", vQA + 32 * n + 4 * dt, 4)
    return O(n, dt)
def mul2(d, a, m):
    if m[0] == "s": l = [V("v_mul_f32", f"v{d+k}", m, f"v{a+k}") for k in range(2)]; f = V("v_pk_mul_f32", ("v", d, 2), ("v", a, 2), ("s", 22, 2))
    else:
        r = int(m[1:]); l = [V("v_mul_f32", f"v{d+k}", f"v{a+k}", m) for k in range(2)]
        f = V("v_pk_mul_f32", ("v", d, 2), ("v", a, 2), ("v", r & ~1, 2), mod=" op_sel:[0,1] op_sel_hi:[1,1]" if r & 1 else " op_sel_hi:[1,0]")
        f.r.discard(f"v{r^1}")
    if OPT["pk"]: l[0].fuse = l[1].fuse = f
    return l
def f32(x): return hex(struct.unpack("<I", struct.pack("<f", float(x)))[0])
def fmap(d, a, m, c):
    l = [V("v_fma_f32", f"v{d+k}", f"v{a+k}", f"v{m+k}", f"v{c+k}") for k in range(2)]
    if OPT["pk"]: l[0].fuse = l[1].fuse = V("v_pk_fma_f32", ("v", d, 2), ("v", a, 2), ("v", m, 2), ("v", c, 2))
    return l
def colput(LW, slot, a, b, gate=()):
    i = I(f"ds_write2_b32 v{LW}, v{a}, v{b} offset0:{16*slot} offset1:{16*slot+16}", "dsw", r=[f"v{LW}", f"v{a}", f"v{b}"])
    i.xw = {f"Fq{slot}", f"Fq{slot+1}"}; i.xr = set(gate); return i
def rowget(d, LR, slot):
    i = ds_read("ds_read_b128", ("v", d, 4), f"v{LR}", 64 * slot); i.xr = {f"Fq{slot}"}; return i
def KOFF(ks): return (ks & 1) * 32 + (ks >> 1) * 128
def L(n): return ("a", aL + 4 * (n // 2), 4)
def Lr(n): return aL + 4 * (n // 2) + 2 * (n % 2)
def ONE(n): return ("a", aONE + 4 * (n % 2), 4)

LEAD = {}
class Role:
    def __init__(s, types, tag):
        s.half = [t == "B" for t in types]; s.tag = tag
        s.kst = [[s.half[0], 0] for _ in range(4)]; s.vst = [[s.half[0], 0] for _ in range(8)]
        s.prog = []; s.hints = []; s.nstamp = 0; s.epoch = 0; s.stubs = []
    def add(s, *l):
        for x in l:
            if isinstance(x, list): s.prog += x
            else: s.prog.append(x)
    def hint(s, i, m, off, attr="nb"): s.hints.append((i, m, off, attr)); return i
    def addr(s, st, reg, half, h, sflip):
        o = []
        if st[0] != half:
            if st[1]: o.append(V("v_xor_b32", reg, "0x2000", reg)); st[1] = 0
            o.append(V("v_xor_b32", reg, sflip, reg)); st[0] = half
        if not half: return o, h * 8192
        if st[1] != h: o.append(V("v_xor_b32", reg, "0x2000", reg)); st[1] = h
        return o, 0
    def kread(s, dst, b, t, ks):
        o, off = s.addr(s.kst[ks], f"v{vKA+ks}", s.half[b // 16], t >> 1, sFK)
        i = ds_read("ds_read_b128", dst, f"v{vKA+ks}", (b % 4) * 16384 + off + (t & 1) * 4096)
        i.ring = ("K", b); i.xr = {f"cK{b}", f"oK{b}"}; i.wt = {f"rK{b}"}
        return o + [i]
    def vread(s, dst, b, dt, ks):
        o, off = s.addr(s.vst[dt], f"v{vVA+dt}", s.half[b // 16], ks, sFV)
        for u in range(2):
            i = ds_read("ds_read_b64_tr_b16", (dst[0], dst[1] + 2 * u, 2), f"v{vVA+dt}", (b % 4) * 16384 + off + u * 4096)
            i.ring = ("V", b); i.xr = {f"cV{b}", f"oV{b}"}; i.wt = {f"rV{b}"}
            o.append(i)
        return o
    def vks(s, b, dt, pref):
        if s.half[b // 16] and s.vst[dt][0]: return [s.vst[dt][1], s.vst[dt][1] ^ 1]
        return pref
    def dma(s, kind, b, gate=None):
        o = []
        so = sOFF if kind == "K" else sOFV
        gl = OPT["gl"] and b >= 4; gp = 96 if kind == "K" else 98
        srd = sK if kind == "K" else sV
        if OPT["rot"]:
            if b > 0: o += [SS("s_add_u32", so, so, 16384), SS("s_bitset1_b32" if b >= 16 else "s_bitset0_b32", so, 18)] + ([SS("s_bitset0_b32", so, 19)] if b > 16 else [])
            if gl: o.append(raw(f"s_add_u32 s{gp}, s{srd}, {so}\n    s_addc_u32 s{gp+1}, s{srd+1}, 0", w=[f"s{gp}"], r=[so])); o[-1].cmt = "two"
        elif gl:
            if b == 4:
                o.append(raw(f"s_add_u32 s{gp}, s{srd}, {so}\n    s_addc_u32 s{gp+1}, s{srd+1}, 0", w=[f"s{gp}"], r=[so])); o[-1].cmt = "two"
            o.append(raw(f"s_add_u32 s{gp}, s{gp}, 16384\n    s_addc_u32 s{gp+1}, s{gp+1}, 0", w=[f"s{gp}"], r=[f"s{gp}"])); o[-1].cmt = "two"
        elif b > 0: o.append(SS("s_add_u32", so, so, 16384))
        o.append(SS("s_add_u32", "m0", sW4K, (b % 4) * 16384 + (VB if kind == "V" else KB)))
        for k in range(4):
            i = dma(f"v{vDA if k % 2 == 0 else vDB}", sK if kind == "K" else sV, so, k * 1024, mod=MODS[OPT["kvy" if s.tag == "Y" and b >= 3 else "kv"]])
            if gl:
                va = f"v{vDA if k % 2 == 0 else vDB}"
                i = I(f"global_load_lds_dwordx4 {va}, s[{gp}:{gp+1}] offset:{k*1024}{MODS[OPT['kv']]}", "vmem", r=[va, f"s{gp}", "m0"])
            i.ring = (kind, b); i.wt = {f"d{kind}{b}"}; i.xw = {f"i{kind}{b}"}
            if gate: i.xr = {gate}
            o.append(i)
        return o
    def barrier(s, close, opn, gate=None, extra_need=(), extra_w=(), extra_r=()):
        w = wait(need=[f"r{x}" for x in close] + [f"d{x}" for x in opn] + list(extra_need))
        w.xw = {f"c{x}" for x in close} | {"barseq"}; w.xr = {f"i{x}" for x in opn} | set(extra_r)
        b = bar(); b.xr = {"barseq"}; b.xw = {f"o{x}" for x in opn} | ({gate} if gate else set()) | set(extra_w)
        return [w, b]
    def sync(s, close, opn, m, gate=None, extra_need=(), extra_w=(), extra_r=(), off_bar=0, off_rd=0):
        if not OPT["fl"]:
            bl = s.barrier(close, opn, gate, extra_need, extra_w, extra_r); s.hint(bl[0], m, off_bar); return bl
        s.epoch += 1; e = s.epoch; tag = f"{s.tag}{e}"
        w = wait(need=[f"d{x}" for x in opn]); w.xr = {f"i{x}" for x in opn}; w.xw = {"flseq"}; s.hint(w, m, 0)
        a = ds_write("ds_write_b32", f"v{vFA}", f"v{vFE}", 0); a.xr = {"flseq"} | set(extra_r); a.xw = {f"c{x}" for x in close}; a.cmt = "arrive"
        r = ds_read("ds_read_b32", f"v{vFE}", f"v{vDA}", FLAG); s.hint(r, m, off_rd)
        c = V("v_cmp_gt_u32", "vcc", e, f"v{vFE}")
        b = I(f"s_cbranch_vccnz Ls{tag}\nLr{tag}:", "br", r=["vcc", f"v{vDA}"], w=["vcc", f"v{vFE}"]); b.cmt = "check"
        b.xw = {f"o{x}" for x in opn} | ({gate} if gate else set()) | set(extra_w)
        s.stubs += [label(f"Ls{tag}"), raw(f"ds_read_b32 v{vFE}, v{vDA} offset:{FLAG}"), raw("s_waitcnt lgkmcnt(0)"), raw(f"v_cmp_gt_u32 vcc, {e}, v{vFE}"), raw("s_nop 0"),
                    raw(f"s_cbranch_vccnz Ls{tag}")] + ([raw("s_add_u32 s95, s95, 1")] if OPT["stm"] == 4 else []) + [raw(f"s_branch Lr{tag}")]
        if OPT["cd"]: s.hint(b, m, off_rd + 8 + OPT["cd"])
        mv = V("v_mov_b32", f"v{vFE}", e)
        for i in (w, a): s.hint(i, m, max(0, off_rd - 10), "dlm")
        return ([w] if opn else []) + [mv, a, r, c, b]
    def chain(s, p, n, sq, kf, czero):
        order = [0, 1, 2, 3] if n % 2 == 0 or OPT["nosnake"] else [3, 2, 1, 0]
        return [mfma(sq, kf(ks), Q(p, n, ks), sq if k else ("0" if czero or OPT["cz"] else NM(n))) for k, ks in enumerate(order)]
    def rowmax(s, n, sq, a, b):
        x = [f"v{sq[1]+r}" for r in range(4)]
        l = [V("v_max3_f32", a, x[0], x[1], x[2]), V("v_max_f32", a, a, x[3])] + ([V("v_add_f32", a, hex(struct.unpack("<I", struct.pack("<f", OPT["dlt"] + OPT["dfr"] / 10.0))[0]), a)] if OPT["dlt"] else []) + [V("v_mov_b32", b, a),
             swap("v_permlane16_swap_b32", a, b), V("v_max_f32", a, a, b), V("v_mov_b32", b, a), swap("v_permlane32_swap_b32", a, b)]
        l += [V("v_min_f32", f"v{vNM+4*n+r}", "-" + a, "-" + b) for r in range(4)]
        l += [V("v_add_f32", x[r], x[r], f"v{vNM+4*n}") for r in range(4)]
        return l
    def expcvt(s, par, n, t, sq, pb=None):
        l = []
        if pb is None: pb = vP + 40 * par + 8 * n
        for h in range(2):
            x0, x1 = f"v{sq[1]+2*h}", f"v{sq[1]+2*h+1}"
            l += [V("v_exp_f32", x0, x0), V("v_exp_f32", x1, x1), V("v_cvt_pk_bf16_f32", f"v{pb+2*t+h}", x0, x1)]
        return l
    def smf(s, b, n, pb=None):
        if pb is None: pb = vP + 40 * (b % 2) + 8 * n
        if s.half[b // 16] and n == 4: return mfma(L(4), ONE(4), ("v", pb, 4), L(4))
        return smfmac(L(n), ONE(n), ("v", pb, 8), f"v{vIDX}")
    def scale(s, src, dst, ta, pk=False):
        a, b = f"v{ta}", f"v{ta+1}"
        l = [V("v_lshlrev_b32", a, 16, src), V("v_and_b32", b, sMASK, src)]
        l += mul2(ta, ta, sC)
        if dst[0] == "v": return l + [V("v_cvt_pk_bf16_f32", dst, a, b)]
        return l + [V("v_cvt_pk_bf16_f32", a, a, b), V("v_accvgpr_write_b32", dst, a)]
    def rowoff(s, p, n, extra=None):
        t = stmp()
        i = SS("s_add_u32", t, sROW[p][0], n * 4096) if n < 4 else SS("s_mov_b32", t, sROW[p][1])
        if extra is None: return t, [i]
        return t, [i, SS("s_add_u32", t, t, extra)]
    def stamp(s, m=None, off=0):
        if not OPT["stamps"]: return
        k = s.nstamp; s.nstamp += 1; assert k < 14
        a = raw(f"s_memtime s[{44+4*k}:{45+4*k}]"); b = raw(f"s_memrealtime s[{46+4*k}:{47+4*k}]")
        for i in (a, b):
            if m is not None: s.hint(i, m, off); s.hint(i, m, off + 2, "dlm")
            else: i.xw = {"seq"}
        s.add(a, b)

    QREG = [(KB + 32768, ("K", 2)), (VB + 16384, ("V", 1)), (VB + 32768, ("V", 2)), (KB + 49152, ("K", 3)), (X0, "X0")]
    TA = 236
    def qdma(s, n):
        t, o = s.rowoff(0, n)
        o.append(SS("s_add_u32", "m0", sW4K, s.QREG[n][0]))
        for k in range(4):
            i = dma(f"v{vDA if k % 2 == 0 else vDB}", sQ, t, k * 1024, mod=MODS[OPT["q"]])
            i.wt = {f"dQ{n}"}; i.priv = (n, s.QREG[n][1]); o.append(i)
        return o
    def start(s):
        half = s.half[0]; TA = s.TA
        def seq(l):
            for i in l:
                if i.k in ("vmem", "wait", "bar"): i.xw = i.xw | {"seq"}
                if OPT["asap"] and i.k in ("vmem", "salu"): i.cmt = "asap"
            return l
        KF = lambda b, t: (lambda ks: ("a", 96 + 16 * t + 4 * ks, 4) if b == 0 else Q(1, t, ks))
        s.KF = KF
        def kpart(bs, dm, order, sq):
            if OPT["stm"] == 1 and 0 in bs: s.stamp()
            bl = seq(s.barrier([], [f"K{b}" for b in bs], extra_need=["cw"]))
            s.add(bl[0], seq(dm), bl[1]) if not OPT["so"] else s.add(bl, seq(dm))
            if OPT["stm"] == 1 and 0 in bs: s.stamp()
            for k, (b, t) in enumerate(order):
                for ks in range(4):
                    l = s.kread(KF(b, t)(ks), b, t, ks)
                    if sq and k < OPT["kq"]: l[-1].xr = l[-1].xr | {"seq"}
                    s.add(l)
        if not OPT["so"]:
            kpart([0, 1], s.qdma(2) + (s.qdma(3) if OPT["sd"] else []), ((0, 0), (0, 1), (0, 2), (0, 3), (1, 2), (1, 3), (1, 0), (1, 1)), True)
        nxt = [s.qdma(3), s.qdma(4), s.dma("V", 0), s.dma("K", 2), s.dma("V", 1)]
        late = []; EP = {}
        if OPT["ep"]:
            nxt = [nxt[2], nxt[0], nxt[1], nxt[3], nxt[4]]
            EP = [{5: [0], 6: [1, 2], 7: [3]}, {6: [0, 1], 7: [2, 3]}, {5: [0, 1], 6: [2, 3]}, {6: [0, 1], 7: [2], 8: [3]}, {6: [0, 1], 8: [2, 3]}, {5: [0, 1], 7: [2, 3]}][OPT["epo"]]
        def grpA(q):
            rd, mm = s.pvgroup(0, q, [0, 1, 2], aK if q % 2 == 0 else aV, lambda n: ("a", 28, 4) if OPT["ob"] else "0")
            if q < 3: mm.append(s.smf(0, q))
            s.add(rd, mm); return mm
        if OPT["sv"] & 1: nxt[1], nxt[2] = nxt[2], nxt[1]
        if OPT["sv"] & 2: late = nxt[3] + nxt[4]; nxt[3] = []; nxt[4] = []
        if OPT["sv"] & 4: late = nxt[4]; nxt[4] = nxt[3]; nxt[3] = []
        if OPT["sd"]: nxt = nxt[1:] + [[]]
        k1d = nxt[0]
        if OPT["so"]: nxt[0] = s.qdma(1 + OPT["sd"])
        s.sc = 0
        for n in range(5):
            w = wait(need=[f"dQ{n}"]); w.xw = {"seq", f"oQ{n}"}; s.add(w)
            if n == 0 or n == 4 or OPT["stm"] == 1: s.stamp()
            base = TA + (4 if n in (1, 2, 3) else 0); off = s.QREG[n][0] - (KB + 49152 if n in (1, 2, 3) else X0)
            for ks in range(4):
                i = ds_read("ds_read_b128", Q(0, n, ks), f"v{base+ks}", off); i.xr = {f"oQ{n}", f"cQ{n}", "seq"}; i.priv = (n, s.QREG[n][1]); i.wt = {f"rQ{n}"}; s.add(i)
            s.add(seq(nxt[n]))
            if OPT["pf2"] and n == OPT["pf2"]:
                s.add(V("v_accvgpr_read_b32", f"v{TA+8}", "a0"), V("v_accvgpr_read_b32", f"v{TA+9}", "a1"),
                      seq([I(f"global_load_dword a{aQB+43}, v[{TA+8}:{TA+9}], off" if 0 else f"global_load_dword a95, v[{TA+8}:{TA+9}], off", "vmem", w=["a95"], r=[f"v{TA+8}", f"v{TA+9}"])]))
            for r in range(16):
                q = f"v{vQA+16*n+r}"; s.add(s.scale(q, q, TA + 8 + 2 * (r % 4), pk=OPT["pk"]))
            for q in EP.get(2 * n, []): grpA(q)
            if OPT["so"] == 1 and n == 0:
                s.prog[-1].xw = {"seq"}
                kpart([0, 1], s.qdma(2) + s.qdma(3), ((0, 0), (0, 1), (0, 2), (0, 3), (1, 2), (1, 3), (1, 0), (1, 1)), False)
            if OPT["so"] >= 2 and n == 0:
                s.prog[-1].xw = {"seq"}
                kpart([0], s.qdma(2 + OPT["sd"]), ((0, 0), (0, 1), (0, 2), (0, 3)), False)
            for b in range(2 if n < 4 else 1):
                if OPT["so"] >= 2 and n == 0 and b == 1:
                    ch[0].xw = {"seq"}
                    kpart([1], k1d, ((1, 0), (1, 1), (1, 2), (1, 3)), False)
                for t in range(2 if half and n == 4 else 4):
                    sq = Sx(s.sc % 5); s.sc += 1
                    ch = s.chain(0, n, sq, KF(b, t), t == 0 and b == 0); s.add(ch)
                    if t == 0 and b == 0:
                        s.add(s.rowmax(n, sq, f"v{TA+16}", f"v{TA+17}"))
                        if n == 4 and not OPT["ep"]:
                            ch[-1].xw = {"seq"}
                            s.add(seq(s.barrier(["K0", "K1"], ["V0"], gate="D-1")), seq(late))
                    s.add(s.expcvt(b, n, t, sq))
            if n < 4: ch[-1].xw = {"seq"}
            if OPT["ep"] and n == 2: s.add(seq(s.barrier(["K0", "K1"], ["V0"], gate="D-1")))
            for q in EP.get(2 * n + 1, []): grpA(q)[-1].xw = {"seq"}

    def nbr(s, p, d, rl):
        return [V("v_mul_f32_e64", f"v{d}", "-" + sB[p], f"v{rl}")] if OPT["ob"] else []
    def ep_l(s, p, n, rl, tmp):
        a, b = f"v{rl}", f"v{tmp}"
        o = [V("v_accvgpr_read_b32", a, f"a{Lr(n)}")]
        if not (s.half[p] and n == 4): o += [V("v_accvgpr_read_b32", b, f"a{Lr(n)+1}"), V("v_add_f32", a, a, b)]
        if OPT["lfix"]: o += [V("v_mov_b32", a, "0.5")]
        o += [V("v_cmp_nge_f32", ("s", 42, 2), sTHR, a), SS("s_or_b64", sBAD[p], sBAD[p], ("s", 42, 2))]
        if not (s.half[p] and n == 4): o += [V("v_rcp_f32", a, a)]
        return o
    def lane16(s, d):
        return [V("v_mbcnt_lo_u32_b32", d, -1, 0), V("v_mbcnt_hi_u32_b32", d, -1, d), V("v_lshlrev_b32", d, 4, d)]
    def cmb_pre(s, T, base):
        return s.lane16(f"v{T}") + [V("v_add_u32", f"v{T}", sW4K, f"v{T}"), V("v_add_u32", f"v{T}", base, f"v{T}"), V("v_xor_b32", f"v{T+1}", "0x1000", f"v{T}"),
             V("v_mov_b32", f"v{T+2}", f"v{vNM+16}")]
    def cmb_give(s, p, T, LW):
        o = s.ep_l(p, 4, T + 3, T + 4)
        w = [colput(LW, 12, T + 2, T + 3)] + [ds_write("ds_write_b128", f"v{T}", O(4, dt), 16384 + dt * 1024) for dt in range(4)]
        for i in w: i.wt = {"cw"}; i.xw = i.xw | {"cgive", "cQ8"}
        return o + w
    def cmb_col(s, p, T, LW):
        nm, l, nm2, l2, x, y = [f"v{T+k}" for k in (2, 3, 4, 5, 6, 7)]
        r = I(f"ds_read2_b32 v[{T+4}:{T+5}], {y} offset0:{16*12} offset1:{16*13}", "ds", w=[nm2, l2], r=[y]); r.xr = {"cmb"}
        return [V("v_xor_b32", y, "0x1000", f"v{LW}"), r, V("v_cmp_nge_f32", ("s", 42, 2), sTHR, l2), SS("s_or_b64", sBAD[p], sBAD[p], ("s", 42, 2)),
                V("v_min_f32", x, nm, nm2), V("v_sub_f32", nm, x, nm), V("v_sub_f32", nm2, x, nm2), V("v_exp_f32", nm, nm), V("v_exp_f32", nm2, nm2),
                V("v_mul_f32", x, l, nm), V("v_fma_f32", x, l2, nm2, x), V("v_rcp_f32", x, x), V("v_mul_f32", nm, nm, x), V("v_mul_f32", nm2, nm2, x),
                V("v_add_f32", y, nm, nm2), V("v_mul_f32_e64", y, "-" + sB[p], y), colput(LW, 8, T + 2, T + 7), colput(LW, 10, T + 4, T + 4)]
    def half_addr(s, WA, RA, GA, LW, LR, base, base2, t0, t1):
        t0, t1, wa, ra = f"v{t0}", f"v{t1}", f"v{WA}", f"v{RA}"
        t = stmp(); t2 = stmp()
        a = [SS("s_add_u32", t, sW4K, base), SS("s_add_u32", t2, sW4K, base2), V("v_mbcnt_lo_u32_b32", t0, -1, 0), V("v_mbcnt_hi_u32_b32", t0, -1, t0),
             V("v_and_b32", t1, 15, t0), V("v_lshl_add_u32", f"v{LW}", t1, 2, t2), V("v_lshl_add_u32", wa, t1, 3, t), V("v_lshrrev_b32", t1, 4, t0), V("v_lshl_add_u32", wa, t1, 9, wa),
             V("v_lshl_add_u32", f"v{LR}", t1, 4, t2),
             V("v_lshl_add_u32", ra, t1, 8, t), V("v_and_b32", t1, 3, t0), V("v_lshl_add_u32", ra, t1, 6, ra), V("v_and_b32", t1, 12, t0), V("v_lshl_add_u32", ra, t1, 1, ra),
             V("v_and_b32", t1, 7, t0), V("v_lshlrev_b32", t1, 4, t1), V("v_lshrrev_b32", t0, 3, t0), V("v_lshl_add_u32", f"v{GA}", t0, 8, t1)]
        return a
    def half_put(s, pk, r, WA, X, gate):
        w = ds_write("ds_write_b64", f"v{WA}", ("v", pk, 2), X + r * 128); w.xr = set(gate); w.xw = {f"Xd{X}_{r}"}; return [w]
    def half_wide(s, p, n, H, FR, FB, TB, WA, X, gate, part=None):
        o = []
        for r in (0, 2):
            tb = TB[r // 2]
            if OP(p, n, 0)[0] == "a":
                x = [tb + 2 * j for j in range(4)]
                o += [V("v_accvgpr_read_b32", f"v{tb+2*j+k}", f"a{OP(p, n, 4*H+j)[1]+r+k}") for j in range(4) for k in range(2)]
            else: x = [OP(p, n, 4 * H + j)[1] + r for j in range(4)]
            for j in range(4): o += fmap(x[j], x[j], FR + r, FB + r)
            if part:
                T, U, FA = part
                rr = [ds_read("ds_read_b64", ("v", U + 2 * j, 2), f"v{T+1}", 16384 + j * 1024 + r * 4) for j in range(4)]
                for i in rr: i.xr = {"cmb"}
                o += rr
                for j in range(4): o += fmap(x[j], U + 2 * j, FA + r, x[j])
            o += [V("v_cvt_pk_bf16_f32", f"v{tb+d}", f"v{x[ja]+k}", f"v{x[ja+1]+k}") for d, ja, k in ((0, 0, 0), (2, 0, 1), (1, 2, 0), (3, 2, 1))]
            o += s.half_put(tb, r, WA, X, gate) + s.half_put(tb + 2, r + 1, WA, X, gate)
        return o
    def half_slim(s, p, n, H, FR, FB, T4, WA, X):
        o = []
        for r in range(4):
            o += [V("v_accvgpr_read_b32", f"v{T4+j}", f"a{O(n, 4*H+j)[1]+r}") for j in range(4)]
            o += [V("v_fma_f32", f"v{T4+j}", f"v{T4+j}", f"v{FR+r}", f"v{FB+r}") for j in range(4)]
            o += [V("v_cvt_pk_bf16_f32", f"v{T4+k}", f"v{T4+2*k}", f"v{T4+2*k+1}") for k in range(2)] + s.half_put(T4, r, WA, X, [])
        return o
    def half_out(s, p, n, H, rb, RA, GA, X, mod):
        if s.half[p]: t, o = s.rowoff(p, n, sD1 if H else sD0); off = 0
        else: t, o = s.rowoff(p, n); off = 128 * H
        for k in range(2):
            for u in range(2):
                i = ds_read("ds_read_b64_tr_b16", ("v", rb[k] + 2 * u, 2), f"v{RA}", X + k * 1024 + u * 32); i.xr = {f"Xd{X}_{r}" for r in range(4)}; o.append(i)
            o.append(bstore(("v", rb[k], 4), f"v{GA}", sO, t, off + k * 2048, mod=MODS[mod]))
            if p == 1 and OPT["sp"]: o[-1].cmt = "prio"
        return o
    def plan_trans(s):
        hv = s.half[0]; E = vQA + 64
        WA, RA, GA, LR, FR, FB, T4 = E, E + 1, E + 2, E + 3, E + 4, E + 8, E + 12
        s.LW = LW = vQA + 24
        s.CT = CT = vQA + 56; TB = [vQA + 16, vQA + 16 if hv else vQA + 48]; XB = [0] if hv else [0, X0 - 2048, X0]; cnt = [0]
        def fin(l, dl):
            for i in l:
                if i.k == "vmem": s.hint(i, s.bstart[15], dl, "dlm")
            return l
        def wide(n, H, dl):
            X = XB[cnt[0] % len(XB)]; cnt[0] += 1
            rb = [vQA + 8, vQA + 12] if H == 0 else ([T4, vQA + 52] if hv else [vQA + 56, vQA + 60])
            l = [rowget(FR, LR, 2 * n), rowget(FB, LR, 2 * n + 1)]
            l += s.half_wide(0, n, H, FR, FB, TB, WA, X, []) + s.half_out(0, n, H, rb, RA, GA, X, OPT["o0"])
            if n == 2: l += [V("v_accvgpr_write_b32", f"a{O(2, 4*H+3)[1]+r}", sB[1]) for r in range(4)]
            return fin(l, dl)
        def comb(dl):
            l = [rowget(FR, LR, 8), rowget(FB, LR, 9), rowget(T4, LR, 10)]
            l += s.half_wide(0, 4, 1, FR, FB, TB, WA, 0, [], part=(CT, vQA + 48, T4)) + s.half_out(0, 4, 1, [T4, vQA + 60], RA, GA, 0, OPT["o0"])
            return fin(l, dl)
        def slim(n, H, newf, dl):
            return fin(([rowget(FR, LR, 2 * n), rowget(FB, LR, 2 * n + 1)] if newf else []) + s.half_slim(0, n, H, FR, FB, T4, WA, 0) + s.half_out(0, n, H, [T4, T4], RA, GA, 0, OPT["o0"]), dl)
        urg = [2, 3] if hv else [2, 3, 4]
        s.ins = {(15, 0, 0): lambda: [V("v_mov_b32", f"v{vQA+28+r}", sB[1]) for r in range(4)] + s.half_addr(WA, RA, GA, LW, LR, X1 + 2048, X1, vQA + 2, vQA + 3) + (s.cmb_pre(CT, X1) if hv else []),
                 (15, 0, 1): lambda: sum((s.ep_l(0, n, vQA + 4, vQA + 5) + s.nbr(0, vQA + 5, vQA + 4) + [colput(LW, 2 * n, vQA + 4, vQA + 5)] for n in urg + [0, 1]), []),
                 (15, 2, 0): lambda: sum((wide(n, 0, OPT["h0"] + OPT["h1"] * k) for k, n in enumerate(urg)), []),
                 (16, 0, 0): lambda: sum((wide(n, 1, OPT["h2"] + OPT["h3"] * k) for k, n in enumerate(urg)), []) + (comb(OPT["h2"] + OPT["h3"] * 2) if hv else [])
                                     + sum((slim(k // 2, k % 2, k % 2 == 0, 330 + (k + 1) * OPT["hd"]) for k in range(4)), [])}

    def pvgroup(s, j, q, tiles, vbuf, cinit):
        pv = j // 16; hv = s.half[pv]; rd = []; mm = []
        for h, pref in ((0, [0, 1]), (1, [0, 1] if hv else [1, 0])):
            for ks in s.vks(j, 2 * q + h, pref): rd += s.vread(("a", vbuf + 8 * h + 4 * ks, 4), j, 2 * q + h, ks)
        if OPT["po"] and j % 16 and j != 30:
            for n in tiles:
                hs = [0, 1] if n % 2 == 0 or OPT["po"] == 2 else [1, 0]
                for x, h in enumerate(hs):
                    for ks in ([0] if hv and n == 4 else ([0, 1] if x == 0 else [1, 0])):
                        mm.append(mfma(OP(pv, n, 2 * q + h), P(j % 2, n, ks), ("a", vbuf + 8 * h + 4 * ks, 4), OP(pv, n, 2 * q + h)))
            return rd, mm
        for h in range(2):
            dt = 2 * q + h
            for n in (tiles if h == 0 else reversed(tiles)):
                if OPT["c4"] and j % 16 != 0 and j != 30:
                    if h == 0:
                        seq4 = [(0, 0), (0, 1), (1, 0), (1, 1)][::1 if n % 2 == 0 else -1]
                        if hv and n == 4: seq4 = [(0, 0), (1, 0)]
                        for hh, ks in seq4:
                            d_ = OP(pv, n, 2 * q + (j % 2))
                            mm.append(mfma(d_, P(j % 2, n if hh == 0 else (n + 2) % 4, ks), ("a", vbuf + 8 * hh + 4 * ks, 4), d_))
                    continue
                kss = [0] if hv and n == 4 else ([0, 1] if (n + h) % 2 == 0 or OPT["nosnake"] else [1, 0])
                for k_, ks in enumerate(kss):
                    ab = [("a", vbuf + 8 * h + 4 * ks, 4), P(j % 2, n, ks)][::-1 if OPT["swp"] else 1]
                    mm.append(mfma(OP(pv, n, dt), ab[0], ab[1], cinit(n) if j % 16 == 0 and k_ == 0 else OP(pv, n, dt)))
        return rd, mm
    def tq(s, b, q): return q ^ 2 if (OPT["kalt"] and s.half[b // 16] and b % 2 == 1 and b != 31) else q
    def block(s, j):
        b = j + 1; p = b // 16; pv = j // 16
        hq, hv = s.half[p], s.half[pv]
        first = (j % 16 == 0); trans = (j == 15)
        smfs = [{0: [0], 1: [1], 2: [2, 3], 3: [4]}, {0: [0, 1], 1: [2, 3], 2: [4], 3: []}, {0: [0, 1, 2, 3, 4], 1: [], 2: [], 3: []}][OPT["sm"]]
        if j == 0 and OPT["ep"]: smfs = {0: [], 1: [], 2: [], 3: [3, 4]}
        MX = vQA; CT = s.CT
        if j == 30: s.tail_pre()
        for q in range(4):
            vbuf = aK if (j == 0 and q % 2 == 0) else aV
            def cinit(n):
                if not OPT["ob"]: return "0"
                if j == 0: return ("a", aQB, 4)
                return O(2, 3 if q < 2 else 7) if OP(1, n, 0)[0] == "a" else ("v", vQA + 28, 4)
            rd, pvm = s.pvgroup(j, q, [3, 4] if j == 0 and OPT["ep"] else [0, 1, 2, 3, 4], vbuf, cinit)
            s.add(rd)
            if (j, q, 0) in s.ins: s.add(s.ins[(j, q, 0)]())
            cz = (b % 16 == 0 and q == 0)
            if j == 0:
                work = [(4, t, s.KF(1, t), None) for t in ([[0, 1], [2], [3], []] if not hq else [[0, 1], [], [], []])[q]]
            elif j == 30:
                work = [(4, q, s.KT(q), s.PT[0])] if not (hq and q >= 2) else []
            else: work = [(n, s.tq(b, q), (lambda ks: ("a", aK + 4 * ks, 4)), None) for n in range(4 if hq and s.tq(b, q) >= 2 else 5)]
            ch = []; sqs = []
            for n, t, kf, pb in work:
                if j in (0, 30): sq = Sx(s.sc % 5); s.sc += 1
                else: sq = Sx(n)
                sqs.append(sq); ch += s.chain(p, n, sq, kf, cz)
            s.add(ch); m0 = (ch + pvm)[0]
            if OPT["vb"] and j not in (0, 30):
                for k, i in enumerate([x for x in rd if x.k == "ds"]): s.hint(i, m0, -6 + k); s.hint(i, m0, -5 + k, "dlm")
                for k, i in enumerate(getattr(s, "lastk", [])): s.hint(i, m0, -10 + k - (OPT["vb"] - 1)); s.hint(i, m0, -9 + k - (OPT["vb"] - 1), "dlm")
            if j == 0 and q == 0 and OPT["ob"]: s.add([V("v_accvgpr_write_b32", f"a{aQB+r}", sB[0]) for r in range(4)])
            if q == 0:
                s.bstart[j] = m0
                if j in s.stamp_at: s.stamp(m0)
                lag = 0
                if s.half[0] and not s.half[1]: lag = min(OPT["lagmax"], (16 * (j if j <= 15 else 31 - j) * OPT["lagc"]) // 100)
                bat = []
                if j == 0: bat.append((s.dma("K", 3, gate="D-1") + s.dma("V", 2, gate="D-1"), OPT["l0"])); lag = OPT["l1"]
                if j == 1: lag = OPT["l2"]
                if j == 2: lag = OPT["l3"]
                dl = []
                if j + 4 <= 31: dl += s.dma("K", j + 4, gate=f"D{j-1}")
                if j + 3 <= 31: dl += s.dma("V", j + 3, gate=f"D{j-1}")
                bat.append((dl, lag))
                for dl, lag in bat:
                    for k, i in enumerate([x for x in dl if x.k == "vmem"]):
                        if OPT["dw"] and j >= 3:
                            L = OPT["dx"] + max(0, min(OPT["lagmax"], LEAD.get(j, 0) * OPT["dc"] // 100 + OPT["dy"])) * (s.tag == "Y") + OPT["dsp"] * k
                            s.hint(i, m0, L); s.hint(i, m0, L + OPT["dw"], "dlm"); continue
                        s.hint(i, m0, lag + 30 + 2 * k, "dlm")
                        if lag: s.hint(i, m0, lag - 20)
                        L = lag + 30 + 2 * k
                    s.add(dl)
                if j in s.qst: s.add(s.qst[j](m0, L + 12))
            qlen = len(ch) + len(pvm) + 1
            if OPT["spf"] and (q == 1 or (OPT["spf"] > 1 and q == 3) or OPT["spf"] > 2):
                for i in (raw("s_getpc_b64 s[40:41]", w=["s40"]), raw(f"s_load_dword s42, s[40:41], {OPT['spd']}", r=["s40"])):
                    s.hint(i, m0, 8); s.hint(i, m0, 12, "dlm"); s.add(i)
            k = 0
            for (n, t, kf, pb), sq in zip(work, sqs):
                if cz: s.add(s.rowmax(n, sq, f"v{MX}", f"v{MX+1}"))
                l = s.expcvt(b % 2, n, t, sq, pb)
                for i in l:
                    if i.k == "trans" and j not in (0, 30) and OPT["eh"]: s.hint(i, m0, OPT["e0"] + (k * qlen) // (4 * len(work))); k += 1
                s.add(l)
            if q == 3 and j < 30:
                opn = [f"K{j+2}", f"V{j+1}"] + (["V31"] if j == 29 else [])
                cm = trans and hv
                kw = dict(gate=f"D{j}", extra_need=["cw"] if cm else [], extra_w=["cmb"] if cm else [], extra_r=["cgive"] if cm else [])
                if j == 0:
                    bl = s.barrier(["V0"], opn, **kw); s.hint(bl[0], m0, 0); s.add(bl)
                else: s.add(s.sync([f"K{b}", f"V{j}"], opn, m0, off_bar=len(ch) - 3, off_rd=OPT["flr"] - (20 - len(ch)), **kw))
                if cm: s.add(s.cmb_col(pv, CT, s.LW))
            n0 = len(s.prog)
            if j < 30:
                if q < 3 and j > 0:
                    for ks in range(4): s.add(s.kread(("a", aK + 4 * ks, 4), b, s.tq(b, q + 1), ks))
                elif q == 3:
                    for ks in range(4): s.add(s.kread(("a", aK + 4 * ks, 4), b + 1, s.tq(b + 1, 0), ks))
            s.lastk = [x for x in s.prog[n0:] if x.k == "ds"]
            if trans and q == 0:
                s.add([s.smf(j, n) for n in range(5)])
            if (j, q, 1) in s.ins: s.add(s.ins[(j, q, 1)]())
            s.add(pvm)
            if not trans: s.add([s.smf(j, n) for n in smfs[q]])
            if trans:
                if hv and q == 1: s.add(s.cmb_give(pv, CT, s.LW))
                if q == 1: s.add([V("v_accvgpr_write_b32", f"a{aL+r}", 0) for r in range(10)])
            if q == 1 and j in s.stage: s.add(s.stage[j](m0))

    def plan_stage(s):
        s.stage = {}
        def g(m):
            o = []
            def ld(f, dst, k=0):
                t, oo = s.rowoff(1, f // 4)
                i = bload(dst, f"v{vDA if OPT['qlin'] else vG}", sQ, t, (f % 4) * 1024 if OPT["qlin"] else KOFF(f % 4), mod=MODS[OPT["q"]]); i.cmt = "strided"; s.hint(i, m, (k // 2) * OPT["sg1"])
                return oo + [i]
            def sc(f, src):
                d = Q(1, f // 4, f % 4); l = []
                for r in range(4):
                    if src[0] == "a": l += [V("v_accvgpr_read_b32", f"v{vT+1}", f"a{src[1]+r}")] + s.scale(f"v{vT+1}", f"a{d[1]+r}", vT)
                    else: l += s.scale(f"v{src[1]+r}", f"{d[0]}{d[1]+r}", vT)
                return l
            land = lambda f: ("v", vQB + 4 * (f + 1), 4) if f < 8 else Q(1, f // 4, f % 4)
            for f in range(12): o += ld(f, land(f), f)
            for f in range(0, 8, 2): o += sc(f, land(f)) + sc(f + 1, land(f + 1)) + ld(12 + f, land(12 + f)) + ld(13 + f, land(13 + f))
            for f in range(8, 20): o += sc(f, land(f))
            return o
        if not OPT["qd"]: s.stage[OPT["sg0"] if s.half[0] else OPT["sgx"]] = g
        s.qst = {}
        def tile(n, prev):
            def h(m, L):
                t, o = s.rowoff(1, n)
                w = wait(need=[f"rQ{prev}"]); w.xw = {f"cQ{prev}", "qbuf"}; s.hint(w, m, L - 2)
                o += [w, SS("s_add_u32", "m0", sW4K, X0)]
                for k in range(4):
                    i = dma(f"v{vDA if k % 2 == 0 else vDB}", sQ, t, k * 1024, mod=MODS[OPT["q"]])
                    i.wt = {f"dQ{n+5}"}; i.priv = (n + 5, "X0"); i.xr = {"qbuf"}; i.xw = {f"iQ{n+5}"}; i.cmt = "slow"
                    s.hint(i, m, L + OPT["qs"] * k); s.hint(i, m, L + OPT["qs"] * k + 6, "dlm"); o.append(i)
                w = wait(need=[f"dQ{n+5}"]); w.xr = {f"iQ{n+5}"}; w.xw = {f"oQ{n+5}"}; o.append(w)
                land = lambda f: vQB + 4 * (f % 8 + 1) if f < 11 else Q(1, f // 4, f % 4)[1]
                for ks in range(4):
                    d = land(4 * n + ks); a = f"v{vG}"
                    if ks: a = f"v{d}"; o.append(V("v_xor_b32", a, KOFF(ks), f"v{vG}"))
                    i = ds_read("ds_read_b128", ("v", d, 4), a, 0); i.xr = {f"oQ{n+5}", f"cQ{n+5}"}; i.priv = (n + 5, "X0"); i.wt = {f"rQ{n+5}"}; o.append(i)
                for ks in range(4):
                    d = Q(1, n, ks)
                    for r in range(4): o += s.scale(f"v{land(4*n+ks)+r}", f"{d[0]}{d[1]+r}", vT)
                return o
            return h
        if OPT["qd"]:
            for j, n, prev in zip((0, 2, 4, 6, 8), (0, 1, 2, 4, 3), (4, 5, 6, 7, 9)): s.qst[j + OPT["q0"] if j or OPT["q0"] else 1] = tile(n, prev)

    def tail_pre(s):
        hv = s.half[1]; Z = ("a", 0) if OPT["ov"] else ("v", vQA)
        s.KT = lambda t: (lambda ks: ("a", aK + 4 * ks, 4) if t == 0 else (("v", vP + 40 + 16 * (t - 1) + 4 * ks, 4) if t < 3 else (Z[0], Z[1] + 48 + 4 * ks, 4)))
        s.VT = lambda dt, ks: (Z[0], Z[1] + 8 * dt + 4 * ks, 4) if dt < 6 else ("a", aV + 8 * (dt - 6) + 4 * ks, 4)
        s.PT = [vP + 72, 236]
        for t in range(1, 4):
            for ks in range(4): s.add(s.kread(s.KT(t)(ks), 31, t, ks))
    def tail(s):
        j = 31; hv = s.half[1]
        for dt in range(8):
            for ks in s.vks(j, dt, [0, 1]): s.add(s.vread(s.VT(dt, ks), j, dt, ks))
        E = vQA + 64
        WA, RA, GA, LW, LR, RL, NC = E, E + 1, E + 2, E + 3, E + 4, E + 6, E + 7
        CT = 244; CU = 220
        F = vP
        TB = [F, F + 8]; FQ = [(E + 8, E + 12), (F + 16, F + 20)]; RB = [F + 24 + 4 * k for k in range(4)]
        a = s.half_addr(WA, RA, GA, LW, LR, VB, KB, RL, NC)
        for i in a: s.hint(i, s.bstart[28], 0)
        s.add(a)
        order = [4, 3, 2, 1, 0]; XB = [0, 2048, 16384, 18432]
        if hv: s.add(s.cmb_pre(CT, KB))
        k2 = 0
        for k, n in enumerate(order):
            pb = s.PT[k % 2]; hn = hv and n == 4; FR, FB = FQ[k % 2]
            ml = [[s.smf(j, n, pb)], [], [], []]
            for dt in range(8):
                kss = [0] if hn else ([0, 1] if dt % 2 == 0 else [1, 0])
                ml[dt // 2] += [mfma(OP(1, n, dt), ("v", pb + 4 * ks, 4), s.VT(dt, ks), OP(1, n, dt)) for ks in kss]
            if k == 0 and OPT["stm"] != 5: s.stamp(ml[0][0])
            if k == 0 and OPT["es"]: s.add(ml[0].pop(0))
            for t in range(4):
                if k < 4:
                    n2 = order[k + 1]; sq = Sx(s.sc % 5); s.sc += 1
                    s.add(s.chain(1, n2, sq, s.KT(t), False), s.expcvt(1, n2, t, sq, s.PT[(k + 1) % 2]))
                s.add(ml[t])
                if t == 0 and not hn: s.add(s.ep_l(1, n, RL, NC) + s.nbr(1, NC, RL) + [colput(LW, 2 * n, RL, NC, ["D29"]), rowget(FR, LR, 2 * n), rowget(FB, LR, 2 * n + 1)])
            if hn:
                s.add(s.cmb_give(1, CT, LW))
                s.add(s.sync([], [], ml[3][-1], extra_need=["cw"], extra_w=["cmb"], extra_r=["cgive"], off_bar=24, off_rd=OPT["tf"]))
                continue
            for H in range(2):
                X = XB[k2 % 4]
                ep = s.half_wide(1, n, H, FR, FB, TB, WA, X, ["D29"]) + s.half_out(1, n, H, RB[2 * (k2 % 2):], RA, GA, X, OPT["o1"]); k2 += 1
                for i in ep:
                    if i.k == "vmem": s.hint(i, ml[2 * H + 1][-1], OPT["tdl"], "dlm")
                s.add(ep)
            if hv and k == 1:
                X = XB[k2 % 4]
                s.add(s.cmb_col(1, CT, LW), rowget(FR, LR, 8), rowget(FB, LR, 9), rowget(CU + 8, LR, 10))
                s.add(s.half_wide(1, 4, 1, FR, FB, TB, WA, X, ["D29"], part=(CT, CU, CU + 8)), s.half_out(1, 4, 1, RB[2 * (k2 % 2):], RA, GA, X, OPT["o1"])); k2 += 1

    def final(s):
        hv = s.half[1]
        s.tail_pre()
        E = vQA + 64; F = vP; CT = 244
        WA, RA, GA, LW, LR, RL, NC = E, E + 1, E + 2, E + 3, E + 4, E + 6, E + 7
        a = s.half_addr(WA, RA, GA, LW, LR, VB, KB, RL, NC)
        for i in a: s.hint(i, s.bstart[28], 0)
        s.add(a)
        PT = {4: vP + 72, 3: 236, 2: 220, 1: vP + 72, 0: 236}
        XB = [0, 2048, 16384, 18432]; st = dict(k2=0, late=False, fq={}, nf=0); vdone = set(); last = [None]
        std = lambda n: f"q{n-1}0 l{n} p{n}0 q{n-1}1 p{n}1 e{n}0 q{n-1}2 p{n}2 q{n-1}3 p{n}3 e{n}1 " if n else "l0 p00 p01 e00 p02 p03 e01"
        if not hv:
            sc = ["q40 P0 q41 q42 q43 P1 s4 l4 q30 p40 q31 p41 e40 q32 q33 P2 s3 l3 p30 p31 e30 P3 s0 s1 s2 p42 q20 p32 q21 p43 e41 q22 p33 e31 q23 ",
                  "q40 P0 q41 q42 q43 P1 s4 l4 p40 p41 e40 q30 q31 P2 q32 q33 P3 s3 s0 s1 s2 p42 l3 p30 q20 p43 e41 p31 e30 q21 p32 q22 p33 e31 q23 "][OPT["fin"] - 1]
        else:
            sc = ["q40 P0 q41 q30 q31 P1 s4 l4 p40 p41 g q32 q33 P2 s3 l3 p30 p31 e30 P3 s0 s1 s2 p42 p32 q20 q21 p43 p33 e31 c q22 q23 ",
                  "q40 P0 q41 q30 q31 q32 P1 s4 l4 p40 p41 g q33 s3 P2 l3 p30 p31 e30 P3 s0 s1 s2 p42 p32 q20 p43 c q21 p33 e31 q22 q23 "][OPT["fin"] - 1]
        sc += "l2 p20 q10 p21 e20 q11 p22 q12 p23 e21 q13 l1 p10 q00 p11 e10 q01 p12 q02 p13 e11 q03 l0 p00 p01 e00 p02 p03 e01" if OPT["to"] else std(2) + std(1) + std(0)
        def mm(l):
            if 30 not in s.bstart:
                s.bstart[30] = l[0]
                if 30 in s.stamp_at: s.stamp(l[0])
            s.add(l); last[0] = l[-1]
        def temps():
            k2 = st["k2"]; st["k2"] += 1
            if st["late"]: return XB[k2 % 4], [F, F + 8], [F + 24 + 8 * (k2 % 2), F + 28 + 8 * (k2 % 2)]
            return (XB[k2 % 4], [220, 220], [228, 232]) if hv else (XB[k2 % 4], [244, 244], [vNM + 16, 244] if k2 == 0 else [228, 232])
        def fq(key, slots):
            for q_, k_ in st["fq"].items():
                if k_ == key: return q_, []
            q_ = (F + 16) if st["late"] and st["nf"] % 2 else (E + 8); st["nf"] += 1; st["fq"][q_] = key
            return q_, [rowget(q_, LR, slots[0]), rowget(q_ + 4, LR, slots[1])]
        def dls(l):
            for i in l:
                if i.k == "vmem": s.hint(i, last[0], OPT["tdl"], "dlm")
            return l
        for x in sc.split():
            c = x[0]; n = int(x[1]) if len(x) > 1 else 4; hn = hv and n == 4
            if c == "q":
                t = int(x[2]); sq = Sx(s.sc % 5); s.sc += 1
                mm(s.chain(1, n, sq, s.KT(t), False)); s.add(s.expcvt(1, n, t, sq, PT[n]))
            elif c == "P":
                rd, m_ = s.pvgroup(30, n, [0, 1, 2, 3, 4], aV, None); s.add(rd); mm(m_)
                for dt in (2 * n, 2 * n + 1):
                    for ks in s.vks(31, dt, [0, 1]): s.add(s.vread(s.VT(dt, ks), 31, dt, ks))
            elif c == "s":
                mm([s.smf(30, n)])
                if n == 2: st["late"] = True
            elif c == "l":
                mm([s.smf(31, n, PT[n])])
                if not hn: s.add(s.ep_l(1, n, RL, NC) + s.nbr(1, NC, RL) + [colput(LW, 2 * n, RL, NC, ["D29"])])
            elif c == "p":
                l = []
                for dt in (2 * int(x[2]), 2 * int(x[2]) + 1):
                    l += [mfma(OP(1, n, dt), ("v", PT[n] + 4 * ks, 4), s.VT(dt, ks), OP(1, n, dt)) for ks in ([0] if hn else ([0, 1] if dt % 2 == 0 else [1, 0]))]
                mm(l)
            elif c == "e":
                H = int(x[2]); X, TB, RB = temps(); FR, l = fq(n, (2 * n, 2 * n + 1))
                s.add(dls(l + s.half_wide(1, n, H, FR, FR + 4, TB, WA, X, ["D29"]) + s.half_out(1, n, H, RB, RA, GA, X, OPT["o1"])))
            elif c == "g":
                s.add(s.cmb_pre(CT, KB), s.cmb_give(1, CT, LW))
                s.add(s.sync([], [], last[0], extra_need=["cw"], extra_w=["cmb"], extra_r=["cgive"], off_bar=24, off_rd=30))
            elif c == "c":
                X, TB, RB = temps(); s.add(s.cmb_col(1, CT, LW)); FR, l = fq("c", (8, 9))
                s.add(dls(l + [rowget(228, LR, 10)] + s.half_wide(1, 4, 1, FR, FR + 4, TB, WA, X, ["D29"], part=(CT, vNM + 12, 228)) + s.half_out(1, 4, 1, RB, RA, GA, X, OPT["o1"])))

    def build(s):
        s.bstart = {}; s.stamp_at = {0, 4, 8, 15, 16, 18, 24} if OPT["stamps"] else set()
        s.nstamp = 1
        if OPT["stm"] == 1: s.stamp_at = {0}; s.nstamp = 2
        if OPT["stm"] == 2: s.stamp_at = set(range(OPT["pj"], OPT["pj"] + 8))
        if OPT["stm"] == 5: s.stamp_at = {0, 30}
        if OPT["stm"] == 4: s.stamp_at = {0, 22, 28}
        if OPT["stm"] == 3: s.stamp_at = {0, 15, 16, 17, 18, 19, 30}
        s.plan_stage(); s.plan_trans()
        s.start()
        for j in range(30 if OPT["fin"] else 31): s.block(j)
        n0 = len(s.prog)
        s.final() if OPT["fin"] else s.tail()
        for k, m in enumerate([i for i in s.prog[n0:] if ismf(i)]): m.lg = OPT["gt"] if k % OPT["gp_"] == 0 else 0
        ms = [i for i in s.prog if ismf(i)]
        for m in ms[ms.index(s.bstart[15]):ms.index(s.bstart[17]) - 40]: m.lg = OPT["gr"]
        for k, m in enumerate(ms): m.mi = k
        for i, m, off, attr in s.hints: setattr(i, attr, ms[max(0, min(len(ms) - 1, m.mi + off))])
        out = schedule(s.prog, verbose=True, name=s.tag)
        if OPT["verbose"]:
            prev = None
            for j in sorted(s.bstart):
                if prev is not None: print(f"  blk {j-1}: {s.bstart[j].st - prev}", end="")
                prev = s.bstart[j].st
            print(f"\n  start {s.bstart[0].st}  tail from blk30 {out[-1].st - prev}")
        return out

def setup_common():
    t0, t1, w = "s34", "s35", "s3"
    R = Role("AA", "")
    l, m, g, a, b, c = "v16", "v17", "v18", "v19", "v20", "v21"
    o = [raw("s_cmp_lt_u32 s2, 256", w=["scc"]), br("s_cbranch_scc1", "Lgo"), raw("s_endpgm"), label("Lgo")]
    if OPT["stamps"]: o += [raw("s_memtime s[44:45]"), raw("s_memrealtime s[46:47]")]
    if OPT["rb"] != 3:
        o += [S("s_lshr_b32", t0, "s2", OPT["rb"] - 3), S("s_xor_b32", t0, t0, "s2"), S("s_and_b32", t0, t0, 8), S("s_mul_i32", t0, t0, 1 + (1 << (OPT["rb"] - 3))), S("s_xor_b32", "s2", "s2", t0)]
    o += [raw("s_load_dwordx4 s[8:11], s[0:1], 0"), raw("s_load_dwordx4 s[12:15], s[0:1], 16"),
          V("v_lshrrev_b32", "v1", 6, "v0"), V("v_and_b32", l, 63, "v0"), V("v_and_b32", m, 15, "v0"),
          V("v_readfirstlane_b32", w, "v1"), V("v_lshrrev_b32", g, 4, l)]
    if OPT["pf"]:
        o += [raw("s_getpc_b64 s[36:37]", w=["s36", "s37"]), label("Lpf"),
              S("s_lshr_b32", t0, "s2", 4), S("s_lshl_b32", t0, t0, 13), S("s_bitcmp1_b32", "s2", 3), S("s_cselect_b32", t1, "LroleY-Lpf", 0), S("s_add_u32", t0, t0, t1),
              V("v_lshl_add_u32", a, "v0", 5, t0), V("v_min_u32", a, "Lcodeend-Lpf", a), V("v_mov_b32", "v25", "s37"),
              I("v_add_co_u32 v24, vcc, s36, v19", "valu", w=["v24", "vcc"], r=["s36", "v19"]), I("v_addc_co_u32 v25, vcc, 0, v25, vcc", "valu", w=["v25", "vcc"], r=["v25", "vcc"]),
              I("global_load_dword v253, v[24:25], off", "vmem", w=["v253"], r=["v24", "v25"])]
        if OPT["pf2"]:
            o = o[:-1] + [V("v_accvgpr_write_b32", "a0", "v24"), V("v_accvgpr_write_b32", "a1", "v25"),
                  S("s_lshr_b32", t0, "s2", 4), S("s_lshl_b32", t0, t0, 10), S("s_add_u32", t0, t0, t1), V("v_lshl_add_u32", a, "v0", 2, t0), V("v_mov_b32", "v25", "s37"),
                  I("v_add_co_u32 v24, vcc, s36, v19", "valu", w=["v24", "vcc"], r=["s36", "v19"]), I("v_addc_co_u32 v25, vcc, 0, v25, vcc", "valu", w=["v25", "vcc"], r=["v25", "vcc"]), o[-1]]
    o += [V("v_xor_b32", a, g, m), V("v_lshlrev_b32", a, 4, a), V("v_lshl_add_u32", f"v{vDA}", g, 8, a), V("v_xor_b32", f"v{vDB}", 128, f"v{vDA}")]
    if OPT["dlin"]: o += [V("v_lshlrev_b32", f"v{vDA}", 4, l), V("v_lshlrev_b32", f"v{vDB}", 4, l)]
    if OPT["ob"]: o += [V("v_and_b32", a, 31, l), V("v_lshlrev_b32", a, 4, a), V("v_lshrrev_b32", b, 5, l), V("v_lshl_add_u32", "v22", b, 18, a)]
    o += [S("s_lshl_b32", sW4K, w, 12), S("s_mov_b32", sOFF, sW4K), S("s_mov_b32", sOFV, sW4K)]
    if OPT["rot"]:
        o += [S("s_lshr_b32", t0, "s2", 4)] + ([S("s_lshl_b32", t1, "s2", 1), S("s_and_b32", t1, t1, 14), S("s_add_u32", t0, t0, t1)] if OPT["rot"] == 2 else []) + ([S("s_lshl_b32", t0, t0, 1)] if OPT["rot"] == 3 else [])
        o += [S("s_and_b32", t0, t0, 15), S("s_lshl_b32", t0, t0, 14), S("s_add_u32", sOFF, sOFF, t0), S("s_mov_b32", sOFV, sOFF)]
    o += [S("s_mul_i32", "s28", w, 5 * 4096), S("s_add_u32", "s29", "s28", 4 * 4096)]
    if OPT["ab"]: o += [S("s_lshl_b32", "s30", w, 14), S("s_add_u32", "s30", "s30", 20 * 4096), S("s_and_b32", "s31", sW4K, "0x2000"), S("s_lshr_b32", "s31", "s31", 1), S("s_add_u32", "s31", "s31", 36 * 4096)]
    else: o += [S("s_add_u32", "s30", "s28", 18 * 4096), S("s_add_u32", "s31", "s28", 22 * 4096)]
    o += [S("s_bitcmp1_b32", "s2", 3), S("s_cselect_b64", ("s", 24, 2), ("s", 30, 2), ("s", 28, 2)), S("s_cselect_b64", ("s", 26, 2), ("s", 28, 2), ("s", 30, 2))]
    o += [S("s_and_b32", t0, "s2", 7), S("s_lshr_b32", t1, "s2", 4), S("s_lshl_b32", t0, t0, 4), S("s_add_u32", t0, t0, t1),
          S("s_mul_i32", t1, t0, 2 * HEADQ), S("s_lshl_b32", t0, t0, 19), S("s_mov_b32", "s6", 2 * HEADQ), S("s_mov_b32", "s7", "0x00020000")]
    o += [raw("s_waitcnt lgkmcnt(0)", k="salu")]
    if OPT["stamps"] and OPT["stm"] == 1: o += [raw("s_memtime s[48:49]"), raw("s_memrealtime s[50:51]")]
    o += [S("s_add_u32", "s4", "s8", t1), S("s_addc_u32", "s5", "s9", 0),
          S("s_add_u32", "s8", "s10", t0), S("s_addc_u32", "s9", "s11", 0), S("s_mov_b32", "s10", 2 * HEADK), S("s_mov_b32", "s11", "0x00020000")]
    srd2 = [S("s_add_u32", "s16", "s14", t1), S("s_addc_u32", "s17", "s15", 0), S("s_mov_b32", "s18", 2 * HEADQ), S("s_mov_b32", "s19", "0x00020000"),
          S("s_add_u32", "s12", "s12", t0), S("s_addc_u32", "s13", "s13", 0), S("s_mov_b32", "s14", 2 * HEADK), S("s_mov_b32", "s15", "0x00020000")]
    vl = [bload(("v", 24 + 4 * k, 4), "v22", sV, 0, 512 * k, mod=" nt") for k in range(2)] if OPT["ob"] else []
    parts = [R.qdma(0), R.dma("K", 0), R.dma("K", 1)] if OPT["so"] else [R.dma("K", 0), R.dma("K", 1), R.qdma(0)]
    k1late = []
    if OPT["so"] == 3: k1late = parts.pop(); parts = parts[::-1]
    if OPT["so"] == 4: k1late = parts.pop()
    parts.insert(OPT["bp"], srd2 + vl)
    for x in parts: o += x
    if OPT["stamps"]: o += [S("s_lshl_b32", "s100", "s2", 2), S("s_add_u32", "s100", "s100", w), S("s_mov_b32", "s101", "s2")] + ([S("s_mov_b32", "s95", 0)] if OPT["stm"] == 4 else [])
    if OPT["wu"]: o += [S("s_mov_b64", ("s", 96, 2), ("s", 8, 2)), S("s_mov_b64", ("s", 98, 2), ("s", 12, 2)), V("v_mov_b32", f"v{vQA+66}", 0)]
    o += [S("s_add_u32", "s26", "s26", HEADQ), S("s_add_u32", "s27", "s27", HEADQ)]
    o += [S("s_add_u32", "s33", sW4K, X0), V("v_and_b32", a, 1, g), V("v_lshlrev_b32", a, 6, a), V("v_lshrrev_b32", b, 1, g), V("v_lshl_add_u32", a, b, 4, a), V("v_lshl_add_u32", f"v{vG}", m, 8, a)]
    o += [V("v_and_b32", a, 3, m), V("v_and_b32", b, 4, m), V("v_lshl_add_u32", a, b, 1, a), V("v_lshlrev_b32", a, 4, a), V("v_xor_b32", a, a, f"v{vG}")]
    for ks in range(4):
        o += [V("v_xor_b32", b, KOFF(ks), a), V("v_add_u32", f"v{vKA+ks}", KB, b), V("v_add_u32", f"v{R.TA+ks}", "s33", b), V("v_add_u32", f"v{R.TA+4+ks}", KB + 49152 - X0, f"v{R.TA+ks}")]
    if OPT["qd"]: o += [V("v_mov_b32", f"v{vG}", f"v{R.TA}")]
    o += [V("v_lshrrev_b32", a, 2, l), V("v_and_b32", b, 3, a), V("v_and_b32", c, 4, a), V("v_lshl_add_u32", b, c, 1, b), V("v_and_b32", c, 2, l), V("v_lshl_add_u32", b, c, 1, b),
          V("v_lshlrev_b32", b, 4, b), V("v_and_b32", c, 1, l), V("v_lshl_add_u32", b, c, 3, b), V("v_lshl_add_u32", b, a, 8, b), V("v_add_u32", f"v{vVA}", VB, b)]
    o += [V("v_xor_b32", f"v{vVA+dt}", (dt & 3) * 16 + (dt >> 2) * 128, f"v{vVA}") for dt in range(1, 8)]
    o += [S("s_lshl_b32", t0, w, 8), S("s_add_u32", t0, t0, FLAG), V("v_lshl_add_u32", f"v{vFA}", l, 2, t0), V("v_mov_b32", f"v{vFE}", 0)]
    fi = ds_write("ds_write_b32", f"v{vFA}", f"v{vFE}", 0); fi.wt = {"cw"}; o.append(fi)
    o += [V("v_accvgpr_write_b32", f"a{aL+r}", 0) for r in range(12)]
    for msk, d in ((OPT["me"], a), (OPT["mo"], b), (OPT["mi_"], c)): o += [V("v_mov_b32", d, msk), V("v_bfe_i32", d, d, m, 1)]
    o += [V("v_and_b32", a, "0x3f803f80", a), V("v_and_b32", b, "0x3f803f80", b), V("v_and_b32", c, "0xaaaaaaaa", c), V("v_or_b32", f"v{vIDX}", "0x44444444", c)]
    o += [V("v_accvgpr_write_b32", f"a{aONE+i}", a) for i in range(4)] + [V("v_accvgpr_write_b32", f"a{aONE+4+i}", b) for i in range(4)]
    o += [S("s_mov_b32", sC, hex(CSCALE)), S("s_mov_b32", sC2, hex(CSCALE)), S("s_mov_b32", sMASK, "0xffff0000"), S("s_mov_b32", sTHR, hex(OPT["thr"])),
          S("s_mov_b64", sBAD[0], 0), S("s_mov_b64", sBAD[1], 0)]
    o += [S("s_and_b32", sD0, w, 1), S("s_lshl_b32", sFK, sD0, 13), S("s_lshl_b32", sD0, sD0, 7), S("s_or_b32", sFV, sFK, sD0)]
    if OPT["ob"]:
        x = [f"v{24+k}" for k in range(8)]; y = [f"v{32+k}" for k in range(8)]
        bo = [wait(need=x)] + [V("v_max_f32_e64", y[k], f"|{x[k]}|", f"|{x[4+k]}|") for k in range(4)]
        bo += [V("v_lshlrev_b32", x[k], 16, x[k]) for k in range(8)] + [V("v_max_f32_e64", y[4+k], f"|{x[k]}|", f"|{x[4+k]}|") for k in range(4)]
        bo += [swap("v_permlane16_swap_b32", y[k], y[4+k]) for k in range(4)] + [V("v_max_f32", y[k], y[k], y[4+k]) for k in range(4)]
        bo += [V("v_min3_f32", y[0], y[0], y[1], y[2]), V("v_min_f32", y[0], y[0], y[3])]
        bo += [V("v_min_f32_dpp", y[0], y[0], y[0], mod=f" row_ror:{k} row_mask:0xf bank_mask:0xf") for k in (8, 4, 2, 1)]
        bo += [V("v_and_b32", y[0], "0x7f800000", y[0]), V("v_min_f32", y[0], f32(2.0 ** 100), y[0]), V("v_mul_f32", y[0], f32(1.5 * 2.0 ** (OPT["kap"] - OPT["dlt"])), y[0]), nop(1)]
        bo += [V("v_readlane_b32", "s40", y[0], 0), V("v_readlane_b32", "s36", y[0], 16), V("v_readlane_b32", "s41", y[0], 32), V("v_readlane_b32", "s37", y[0], 48), nop(2),
               S("s_min_u32", "s40", "s40", "s36"), S("s_min_u32", "s41", "s41", "s37")]
    else: bo = []
    o += k1late
    if OPT["ep"]: bo += [V("v_accvgpr_write_b32", f"a{28+r}", "s40") for r in range(4)]
    if OPT["bq"]: o += bo
    if not OPT["so"] or OPT["sd"]: o += R.qdma(1)
    if not OPT["bq"]: o += bo
    o += [S("s_bitcmp1_b32", "s2", 3), br("s_cbranch_scc1", "LroleY")]
    return o

def setup_role(R, k):
    o = [S("s_xor_b32", sD1, sD0, 128)]
    if R.half[0]:
        o += [V("v_xor_b32", f"v{vKA+ks}", sFK, f"v{vKA+ks}") for ks in range(4)] + [V("v_xor_b32", f"v{vVA+dt}", sFV, f"v{vVA+dt}") for dt in range(8)]
    return o

def finish(R, k):
    o = []
    if OPT["stamps"]:
        n = R.nstamp
        o += [raw(f"s_memtime s[{44+4*n}:{45+4*n}]"), raw(f"s_memrealtime s[{46+4*n}:{47+4*n}]"), raw("s_waitcnt vmcnt(0) lgkmcnt(0)")]; n += 1
        o += [raw(f"s_memtime s[{44+4*n}:{45+4*n}]"), raw(f"s_memrealtime s[{46+4*n}:{47+4*n}]"), raw("s_waitcnt lgkmcnt(0)")]; n += 1
        assert n <= 13
        if OPT["pi"] >= 0:
            i, j, kk = OPT["pi"], OPT["pj"], OPT["pk_"]
            if not OPT["pall"]: o += [raw("s_and_b32 s101, s101, 0xf7"), raw("s_cmp_lg_u32 s101, 100"), raw(f"s_cbranch_scc1 Lfin{k}")]
            o += [raw(f"s_sub_u32 s36, s{44+4*j+2*kk}, s{44+4*i+2*kk}"), raw("s_mul_i32 s36, s36, 10") if kk else raw("s_lshr_b32 s36, s36, 1"),
                  raw("s_min_u32 s36, s36, 200000"), raw("s_memrealtime s[38:39]"), raw("s_waitcnt lgkmcnt(0)")] + ([raw(f"s_mov_b32 s36, {OPT['pfix']}"), raw("s_mov_b32 s38, s46")] if OPT["pfix"] else []) + [label(f"Lspin{k}"), raw("s_memrealtime s[40:41]"), raw("s_waitcnt lgkmcnt(0)"),
                  raw("s_sub_u32 s37, s40, s38"), raw("s_cmp_lt_u32 s37, s36"), raw(f"s_cbranch_scc1 Lspin{k}")]
        else:
            o += [raw("; STAMPS"), raw("s_load_dwordx2 s[40:41], s[0:1], 40"), raw("v_mov_b32 v16, 0")]
            for x in range(n): o += [raw(f"v_writelane_b32 v16, s{44+4*x}, {2*x}"), raw(f"v_writelane_b32 v16, s{46+4*x}, {2*x+1}")]
            o += [raw(f"v_writelane_b32 v16, {n}, 63"), raw("v_writelane_b32 v16, s95, 62"), raw("s_lshl_b32 s100, s100, 8"), raw("v_mbcnt_lo_u32_b32 v17, -1, 0"), raw("v_mbcnt_hi_u32_b32 v17, -1, v17"), raw("v_lshlrev_b32 v17, 2, v17"),
                  raw("s_waitcnt lgkmcnt(0)"), raw("s_mov_b32 s42, 0x100000"), raw("s_mov_b32 s43, 0x00020000"), raw("buffer_store_dword v16, v17, s[40:43], s100 offen"), raw("s_waitcnt vmcnt(0)")]
    o += [label(f"Lfin{k}")]
    if OPT["slow"]: o += [raw("s_or_b64 s[36:37], s[30:31], s[32:33]"), raw("s_cbranch_scc1 Lslow")]
    o += [raw("s_endpgm")] + R.stubs
    return o

MACROS = """.macro qa d,a,b,c
v_mfma_f32_16x16x32_bf16 v[\\d:\\d+3], a[\\a:\\a+3], v[\\b:\\b+3], v[\\c:\\c+3]
.endm
.macro qb d,a,b,c
v_mfma_f32_16x16x32_bf16 v[\\d:\\d+3], a[\\a:\\a+3], a[\\b:\\b+3], v[\\c:\\c+3]
.endm
.macro pv d,a,b
v_mfma_f32_16x16x32_bf16 a[\\d:\\d+3], a[\\a:\\a+3], v[\\b:\\b+3], a[\\d:\\d+3]
.endm
.macro pw d,a,b
v_mfma_f32_16x16x32_bf16 v[\\d:\\d+3], a[\\a:\\a+3], v[\\b:\\b+3], v[\\d:\\d+3]
.endm
.macro pa d,a,b
v_mfma_f32_16x16x32_bf16 a[\\d:\\d+3], v[\\a:\\a+3], a[\\b:\\b+3], a[\\d:\\d+3]
.endm
.macro pb d,a,b
v_mfma_f32_16x16x32_bf16 v[\\d:\\d+3], v[\\a:\\a+3], a[\\b:\\b+3], v[\\d:\\d+3]
.endm
.macro ex r
v_exp_f32 v\\r, v\\r
.endm
.macro cv d,a,b
v_cvt_pk_bf16_f32 v\\d, v\\a, v\\b
.endm
.macro lk d,a,o
ds_read_b128 a[\\d:\\d+3], v\\a offset:\\o
.endm
.macro lv d,a,o
ds_read_b64_tr_b16 a[\\d:\\d+1], v\\a offset:\\o
.endm
"""
def compact(txt):
    M = "    v_mfma_f32_16x16x32_bf16 "
    txt = re.sub(M + r"v\[(\d+):\d+\], a\[(\d+):\d+\], v\[(\d+):\d+\], v\[\1:\d+\]", r"pw \1,\2,\3", txt)
    txt = re.sub(M + r"v\[(\d+):\d+\], a\[(\d+):\d+\], v\[(\d+):\d+\], v\[(\d+):\d+\]", r"qa \1,\2,\3,\4", txt)
    txt = re.sub(M + r"v\[(\d+):\d+\], a\[(\d+):\d+\], a\[(\d+):\d+\], v\[(\d+):\d+\]", r"qb \1,\2,\3,\4", txt)
    txt = re.sub(M + r"a\[(\d+):\d+\], a\[(\d+):\d+\], v\[(\d+):\d+\], a\[\1:\d+\]", r"pv \1,\2,\3", txt)
    txt = re.sub(M + r"a\[(\d+):\d+\], v\[(\d+):\d+\], a\[(\d+):\d+\], a\[\1:\d+\]", r"pa \1,\2,\3", txt)
    txt = re.sub(M + r"v\[(\d+):\d+\], v\[(\d+):\d+\], a\[(\d+):\d+\], v\[\1:\d+\]", r"pb \1,\2,\3", txt)
    txt = re.sub(r"    v_exp_f32 v(\d+), v\1\n", r"ex \1\n", txt)
    txt = re.sub(r"    v_cvt_pk_bf16_f32 v(\d+), v(\d+), v(\d+)", r"cv \1,\2,\3", txt)
    txt = re.sub(r"    ds_read_b128 a\[(\d+):\d+\], v(\d+) offset:(\d+)", r"lk \1,\2,\3", txt)
    txt = re.sub(r"    ds_read_b64_tr_b16 a\[(\d+):\d+\], v(\d+) offset:(\d+)", r"lv \1,\2,\3", txt)
    return txt.replace("\n    ", "\n")

def sizes(l):
    import subprocess, tempfile, os
    d = tempfile.mkdtemp()
    t = "".join(f"Z{k}:\n" + re.sub(r"(s_c?branch\w*) \w+", r"\1 Z0", re.sub(r"(?m)^L\w+:\n", "", i.text())) for k, i in enumerate(l)) + f"Z{len(l)}:\ns_endpgm\n"
    open(d + "/a.s", "w").write(t)
    subprocess.run(["clang", "-x", "assembler", "-target", "amdgcn-amd-amdhsa", "-mcpu=gfx950", "-c", d + "/a.s", "-o", d + "/a.o"], check=True)
    out = subprocess.run(["llvm-objdump", "-t", d + "/a.o"], capture_output=True, text=True).stdout
    ad = {x.split()[-1]: int(x.split()[0], 16) for x in out.splitlines() if re.search(r" Z\d+$", x)}
    return [ad[f"Z{k+1}"] - ad[f"Z{k}"] for k in range(len(l))]
def warmup(l, tag, dense):
    def entry(r):
        o = [raw("s_mov_b64 vcc, -1")]
        for w in range(3): o += [raw(f"s_cmp_eq_u32 {sW4K}, {4096*w}"), raw(f"s_cbranch_scc1 Lw{tag}{r}_{w}")]
        return o + [raw(f"s_branch Lw{tag}{r}_3"), label(f"Lwr{tag}{r}"), raw("s_mov_b64 vcc, 0")]
    l = entry(0) + l
    sz = sizes(l); esz = sum(sizes(entry(1))); total = sum(sz)
    idx = {id(x): k for k, x in enumerate(l)}
    isd = [False] * len(l)
    for a, b in dense:
        for k in range(idx[id(a)] if a is not None else 0, idx[id(b)] if b is not None else len(l)): isd[k] = True
    ends = [e * 4096 + 1024 for e in (OPT["wu1"], OPT["wu2"]) if e]
    out = []; pos = 0; win = False; pads = [[]]; nxt = OPT["wg"] if isd[0] else 4096
    for k, (i, z) in enumerate(zip(l, sz)):
        prev = l[k - 1] if k else None
        free = prev is not None and ismf(prev) and i.k not in SCAL and not i.nop
        if isd[k]: nxt = min(nxt, (pos // OPT["wg"] + 1) * OPT["wg"])
        if pos >= nxt and not win and (free or pos >= nxt + 40) and sum(sz[k:k + 40]) >= 128:
            p = raw(""); pads[-1].append(p); out.append(p); pos += 4
            nxt = (pos // 4096 + 1) * 4096
        elif ends and pos >= ends[0] and not win and free:
            out += entry(len(pads)); pos += esz; pads.append([]); ends.pop(0)
        if i.t.startswith("v_cmp") and "vcc" in i.w: win = True
        if i.cmt == "check": win = False
        out.append(i); pos += z
    for r, pl in enumerate(pads):
        assert len(pl) >= 4, (r, len(pl))
        for k, p in enumerate(pl):
            p.t = f"\nLw{tag}{r}_{k}:\n    s_cbranch_vccnz " + (f"Lw{tag}{r}_{k+4}" if k + 4 < len(pl) else f"Lwr{tag}{r}")
    if OPT["verbose"]: print("  pads per round:", [len(x) for x in pads])
    return out
def build():
    STC[0] = OPT["stc"]; DWP[0] = OPT["dwp"]; IMPR[0] = OPT["im"]; BW[0] = OPT["bw"]; NOPW[0] = OPT["nw"]; TA_LIM[0] = OPT["tal"]; VM_LAT[0] = OPT["vml"]
    if OPT["dw"]:
        import bisect
        sv = _st[0]; RX = Role("AB", "X"); RX.build(); RY = Role("BA", "Y"); RY.build(); _st[0] = sv
        ty = [i.st - RY.bstart[0].st for i in RY.prog if ismf(i)]
        for j in range(3, 30): LEAD[j] = bisect.bisect_left(ty, RX.bstart[j].st - RX.bstart[0].st) - RY.bstart[j].mi
        if OPT["verbose"]: print("  lead:", LEAD)
    com = setup_common()
    body = ""
    txt = []
    for k, types in enumerate((("AB", "BA") if OPT["ab"] else ("AA", "AA"))):
        R = Role(types, "XY"[k])
        main = R.build()
        su = setup_role(R, k)
        for i in com + su: i.st = -1000
        tr = insert_waits(com + su + main)
        while fix_hazards(tr, verbose=OPT["verbose"] > 1): pass
        e = verify2(tr); assert e == 0, e
        nc = len(com)
        if OPT["loopt"]:
            tr = [i for i in tr if i.cmt != "check"]; R.stubs = []
            i0 = tr.index(R.bstart[23]); i1 = tr.index(R.bstart[27])
            tr = tr[:i0] + [raw(f"s_mov_b32 s42, {OPT['loopt']}"), label(f"Llt{k}")] + tr[i0:i1] + [raw("s_sub_u32 s20, s20, 65536"), raw("s_sub_u32 s43, s43, 65536"), raw("s_sub_u32 s42, s42, 1"), raw("s_cmp_lg_u32 s42, 0"), raw(f"s_cbranch_scc1 Llt{k}")] + tr[i1:]
        if OPT["nost"]: tr = [i for i in tr if not (i.k == "vmem" and "store" in i.t and i.st > 75000)]
        if OPT["nodsw"]: tr = [i for i in tr if not (i.k == "dsw" and "b64" in i.t and i.st > 75000)]
        if OPT["nowait"]: tr = [i for i in tr if not (i.k == "wait" and i.st > 20000)]
        if OPT["nosync"]: tr = [i for i in tr if not ("v255" in i.t and i.st > 20000)]
        if OPT["nodma"]: tr = [i for i in tr if not (i.k == "vmem" and i.ring and i.ring[1] >= 4)]
        if OPT["samekv"]:
            for i in tr:
                if i.t == "s_add_u32 s20, s20, 16384": i.t = "s_xor_b32 s20, s20, 16384"
        if OPT["nosmf"]: tr = [i for i in tr if i.tag != "smf"]
        if OPT["nocvt"]: tr = [i for i in tr if not (i.t.startswith("v_cvt_pk") and 136 <= int(i.t.split()[1][1:-1]) < 216 and i.st > 8000)]
        if OPT["nobar"]: tr = [i for i in tr if i.k != "bar"]
        if OPT["noxor"]: tr = [i for i in tr if "0x2000, " not in i.t]
        if OPT["nolds"]: tr = [i for i in tr if not (i.k == "ds" and i.ring and i.ring[1] >= 2)]
        if OPT["noexp"]: tr = [i for i in tr if "v_exp" not in i.t]
        assert all(a is b for a, b in zip(tr[:nc], com))
        code = tr[nc:]
        if OPT["wu"]: code = warmup(code, "XY"[k], [x for b_, x in enumerate([(R.bstart[30], None), (None, R.bstart[0]), (R.bstart[15], R.bstart[17])]) if OPT["wd"] >> b_ & 1])
        txt.append("".join(i.text() for i in code + finish(R, k)))
        if OPT["verbose"]: print("  nops:", sum(i.nop for i in tr), "waits:", sum(i.k == "wait" for i in tr))
    slow = ""
    if OPT["slow"]:
        import slowpath4 as slowpath
        slow = slowpath.text(sys.modules[__name__])
    al = ".p2align 12" if OPT["wu"] or OPT["al"] else ".p2align 6"
    body = "".join(i.text() for i in com) + ("    s_branch LroleX\n" + al + "\nLroleX:\n" if OPT["wu"] or OPT["al"] else "") + txt[0] + slow + al + "\nLroleY:\n" + txt[1] + "Lcodeend:\n    s_endpgm\n" + (".fill 4096, 4, 0xbf810000\n" if OPT["spf"] else "")
    return compact(body) if OPT["compact"] else body

HEAD = f"""; softmax(Q K^T / sqrt(128)) V, B8 H32 Sq608 Sk1024 D128, bf16 in / bf16 out. Hand-designed; the instruction order is emitted by my own list-scheduling script.
; One workgroup (4 waves, 512 registers each) per CU. Workgroups 16i+x and 16i+8+x share two heads (one after the other), each taking about half of the
; ring (LDS-DMA); waves synchronise through epoch flags in LDS. S^T = K Q'^T with Q' = bf16(Q * log2(e)/sqrt(128)), P = exp2(S - m), O += P V, l += P 1.
; Softmax guard: m = (true maximum of the row's first 16 keys) + 10, so m never exceeds the row's true maximum by more than 10 (nothing extra underflows).
; Every row sum l is checked at run time (l <= 2^40, not NaN); a wave that fails the check recomputes its rows at Lslow with the true row maximum.
; The fp32 output accumulators start from a small constant B (tied to the smallest column scale of V) that is subtracted again in the epilogue.
; The Lw* branches are never taken in normal flow (vcc = 0); twice per launch a wave sets vcc and hops through them to pull the first line of each code page into the I-cache.
; @launch grid=(256,1,1) block=(256,1,1) lds=163840
.amdgcn_target "amdgcn-amd-amdhsa--gfx950"
{MACROS}.text
.globl {NAME}_kernel
.p2align 8
.type {NAME}_kernel,@function
{NAME}_kernel:
"""
TAIL = f""".section .rodata,"a"
.p2align 6
.amdhsa_kernel {NAME}_kernel
  .amdhsa_next_free_vgpr 512
  .amdhsa_next_free_sgpr 102
  .amdhsa_accum_offset 256
  .amdhsa_group_segment_fixed_size 0
  .amdhsa_kernarg_size 48
  .amdhsa_user_sgpr_count 2
  .amdhsa_user_sgpr_kernarg_segment_ptr 1
  .amdhsa_system_sgpr_workgroup_id_x 1
  .amdhsa_float_denorm_mode_32 3
.end_amdhsa_kernel
"""
if __name__ == "__main__":
    open(sys.argv[1], "w").write(HEAD + build() + TAIL)
```

```python
import sys, struct, math, re
from asmir import *
from sched import *

NAME = "standalone__mha_softmax__near_ridge"
OPT = dict(eu=12, eo=0, cm=0, we=0, leg=0, lfix=0, me=0x3333, mo=0xcccc, mi_=0xaaaa, dwp=0, dlin=0, qd=0, qs=10, q0=1, qlin=0, sgx=4, dsp=15, dw=10, dx=-14, dy=0, dc=85, al=0, wu=1, wu1=14, wu2=0, wd=0, wg=512, fin=1, pf2=0, rot=0, sp=0, es=1, dfr=0, po=0, im=7, bw=10, stc=64, gt=0, gp_=1, gr=0, nw=40, hl=30, df0=17, df1=2, tf=12, sm=0, to=0, pfix=0, eh=1, vb=0, c4=0, swp=1, gl=1, tl=0, h0=115, h1=30, h2=195, h3=30, hd=260, nost=0, nodsw=0, ep=0, epo=0, l0=40, l1=110, l2=90, l3=40, sv=0, sd=0, asap=1, kq=4, rb=3, kalt=1, sg0=1, sg1=140, vml=3500, tal=0, bp=0, bq=1, ob=1, kap=7, obias=0, dlt=10, olast=0, o2=0, one0=0, cz=0, nosnake=0, so=0, tch=0, u0=66, u1=19, u2=19, ov=1, ddl=130, cd=1, loopt=0, nowait=0, nosync=0, spf=0, spd=6144, sdl=24, tdl=16, fl=1, flr=20, stm=0, samekv=0, nosmf=0, nocvt=0, nodma=0, nobar=0, noxor=0, nolds=0, noexp=0, xd=0, thr=0x53800000, lagc=50, lagmax=240, stamps=0, kv=1, kvy=1, q=1, o0=4, o1=4, ab=1, pf=1, e0=7, pk=1, pi=-1, pj=0, pk_=1, pall=0, verbose=0, compact=1, slow=1)
MODS = ["", " nt", " sc1", " sc1 nt", " sc0 sc1", " sc0 sc1 nt", " sc0", " sc0 nt"]
for a in sys.argv[2:]:
    k, v = a.split("="); assert k in OPT, k; OPT[k] = int(v, 0)
vKA = 0; vVA = 4; vDA, vDB = 12, 13; vIDX = 14; vG = 15
vS = 16; vNM = 36; vQA = 56; vP = 136; vQB = 216; vT = 252
aO = 0; aL = 160; aONE = 172; aV = 180; aK = 196; aQB = 212
sQ, sK, sV, sO = 4, 8, 12, 16
sOFF = "s20"; sW4K = "s21"; sC = "s22"; sC2 = "s23"
sROW = [["s24", "s25"], ["s26", "s27"]]
sMASK = "s28"; sTHR = "s29"; sBAD = [("s", 30, 2), ("s", 32, 2)]; sFK = "s34"; sFV = "s35"; sD0 = "s3"; sD1 = "s2"
sOFV = "s94" if OPT["rot"] else "s43"; sB = ["s40", "s41"]
sTMP = [f"s{i}" for i in range(36, 40)]
HEADQ = 608 * 256; HEADK = 1024 * 256
CSCALE = struct.unpack("<I", struct.pack("<f", math.log2(math.e) / math.sqrt(128.0)))[0]
X1 = 0; X0 = 16384; KB = 32768; VB = 98304; FLAG = 1024
vFA, vFE = 254, 255
_st = [0]
def stmp():
    _st[0] = (_st[0] + 1) % len(sTMP); return sTMP[_st[0]]
def SS(op, d, *src):
    i = S(op, d, *src); i.w.discard("scc"); return i

def Sx(n): return ("v", vS + 4 * n, 4)
def NM(n): return ("v", vNM + 4 * n, 4)
def Q(p, n, ks):
    f = 4 * n + ks
    if p == 0: return ("v", vQA + 4 * f, 4)
    return ("a", aQB + 4 * f, 4) if f < 11 else ("v", vQB + 4 * (f - 11), 4)
def P(par, n, ks): return ("v", vP + 40 * par + 8 * n + 4 * ks, 4)
def O(n, dt): return ("a", aO + 32 * n + 4 * dt, 4)
def OP(p, n, dt):
    if p == 1 and n < 2 and OPT["ov"]: return ("v", vQA + 32 * n + 4 * dt, 4)
    return O(n, dt)
def mul2(d, a, m):
    if m[0] == "s": l = [V("v_mul_f32", f"v{d+k}", m, f"v{a+k}") for k in range(2)]; f = V("v_pk_mul_f32", ("v", d, 2), ("v", a, 2), ("s", 22, 2))
    else:
        r = int(m[1:]); l = [V("v_mul_f32", f"v{d+k}", f"v{a+k}", m) for k in range(2)]
        f = V("v_pk_mul_f32", ("v", d, 2), ("v", a, 2), ("v", r & ~1, 2), mod=" op_sel:[0,1] op_sel_hi:[1,1]" if r & 1 else " op_sel_hi:[1,0]")
        f.r.discard(f"v{r^1}")
    if OPT["pk"]: l[0].fuse = l[1].fuse = f
    return l
def f32(x): return hex(struct.unpack("<I", struct.pack("<f", float(x)))[0])
def fmap(d, a, m, c):
    l = [V("v_fma_f32", f"v{d+k}", f"v{a+k}", f"v{m+k}", f"v{c+k}") for k in range(2)]
    if OPT["pk"]: l[0].fuse = l[1].fuse = V("v_pk_fma_f32", ("v", d, 2), ("v", a, 2), ("v", m, 2), ("v", c, 2))
    return l
def colput(LW, slot, a, b, gate=()):
    i = I(f"ds_write2_b32 v{LW}, v{a}, v{b} offset0:{16*slot} offset1:{16*slot+16}", "dsw", r=[f"v{LW}", f"v{a}", f"v{b}"])
    i.xw = {f"Fq{slot}", f"Fq{slot+1}"}; i.xr = set(gate); return i
def rowget(d, LR, slot):
    i = ds_read("ds_read_b128", ("v", d, 4), f"v{LR}", 64 * slot); i.xr = {f"Fq{slot}"}; return i
def KOFF(ks): return (ks & 1) * 32 + (ks >> 1) * 128
def L(n): return ("a", aL + 4 * (n // 2), 4)
def Lr(n): return aL + 4 * (n // 2) + 2 * (n % 2)
def ONE(n): return ("a", aONE + 4 * (n % 2), 4)

LEAD = {}
class Role:
    def __init__(s, types, tag):
        s.half = [t == "B" for t in types]; s.tag = tag
        s.kst = [[s.half[0], 0] for _ in range(4)]; s.vst = [[s.half[0], 0] for _ in range(8)]
        s.prog = []; s.hints = []; s.nstamp = 0; s.epoch = 0; s.stubs = []
    def add(s, *l):
        for x in l:
            if isinstance(x, list): s.prog += x
            else: s.prog.append(x)
    def hint(s, i, m, off, attr="nb"): s.hints.append((i, m, off, attr)); return i
    def addr(s, st, reg, half, h, sflip):
        o = []
        if st[0] != half:
            if st[1]: o.append(V("v_xor_b32", reg, "0x2000", reg)); st[1] = 0
            o.append(V("v_xor_b32", reg, sflip, reg)); st[0] = half
        if not half: return o, h * 8192
        if st[1] != h: o.append(V("v_xor_b32", reg, "0x2000", reg)); st[1] = h
        return o, 0
    def kread(s, dst, b, t, ks):
        o, off = s.addr(s.kst[ks], f"v{vKA+ks}", s.half[b // 16], t >> 1, sFK)
        i = ds_read("ds_read_b128", dst, f"v{vKA+ks}", (b % 4) * 16384 + off + (t & 1) * 4096)
        i.ring = ("K", b); i.xr = {f"cK{b}", f"oK{b}"}; i.wt = {f"rK{b}"}
        return o + [i]
    def vread(s, dst, b, dt, ks):
        o, off = s.addr(s.vst[dt], f"v{vVA+dt}", s.half[b // 16], ks, sFV)
        for u in range(2):
            i = ds_read("ds_read_b64_tr_b16", (dst[0], dst[1] + 2 * u, 2), f"v{vVA+dt}", (b % 4) * 16384 + off + u * 4096)
            i.ring = ("V", b); i.xr = {f"cV{b}", f"oV{b}"}; i.wt = {f"rV{b}"}
            o.append(i)
        return o
    def vks(s, b, dt, pref):
        if s.half[b // 16] and s.vst[dt][0]: return [s.vst[dt][1], s.vst[dt][1] ^ 1]
        return pref
    def dma(s, kind, b, gate=None):
        o = []
        so = sOFF if kind == "K" else sOFV
        gl = OPT["gl"] and b >= 4; gp = 96 if kind == "K" else 98
        srd = sK if kind == "K" else sV
        if OPT["rot"]:
            if b > 0: o += [SS("s_add_u32", so, so, 16384), SS("s_bitset1_b32" if b >= 16 else "s_bitset0_b32", so, 18)] + ([SS("s_bitset0_b32", so, 19)] if b > 16 else [])
            if gl: o.append(raw(f"s_add_u32 s{gp}, s{srd}, {so}\n    s_addc_u32 s{gp+1}, s{srd+1}, 0", w=[f"s{gp}"], r=[so])); o[-1].cmt = "two"
        elif gl:
            if b == 4:
                o.append(raw(f"s_add_u32 s{gp}, s{srd}, {so}\n    s_addc_u32 s{gp+1}, s{srd+1}, 0", w=[f"s{gp}"], r=[so])); o[-1].cmt = "two"
            o.append(raw(f"s_add_u32 s{gp}, s{gp}, 16384\n    s_addc_u32 s{gp+1}, s{gp+1}, 0", w=[f"s{gp}"], r=[f"s{gp}"])); o[-1].cmt = "two"
        elif b > 0: o.append(SS("s_add_u32", so, so, 16384))
        o.append(SS("s_add_u32", "m0", sW4K, (b % 4) * 16384 + (VB if kind == "V" else KB)))
        for k in range(4):
            i = dma(f"v{vDA if k % 2 == 0 else vDB}", sK if kind == "K" else sV, so, k * 1024, mod=MODS[OPT["kvy" if s.tag == "Y" and b >= 3 else "kv"]])
            if gl:
                va = f"v{vDA if k % 2 == 0 else vDB}"
                i = I(f"global_load_lds_dwordx4 {va}, s[{gp}:{gp+1}] offset:{k*1024}{MODS[OPT['kv']]}", "vmem", r=[va, f"s{gp}", "m0"])
            i.ring = (kind, b); i.wt = {f"d{kind}{b}"}; i.xw = {f"i{kind}{b}"}
            if gate: i.xr = {gate}
            o.append(i)
        return o
    def barrier(s, close, opn, gate=None, extra_need=(), extra_w=(), extra_r=()):
        w = wait(need=[f"r{x}" for x in close] + [f"d{x}" for x in opn] + list(extra_need))
        w.xw = {f"c{x}" for x in close} | {"barseq"}; w.xr = {f"i{x}" for x in opn} | set(extra_r)
        b = bar(); b.xr = {"barseq"}; b.xw = {f"o{x}" for x in opn} | ({gate} if gate else set()) | set(extra_w)
        return [w, b]
    def sync(s, close, opn, m, gate=None, extra_need=(), extra_w=(), extra_r=(), off_bar=0, off_rd=0):
        if not OPT["fl"]:
            bl = s.barrier(close, opn, gate, extra_need, extra_w, extra_r); s.hint(bl[0], m, off_bar); return bl
        s.epoch += 1; e = s.epoch; tag = f"{s.tag}{e}"
        w = wait(need=[f"d{x}" for x in opn]); w.xr = {f"i{x}" for x in opn}; w.xw = {"flseq"}; s.hint(w, m, 0)
        a = ds_write("ds_write_b32", f"v{vFA}", f"v{vFE}", 0); a.xr = {"flseq"} | set(extra_r); a.xw = {f"c{x}" for x in close}; a.cmt = "arrive"
        r = ds_read("ds_read_b32", f"v{vFE}", f"v{vDA}", FLAG); s.hint(r, m, off_rd)
        c = V("v_cmp_gt_u32", "vcc", e, f"v{vFE}")
        b = I(f"s_cbranch_vccnz Ls{tag}\nLr{tag}:", "br", r=["vcc", f"v{vDA}"], w=["vcc", f"v{vFE}"]); b.cmt = "check"
        b.xw = {f"o{x}" for x in opn} | ({gate} if gate else set()) | set(extra_w)
        s.stubs += [label(f"Ls{tag}"), raw(f"ds_read_b32 v{vFE}, v{vDA} offset:{FLAG}"), raw("s_waitcnt lgkmcnt(0)"), raw(f"v_cmp_gt_u32 vcc, {e}, v{vFE}"), raw("s_nop 0"),
                    raw(f"s_cbranch_vccnz Ls{tag}")] + ([raw("s_add_u32 s95, s95, 1")] if OPT["stm"] == 4 else []) + [raw(f"s_branch Lr{tag}")]
        if OPT["cd"]: s.hint(b, m, off_rd + 8 + OPT["cd"])
        mv = V("v_mov_b32", f"v{vFE}", e)
        for i in (w, a): s.hint(i, m, max(0, off_rd - 10), "dlm")
        return ([w] if opn else []) + [mv, a, r, c, b]
    def chain(s, p, n, sq, kf, czero):
        order = [0, 1, 2, 3] if n % 2 == 0 or OPT["nosnake"] else [3, 2, 1, 0]
        return [mfma(sq, kf(ks), Q(p, n, ks), sq if k else ("0" if czero or OPT["cz"] else NM(n))) for k, ks in enumerate(order)]
    def rowmax(s, n, sq, a, b):
        x = [f"v{sq[1]+r}" for r in range(4)]
        l = [V("v_max3_f32", a, x[0], x[1], x[2]), V("v_max_f32", a, a, x[3])] + ([V("v_add_f32", a, hex(struct.unpack("<I", struct.pack("<f", OPT["dlt"] + OPT["dfr"] / 10.0))[0]), a)] if OPT["dlt"] else []) + [V("v_mov_b32", b, a),
             swap("v_permlane16_swap_b32", a, b), V("v_max_f32", a, a, b), V("v_mov_b32", b, a), swap("v_permlane32_swap_b32", a, b)]
        if OPT["cm"]: l += [V("v_mov_b32", a, f32(OPT["cm"] / 10.0)), V("v_mov_b32", b, a)]
        l += [V("v_min_f32", f"v{vNM+4*n+r}", "-" + a, "-" + b) for r in range(4)]
        l += [V("v_add_f32", x[r], x[r], f"v{vNM+4*n}") for r in range(4)]
        return l
    def expcvt(s, par, n, t, sq, pb=None):
        l = []
        if pb is None: pb = vP + 40 * par + 8 * n
        for h in range(2):
            x0, x1 = f"v{sq[1]+2*h}", f"v{sq[1]+2*h+1}"
            l += [V("v_exp_f32", x0, x0), V("v_exp_f32", x1, x1), V("v_cvt_pk_bf16_f32", f"v{pb+2*t+h}", x0, x1)]
        return l
    def smf(s, b, n, pb=None):
        if pb is None: pb = vP + 40 * (b % 2) + 8 * n
        if s.half[b // 16] and n == 4: return mfma(L(4), ONE(4), ("v", pb, 4), L(4))
        return smfmac(L(n), ONE(n), ("v", pb, 8), f"v{vIDX}")
    def scale(s, src, dst, ta, pk=False):
        a, b = f"v{ta}", f"v{ta+1}"
        l = [V("v_lshlrev_b32", a, 16, src), V("v_and_b32", b, sMASK, src)]
        l += mul2(ta, ta, sC)
        if dst[0] == "v": return l + [V("v_cvt_pk_bf16_f32", dst, a, b)]
        return l + [V("v_cvt_pk_bf16_f32", a, a, b), V("v_accvgpr_write_b32", dst, a)]
    def rowoff(s, p, n, extra=None):
        t = stmp()
        i = SS("s_add_u32", t, sROW[p][0], n * 4096) if n < 4 else SS("s_mov_b32", t, sROW[p][1])
        if extra is None: return t, [i]
        return t, [i, SS("s_add_u32", t, t, extra)]
    def stamp(s, m=None, off=0):
        if not OPT["stamps"]: return
        k = s.nstamp; s.nstamp += 1; assert k < 14
        a = raw(f"s_memtime s[{44+4*k}:{45+4*k}]"); b = raw(f"s_memrealtime s[{46+4*k}:{47+4*k}]")
        for i in (a, b):
            if m is not None: s.hint(i, m, off); s.hint(i, m, off + 2, "dlm")
            else: i.xw = {"seq"}
        s.add(a, b)

    QREG = [(KB + 32768, ("K", 2)), (VB + 16384, ("V", 1)), (VB + 32768, ("V", 2)), (KB + 49152, ("K", 3)), (X0, "X0")]
    TA = 236
    def qdma(s, n):
        t, o = s.rowoff(0, n)
        o.append(SS("s_add_u32", "m0", sW4K, s.QREG[n][0]))
        for k in range(4):
            i = dma(f"v{vDA if k % 2 == 0 else vDB}", sQ, t, k * 1024, mod=MODS[OPT["q"]])
            i.wt = {f"dQ{n}"}; i.priv = (n, s.QREG[n][1]); o.append(i)
        return o
    def start(s):
        half = s.half[0]; TA = s.TA
        def seq(l):
            for i in l:
                if i.k in ("vmem", "wait", "bar"): i.xw = i.xw | {"seq"}
                if OPT["asap"] and i.k in ("vmem", "salu"): i.cmt = "asap"
            return l
        KF = lambda b, t: (lambda ks: ("a", 96 + 16 * t + 4 * ks, 4) if b == 0 else Q(1, t, ks))
        s.KF = KF
        def kpart(bs, dm, order, sq):
            if OPT["stm"] == 1 and 0 in bs: s.stamp()
            bl = seq(s.barrier([], [f"K{b}" for b in bs], extra_need=["cw"]))
            s.add(bl[0], seq(dm), bl[1]) if not OPT["so"] else s.add(bl, seq(dm))
            if OPT["stm"] == 1 and 0 in bs: s.stamp()
            for k, (b, t) in enumerate(order):
                for ks in range(4):
                    l = s.kread(KF(b, t)(ks), b, t, ks)
                    if sq and k < OPT["kq"]: l[-1].xr = l[-1].xr | {"seq"}
                    s.add(l)
        if not OPT["so"]:
            kpart([0, 1], s.qdma(2) + (s.qdma(3) if OPT["sd"] else []), ((0, 0), (0, 1), (0, 2), (0, 3), (1, 2), (1, 3), (1, 0), (1, 1)), True)
        nxt = [s.qdma(3), s.qdma(4), s.dma("V", 0), s.dma("K", 2), s.dma("V", 1)]
        late = []; EP = {}
        if OPT["ep"]:
            nxt = [nxt[2], nxt[0], nxt[1], nxt[3], nxt[4]]
            EP = [{5: [0], 6: [1, 2], 7: [3]}, {6: [0, 1], 7: [2, 3]}, {5: [0, 1], 6: [2, 3]}, {6: [0, 1], 7: [2], 8: [3]}, {6: [0, 1], 8: [2, 3]}, {5: [0, 1], 7: [2, 3]}][OPT["epo"]]
        def grpA(q):
            rd, mm = s.pvgroup(0, q, [0, 1, 2], aK if q % 2 == 0 else aV, lambda n: ("a", 28, 4) if OPT["ob"] else "0")
            if q < 3: mm.append(s.smf(0, q))
            s.add(rd, mm); return mm
        if OPT["sv"] & 1: nxt[1], nxt[2] = nxt[2], nxt[1]
        if OPT["sv"] & 2: late = nxt[3] + nxt[4]; nxt[3] = []; nxt[4] = []
        if OPT["sv"] & 4: late = nxt[4]; nxt[4] = nxt[3]; nxt[3] = []
        if OPT["sd"]: nxt = nxt[1:] + [[]]
        k1d = nxt[0]
        if OPT["so"]: nxt[0] = s.qdma(1 + OPT["sd"])
        s.sc = 0
        for n in range(5):
            w = wait(need=[f"dQ{n}"]); w.xw = {"seq", f"oQ{n}"}; s.add(w)
            if n == 0 or n == 4 or OPT["stm"] == 1: s.stamp()
            base = TA + (4 if n in (1, 2, 3) else 0); off = s.QREG[n][0] - (KB + 49152 if n in (1, 2, 3) else X0)
            for ks in range(4):
                i = ds_read("ds_read_b128", Q(0, n, ks), f"v{base+ks}", off); i.xr = {f"oQ{n}", f"cQ{n}", "seq"}; i.priv = (n, s.QREG[n][1]); i.wt = {f"rQ{n}"}; s.add(i)
            s.add(seq(nxt[n]))
            if OPT["pf2"] and n == OPT["pf2"]:
                s.add(V("v_accvgpr_read_b32", f"v{TA+8}", "a0"), V("v_accvgpr_read_b32", f"v{TA+9}", "a1"),
                      seq([I(f"global_load_dword a{aQB+43}, v[{TA+8}:{TA+9}], off" if 0 else f"global_load_dword a95, v[{TA+8}:{TA+9}], off", "vmem", w=["a95"], r=[f"v{TA+8}", f"v{TA+9}"])]))
            for r in range(16):
                q = f"v{vQA+16*n+r}"; s.add(s.scale(q, q, TA + 8 + 2 * (r % 4), pk=OPT["pk"]))
            for q in EP.get(2 * n, []): grpA(q)
            if OPT["so"] == 1 and n == 0:
                s.prog[-1].xw = {"seq"}
                kpart([0, 1], s.qdma(2) + s.qdma(3), ((0, 0), (0, 1), (0, 2), (0, 3), (1, 2), (1, 3), (1, 0), (1, 1)), False)
            if OPT["so"] >= 2 and n == 0:
                s.prog[-1].xw = {"seq"}
                kpart([0], s.qdma(2 + OPT["sd"]), ((0, 0), (0, 1), (0, 2), (0, 3)), False)
            for b in range(2 if n < 4 else 1):
                if OPT["so"] >= 2 and n == 0 and b == 1:
                    ch[0].xw = {"seq"}
                    kpart([1], k1d, ((1, 0), (1, 1), (1, 2), (1, 3)), False)
                for t in range(2 if half and n == 4 else 4):
                    sq = Sx(s.sc % 5); s.sc += 1
                    ch = s.chain(0, n, sq, KF(b, t), t == 0 and b == 0); s.add(ch)
                    if t == 0 and b == 0:
                        s.add(s.rowmax(n, sq, f"v{TA+16}", f"v{TA+17}"))
                        if n == 4 and not OPT["ep"]:
                            ch[-1].xw = {"seq"}
                            s.add(seq(s.barrier(["K0", "K1"], ["V0"], gate="D-1")), seq(late))
                    s.add(s.expcvt(b, n, t, sq))
            if n < 4: ch[-1].xw = {"seq"}
            if OPT["ep"] and n == 2: s.add(seq(s.barrier(["K0", "K1"], ["V0"], gate="D-1")))
            for q in EP.get(2 * n + 1, []): grpA(q)[-1].xw = {"seq"}

    def nbr(s, p, d, rl):
        return [V("v_mul_f32_e64", f"v{d}", "-" + sB[p], f"v{rl}")] if OPT["ob"] else []
    def ep_l(s, p, n, rl, tmp):
        a, b = f"v{rl}", f"v{tmp}"
        o = [V("v_accvgpr_read_b32", a, f"a{Lr(n)}")]
        if not (s.half[p] and n == 4): o += [V("v_accvgpr_read_b32", b, f"a{Lr(n)+1}"), V("v_add_f32", a, a, b)]
        if OPT["lfix"]: o += [V("v_mov_b32", a, "0.5")]
        o += [V("v_cmp_nge_f32", ("s", 42, 2), sTHR, a), SS("s_or_b64", sBAD[p], sBAD[p], ("s", 42, 2))]
        if not (s.half[p] and n == 4): o += [V("v_rcp_f32", a, a)]
        return o
    def lane16(s, d):
        return [V("v_mbcnt_lo_u32_b32", d, -1, 0), V("v_mbcnt_hi_u32_b32", d, -1, d), V("v_lshlrev_b32", d, 4, d)]
    def cmb_pre(s, T, base):
        return s.lane16(f"v{T}") + [V("v_add_u32", f"v{T}", sW4K, f"v{T}"), V("v_add_u32", f"v{T}", base, f"v{T}"), V("v_xor_b32", f"v{T+1}", "0x1000", f"v{T}"),
             V("v_mov_b32", f"v{T+2}", f"v{vNM+16}")]
    def cmb_give(s, p, T, LW):
        o = s.ep_l(p, 4, T + 3, T + 4)
        w = [colput(LW, 12, T + 2, T + 3)] + [ds_write("ds_write_b128", f"v{T}", O(4, dt), 16384 + dt * 1024) for dt in range(4)]
        for i in w: i.wt = {"cw"}; i.xw = i.xw | {"cgive", "cQ8"}
        return o + w
    def cmb_col(s, p, T, LW):
        nm, l, nm2, l2, x, y = [f"v{T+k}" for k in (2, 3, 4, 5, 6, 7)]
        r = I(f"ds_read2_b32 v[{T+4}:{T+5}], {y} offset0:{16*12} offset1:{16*13}", "ds", w=[nm2, l2], r=[y]); r.xr = {"cmb"}
        return [V("v_xor_b32", y, "0x1000", f"v{LW}"), r, V("v_cmp_nge_f32", ("s", 42, 2), sTHR, l2), SS("s_or_b64", sBAD[p], sBAD[p], ("s", 42, 2)),
                V("v_min_f32", x, nm, nm2), V("v_sub_f32", nm, x, nm), V("v_sub_f32", nm2, x, nm2), V("v_exp_f32", nm, nm), V("v_exp_f32", nm2, nm2),
                V("v_mul_f32", x, l, nm), V("v_fma_f32", x, l2, nm2, x), V("v_rcp_f32", x, x), V("v_mul_f32", nm, nm, x), V("v_mul_f32", nm2, nm2, x),
                V("v_add_f32", y, nm, nm2), V("v_mul_f32_e64", y, "-" + sB[p], y), colput(LW, 8, T + 2, T + 7), colput(LW, 10, T + 4, T + 4)]
    def half_addr(s, WA, RA, GA, LW, LR, base, base2, t0, t1):
        t0, t1, wa, ra = f"v{t0}", f"v{t1}", f"v{WA}", f"v{RA}"
        t = stmp(); t2 = stmp()
        a = [SS("s_add_u32", t, sW4K, base), SS("s_add_u32", t2, sW4K, base2), V("v_mbcnt_lo_u32_b32", t0, -1, 0), V("v_mbcnt_hi_u32_b32", t0, -1, t0),
             V("v_and_b32", t1, 15, t0), V("v_lshl_add_u32", f"v{LW}", t1, 2, t2), V("v_lshl_add_u32", wa, t1, 3, t), V("v_lshrrev_b32", t1, 4, t0), V("v_lshl_add_u32", wa, t1, 9, wa),
             V("v_lshl_add_u32", f"v{LR}", t1, 4, t2),
             V("v_lshl_add_u32", ra, t1, 8, t), V("v_and_b32", t1, 3, t0), V("v_lshl_add_u32", ra, t1, 6, ra), V("v_and_b32", t1, 12, t0), V("v_lshl_add_u32", ra, t1, 1, ra),
             V("v_and_b32", t1, 7, t0), V("v_lshlrev_b32", t1, 4, t1), V("v_lshrrev_b32", t0, 3, t0), V("v_lshl_add_u32", f"v{GA}", t0, 8, t1)]
        return a
    def half_put(s, pk, r, WA, X, gate):
        w = ds_write("ds_write_b64", f"v{WA}", ("v", pk, 2), X + r * 128); w.xr = set(gate); w.xw = {f"Xd{X}_{r}"}; return [w]
    def half_wide(s, p, n, H, FR, FB, TB, WA, X, gate, part=None):
        o = []
        for r in (0, 2):
            tb = TB[r // 2]
            if OP(p, n, 0)[0] == "a":
                x = [tb + 2 * j for j in range(4)]
                o += [V("v_accvgpr_read_b32", f"v{tb+2*j+k}", f"a{OP(p, n, 4*H+j)[1]+r+k}") for j in range(4) for k in range(2)]
            else: x = [OP(p, n, 4 * H + j)[1] + r for j in range(4)]
            for j in range(4): o += fmap(x[j], x[j], FR + r, FB + r)
            if part:
                T, U, FA = part
                rr = [ds_read("ds_read_b64", ("v", U + 2 * j, 2), f"v{T+1}", 16384 + j * 1024 + r * 4) for j in range(4)]
                for i in rr: i.xr = {"cmb"}
                o += rr
                for j in range(4): o += fmap(x[j], U + 2 * j, FA + r, x[j])
            o += [V("v_cvt_pk_bf16_f32", f"v{tb+d}", f"v{x[ja]+k}", f"v{x[ja+1]+k}") for d, ja, k in ((0, 0, 0), (2, 0, 1), (1, 2, 0), (3, 2, 1))]
            o += s.half_put(tb, r, WA, X, gate) + s.half_put(tb + 2, r + 1, WA, X, gate)
        return o
    def half_slim(s, p, n, H, FR, FB, T4, WA, X):
        o = []
        for r in range(4):
            o += [V("v_accvgpr_read_b32", f"v{T4+j}", f"a{O(n, 4*H+j)[1]+r}") for j in range(4)]
            o += [V("v_fma_f32", f"v{T4+j}", f"v{T4+j}", f"v{FR+r}", f"v{FB+r}") for j in range(4)]
            o += [V("v_cvt_pk_bf16_f32", f"v{T4+k}", f"v{T4+2*k}", f"v{T4+2*k+1}") for k in range(2)] + s.half_put(T4, r, WA, X, [])
        return o
    def half_out(s, p, n, H, rb, RA, GA, X, mod):
        if s.half[p]: t, o = s.rowoff(p, n, sD1 if H else sD0); off = 0
        else: t, o = s.rowoff(p, n); off = 128 * H
        for k in range(2):
            for u in range(2):
                i = ds_read("ds_read_b64_tr_b16", ("v", rb[k] + 2 * u, 2), f"v{RA}", X + k * 1024 + u * 32); i.xr = {f"Xd{X}_{r}" for r in range(4)}; o.append(i)
            o.append(bstore(("v", rb[k], 4), f"v{GA}", sO, t, off + k * 2048, mod=MODS[mod]))
            if p == 1 and OPT["sp"]: o[-1].cmt = "prio"
        return o
    def plan_trans(s):
        hv = s.half[0]; E = vQA + 64
        WA, RA, GA, LR, FR, FB, T4 = E, E + 1, E + 2, E + 3, E + 4, E + 8, E + 12
        s.LW = LW = vQA + 24
        s.CT = CT = vQA + 56; TB = [vQA + 16, vQA + 16 if hv else vQA + 48]; XB = [0] if hv else [0, X0 - 2048, X0]; cnt = [0]
        def fin(l, dl):
            for i in l:
                if i.k == "vmem": s.hint(i, s.bstart[15], dl, "dlm")
            return l
        def wide(n, H, dl):
            X = XB[cnt[0] % len(XB)]; cnt[0] += 1
            rb = [vQA + 8, vQA + 12] if H == 0 else ([T4, vQA + 52] if hv else [vQA + 56, vQA + 60])
            l = [rowget(FR, LR, 2 * n), rowget(FB, LR, 2 * n + 1)]
            l += s.half_wide(0, n, H, FR, FB, TB, WA, X, []) + s.half_out(0, n, H, rb, RA, GA, X, OPT["o0"])
            if n == 2: l += [V("v_accvgpr_write_b32", f"a{O(2, 4*H+3)[1]+r}", sB[1]) for r in range(4)]
            return fin(l, dl)
        def comb(dl):
            l = [rowget(FR, LR, 8), rowget(FB, LR, 9), rowget(T4, LR, 10)]
            l += s.half_wide(0, 4, 1, FR, FB, TB, WA, 0, [], part=(CT, vQA + 48, T4)) + s.half_out(0, 4, 1, [T4, vQA + 60], RA, GA, 0, OPT["o0"])
            return fin(l, dl)
        def slim(n, H, newf, dl):
            return fin(([rowget(FR, LR, 2 * n), rowget(FB, LR, 2 * n + 1)] if newf else []) + s.half_slim(0, n, H, FR, FB, T4, WA, 0) + s.half_out(0, n, H, [T4, T4], RA, GA, 0, OPT["o0"]), dl)
        urg = [2, 3] if hv else [2, 3, 4]
        s.ins = {(15, 0, 0): lambda: [V("v_mov_b32", f"v{vQA+28+r}", sB[1]) for r in range(4)] + s.half_addr(WA, RA, GA, LW, LR, X1 + 2048, X1, vQA + 2, vQA + 3) + (s.cmb_pre(CT, X1) if hv else []),
                 (15, 0, 1): lambda: sum((s.ep_l(0, n, vQA + 4, vQA + 5) + s.nbr(0, vQA + 5, vQA + 4) + [colput(LW, 2 * n, vQA + 4, vQA + 5)] for n in urg + [0, 1]), []),
                 (15, 2, 0): lambda: sum((wide(n, 0, OPT["h0"] + OPT["h1"] * k) for k, n in enumerate(urg)), []),
                 (16, 0, 0): lambda: sum((wide(n, 1, OPT["h2"] + OPT["h3"] * k) for k, n in enumerate(urg)), []) + (comb(OPT["h2"] + OPT["h3"] * 2) if hv else [])
                                     + sum((slim(k // 2, k % 2, k % 2 == 0, 330 + (k + 1) * OPT["hd"]) for k in range(4)), [])}

    def pvgroup(s, j, q, tiles, vbuf, cinit):
        pv = j // 16; hv = s.half[pv]; rd = []; mm = []
        for h, pref in ((0, [0, 1]), (1, [0, 1] if hv else [1, 0])):
            for ks in s.vks(j, 2 * q + h, pref): rd += s.vread(("a", vbuf + 8 * h + 4 * ks, 4), j, 2 * q + h, ks)
        if OPT["po"] and j % 16 and j != 30:
            for n in tiles:
                hs = [0, 1] if n % 2 == 0 or OPT["po"] == 2 else [1, 0]
                for x, h in enumerate(hs):
                    for ks in ([0] if hv and n == 4 else ([0, 1] if x == 0 else [1, 0])):
                        mm.append(mfma(OP(pv, n, 2 * q + h), P(j % 2, n, ks), ("a", vbuf + 8 * h + 4 * ks, 4), OP(pv, n, 2 * q + h)))
            return rd, mm
        for h in range(2):
            dt = 2 * q + h
            for n in (tiles if h == 0 else reversed(tiles)):
                if OPT["c4"] and j % 16 != 0 and j != 30:
                    if h == 0:
                        seq4 = [(0, 0), (0, 1), (1, 0), (1, 1)][::1 if n % 2 == 0 else -1]
                        if hv and n == 4: seq4 = [(0, 0), (1, 0)]
                        for hh, ks in seq4:
                            d_ = OP(pv, n, 2 * q + (j % 2))
                            mm.append(mfma(d_, P(j % 2, n if hh == 0 else (n + 2) % 4, ks), ("a", vbuf + 8 * hh + 4 * ks, 4), d_))
                    continue
                kss = [0] if hv and n == 4 else ([0, 1] if (n + h) % 2 == 0 or OPT["nosnake"] else [1, 0])
                for k_, ks in enumerate(kss):
                    ab = [("a", vbuf + 8 * h + 4 * ks, 4), P(j % 2, n, ks)][::-1 if OPT["swp"] else 1]
                    mm.append(mfma(OP(pv, n, dt), ab[0], ab[1], cinit(n) if j % 16 == 0 and k_ == 0 else OP(pv, n, dt)))
        return rd, mm
    def tq(s, b, q): return q ^ 2 if (OPT["kalt"] and s.half[b // 16] and b % 2 == 1 and b != 31) else q
    def block(s, j):
        b = j + 1; p = b // 16; pv = j // 16
        hq, hv = s.half[p], s.half[pv]
        first = (j % 16 == 0); trans = (j == 15)
        smfs = [{0: [0], 1: [1], 2: [2, 3], 3: [4]}, {0: [0, 1], 1: [2, 3], 2: [4], 3: []}, {0: [0, 1, 2, 3, 4], 1: [], 2: [], 3: []}][OPT["sm"]]
        if j == 0 and OPT["ep"]: smfs = {0: [], 1: [], 2: [], 3: [3, 4]}
        MX = vQA; CT = s.CT
        if j == 30: s.tail_pre()
        for q in range(4):
            vbuf = aK if (j == 0 and q % 2 == 0) else aV
            def cinit(n):
                if not OPT["ob"]: return "0"
                if j == 0: return ("a", aQB, 4)
                return O(2, 3 if q < 2 else 7) if OP(1, n, 0)[0] == "a" else ("v", vQA + 28, 4)
            rd, pvm = s.pvgroup(j, q, [3, 4] if j == 0 and OPT["ep"] else [0, 1, 2, 3, 4], vbuf, cinit)
            s.add(rd)
            if (j, q, 0) in s.ins: s.add(s.ins[(j, q, 0)]())
            cz = (b % 16 == 0 and q == 0)
            if j == 0:
                work = [(4, t, s.KF(1, t), None) for t in ([[0, 1], [2], [3], []] if not hq else [[0, 1], [], [], []])[q]]
            elif j == 30:
                work = [(4, q, s.KT(q), s.PT[0])] if not (hq and q >= 2) else []
            else: work = [(n, s.tq(b, q), (lambda ks: ("a", aK + 4 * ks, 4)), None) for n in range(4 if hq and s.tq(b, q) >= 2 else 5)]
            ch = []; sqs = []
            for n, t, kf, pb in work:
                if j in (0, 30): sq = Sx(s.sc % 5); s.sc += 1
                else: sq = Sx(n)
                sqs.append(sq); ch += s.chain(p, n, sq, kf, cz)
            s.add(ch); m0 = (ch + pvm)[0]
            if OPT["vb"] and j not in (0, 30):
                for k, i in enumerate([x for x in rd if x.k == "ds"]): s.hint(i, m0, -6 + k); s.hint(i, m0, -5 + k, "dlm")
                for k, i in enumerate(getattr(s, "lastk", [])): s.hint(i, m0, -10 + k - (OPT["vb"] - 1)); s.hint(i, m0, -9 + k - (OPT["vb"] - 1), "dlm")
            if j == 0 and q == 0 and OPT["ob"]: s.add([V("v_accvgpr_write_b32", f"a{aQB+r}", sB[0]) for r in range(4)])
            if q == 0:
                s.bstart[j] = m0
                if j in s.stamp_at: s.stamp(m0)
                lag = 0
                if s.half[0] and not s.half[1]: lag = min(OPT["lagmax"], (16 * (j if j <= 15 else 31 - j) * OPT["lagc"]) // 100)
                bat = []
                if j == 0: bat.append((s.dma("K", 3, gate="D-1") + s.dma("V", 2, gate="D-1"), OPT["l0"])); lag = OPT["l1"]
                if j == 1: lag = OPT["l2"]
                if j == 2: lag = OPT["l3"]
                dl = []
                if j + 4 <= 31: dl += s.dma("K", j + 4, gate=f"D{j-1}")
                if j + 3 <= 31: dl += s.dma("V", j + 3, gate=f"D{j-1}")
                bat.append((dl, lag))
                for dl, lag in bat:
                    for k, i in enumerate([x for x in dl if x.k == "vmem"]):
                        if OPT["dw"] and j >= 3:
                            L = OPT["dx"] + max(0, min(OPT["lagmax"], LEAD.get(j, 0) * OPT["dc"] // 100 + OPT["dy"])) * (s.tag == "Y") + OPT["dsp"] * k
                            s.hint(i, m0, L); s.hint(i, m0, L + OPT["dw"], "dlm"); continue
                        if OPT["eu"]:
                            s.ne = getattr(s, "ne", -1) + 1; L = OPT["eo"] + OPT["eu"] * s.ne
                            s.hint(i, s.bstart[0], L); s.hint(i, s.bstart[0], L + 8, "dlm"); continue
                        s.hint(i, m0, lag + 30 + 2 * k, "dlm")
                        if lag: s.hint(i, m0, lag - 20)
                        L = lag + 30 + 2 * k
                    s.add(dl)
                if j in s.qst: s.add(s.qst[j](m0, L + 12))
            qlen = len(ch) + len(pvm) + 1
            if OPT["spf"] and (q == 1 or (OPT["spf"] > 1 and q == 3) or OPT["spf"] > 2):
                for i in (raw("s_getpc_b64 s[40:41]", w=["s40"]), raw(f"s_load_dword s42, s[40:41], {OPT['spd']}", r=["s40"])):
                    s.hint(i, m0, 8); s.hint(i, m0, 12, "dlm"); s.add(i)
            k = 0
            for (n, t, kf, pb), sq in zip(work, sqs):
                if cz: s.add(s.rowmax(n, sq, f"v{MX}", f"v{MX+1}"))
                l = s.expcvt(b % 2, n, t, sq, pb)
                for i in l:
                    if i.k == "trans" and j not in (0, 30) and OPT["eh"]: s.hint(i, m0, OPT["e0"] + (k * qlen) // (4 * len(work))); k += 1
                s.add(l)
            if q == 3 and j < 30:
                opn = [f"K{j+2}", f"V{j+1}"] + (["V31"] if j == 29 else [])
                cm = trans and hv
                kw = dict(gate=f"D{j}", extra_need=["cw"] if cm else [], extra_w=["cmb"] if cm else [], extra_r=["cgive"] if cm else [])
                if j == 0:
                    bl = s.barrier(["V0"], opn, **kw); s.hint(bl[0], m0, 0); s.add(bl)
                else: s.add(s.sync([f"K{b}", f"V{j}"], opn, m0, off_bar=len(ch) - 3, off_rd=OPT["flr"] - (20 - len(ch)), **kw))
                if cm: s.add(s.cmb_col(pv, CT, s.LW))
            n0 = len(s.prog)
            if j < 30:
                if q < 3 and j > 0:
                    for ks in range(4): s.add(s.kread(("a", aK + 4 * ks, 4), b, s.tq(b, q + 1), ks))
                elif q == 3:
                    for ks in range(4): s.add(s.kread(("a", aK + 4 * ks, 4), b + 1, s.tq(b + 1, 0), ks))
            s.lastk = [x for x in s.prog[n0:] if x.k == "ds"]
            if trans and q == 0:
                s.add([s.smf(j, n) for n in range(5)])
            if (j, q, 1) in s.ins: s.add(s.ins[(j, q, 1)]())
            s.add(pvm)
            if not trans: s.add([s.smf(j, n) for n in smfs[q]])
            if trans:
                if hv and q == 1: s.add(s.cmb_give(pv, CT, s.LW))
                if q == 1: s.add([V("v_accvgpr_write_b32", f"a{aL+r}", 0) for r in range(10)])
            if q == 1 and j in s.stage: s.add(s.stage[j](m0))

    def plan_stage(s):
        s.stage = {}
        def g(m):
            o = []
            def ld(f, dst, k=0):
                t, oo = s.rowoff(1, f // 4)
                i = bload(dst, f"v{vDA if OPT['qlin'] else vG}", sQ, t, (f % 4) * 1024 if OPT["qlin"] else KOFF(f % 4), mod=MODS[OPT["q"]]); i.cmt = "strided"; s.hint(i, m, (k // 2) * OPT["sg1"])
                return oo + [i]
            def sc(f, src):
                d = Q(1, f // 4, f % 4); l = []
                for r in range(4):
                    if src[0] == "a": l += [V("v_accvgpr_read_b32", f"v{vT+1}", f"a{src[1]+r}")] + s.scale(f"v{vT+1}", f"a{d[1]+r}", vT)
                    else: l += s.scale(f"v{src[1]+r}", f"{d[0]}{d[1]+r}", vT)
                return l
            land = lambda f: ("v", vQB + 4 * (f + 1), 4) if f < 8 else Q(1, f // 4, f % 4)
            for f in range(12): o += ld(f, land(f), f)
            for f in range(0, 8, 2): o += sc(f, land(f)) + sc(f + 1, land(f + 1)) + ld(12 + f, land(12 + f)) + ld(13 + f, land(13 + f))
            for f in range(8, 20): o += sc(f, land(f))
            return o
        if not OPT["qd"]: s.stage[OPT["sg0"] if s.half[0] else OPT["sgx"]] = g
        s.qst = {}
        def tile(n, prev):
            def h(m, L):
                t, o = s.rowoff(1, n)
                w = wait(need=[f"rQ{prev}"]); w.xw = {f"cQ{prev}", "qbuf"}; s.hint(w, m, L - 2)
                o += [w, SS("s_add_u32", "m0", sW4K, X0)]
                for k in range(4):
                    i = dma(f"v{vDA if k % 2 == 0 else vDB}", sQ, t, k * 1024, mod=MODS[OPT["q"]])
                    i.wt = {f"dQ{n+5}"}; i.priv = (n + 5, "X0"); i.xr = {"qbuf"}; i.xw = {f"iQ{n+5}"}; i.cmt = "slow"
                    s.hint(i, m, L + OPT["qs"] * k); s.hint(i, m, L + OPT["qs"] * k + 6, "dlm"); o.append(i)
                w = wait(need=[f"dQ{n+5}"]); w.xr = {f"iQ{n+5}"}; w.xw = {f"oQ{n+5}"}; o.append(w)
                land = lambda f: vQB + 4 * (f % 8 + 1) if f < 11 else Q(1, f // 4, f % 4)[1]
                for ks in range(4):
                    d = land(4 * n + ks); a = f"v{vG}"
                    if ks: a = f"v{d}"; o.append(V("v_xor_b32", a, KOFF(ks), f"v{vG}"))
                    i = ds_read("ds_read_b128", ("v", d, 4), a, 0); i.xr = {f"oQ{n+5}", f"cQ{n+5}"}; i.priv = (n + 5, "X0"); i.wt = {f"rQ{n+5}"}; o.append(i)
                for ks in range(4):
                    d = Q(1, n, ks)
                    for r in range(4): o += s.scale(f"v{land(4*n+ks)+r}", f"{d[0]}{d[1]+r}", vT)
                return o
            return h
        if OPT["qd"]:
            for j, n, prev in zip((0, 2, 4, 6, 8), (0, 1, 2, 4, 3), (4, 5, 6, 7, 9)): s.qst[j + OPT["q0"] if j or OPT["q0"] else 1] = tile(n, prev)

    def tail_pre(s):
        hv = s.half[1]; Z = ("a", 0) if OPT["ov"] else ("v", vQA)
        s.KT = lambda t: (lambda ks: ("a", aK + 4 * ks, 4) if t == 0 else (("v", vP + 40 + 16 * (t - 1) + 4 * ks, 4) if t < 3 else (Z[0], Z[1] + 48 + 4 * ks, 4)))
        s.VT = lambda dt, ks: (Z[0], Z[1] + 8 * dt + 4 * ks, 4) if dt < 6 else ("a", aV + 8 * (dt - 6) + 4 * ks, 4)
        s.PT = [vP + 72, 236]
        for t in range(1, 4):
            for ks in range(4): s.add(s.kread(s.KT(t)(ks), 31, t, ks))
    def tail(s):
        j = 31; hv = s.half[1]
        for dt in range(8):
            for ks in s.vks(j, dt, [0, 1]): s.add(s.vread(s.VT(dt, ks), j, dt, ks))
        E = vQA + 64
        WA, RA, GA, LW, LR, RL, NC = E, E + 1, E + 2, E + 3, E + 4, E + 6, E + 7
        CT = 244; CU = 220
        F = vP
        TB = [F, F + 8]; FQ = [(E + 8, E + 12), (F + 16, F + 20)]; RB = [F + 24 + 4 * k for k in range(4)]
        a = s.half_addr(WA, RA, GA, LW, LR, VB, KB, RL, NC)
        for i in a: s.hint(i, s.bstart[28], 0)
        s.add(a)
        order = [4, 3, 2, 1, 0]; XB = [0, 2048, 16384, 18432]
        if hv: s.add(s.cmb_pre(CT, KB))
        k2 = 0
        for k, n in enumerate(order):
            pb = s.PT[k % 2]; hn = hv and n == 4; FR, FB = FQ[k % 2]
            ml = [[s.smf(j, n, pb)], [], [], []]
            for dt in range(8):
                kss = [0] if hn else ([0, 1] if dt % 2 == 0 else [1, 0])
                ml[dt // 2] += [mfma(OP(1, n, dt), ("v", pb + 4 * ks, 4), s.VT(dt, ks), OP(1, n, dt)) for ks in kss]
            if k == 0 and OPT["stm"] != 5: s.stamp(ml[0][0])
            if k == 0 and OPT["es"]: s.add(ml[0].pop(0))
            for t in range(4):
                if k < 4:
                    n2 = order[k + 1]; sq = Sx(s.sc % 5); s.sc += 1
                    s.add(s.chain(1, n2, sq, s.KT(t), False), s.expcvt(1, n2, t, sq, s.PT[(k + 1) % 2]))
                s.add(ml[t])
                if t == 0 and not hn: s.add(s.ep_l(1, n, RL, NC) + s.nbr(1, NC, RL) + [colput(LW, 2 * n, RL, NC, ["D29"]), rowget(FR, LR, 2 * n), rowget(FB, LR, 2 * n + 1)])
            if hn:
                s.add(s.cmb_give(1, CT, LW))
                s.add(s.sync([], [], ml[3][-1], extra_need=["cw"], extra_w=["cmb"], extra_r=["cgive"], off_bar=24, off_rd=OPT["tf"]))
                continue
            for H in range(2):
                X = XB[k2 % 4]
                ep = s.half_wide(1, n, H, FR, FB, TB, WA, X, ["D29"]) + s.half_out(1, n, H, RB[2 * (k2 % 2):], RA, GA, X, OPT["o1"]); k2 += 1
                for i in ep:
                    if i.k == "vmem": s.hint(i, ml[2 * H + 1][-1], OPT["tdl"], "dlm")
                s.add(ep)
            if hv and k == 1:
                X = XB[k2 % 4]
                s.add(s.cmb_col(1, CT, LW), rowget(FR, LR, 8), rowget(FB, LR, 9), rowget(CU + 8, LR, 10))
                s.add(s.half_wide(1, 4, 1, FR, FB, TB, WA, X, ["D29"], part=(CT, CU, CU + 8)), s.half_out(1, 4, 1, RB[2 * (k2 % 2):], RA, GA, X, OPT["o1"])); k2 += 1

    def final(s):
        hv = s.half[1]
        s.tail_pre()
        E = vQA + 64; F = vP; CT = 244
        WA, RA, GA, LW, LR, RL, NC = E, E + 1, E + 2, E + 3, E + 4, E + 6, E + 7
        a = s.half_addr(WA, RA, GA, LW, LR, VB, KB, RL, NC)
        for i in a: s.hint(i, s.bstart[28], 0)
        s.add(a)
        PT = {4: vP + 72, 3: 236, 2: 220, 1: vP + 72, 0: 236}
        XB = [0, 2048, 16384, 18432]; st = dict(k2=0, late=False, fq={}, nf=0); vdone = set(); last = [None]
        std = lambda n: f"q{n-1}0 l{n} p{n}0 q{n-1}1 p{n}1 e{n}0 q{n-1}2 p{n}2 q{n-1}3 p{n}3 e{n}1 " if n else "l0 p00 p01 e00 p02 p03 e01"
        if not hv:
            sc = ["q40 P0 q41 q42 q43 P1 s4 l4 q30 p40 q31 p41 e40 q32 q33 P2 s3 l3 p30 p31 e30 P3 s0 s1 s2 p42 q20 p32 q21 p43 e41 q22 p33 e31 q23 ",
                  "q40 P0 q41 q42 q43 P1 s4 l4 p40 p41 e40 q30 q31 P2 q32 q33 P3 s3 s0 s1 s2 p42 l3 p30 q20 p43 e41 p31 e30 q21 p32 q22 p33 e31 q23 "][OPT["fin"] - 1]
        else:
            sc = ["q40 P0 q41 q30 q31 P1 s4 l4 p40 p41 g q32 q33 P2 s3 l3 p30 p31 e30 P3 s0 s1 s2 p42 p32 q20 q21 p43 p33 e31 c q22 q23 ",
                  "q40 P0 q41 q30 q31 q32 P1 s4 l4 p40 p41 g q33 s3 P2 l3 p30 p31 e30 P3 s0 s1 s2 p42 p32 q20 p43 c q21 p33 e31 q22 q23 "][OPT["fin"] - 1]
        sc += "l2 p20 q10 p21 e20 q11 p22 q12 p23 e21 q13 l1 p10 q00 p11 e10 q01 p12 q02 p13 e11 q03 l0 p00 p01 e00 p02 p03 e01" if OPT["to"] else std(2) + std(1) + std(0)
        def mm(l):
            if 30 not in s.bstart:
                s.bstart[30] = l[0]
                if 30 in s.stamp_at: s.stamp(l[0])
            s.add(l); last[0] = l[-1]
        def temps():
            k2 = st["k2"]; st["k2"] += 1
            if st["late"]: return XB[k2 % 4], [F, F + 8], [F + 24 + 8 * (k2 % 2), F + 28 + 8 * (k2 % 2)]
            return (XB[k2 % 4], [220, 220], [228, 232]) if hv else (XB[k2 % 4], [244, 244], [vNM + 16, 244] if k2 == 0 else [228, 232])
        def fq(key, slots):
            for q_, k_ in st["fq"].items():
                if k_ == key: return q_, []
            q_ = (F + 16) if st["late"] and st["nf"] % 2 else (E + 8); st["nf"] += 1; st["fq"][q_] = key
            return q_, [rowget(q_, LR, slots[0]), rowget(q_ + 4, LR, slots[1])]
        def dls(l):
            for i in l:
                if i.k == "vmem": s.hint(i, last[0], OPT["tdl"], "dlm")
            return l
        for x in sc.split():
            c = x[0]; n = int(x[1]) if len(x) > 1 else 4; hn = hv and n == 4
            if c == "q":
                t = int(x[2]); sq = Sx(s.sc % 5); s.sc += 1
                mm(s.chain(1, n, sq, s.KT(t), False)); s.add(s.expcvt(1, n, t, sq, PT[n]))
            elif c == "P":
                rd, m_ = s.pvgroup(30, n, [0, 1, 2, 3, 4], aV, None); s.add(rd); mm(m_)
                for dt in (2 * n, 2 * n + 1):
                    for ks in s.vks(31, dt, [0, 1]): s.add(s.vread(s.VT(dt, ks), 31, dt, ks))
            elif c == "s":
                mm([s.smf(30, n)])
                if n == 2: st["late"] = True
            elif c == "l":
                mm([s.smf(31, n, PT[n])])
                if not hn: s.add(s.ep_l(1, n, RL, NC) + s.nbr(1, NC, RL) + [colput(LW, 2 * n, RL, NC, ["D29"])])
            elif c == "p":
                l = []
                for dt in (2 * int(x[2]), 2 * int(x[2]) + 1):
                    l += [mfma(OP(1, n, dt), ("v", PT[n] + 4 * ks, 4), s.VT(dt, ks), OP(1, n, dt)) for ks in ([0] if hn else ([0, 1] if dt % 2 == 0 else [1, 0]))]
                mm(l)
            elif c == "e":
                H = int(x[2]); X, TB, RB = temps(); FR, l = fq(n, (2 * n, 2 * n + 1))
                s.add(dls(l + s.half_wide(1, n, H, FR, FR + 4, TB, WA, X, ["D29"]) + s.half_out(1, n, H, RB, RA, GA, X, OPT["o1"])))
            elif c == "g":
                s.add(s.cmb_pre(CT, KB), s.cmb_give(1, CT, LW))
                s.add(s.sync([], [], last[0], extra_need=["cw"], extra_w=["cmb"], extra_r=["cgive"], off_bar=24, off_rd=30))
            elif c == "c":
                X, TB, RB = temps(); s.add(s.cmb_col(1, CT, LW)); FR, l = fq("c", (8, 9))
                s.add(dls(l + [rowget(228, LR, 10)] + s.half_wide(1, 4, 1, FR, FR + 4, TB, WA, X, ["D29"], part=(CT, vNM + 12, 228)) + s.half_out(1, 4, 1, RB, RA, GA, X, OPT["o1"])))

    def build(s):
        s.bstart = {}; s.stamp_at = {0, 4, 8, 15, 16, 18, 24} if OPT["stamps"] else set()
        s.nstamp = 1
        if OPT["stm"] == 1: s.stamp_at = {0}; s.nstamp = 2
        if OPT["stm"] == 2: s.stamp_at = set(range(OPT["pj"], OPT["pj"] + 8))
        if OPT["stm"] == 5: s.stamp_at = {0, 30}
        if OPT["stm"] == 4: s.stamp_at = {0, 22, 28}
        if OPT["stm"] == 3: s.stamp_at = {0, 15, 16, 17, 18, 19, 30}
        s.plan_stage(); s.plan_trans()
        s.start()
        for j in range(30 if OPT["fin"] else 31): s.block(j)
        n0 = len(s.prog)
        s.final() if OPT["fin"] else s.tail()
        for k, m in enumerate([i for i in s.prog[n0:] if ismf(i)]): m.lg = OPT["gt"] if k % OPT["gp_"] == 0 else 0
        ms = [i for i in s.prog if ismf(i)]
        for m in ms[ms.index(s.bstart[15]):ms.index(s.bstart[17]) - 40]: m.lg = OPT["gr"]
        for k, m in enumerate(ms): m.mi = k
        for i, m, off, attr in s.hints: setattr(i, attr, ms[max(0, min(len(ms) - 1, m.mi + off))])
        out = schedule(s.prog, verbose=True, name=s.tag)
        if OPT["verbose"]:
            prev = None
            for j in sorted(s.bstart):
                if prev is not None: print(f"  blk {j-1}: {s.bstart[j].st - prev}", end="")
                prev = s.bstart[j].st
            print(f"\n  start {s.bstart[0].st}  tail from blk30 {out[-1].st - prev}")
        return out

def setup_common():
    t0, t1, w = "s34", "s35", "s3"
    R = Role("AA", "")
    l, m, g, a, b, c = "v16", "v17", "v18", "v19", "v20", "v21"
    o = [raw("s_cmp_lt_u32 s2, 256", w=["scc"]), br("s_cbranch_scc1", "Lgo"), raw("s_endpgm"), label("Lgo")]
    if OPT["stamps"]: o += [raw("s_memtime s[44:45]"), raw("s_memrealtime s[46:47]")]
    if OPT["rb"] != 3:
        o += [S("s_lshr_b32", t0, "s2", OPT["rb"] - 3), S("s_xor_b32", t0, t0, "s2"), S("s_and_b32", t0, t0, 8), S("s_mul_i32", t0, t0, 1 + (1 << (OPT["rb"] - 3))), S("s_xor_b32", "s2", "s2", t0)]
    o += [raw("s_load_dwordx4 s[8:11], s[0:1], 0"), raw("s_load_dwordx4 s[12:15], s[0:1], 16"),
          V("v_lshrrev_b32", "v1", 6, "v0"), V("v_and_b32", l, 63, "v0"), V("v_and_b32", m, 15, "v0"),
          V("v_readfirstlane_b32", w, "v1"), V("v_lshrrev_b32", g, 4, l)]
    if OPT["pf"]:
        o += [raw("s_getpc_b64 s[36:37]", w=["s36", "s37"]), label("Lpf"),
              S("s_lshr_b32", t0, "s2", 4), S("s_lshl_b32", t0, t0, 13), S("s_bitcmp1_b32", "s2", 3), S("s_cselect_b32", t1, "LroleY-Lpf", 0), S("s_add_u32", t0, t0, t1),
              V("v_lshl_add_u32", a, "v0", 5, t0), V("v_min_u32", a, "Lcodeend-Lpf", a), V("v_mov_b32", "v25", "s37"),
              I("v_add_co_u32 v24, vcc, s36, v19", "valu", w=["v24", "vcc"], r=["s36", "v19"]), I("v_addc_co_u32 v25, vcc, 0, v25, vcc", "valu", w=["v25", "vcc"], r=["v25", "vcc"]),
              I("global_load_dword v253, v[24:25], off", "vmem", w=["v253"], r=["v24", "v25"])]
        if OPT["pf2"]:
            o = o[:-1] + [V("v_accvgpr_write_b32", "a0", "v24"), V("v_accvgpr_write_b32", "a1", "v25"),
                  S("s_lshr_b32", t0, "s2", 4), S("s_lshl_b32", t0, t0, 10), S("s_add_u32", t0, t0, t1), V("v_lshl_add_u32", a, "v0", 2, t0), V("v_mov_b32", "v25", "s37"),
                  I("v_add_co_u32 v24, vcc, s36, v19", "valu", w=["v24", "vcc"], r=["s36", "v19"]), I("v_addc_co_u32 v25, vcc, 0, v25, vcc", "valu", w=["v25", "vcc"], r=["v25", "vcc"]), o[-1]]
    o += [V("v_xor_b32", a, g, m), V("v_lshlrev_b32", a, 4, a), V("v_lshl_add_u32", f"v{vDA}", g, 8, a), V("v_xor_b32", f"v{vDB}", 128, f"v{vDA}")]
    if OPT["dlin"]: o += [V("v_lshlrev_b32", f"v{vDA}", 4, l), V("v_lshlrev_b32", f"v{vDB}", 4, l)]
    if OPT["ob"]: o += [V("v_and_b32", a, 31, l), V("v_lshlrev_b32", a, 4, a), V("v_lshrrev_b32", b, 5, l), V("v_lshl_add_u32", "v22", b, 18, a)]
    o += [S("s_lshl_b32", sW4K, w, 12), S("s_mov_b32", sOFF, sW4K), S("s_mov_b32", sOFV, sW4K)]
    if OPT["rot"]:
        o += [S("s_lshr_b32", t0, "s2", 4)] + ([S("s_lshl_b32", t1, "s2", 1), S("s_and_b32", t1, t1, 14), S("s_add_u32", t0, t0, t1)] if OPT["rot"] == 2 else []) + ([S("s_lshl_b32", t0, t0, 1)] if OPT["rot"] == 3 else [])
        o += [S("s_and_b32", t0, t0, 15), S("s_lshl_b32", t0, t0, 14), S("s_add_u32", sOFF, sOFF, t0), S("s_mov_b32", sOFV, sOFF)]
    o += [S("s_mul_i32", "s28", w, 5 * 4096), S("s_add_u32", "s29", "s28", 4 * 4096)]
    if OPT["ab"]: o += [S("s_lshl_b32", "s30", w, 14), S("s_add_u32", "s30", "s30", 20 * 4096), S("s_and_b32", "s31", sW4K, "0x2000"), S("s_lshr_b32", "s31", "s31", 1), S("s_add_u32", "s31", "s31", 36 * 4096)]
    else: o += [S("s_add_u32", "s30", "s28", 18 * 4096), S("s_add_u32", "s31", "s28", 22 * 4096)]
    o += [S("s_bitcmp1_b32", "s2", 3), S("s_cselect_b64", ("s", 24, 2), ("s", 30, 2), ("s", 28, 2)), S("s_cselect_b64", ("s", 26, 2), ("s", 28, 2), ("s", 30, 2))]
    o += [S("s_and_b32", t0, "s2", 7), S("s_lshr_b32", t1, "s2", 4), S("s_lshl_b32", t0, t0, 4), S("s_add_u32", t0, t0, t1),
          S("s_mul_i32", t1, t0, 2 * HEADQ), S("s_lshl_b32", t0, t0, 19), S("s_mov_b32", "s6", 2 * HEADQ), S("s_mov_b32", "s7", "0x00020000")]
    o += [raw("s_waitcnt lgkmcnt(0)", k="salu")]
    if OPT["stamps"] and OPT["stm"] == 1: o += [raw("s_memtime s[48:49]"), raw("s_memrealtime s[50:51]")]
    o += [S("s_add_u32", "s4", "s8", t1), S("s_addc_u32", "s5", "s9", 0),
          S("s_add_u32", "s8", "s10", t0), S("s_addc_u32", "s9", "s11", 0), S("s_mov_b32", "s10", 2 * HEADK), S("s_mov_b32", "s11", "0x00020000")]
    srd2 = [S("s_add_u32", "s16", "s14", t1), S("s_addc_u32", "s17", "s15", 0), S("s_mov_b32", "s18", 2 * HEADQ), S("s_mov_b32", "s19", "0x00020000"),
          S("s_add_u32", "s12", "s12", t0), S("s_addc_u32", "s13", "s13", 0), S("s_mov_b32", "s14", 2 * HEADK), S("s_mov_b32", "s15", "0x00020000")]
    vl = [bload(("v", 24 + 4 * k, 4), "v22", sV, 0, 512 * k, mod=" nt") for k in range(2)] if OPT["ob"] else []
    parts = [R.qdma(0), R.dma("K", 0), R.dma("K", 1)] if OPT["so"] else [R.dma("K", 0), R.dma("K", 1), R.qdma(0)]
    k1late = []
    if OPT["so"] == 3: k1late = parts.pop(); parts = parts[::-1]
    if OPT["so"] == 4: k1late = parts.pop()
    parts.insert(OPT["bp"], srd2 + vl)
    for x in parts: o += x
    if OPT["stamps"]: o += [S("s_lshl_b32", "s100", "s2", 2), S("s_add_u32", "s100", "s100", w), S("s_mov_b32", "s101", "s2")] + ([S("s_mov_b32", "s95", 0)] if OPT["stm"] == 4 else [])
    if OPT["wu"]: o += [S("s_mov_b64", ("s", 96, 2), ("s", 8, 2)), S("s_mov_b64", ("s", 98, 2), ("s", 12, 2)), V("v_mov_b32", f"v{vQA+66}", 0)]
    o += [S("s_add_u32", "s26", "s26", HEADQ), S("s_add_u32", "s27", "s27", HEADQ)]
    o += [S("s_add_u32", "s33", sW4K, X0), V("v_and_b32", a, 1, g), V("v_lshlrev_b32", a, 6, a), V("v_lshrrev_b32", b, 1, g), V("v_lshl_add_u32", a, b, 4, a), V("v_lshl_add_u32", f"v{vG}", m, 8, a)]
    o += [V("v_and_b32", a, 3, m), V("v_and_b32", b, 4, m), V("v_lshl_add_u32", a, b, 1, a), V("v_lshlrev_b32", a, 4, a), V("v_xor_b32", a, a, f"v{vG}")]
    for ks in range(4):
        o += [V("v_xor_b32", b, KOFF(ks), a), V("v_add_u32", f"v{vKA+ks}", KB, b), V("v_add_u32", f"v{R.TA+ks}", "s33", b), V("v_add_u32", f"v{R.TA+4+ks}", KB + 49152 - X0, f"v{R.TA+ks}")]
    if OPT["qd"]: o += [V("v_mov_b32", f"v{vG}", f"v{R.TA}")]
    o += [V("v_lshrrev_b32", a, 2, l), V("v_and_b32", b, 3, a), V("v_and_b32", c, 4, a), V("v_lshl_add_u32", b, c, 1, b), V("v_and_b32", c, 2, l), V("v_lshl_add_u32", b, c, 1, b),
          V("v_lshlrev_b32", b, 4, b), V("v_and_b32", c, 1, l), V("v_lshl_add_u32", b, c, 3, b), V("v_lshl_add_u32", b, a, 8, b), V("v_add_u32", f"v{vVA}", VB, b)]
    o += [V("v_xor_b32", f"v{vVA+dt}", (dt & 3) * 16 + (dt >> 2) * 128, f"v{vVA}") for dt in range(1, 8)]
    o += [S("s_lshl_b32", t0, w, 8), S("s_add_u32", t0, t0, FLAG), V("v_lshl_add_u32", f"v{vFA}", l, 2, t0), V("v_mov_b32", f"v{vFE}", 0)]
    fi = ds_write("ds_write_b32", f"v{vFA}", f"v{vFE}", 0); fi.wt = {"cw"}; o.append(fi)
    o += [V("v_accvgpr_write_b32", f"a{aL+r}", 0) for r in range(12)]
    for msk, d in ((OPT["me"], a), (OPT["mo"], b), (OPT["mi_"], c)): o += [V("v_mov_b32", d, msk), V("v_bfe_i32", d, d, m, 1)]
    o += [V("v_and_b32", a, "0x3f803f80", a), V("v_and_b32", b, "0x3f803f80", b), V("v_and_b32", c, "0xaaaaaaaa", c), V("v_or_b32", f"v{vIDX}", "0x44444444", c)]
    o += [V("v_accvgpr_write_b32", f"a{aONE+i}", a) for i in range(4)] + [V("v_accvgpr_write_b32", f"a{aONE+4+i}", b) for i in range(4)]
    o += [S("s_mov_b32", sC, hex(CSCALE)), S("s_mov_b32", sC2, hex(CSCALE)), S("s_mov_b32", sMASK, "0xffff0000"), S("s_mov_b32", sTHR, hex(OPT["thr"])),
          S("s_mov_b64", sBAD[0], 0), S("s_mov_b64", sBAD[1], 0)]
    o += [S("s_and_b32", sD0, w, 1), S("s_lshl_b32", sFK, sD0, 13), S("s_lshl_b32", sD0, sD0, 7), S("s_or_b32", sFV, sFK, sD0)]
    if OPT["ob"]:
        x = [f"v{24+k}" for k in range(8)]; y = [f"v{32+k}" for k in range(8)]
        bo = [wait(need=x)] + [V("v_max_f32_e64", y[k], f"|{x[k]}|", f"|{x[4+k]}|") for k in range(4)]
        bo += [V("v_lshlrev_b32", x[k], 16, x[k]) for k in range(8)] + [V("v_max_f32_e64", y[4+k], f"|{x[k]}|", f"|{x[4+k]}|") for k in range(4)]
        bo += [swap("v_permlane16_swap_b32", y[k], y[4+k]) for k in range(4)] + [V("v_max_f32", y[k], y[k], y[4+k]) for k in range(4)]
        bo += [V("v_min3_f32", y[0], y[0], y[1], y[2]), V("v_min_f32", y[0], y[0], y[3])]
        bo += [V("v_min_f32_dpp", y[0], y[0], y[0], mod=f" row_ror:{k} row_mask:0xf bank_mask:0xf") for k in (8, 4, 2, 1)]
        bo += [V("v_and_b32", y[0], "0x7f800000", y[0]), V("v_min_f32", y[0], f32(2.0 ** 100), y[0]), V("v_mul_f32", y[0], f32(1.5 * 2.0 ** (OPT["kap"] - OPT["dlt"])), y[0]), nop(1)]
        bo += [V("v_readlane_b32", "s40", y[0], 0), V("v_readlane_b32", "s36", y[0], 16), V("v_readlane_b32", "s41", y[0], 32), V("v_readlane_b32", "s37", y[0], 48), nop(2),
               S("s_min_u32", "s40", "s40", "s36"), S("s_min_u32", "s41", "s41", "s37")]
    else: bo = []
    o += k1late
    if OPT["we"]: o += [S("s_bitcmp1_b32", "s2", 3), br("s_cbranch_scc1", "LroleY"), br("s_branch", "LroleX"), label("LwcX"), raw("s_mov_b64 vcc, 0")]
    if OPT["ep"]: bo += [V("v_accvgpr_write_b32", f"a{28+r}", "s40") for r in range(4)]
    if OPT["bq"]: o += bo
    if not OPT["so"] or OPT["sd"]: o += R.qdma(1)
    if not OPT["bq"]: o += bo
    o += [S("s_bitcmp1_b32", "s2", 3), br("s_cbranch_scc1", "LbodyY" if OPT["we"] else "LroleY")]
    return o

def setup_role(R, k):
    o = [S("s_xor_b32", sD1, sD0, 128)]
    if R.half[0]:
        o += [V("v_xor_b32", f"v{vKA+ks}", sFK, f"v{vKA+ks}") for ks in range(4)] + [V("v_xor_b32", f"v{vVA+dt}", sFV, f"v{vVA+dt}") for dt in range(8)]
    return o

def finish(R, k):
    o = []
    if OPT["stamps"]:
        n = R.nstamp
        o += [raw(f"s_memtime s[{44+4*n}:{45+4*n}]"), raw(f"s_memrealtime s[{46+4*n}:{47+4*n}]"), raw("s_waitcnt vmcnt(0) lgkmcnt(0)")]; n += 1
        o += [raw(f"s_memtime s[{44+4*n}:{45+4*n}]"), raw(f"s_memrealtime s[{46+4*n}:{47+4*n}]"), raw("s_waitcnt lgkmcnt(0)")]; n += 1
        assert n <= 13
        if OPT["pi"] >= 0:
            i, j, kk = OPT["pi"], OPT["pj"], OPT["pk_"]
            if not OPT["pall"]: o += [raw("s_and_b32 s101, s101, 0xf7"), raw("s_cmp_lg_u32 s101, 100"), raw(f"s_cbranch_scc1 Lfin{k}")]
            o += [raw(f"s_sub_u32 s36, s{44+4*j+2*kk}, s{44+4*i+2*kk}"), raw("s_mul_i32 s36, s36, 10") if kk else raw("s_lshr_b32 s36, s36, 1"),
                  raw("s_min_u32 s36, s36, 200000"), raw("s_memrealtime s[38:39]"), raw("s_waitcnt lgkmcnt(0)")] + ([raw(f"s_mov_b32 s36, {OPT['pfix']}"), raw("s_mov_b32 s38, s46")] if OPT["pfix"] else []) + [label(f"Lspin{k}"), raw("s_memrealtime s[40:41]"), raw("s_waitcnt lgkmcnt(0)"),
                  raw("s_sub_u32 s37, s40, s38"), raw("s_cmp_lt_u32 s37, s36"), raw(f"s_cbranch_scc1 Lspin{k}")]
        else:
            o += [raw("; STAMPS"), raw("s_load_dwordx2 s[40:41], s[0:1], 40"), raw("v_mov_b32 v16, 0")]
            for x in range(n): o += [raw(f"v_writelane_b32 v16, s{44+4*x}, {2*x}"), raw(f"v_writelane_b32 v16, s{46+4*x}, {2*x+1}")]
            o += [raw(f"v_writelane_b32 v16, {n}, 63"), raw("v_writelane_b32 v16, s95, 62"), raw("s_lshl_b32 s100, s100, 8"), raw("v_mbcnt_lo_u32_b32 v17, -1, 0"), raw("v_mbcnt_hi_u32_b32 v17, -1, v17"), raw("v_lshlrev_b32 v17, 2, v17"),
                  raw("s_waitcnt lgkmcnt(0)"), raw("s_mov_b32 s42, 0x100000"), raw("s_mov_b32 s43, 0x00020000"), raw("buffer_store_dword v16, v17, s[40:43], s100 offen"), raw("s_waitcnt vmcnt(0)")]
    o += [label(f"Lfin{k}")]
    if OPT["slow"]: o += [raw("s_or_b64 s[36:37], s[30:31], s[32:33]"), raw("s_cbranch_scc1 Lslow")]
    o += [raw("s_endpgm")] + R.stubs
    return o

MACROS = """.macro qa d,a,b,c
v_mfma_f32_16x16x32_bf16 v[\\d:\\d+3], a[\\a:\\a+3], v[\\b:\\b+3], v[\\c:\\c+3]
.endm
.macro qb d,a,b,c
v_mfma_f32_16x16x32_bf16 v[\\d:\\d+3], a[\\a:\\a+3], a[\\b:\\b+3], v[\\c:\\c+3]
.endm
.macro pv d,a,b
v_mfma_f32_16x16x32_bf16 a[\\d:\\d+3], a[\\a:\\a+3], v[\\b:\\b+3], a[\\d:\\d+3]
.endm
.macro pw d,a,b
v_mfma_f32_16x16x32_bf16 v[\\d:\\d+3], a[\\a:\\a+3], v[\\b:\\b+3], v[\\d:\\d+3]
.endm
.macro pa d,a,b
v_mfma_f32_16x16x32_bf16 a[\\d:\\d+3], v[\\a:\\a+3], a[\\b:\\b+3], a[\\d:\\d+3]
.endm
.macro pb d,a,b
v_mfma_f32_16x16x32_bf16 v[\\d:\\d+3], v[\\a:\\a+3], a[\\b:\\b+3], v[\\d:\\d+3]
.endm
.macro ex r
v_exp_f32 v\\r, v\\r
.endm
.macro cv d,a,b
v_cvt_pk_bf16_f32 v\\d, v\\a, v\\b
.endm
.macro lk d,a,o
ds_read_b128 a[\\d:\\d+3], v\\a offset:\\o
.endm
.macro lv d,a,o
ds_read_b64_tr_b16 a[\\d:\\d+1], v\\a offset:\\o
.endm
"""
def compact(txt):
    M = "    v_mfma_f32_16x16x32_bf16 "
    txt = re.sub(M + r"v\[(\d+):\d+\], a\[(\d+):\d+\], v\[(\d+):\d+\], v\[\1:\d+\]", r"pw \1,\2,\3", txt)
    txt = re.sub(M + r"v\[(\d+):\d+\], a\[(\d+):\d+\], v\[(\d+):\d+\], v\[(\d+):\d+\]", r"qa \1,\2,\3,\4", txt)
    txt = re.sub(M + r"v\[(\d+):\d+\], a\[(\d+):\d+\], a\[(\d+):\d+\], v\[(\d+):\d+\]", r"qb \1,\2,\3,\4", txt)
    txt = re.sub(M + r"a\[(\d+):\d+\], a\[(\d+):\d+\], v\[(\d+):\d+\], a\[\1:\d+\]", r"pv \1,\2,\3", txt)
    txt = re.sub(M + r"a\[(\d+):\d+\], v\[(\d+):\d+\], a\[(\d+):\d+\], a\[\1:\d+\]", r"pa \1,\2,\3", txt)
    txt = re.sub(M + r"v\[(\d+):\d+\], v\[(\d+):\d+\], a\[(\d+):\d+\], v\[\1:\d+\]", r"pb \1,\2,\3", txt)
    txt = re.sub(r"    v_exp_f32 v(\d+), v\1\n", r"ex \1\n", txt)
    txt = re.sub(r"    v_cvt_pk_bf16_f32 v(\d+), v(\d+), v(\d+)", r"cv \1,\2,\3", txt)
    txt = re.sub(r"    ds_read_b128 a\[(\d+):\d+\], v(\d+) offset:(\d+)", r"lk \1,\2,\3", txt)
    txt = re.sub(r"    ds_read_b64_tr_b16 a\[(\d+):\d+\], v(\d+) offset:(\d+)", r"lv \1,\2,\3", txt)
    return txt.replace("\n    ", "\n")

def sizes(l):
    import subprocess, tempfile, os
    d = tempfile.mkdtemp()
    t = "".join(f"Z{k}:\n" + re.sub(r"(s_c?branch\w*) \w+", r"\1 Z0", re.sub(r"(?m)^L\w+:\n", "", i.text())) for k, i in enumerate(l)) + f"Z{len(l)}:\ns_endpgm\n"
    open(d + "/a.s", "w").write(t)
    subprocess.run(["clang", "-x", "assembler", "-target", "amdgcn-amd-amdhsa", "-mcpu=gfx950", "-c", d + "/a.s", "-o", d + "/a.o"], check=True)
    out = subprocess.run(["llvm-objdump", "-t", d + "/a.o"], capture_output=True, text=True).stdout
    ad = {x.split()[-1]: int(x.split()[0], 16) for x in out.splitlines() if re.search(r" Z\d+$", x)}
    return [ad[f"Z{k+1}"] - ad[f"Z{k}"] for k in range(len(l))]
def warmup(l, tag, dense):
    def entry(r):
        o = [raw("s_mov_b64 vcc, -1")]
        for w in range(3): o += [raw(f"s_cmp_eq_u32 {sW4K}, {4096*w}"), raw(f"s_cbranch_scc1 Lw{tag}{r}_{w}")]
        if r == 0 and OPT["we"]: return o + [raw(f"s_branch Lw{tag}{r}_3")] + ([label("LwcY"), raw("s_branch LwcX")] if tag == "Y" else []) + [label(f"Lbody{tag}")]
        return o + [raw(f"s_branch Lw{tag}{r}_3"), label(f"Lwr{tag}{r}"), raw("s_mov_b64 vcc, 0")]
    l = entry(0) + l
    sz = sizes(l); esz = sum(sizes(entry(1))); total = sum(sz)
    idx = {id(x): k for k, x in enumerate(l)}
    isd = [False] * len(l)
    for a, b in dense:
        for k in range(idx[id(a)] if a is not None else 0, idx[id(b)] if b is not None else len(l)): isd[k] = True
    ends = [e * 4096 + 1024 for e in (OPT["wu1"], OPT["wu2"]) if e]
    out = []; pos = 0; win = False; pads = [[]]; nxt = OPT["wg"] if isd[0] else 4096
    for k, (i, z) in enumerate(zip(l, sz)):
        prev = l[k - 1] if k else None
        free = prev is not None and ismf(prev) and i.k not in SCAL and not i.nop
        if isd[k]: nxt = min(nxt, (pos // OPT["wg"] + 1) * OPT["wg"])
        if pos >= nxt and not win and (free or pos >= nxt + 40) and sum(sz[k:k + 40]) >= 128:
            p = raw(""); pads[-1].append(p); out.append(p); pos += 4
            nxt = (pos // 4096 + 1) * 4096
        elif ends and pos >= ends[0] and not win and free:
            out += entry(len(pads)); pos += esz; pads.append([]); ends.pop(0)
        if i.t.startswith("v_cmp") and "vcc" in i.w: win = True
        if i.cmt == "check": win = False
        out.append(i); pos += z
    for r, pl in enumerate(pads):
        assert len(pl) >= 4, (r, len(pl))
        for k, p in enumerate(pl):
            p.t = f"\nLw{tag}{r}_{k}:\n    s_cbranch_vccnz " + (f"Lw{tag}{r}_{k+4}" if k + 4 < len(pl) else (f"Lwc{tag}" if r == 0 and OPT["we"] else f"Lwr{tag}{r}"))
    if OPT["verbose"]: print("  pads per round:", [len(x) for x in pads])
    return out
def build():
    STC[0] = OPT["stc"]; DWP[0] = OPT["dwp"]; IMPR[0] = OPT["im"]; BW[0] = OPT["bw"]; NOPW[0] = OPT["nw"]; TA_LIM[0] = OPT["tal"]; VM_LAT[0] = OPT["vml"]
    if OPT["dw"]:
        import bisect
        sv = _st[0]; RX = Role("AB", "X"); RX.build(); RY = Role("BA", "Y"); RY.build(); _st[0] = sv
        ty = [i.st - RY.bstart[0].st for i in RY.prog if ismf(i)]
        for j in range(3, 30): LEAD[j] = bisect.bisect_left(ty, RX.bstart[j].st - RX.bstart[0].st) - RY.bstart[j].mi
        if OPT["verbose"]: print("  lead:", LEAD)
    com = setup_common()
    body = ""
    txt = []
    for k, types in enumerate((("AB", "BA") if OPT["ab"] else ("AA", "AA"))):
        R = Role(types, "XY"[k])
        main = R.build()
        su = setup_role(R, k)
        for i in com + su: i.st = -1000
        tr = insert_waits(com + su + main)
        while fix_hazards(tr, verbose=OPT["verbose"] > 1): pass
        e = verify2(tr); assert e == 0, e
        nc = len(com)
        if OPT["loopt"]:
            tr = [i for i in tr if i.cmt != "check"]; R.stubs = []
            i0 = tr.index(R.bstart[23]); i1 = tr.index(R.bstart[27])
            tr = tr[:i0] + [raw(f"s_mov_b32 s42, {OPT['loopt']}"), label(f"Llt{k}")] + tr[i0:i1] + [raw("s_sub_u32 s20, s20, 65536"), raw("s_sub_u32 s43, s43, 65536"), raw("s_sub_u32 s42, s42, 1"), raw("s_cmp_lg_u32 s42, 0"), raw(f"s_cbranch_scc1 Llt{k}")] + tr[i1:]
        if OPT["nost"]: tr = [i for i in tr if not (i.k == "vmem" and "store" in i.t and i.st > 75000)]
        if OPT["nodsw"]: tr = [i for i in tr if not (i.k == "dsw" and "b64" in i.t and i.st > 75000)]
        if OPT["nowait"]: tr = [i for i in tr if not (i.k == "wait" and i.st > 20000)]
        if OPT["nosync"]: tr = [i for i in tr if not ("v255" in i.t and i.st > 20000)]
        if OPT["nodma"]: tr = [i for i in tr if not (i.k == "vmem" and i.ring and i.ring[1] >= 4)]
        if OPT["samekv"]:
            for i in tr:
                if i.t == "s_add_u32 s20, s20, 16384": i.t = "s_xor_b32 s20, s20, 16384"
        if OPT["nosmf"]: tr = [i for i in tr if i.tag != "smf"]
        if OPT["nocvt"]: tr = [i for i in tr if not (i.t.startswith("v_cvt_pk") and 136 <= int(i.t.split()[1][1:-1]) < 216 and i.st > 8000)]
        if OPT["nobar"]: tr = [i for i in tr if i.k != "bar"]
        if OPT["noxor"]: tr = [i for i in tr if "0x2000, " not in i.t]
        if OPT["nolds"]: tr = [i for i in tr if not (i.k == "ds" and i.ring and i.ring[1] >= 2)]
        if OPT["noexp"]: tr = [i for i in tr if "v_exp" not in i.t]
        assert all(a is b for a, b in zip(tr[:nc], com))
        code = tr[nc:]
        if OPT["wu"]: code = warmup(code, "XY"[k], [x for b_, x in enumerate([(R.bstart[30], None), (None, R.bstart[0]), (R.bstart[15], R.bstart[17])]) if OPT["wd"] >> b_ & 1])
        txt.append("".join(i.text() for i in code + finish(R, k)))
        if OPT["verbose"]: print("  nops:", sum(i.nop for i in tr), "waits:", sum(i.k == "wait" for i in tr))
    slow = ""
    if OPT["slow"]:
        import slowpath4 as slowpath
        slow = slowpath.text(sys.modules[__name__])
    al = ".p2align 12" if OPT["wu"] or OPT["al"] else ".p2align 6"
    body = "".join(i.text() for i in com) + (("    s_branch LbodyX\n" if OPT["we"] else "    s_branch LroleX\n") + al + "\nLroleX:\n" if OPT["wu"] or OPT["al"] else "") + txt[0] + slow + al + "\nLroleY:\n" + txt[1] + "Lcodeend:\n    s_endpgm\n" + (".fill 4096, 4, 0xbf810000\n" if OPT["spf"] else "")
    return compact(body) if OPT["compact"] else body

HEAD = f"""; softmax(Q K^T / sqrt(128)) V, B8 H32 Sq608 Sk1024 D128, bf16 in / bf16 out. Hand-designed; the instruction order is emitted by my own list-scheduling script.
; One workgroup (4 waves, 512 registers each) per CU. Workgroups 16i+x and 16i+8+x share two heads (one after the other), each taking about half of the
; ring (LDS-DMA); waves synchronise through epoch flags in LDS. S^T = K Q'^T with Q' = bf16(Q * log2(e)/sqrt(128)), P = exp2(S - m), O += P V, l += P 1.
; Softmax guard: m = (true maximum of the row's first 16 keys) + 10, so m never exceeds the row's true maximum by more than 10 (nothing extra underflows).
; Every row sum l is checked at run time (l <= 2^40, not NaN); a wave that fails the check recomputes its rows at Lslow with the true row maximum.
; The fp32 output accumulators start from a small constant B (tied to the smallest column scale of V) that is subtracted again in the epilogue.
; The Lw* branches are never taken in normal flow (vcc = 0); twice per launch a wave sets vcc and hops through them to pull the first line of each code page into the I-cache.
; @launch grid=(256,1,1) block=(256,1,1) lds=163840
.amdgcn_target "amdgcn-amd-amdhsa--gfx950"
{MACROS}.text
.globl {NAME}_kernel
.p2align 8
.type {NAME}_kernel,@function
{NAME}_kernel:
"""
TAIL = f""".section .rodata,"a"
.p2align 6
.amdhsa_kernel {NAME}_kernel
  .amdhsa_next_free_vgpr 512
  .amdhsa_next_free_sgpr 102
  .amdhsa_accum_offset 256
  .amdhsa_group_segment_fixed_size 0
  .amdhsa_kernarg_size 48
  .amdhsa_user_sgpr_count 2
  .amdhsa_user_sgpr_kernarg_segment_ptr 1
  .amdhsa_system_sgpr_workgroup_id_x 1
  .amdhsa_float_denorm_mode_32 3
.end_amdhsa_kernel
"""
if __name__ == "__main__":
    txt = HEAD + build() + TAIL
    if OPT["leg"]: txt = txt.replace("v_exp_f32", "v_exp_legacy_f32")
    open(sys.argv[1], "w").write(txt)
```

```python
import heapq
from collections import deque
from asmir import *

SCAL = ("salu", "wait", "bar", "nop", "br")
DS_LAT = 112
def cost(i):
    if i.k == "valu": return 4
    if i.k in ("trans", "perm"): return 8
    if i.k == "ds": return 4
    if i.k == "dsw": return 22 if "b128" in i.t else (8 if "write_b32" in i.t else 12)
    if i.k == "vmem": return 4 if "store" in i.t or "global" in i.t else 8
    return 4
JIT = []; DWP = [0]; IMPR = [0]; BW = [4]; NOPW = [-1000]; TA_LIM = [10**9]; VM_LAT = [0]
STC = [64]
def ta_cost(i): return 256 if i.cmt == "strided" else (STC[0] if "store" in i.t else 64)
def lat_cyc(p, c, raw):
    if p.k == "ds" and raw: return DS_LAT
    if p.k == "vmem" and raw and (p.w & c.r or (p.cmt == "slow" and c.k == "wait")): return VM_LAT[0]
    if ismf(p) and raw and not ismf(c): return 36
    return 0

class Node:
    __slots__ = ("i", "idx", "pred", "succ", "np", "dl", "rt", "t", "pos", "mi", "mate", "hard")

def schedule(prog, verbose=False, name=""):
    N = []
    lastw = {}; readers = {}
    lastm = None; lastv = {}; lastseq = None
    mi = 0; fz = {}
    for idx, i in enumerate(prog):
        n = Node(); n.i = i; n.idx = idx; n.pred = {}; n.succ = []; n.t = None; n.pos = None; n.mi = None
        R_ = i.r | i.xr; W_ = i.w | i.xw
        for r in R_:
            p = lastw.get(r)
            if p is not None: n.pred[p] = True
        for r in W_:
            p = lastw.get(r)
            if p is not None: n.pred[p] = True
            for p in readers.get(r, ()):
                if p is not n: n.pred.setdefault(p, p.i.k == "ds" and i.k == "wait")
        for r in R_: readers.setdefault(r, []).append(n)
        for r in W_: lastw[r] = n; readers[r] = []
        if ismf(i):
            if lastm is not None: n.pred.setdefault(lastm, False)
            lastm = n; n.mi = mi; i.mi = mi; mi += 1
        if i.k == "vmem":
            cl = "st" if "store" in i.t else ("dma" if "lds" in i.t else "ld")
            if cl in lastv: n.pred.setdefault(lastv[cl], False)
            lastv[cl] = n
        n.pred.pop(n, None)
        for p in n.pred: p.succ.append(n)
        n.np = len(n.pred); n.rt = 0
        n.mate = None
        if i.fuse is not None:
            o = fz.pop(id(i.fuse), None)
            if o is None: fz[id(i.fuse)] = n
            else: n.mate = o; o.mate = n
        N.append(n)
    NM_ = mi
    for n in N: n.dl = None
    for n in list(reversed(N)) * (3 if IMPR[0] & 1 else 1):
        if n.mi is not None: n.dl = n.hard = n.mi; continue
        d = h = NM_ + n.idx * 1e-6
        if n.i.dlm is not None: d = min(d, n.i.dlm.mi)
        for s in n.succ:
            l = cost(n.i) / 8.0 + lat_cyc(n.i, s.i, s.pred[n]) / 16.0
            if n.i.k in SCAL: l = 1.0
            d = min(d, s.dl - l); h = min(h, s.hard - l)
        if n.i.cmt == "asap": d = h = -1000 + n.idx * 1e-3
        if IMPR[0] & 1 and n.mate is not None and n.mate.dl is not None: d = min(d, n.mate.dl)
        n.dl = d; n.hard = h
    for lo, hi, seed in JIT:
        if not seed: continue
        import random
        rnd = random.Random(seed); amp = rnd.choice([1, 2, 4, 8]); cls = {}
        for n in N:
            if n.mi is None and lo <= n.hard < hi and n.i.cmt != "asap":
                key = n.i.t.split()[0]
                if key not in cls: cls[key] = rnd.uniform(-amp, amp)
                n.dl = min(n.hard, n.dl + cls[key] + rnd.uniform(0, amp / 4))
    ms = [n for n in N if n.mi is not None]
    ready = [n for n in N if n.np == 0 and n.mi is None]
    out = []
    t = 0; pipe = 0; slot = False; last = None; cur = -1
    left = len(N); stall = 0; tm = -100; ta = 0; dwf = 0
    def haz_ok(n):
        d = 0; k = len(out) - 1
        while k >= 0 and d < 12:
            p = out[k]
            if required(p.i, n.i) > d: return False
            d += states(p.i); k -= 1
        return True
    def haz_need(n):
        d = 0; k = len(out) - 1; need = 0
        while k >= 0 and d < 12:
            p = out[k]
            need = max(need, required(p.i, n.i) - d)
            d += states(p.i); k -= 1
        return need
    def eff_cost(n):
        i = n.i
        if i.k in SCAL: return (0 if slot else 4) + (4 if i.cmt == "two" else 0)
        c = cost(i)
        if i.k in ("ds", "dsw", "vmem"):
            if last in VALUK: c += 8
            elif last in ("ds",) and i.k == "ds": c += 4
        return c
    def issue(n):
        nonlocal t, pipe, slot, last, cur, left, stall, tm, ta, dwf
        i = n.i
        if n.mate is not None and n.mate.t is None and n.mate.np == 0 and n.mate.rt <= t and t >= tm + 28 and haz_ok(n.mate):
            o = n.mate; f = Node(); f.i = i.fuse; f.i.st = t
            for x in (n, o):
                ready.remove(x); x.t = t; left -= 1
                for s_ in x.succ:
                    s_.np -= 1; s_.rt = max(s_.rt, t)
                    if s_.np == 0 and s_.mi is None: ready.append(s_)
            out.append(f); t += 4; slot = False; last = "valu"
            return
        if n.mi is not None:
            t0 = max(t, pipe, n.rt)
            if cur >= 0: stall += t0 - pipe
            n.t = t0; pipe = t0 + (32 if i.k == "mfma8" else 16); t = t0 + (12 if i.tag == "smf" else 8)
            slot = True; last = i.k; cur = n.mi; tm = t0
        else:
            ready.remove(n)
            c = eff_cost(n); t = max(t, n.rt); n.t = t; t += c
            if i.k == "vmem": ta = max(ta, n.t) + ta_cost(i)
            if i.k == "dsw" and DWP[0]:
                dwf = t - cost(i) + (52 if "b128" in i.t else DWP[0]); pipe = max(pipe, dwf - 8)
            if i.k == "bar": t += 8
            if i.k == "vmem" and "store" in i.t: pipe = max(pipe, t + 16)
            slot = False
            if i.k not in SCAL: last = i.k
        i.st = n.t
        out.append(n); left -= 1
        for s in n.succ:
            s.np -= 1
            s.rt = max(s.rt, n.t + lat_cyc(i, s.i, s.pred[n]))
            if s.np == 0 and s.mi is None: ready.append(s)
    while left:
        m = ms[cur + 1] if cur + 1 < NM_ else None
        m_ok = m is not None and m.np == 0
        m_rdy = m_ok and m.rt <= max(t, pipe) and haz_ok(m)
        budget0 = budget = pipe - t
        if cur >= 0 and ms[cur].i.lg: budget = max(budget, tm + 16 + ms[cur].i.lg - t)
        cand = [n for n in ready if (n.i.nb is None or n.i.nb.mi <= cur or n.dl <= cur + 1) and n.rt <= t
                and not (n.i.k == "vmem" and ta - t > TA_LIM[0] and n.hard > cur + 1)]
        cand.sort(key=lambda n: (n.dl, n.idx))
        blocked = [n for n in ready if n.dl <= cur + NOPW[0] and n.rt <= t + 48 and (n.i.nb is None or n.i.nb.mi <= cur + 2)]
        cand = [n for n in cand[:60 if IMPR[0] & 4 else 24] if haz_ok(n)]
        pick = None
        atstart = last in ("mfma", "mfma8")
        if slot:
            sc = [n for n in cand if n.i.k in SCAL]
            if sc: pick = sc[0]
        if pick is None and (atstart or m is None):
            pr = [n for n in cand if n.i.cmt == "prio"]
            if pr: pick = pr[0]
        if pick is None and cand:
            fit = [n for n in cand if eff_cost(n) <= budget and not (n.i.k == "vmem" and "store" in n.i.t and not atstart)]
            top = cand[0]
            mem = [n for n in cand if n.i.k in ("ds", "dsw", "vmem")]
            if atstart and mem and (mem[0] is top or top.i.k == "valu" or top.i.k in SCAL or (mem[0].dl <= cur + 2)):
                x = mem[0]
                if eff_cost(x) <= budget or cost(x.i) > 8 or x.dl <= cur + 2 or not m_rdy:
                    if not (top.i.k == "valu" and cost(x.i) > 4 and top.dl <= cur + 2 and x.dl > cur + 4): pick = x
            if pick is None and fit: pick = fit[0]
            if pick is None and top.dl <= cur + 1 and top.i.k not in ("ds", "dsw", "vmem"): pick = top
            if pick is None and not m_rdy: pick = top
        if IMPR[0] & 2 and pick is not None and pick.mate is not None and pick.mate.t is None and (t < tm + 28 or pick.mate.np) and cand[0].dl <= cur + 1:
            alt = [n for n in cand if n.mate is None and n.i.k in VALUK and n.dl <= pick.dl + BW[0] and (eff_cost(n) <= budget or eff_cost(pick) > budget)]
            if alt: pick = alt[0]
        if pick is not None and pick.i.k == "dsw" and t < dwf:
            alt = [n for n in cand if n.i.k in VALUK]
            if alt and not atstart: pick = alt[0]
        if pick is None and m_rdy and blocked and budget0 >= 4:
            need = max(haz_need(n) for n in sorted(blocked, key=lambda n: n.dl)[:2]) - 1
            k = min(need, (budget0 + (4 if slot else 0)) // 4)
            if k >= 1:
                f = Node(); f.i = nop(k); f.i.st = t; out.append(f)
                t += 4 * k - (4 if slot else 0); slot = False
                continue
        if pick is not None: issue(pick)
        elif m_rdy: issue(m)
        else:
            later = [n for n in ready if n.rt > t]
            if m_ok and m.rt <= max(t, pipe):
                issue(m)
            elif (m_ok or later) and t < max([n.rt for n in later] + [m.rt if m_ok else 0]):
                t += 4; slot = False
            else:
                r = sorted(ready, key=lambda n: (n.dl, n.idx))
                assert r, "deadlock"
                issue(r[0])
    if verbose: print(f"sched {name}: {len(N)} instrs, {NM_} mfma, est cycles {max(t,pipe)}, mfma stall {stall}")
    return [n.i for n in out]

def insert_waits(seq, lq=None, vq=None):
    lq = deque() if lq is None else lq; vq = deque() if vq is None else vq
    out = []
    def retire(w):
        if w.lg is not None:
            while len(lq) > w.lg: lq.popleft()
        if w.vm is not None:
            while len(vq) > w.vm: vq.popleft()
    for i in seq:
        if i.k == "wait":
            for q, a in ((lq, "lg"), (vq, "vm")):
                lastn = -1
                for n, (o, _) in enumerate(q):
                    if (o.w | o.wt) & i.need: lastn = n
                if lastn >= 0:
                    cnt = len(q) - 1 - lastn; cur = getattr(i, a)
                    setattr(i, a, cnt if cur is None else min(cur, cnt))
            retire(i); out.append(i); continue
        touch = i.r | i.w
        for q, a, mx in ((lq, "lg", 15), (vq, "vm", 63)):
            lastn = -1
            for n, (o, _) in enumerate(q):
                if o.w & touch: lastn = n
            isq = (i.k in ("ds", "dsw")) if a == "lg" else (i.k == "vmem")
            if lastn < 0 and isq and len(q) >= mx: lastn = 0
            if lastn < 0: continue
            opos = q[lastn][1]
            pos = len(out); k = len(out) - 1; tries = 0
            while k > opos and tries < 3:
                if ismf(out[k]):
                    tries += 1
                    nxt = out[k + 1] if k + 1 < len(out) else None
                    early_ok = tries == 1 or (a == "lg" and out[k].st - q[lastn][0].st >= 96)
                    if not early_ok: break
                    if nxt is None or nxt.k not in SCAL: pos = k + 1; break
                    if nxt.k == "wait" and not nxt.need: pos = -(k + 1); break
                if out[k].k in ("label", "br"): break
                k -= 1
            apos = abs(pos)
            tpos = out[apos - 1].st if apos > 0 and out[apos - 1].st is not None else None
            if a == "lg" and tpos is not None:
                for n in range(lastn + 1, len(q)):
                    if q[n][1] < apos and q[n][0].st is not None and tpos - q[n][0].st >= DS_LAT: lastn = n
            cnt = sum(1 for n in range(lastn + 1, len(q)) if q[n][1] < apos)
            if pos < 0:
                w = out[apos]; cur = getattr(w, a); setattr(w, a, cnt if cur is None else min(cur, cnt))
            else:
                w = wait(); setattr(w, a, cnt); w.st = tpos
                out.insert(apos, w)
                for qq in (lq, vq):
                    for n in range(len(qq)):
                        if qq[n][1] >= apos: qq[n] = (qq[n][0], qq[n][1] + 1)
            for _ in range(lastn + 1): q.popleft()
        if i.k in ("ds", "dsw"): lq.append((i, len(out)))
        elif i.k == "vmem": vq.append((i, len(out)))
        out.append(i)
    return out

def verify2(trace):
    lq = deque(); vq = deque(); errs = 0
    landed = {}; visible = {}; slotof = {}; readdone = {}; nbar = 0; privl = {}; arrived = False; snap = {}
    for i in trace:
        if i.k == "wait":
            if i.lg is not None:
                while len(lq) > i.lg:
                    o = lq.popleft()
                    if o.ring and o.cmt != "early": readdone[o.ring] = nbar + (1 if arrived else 0)
            if i.vm is not None:
                while len(vq) > i.vm:
                    o = vq.popleft()
                    if o.ring: landed[o.ring] = landed.get(o.ring, 0) + 1
                    if o.priv: privl[o.priv] = privl.get(o.priv, 0) + 1
            continue
        if i.k == "bar":
            nbar += 1; visible.update(landed); continue
        if i.cmt == "arrive":
            snap = dict(landed); arrived = True
            for o in lq:
                if o.ring: o.cmt = "early"; readdone[o.ring] = nbar
        if i.cmt == "check":
            nbar += 1; visible.update(snap); arrived = False; continue
        for q in (lq, vq):
            for o in q:
                if o.w & (i.r | i.w): print(f"  ERR pending load [{o.t}] vs [{i.t}]"); errs += 1
        if i.k in ("ds", "dsw"):
            if i.ring:
                kind, b = i.ring
                if visible.get(i.ring, 0) < 4: print(f"  ERR RAW {i.ring} not visible at [{i.t}]"); errs += 1
                if slotof.get((kind, b % 4)) != b: print(f"  ERR slot overwritten {i.ring} at [{i.t}]"); errs += 1
            if i.priv and privl.get(i.priv, 0) < 4: print(f"  ERR priv RAW {i.priv}"); errs += 1
            lq.append(i)
            if len(lq) > 15: print("  ERR lgkm overflow"); errs += 1
        elif i.k == "vmem":
            if i.ring:
                kind, b = i.ring; old = (kind, b - 4)
                if b >= 4:
                    if any(o.ring == old for o in lq) or old not in readdone or readdone[old] >= nbar:
                        print(f"  ERR WAR DMA {i.ring}"); errs += 1
                if any(o.priv and o.priv[1] == (kind, b % 4) for o in lq): print(f"  ERR WAR priv {i.ring}"); errs += 1
                slotof[(kind, b % 4)] = b
            if i.priv and any(o.priv and o.priv[1] == i.priv[1] for o in lq): print(f"  ERR WAR priv dma {i.priv}"); errs += 1
            vq.append(i)
            if len(vq) > 63: print("  ERR vm overflow"); errs += 1
    return errs
```

```python
import sys, struct, math, re
from asmir import *
from sched import *

NAME = "standalone__mha_softmax__near_ridge"
OPT = dict(v2=1, jsX=0, jtX=0, jfX=0, jsY=0, jtY=0, jfY=0, stg=0, stb=13, jit=0, eu=12, eo=0, cm=0, we=0, leg=0, lfix=0, me=0x3333, mo=0xcccc, mi_=0xaaaa, dwp=0, dlin=0, qd=0, qs=10, q0=1, qlin=0, sgx=4, dsp=15, dw=10, dx=-14, dy=0, dc=85, al=0, wu=1, wu1=14, wu2=0, wd=0, wg=512, fin=1, pf2=0, rot=0, sp=0, es=1, dfr=0, po=0, im=7, bw=10, stc=64, gt=0, gp_=1, gr=0, nw=40, hl=30, df0=17, df1=2, tf=12, sm=0, to=0, pfix=0, eh=1, vb=0, c4=0, swp=1, gl=1, tl=0, h0=115, h1=30, h2=195, h3=30, hd=260, nost=0, nodsw=0, ep=0, epo=0, l0=40, l1=110, l2=90, l3=40, sv=0, sd=0, asap=1, kq=4, rb=3, kalt=1, sg0=2, sg1=140, vml=3500, tal=0, bp=0, bq=1, ob=1, kap=7, obias=0, dlt=10, olast=0, o2=0, one0=0, cz=0, nosnake=0, so=0, tch=0, u0=66, u1=19, u2=19, ov=1, ddl=130, cd=1, loopt=0, nowait=0, nosync=0, spf=0, spd=6144, sdl=24, tdl=16, fl=1, flr=20, stm=0, samekv=0, nosmf=0, nocvt=0, nodma=0, nobar=0, noxor=0, nolds=0, noexp=0, xd=0, thr=0x53800000, lagc=50, lagmax=240, stamps=0, kv=1, kvy=1, q=1, o0=4, o1=4, ab=1, pf=1, e0=7, pk=1, pi=-1, pj=0, pk_=1, pall=0, verbose=0, compact=1, slow=1)
MODS = ["", " nt", " sc1", " sc1 nt", " sc0 sc1", " sc0 sc1 nt", " sc0", " sc0 nt"]
for a in sys.argv[2:]:
    k, v = a.split("="); assert k in OPT, k; OPT[k] = int(v, 0)
vKA = 0; vVA = 4; vDA, vDB = 12, 13; vIDX = 14; vG = 15
vS = 16; vNM = 36; vQA = 56; vP = 136; vQB = 216; vT = 252
aO = 0; aL = 160; aONE = 172; aV = 180; aK = 196; aQB = 212
sQ, sK, sV, sO = 4, 8, 12, 16
sOFF = "s20"; sW4K = "s21"; sC = "s22"; sC2 = "s23"
sROW = [["s24", "s25"], ["s26", "s27"]]
sMASK = "s28"; sTHR = "s29"; sBAD = [("s", 30, 2), ("s", 32, 2)]; sFK = "s34"; sFV = "s35"; sD0 = "s3"; sD1 = "s2"
sOFV = "s94" if OPT["rot"] else "s43"; sB = ["s40", "s41"]
sTMP = [f"s{i}" for i in range(36, 40)]
HEADQ = 608 * 256; HEADK = 1024 * 256
CSCALE = struct.unpack("<I", struct.pack("<f", math.log2(math.e) / math.sqrt(128.0)))[0]
X1 = 0; X0 = 16384; KB = 32768; VB = 98304; FLAG = 1024
vFA, vFE = 254, 255
_st = [0]
def stmp():
    _st[0] = (_st[0] + 1) % len(sTMP); return sTMP[_st[0]]
def SS(op, d, *src):
    i = S(op, d, *src); i.w.discard("scc"); return i

def Sx(n): return ("v", vS + 4 * n, 4)
def NM(n): return ("v", vNM + 4 * n, 4)
def Q(p, n, ks):
    f = 4 * n + ks
    if p == 0: return ("v", vQA + 4 * f, 4)
    return ("a", aQB + 4 * f, 4) if f < 11 else ("v", vQB + 4 * (f - 11), 4)
def P(par, n, ks): return ("v", vP + 40 * par + 8 * n + 4 * ks, 4)
def O(n, dt): return ("a", aO + 32 * n + 4 * dt, 4)
def OP(p, n, dt):
    if p == 1 and n < 2 and OPT["ov"]: return ("v", vQA + 32 * n + 4 * dt, 4)
    return O(n, dt)
def mul2(d, a, m):
    if m[0] == "s": l = [V("v_mul_f32", f"v{d+k}", m, f"v{a+k}") for k in range(2)]; f = V("v_pk_mul_f32", ("v", d, 2), ("v", a, 2), ("s", 22, 2))
    else:
        r = int(m[1:]); l = [V("v_mul_f32", f"v{d+k}", f"v{a+k}", m) for k in range(2)]
        f = V("v_pk_mul_f32", ("v", d, 2), ("v", a, 2), ("v", r & ~1, 2), mod=" op_sel:[0,1] op_sel_hi:[1,1]" if r & 1 else " op_sel_hi:[1,0]")
        f.r.discard(f"v{r^1}")
    if OPT["pk"]: l[0].fuse = l[1].fuse = f
    return l
def f32(x): return hex(struct.unpack("<I", struct.pack("<f", float(x)))[0])
def fmap(d, a, m, c):
    l = [V("v_fma_f32", f"v{d+k}", f"v{a+k}", f"v{m+k}", f"v{c+k}") for k in range(2)]
    if OPT["pk"]: l[0].fuse = l[1].fuse = V("v_pk_fma_f32", ("v", d, 2), ("v", a, 2), ("v", m, 2), ("v", c, 2))
    return l
def colput(LW, slot, a, b, gate=()):
    i = I(f"ds_write2_b32 v{LW}, v{a}, v{b} offset0:{16*slot} offset1:{16*slot+16}", "dsw", r=[f"v{LW}", f"v{a}", f"v{b}"])
    i.xw = {f"Fq{slot}", f"Fq{slot+1}"}; i.xr = set(gate); return i
def rowget(d, LR, slot):
    i = ds_read("ds_read_b128", ("v", d, 4), f"v{LR}", 64 * slot); i.xr = {f"Fq{slot}"}; return i
def VA2(dt): return f"v{P(dt // 4, 4, 1)[1] + dt % 4}"
def KOFF(ks): return (ks & 1) * 32 + (ks >> 1) * 128
def L(n): return ("a", aL + 4 * (n // 2), 4)
def Lr(n): return aL + 4 * (n // 2) + 2 * (n % 2)
def ONE(n): return ("a", aONE + 4 * (n % 2), 4)

LEAD = {}
class Role:
    def __init__(s, types, tag):
        s.half = [t == "B" for t in types]; s.tag = tag
        s.kst = [[s.half[0], 0] for _ in range(4)]; s.vst = [[s.half[0], 0] for _ in range(8)]
        s.prog = []; s.hints = []; s.nstamp = 0; s.epoch = 0; s.stubs = []
    def add(s, *l):
        for x in l:
            if isinstance(x, list): s.prog += x
            else: s.prog.append(x)
    def hint(s, i, m, off, attr="nb"): s.hints.append((i, m, off, attr)); return i
    def addr(s, st, reg, half, h, sflip):
        o = []
        if st[0] != half:
            if st[1]: o.append(V("v_xor_b32", reg, "0x2000", reg)); st[1] = 0
            o.append(V("v_xor_b32", reg, sflip, reg)); st[0] = half
        if not half: return o, h * 8192
        if st[1] != h: o.append(V("v_xor_b32", reg, "0x2000", reg)); st[1] = h
        return o, 0
    def kread(s, dst, b, t, ks):
        o, off = s.addr(s.kst[ks], f"v{vKA+ks}", s.half[b // 16], t >> 1, sFK)
        i = ds_read("ds_read_b128", dst, f"v{vKA+ks}", (b % 4) * 16384 + off + (t & 1) * 4096)
        i.ring = ("K", b); i.xr = {f"cK{b}", f"oK{b}"}; i.wt = {f"rK{b}"}
        return o + [i]
    def vread(s, dst, b, dt, ks):
        reg = f"v{vVA+dt}"; hb = s.half[b // 16]
        if OPT["v2"]:
            o = []; off = 0 if hb else ks * 8192
            if s.vst[dt][0] != hb:
                o.append(V("v_xor_b32", reg, sFV, reg)); s.vst[dt][0] = hb
                if hb: o.append(V("v_xor_b32", VA2(dt), "0x2000", reg))
            if hb and ks: reg = VA2(dt)
        else: o, off = s.addr(s.vst[dt], reg, hb, ks, sFV)
        for u in range(2):
            i = ds_read("ds_read_b64_tr_b16", (dst[0], dst[1] + 2 * u, 2), reg, (b % 4) * 16384 + off + u * 4096)
            i.ring = ("V", b); i.xr = {f"cV{b}", f"oV{b}"}; i.wt = {f"rV{b}"}
            o.append(i)
        return o
    def vks(s, b, dt, pref):
        if s.half[b // 16] and s.vst[dt][0] and not OPT["v2"]: return [s.vst[dt][1], s.vst[dt][1] ^ 1]
        return pref
    def dma(s, kind, b, gate=None):
        o = []
        so = sOFF if kind == "K" else sOFV
        gl = OPT["gl"] and b >= 4; gp = 96 if kind == "K" else 98
        srd = sK if kind == "K" else sV
        if OPT["rot"]:
            if b > 0: o += [SS("s_add_u32", so, so, 16384), SS("s_bitset1_b32" if b >= 16 else "s_bitset0_b32", so, 18)] + ([SS("s_bitset0_b32", so, 19)] if b > 16 else [])
            if gl: o.append(raw(f"s_add_u32 s{gp}, s{srd}, {so}\n    s_addc_u32 s{gp+1}, s{srd+1}, 0", w=[f"s{gp}"], r=[so])); o[-1].cmt = "two"
        elif gl:
            if b == 4:
                o.append(raw(f"s_add_u32 s{gp}, s{srd}, {so}\n    s_addc_u32 s{gp+1}, s{srd+1}, 0", w=[f"s{gp}"], r=[so])); o[-1].cmt = "two"
            o.append(raw(f"s_add_u32 s{gp}, s{gp}, 16384\n    s_addc_u32 s{gp+1}, s{gp+1}, 0", w=[f"s{gp}"], r=[f"s{gp}"])); o[-1].cmt = "two"
        elif b > 0: o.append(SS("s_add_u32", so, so, 16384))
        o.append(SS("s_add_u32", "m0", sW4K, (b % 4) * 16384 + (VB if kind == "V" else KB)))
        for k in range(4):
            i = dma(f"v{vDA if k % 2 == 0 else vDB}", sK if kind == "K" else sV, so, k * 1024, mod=MODS[OPT["kvy" if s.tag == "Y" and b >= 3 else "kv"]])
            if gl:
                va = f"v{vDA if k % 2 == 0 else vDB}"
                i = I(f"global_load_lds_dwordx4 {va}, s[{gp}:{gp+1}] offset:{k*1024}{MODS[OPT['kv']]}", "vmem", r=[va, f"s{gp}", "m0"])
            i.ring = (kind, b); i.wt = {f"d{kind}{b}"}; i.xw = {f"i{kind}{b}"}
            if gate: i.xr = {gate}
            o.append(i)
        return o
    def barrier(s, close, opn, gate=None, extra_need=(), extra_w=(), extra_r=()):
        w = wait(need=[f"r{x}" for x in close] + [f"d{x}" for x in opn] + list(extra_need))
        w.xw = {f"c{x}" for x in close} | {"barseq"}; w.xr = {f"i{x}" for x in opn} | set(extra_r)
        b = bar(); b.xr = {"barseq"}; b.xw = {f"o{x}" for x in opn} | ({gate} if gate else set()) | set(extra_w)
        return [w, b]
    def sync(s, close, opn, m, gate=None, extra_need=(), extra_w=(), extra_r=(), off_bar=0, off_rd=0):
        if not OPT["fl"]:
            bl = s.barrier(close, opn, gate, extra_need, extra_w, extra_r); s.hint(bl[0], m, off_bar); return bl
        s.epoch += 1; e = s.epoch; tag = f"{s.tag}{e}"
        w = wait(need=[f"d{x}" for x in opn]); w.xr = {f"i{x}" for x in opn}; w.xw = {"flseq"}; s.hint(w, m, 0)
        a = ds_write("ds_write_b32", f"v{vFA}", f"v{vFE}", 0); a.xr = {"flseq"} | set(extra_r); a.xw = {f"c{x}" for x in close}; a.cmt = "arrive"
        r = ds_read("ds_read_b32", f"v{vFE}", f"v{vDA}", FLAG); s.hint(r, m, off_rd)
        c = V("v_cmp_gt_u32", "vcc", e, f"v{vFE}")
        b = I(f"s_cbranch_vccnz Ls{tag}\nLr{tag}:", "br", r=["vcc", f"v{vDA}"], w=["vcc", f"v{vFE}"]); b.cmt = "check"
        b.xw = {f"o{x}" for x in opn} | ({gate} if gate else set()) | set(extra_w)
        s.stubs += [label(f"Ls{tag}"), raw(f"ds_read_b32 v{vFE}, v{vDA} offset:{FLAG}"), raw("s_waitcnt lgkmcnt(0)"), raw(f"v_cmp_gt_u32 vcc, {e}, v{vFE}"), raw("s_nop 0"),
                    raw(f"s_cbranch_vccnz Ls{tag}")] + ([raw("s_add_u32 s95, s95, 1")] if OPT["stm"] == 4 else []) + [raw(f"s_branch Lr{tag}")]
        if OPT["cd"]: s.hint(b, m, off_rd + 8 + OPT["cd"])
        mv = V("v_mov_b32", f"v{vFE}", e)
        for i in (w, a): s.hint(i, m, max(0, off_rd - 10), "dlm")
        return ([w] if opn else []) + [mv, a, r, c, b]
    def chain(s, p, n, sq, kf, czero):
        order = [0, 1, 2, 3] if n % 2 == 0 or OPT["nosnake"] else [3, 2, 1, 0]
        return [mfma(sq, kf(ks), Q(p, n, ks), sq if k else ("0" if czero or OPT["cz"] else NM(n))) for k, ks in enumerate(order)]
    def rowmax(s, n, sq, a, b):
        x = [f"v{sq[1]+r}" for r in range(4)]
        l = [V("v_max3_f32", a, x[0], x[1], x[2]), V("v_max_f32", a, a, x[3])] + ([V("v_add_f32", a, hex(struct.unpack("<I", struct.pack("<f", OPT["dlt"] + OPT["dfr"] / 10.0))[0]), a)] if OPT["dlt"] else []) + [V("v_mov_b32", b, a),
             swap("v_permlane16_swap_b32", a, b), V("v_max_f32", a, a, b), V("v_mov_b32", b, a), swap("v_permlane32_swap_b32", a, b)]
        if OPT["cm"]: l += [V("v_mov_b32", a, f32(OPT["cm"] / 10.0)), V("v_mov_b32", b, a)]
        l += [V("v_min_f32", f"v{vNM+4*n+r}", "-" + a, "-" + b) for r in range(4)]
        l += [V("v_add_f32", x[r], x[r], f"v{vNM+4*n}") for r in range(4)]
        return l
    def expcvt(s, par, n, t, sq, pb=None):
        l = []
        if pb is None: pb = vP + 40 * par + 8 * n
        for h in range(2):
            x0, x1 = f"v{sq[1]+2*h}", f"v{sq[1]+2*h+1}"
            l += [V("v_exp_f32", x0, x0), V("v_exp_f32", x1, x1), V("v_cvt_pk_bf16_f32", f"v{pb+2*t+h}", x0, x1)]
        return l
    def smf(s, b, n, pb=None):
        if pb is None: pb = vP + 40 * (b % 2) + 8 * n
        if s.half[b // 16] and n == 4: return mfma(L(4), ONE(4), ("v", pb, 4), L(4))
        return smfmac(L(n), ONE(n), ("v", pb, 8), f"v{vIDX}")
    def scale(s, src, dst, ta, pk=False):
        a, b = f"v{ta}", f"v{ta+1}"
        l = [V("v_lshlrev_b32", a, 16, src), V("v_and_b32", b, sMASK, src)]
        l += mul2(ta, ta, sC)
        if dst[0] == "v": return l + [V("v_cvt_pk_bf16_f32", dst, a, b)]
        return l + [V("v_cvt_pk_bf16_f32", a, a, b), V("v_accvgpr_write_b32", dst, a)]
    def rowoff(s, p, n, extra=None):
        t = stmp()
        i = SS("s_add_u32", t, sROW[p][0], n * 4096) if n < 4 else SS("s_mov_b32", t, sROW[p][1])
        if extra is None: return t, [i]
        return t, [i, SS("s_add_u32", t, t, extra)]
    def stamp(s, m=None, off=0):
        if not OPT["stamps"]: return
        k = s.nstamp; s.nstamp += 1; assert k < 14
        a = raw(f"s_memtime s[{44+4*k}:{45+4*k}]"); b = raw(f"s_memrealtime s[{46+4*k}:{47+4*k}]")
        for i in (a, b):
            if m is not None: s.hint(i, m, off); s.hint(i, m, off + 2, "dlm")
            else: i.xw = {"seq"}
        s.add(a, b)

    QREG = [(KB + 32768, ("K", 2)), (VB + 16384, ("V", 1)), (VB + 32768, ("V", 2)), (KB + 49152, ("K", 3)), (X0, "X0")]
    TA = 236
    def qdma(s, n):
        t, o = s.rowoff(0, n)
        o.append(SS("s_add_u32", "m0", sW4K, s.QREG[n][0]))
        for k in range(4):
            i = dma(f"v{vDA if k % 2 == 0 else vDB}", sQ, t, k * 1024, mod=MODS[OPT["q"]])
            i.wt = {f"dQ{n}"}; i.priv = (n, s.QREG[n][1]); o.append(i)
        return o
    def start(s):
        half = s.half[0]; TA = s.TA
        def seq(l):
            for i in l:
                if i.k in ("vmem", "wait", "bar"): i.xw = i.xw | {"seq"}
                if OPT["asap"] and i.k in ("vmem", "salu"): i.cmt = "asap"
            return l
        KF = lambda b, t: (lambda ks: ("a", 96 + 16 * t + 4 * ks, 4) if b == 0 else Q(1, t, ks))
        s.KF = KF
        def kpart(bs, dm, order, sq):
            if OPT["stm"] == 1 and 0 in bs: s.stamp()
            bl = seq(s.barrier([], [f"K{b}" for b in bs], extra_need=["cw"]))
            s.add(bl[0], seq(dm), bl[1]) if not OPT["so"] else s.add(bl, seq(dm))
            if OPT["stm"] == 1 and 0 in bs: s.stamp()
            for k, (b, t) in enumerate(order):
                for ks in range(4):
                    l = s.kread(KF(b, t)(ks), b, t, ks)
                    if sq and k < OPT["kq"]: l[-1].xr = l[-1].xr | {"seq"}
                    s.add(l)
        if not OPT["so"]:
            kpart([0, 1], s.qdma(2) + (s.qdma(3) if OPT["sd"] else []), ((0, 0), (0, 1), (0, 2), (0, 3), (1, 2), (1, 3), (1, 0), (1, 1)), True)
        nxt = [s.qdma(3), s.qdma(4), s.dma("V", 0), s.dma("K", 2), s.dma("V", 1)]
        late = []; EP = {}
        if OPT["ep"]:
            nxt = [nxt[2], nxt[0], nxt[1], nxt[3], nxt[4]]
            EP = [{5: [0], 6: [1, 2], 7: [3]}, {6: [0, 1], 7: [2, 3]}, {5: [0, 1], 6: [2, 3]}, {6: [0, 1], 7: [2], 8: [3]}, {6: [0, 1], 8: [2, 3]}, {5: [0, 1], 7: [2, 3]}][OPT["epo"]]
        def grpA(q):
            rd, mm = s.pvgroup(0, q, [0, 1, 2], aK if q % 2 == 0 else aV, lambda n: ("a", 28, 4) if OPT["ob"] else "0")
            if q < 3: mm.append(s.smf(0, q))
            s.add(rd, mm); return mm
        if OPT["sv"] & 1: nxt[1], nxt[2] = nxt[2], nxt[1]
        if OPT["sv"] & 2: late = nxt[3] + nxt[4]; nxt[3] = []; nxt[4] = []
        if OPT["sv"] & 4: late = nxt[4]; nxt[4] = nxt[3]; nxt[3] = []
        if OPT["sd"]: nxt = nxt[1:] + [[]]
        k1d = nxt[0]
        if OPT["so"]: nxt[0] = s.qdma(1 + OPT["sd"])
        s.sc = 0
        for n in range(5):
            w = wait(need=[f"dQ{n}"]); w.xw = {"seq", f"oQ{n}"}; s.add(w)
            if n == 0 or n == 4 or OPT["stm"] == 1: s.stamp()
            base = TA + (4 if n in (1, 2, 3) else 0); off = s.QREG[n][0] - (KB + 49152 if n in (1, 2, 3) else X0)
            for ks in range(4):
                i = ds_read("ds_read_b128", Q(0, n, ks), f"v{base+ks}", off); i.xr = {f"oQ{n}", f"cQ{n}", "seq"}; i.priv = (n, s.QREG[n][1]); i.wt = {f"rQ{n}"}; s.add(i)
            s.add(seq(nxt[n]))
            if OPT["pf2"] and n == OPT["pf2"]:
                s.add(V("v_accvgpr_read_b32", f"v{TA+8}", "a0"), V("v_accvgpr_read_b32", f"v{TA+9}", "a1"),
                      seq([I(f"global_load_dword a{aQB+43}, v[{TA+8}:{TA+9}], off" if 0 else f"global_load_dword a95, v[{TA+8}:{TA+9}], off", "vmem", w=["a95"], r=[f"v{TA+8}", f"v{TA+9}"])]))
            for r in range(16):
                q = f"v{vQA+16*n+r}"; s.add(s.scale(q, q, TA + 8 + 2 * (r % 4), pk=OPT["pk"]))
            for q in EP.get(2 * n, []): grpA(q)
            if OPT["so"] == 1 and n == 0:
                s.prog[-1].xw = {"seq"}
                kpart([0, 1], s.qdma(2) + s.qdma(3), ((0, 0), (0, 1), (0, 2), (0, 3), (1, 2), (1, 3), (1, 0), (1, 1)), False)
            if OPT["so"] >= 2 and n == 0:
                s.prog[-1].xw = {"seq"}
                kpart([0], s.qdma(2 + OPT["sd"]), ((0, 0), (0, 1), (0, 2), (0, 3)), False)
            for b in range(2 if n < 4 else 1):
                if OPT["so"] >= 2 and n == 0 and b == 1:
                    ch[0].xw = {"seq"}
                    kpart([1], k1d, ((1, 0), (1, 1), (1, 2), (1, 3)), False)
                for t in range(2 if half and n == 4 else 4):
                    sq = Sx(s.sc % 5); s.sc += 1
                    ch = s.chain(0, n, sq, KF(b, t), t == 0 and b == 0); s.add(ch)
                    if t == 0 and b == 0:
                        s.add(s.rowmax(n, sq, f"v{TA+16}", f"v{TA+17}"))
                        if n == 4 and not OPT["ep"]:
                            ch[-1].xw = {"seq"}
                            s.add(seq(s.barrier(["K0", "K1"], ["V0"], gate="D-1")), seq(late))
                    s.add(s.expcvt(b, n, t, sq))
            if n < 4: ch[-1].xw = {"seq"}
            if OPT["ep"] and n == 2: s.add(seq(s.barrier(["K0", "K1"], ["V0"], gate="D-1")))
            for q in EP.get(2 * n + 1, []): grpA(q)[-1].xw = {"seq"}

    def nbr(s, p, d, rl):
        return [V("v_mul_f32_e64", f"v{d}", "-" + sB[p], f"v{rl}")] if OPT["ob"] else []
    def ep_l(s, p, n, rl, tmp):
        a, b = f"v{rl}", f"v{tmp}"
        o = [V("v_accvgpr_read_b32", a, f"a{Lr(n)}")]
        if not (s.half[p] and n == 4): o += [V("v_accvgpr_read_b32", b, f"a{Lr(n)+1}"), V("v_add_f32", a, a, b)]
        if OPT["lfix"]: o += [V("v_mov_b32", a, "0.5")]
        o += [V("v_cmp_nge_f32", ("s", 42, 2), sTHR, a), SS("s_or_b64", sBAD[p], sBAD[p], ("s", 42, 2))]
        if not (s.half[p] and n == 4): o += [V("v_rcp_f32", a, a)]
        return o
    def lane16(s, d):
        return [V("v_mbcnt_lo_u32_b32", d, -1, 0), V("v_mbcnt_hi_u32_b32", d, -1, d), V("v_lshlrev_b32", d, 4, d)]
    def cmb_pre(s, T, base):
        return s.lane16(f"v{T}") + [V("v_add_u32", f"v{T}", sW4K, f"v{T}"), V("v_add_u32", f"v{T}", base, f"v{T}"), V("v_xor_b32", f"v{T+1}", "0x1000", f"v{T}"),
             V("v_mov_b32", f"v{T+2}", f"v{vNM+16}")]
    def cmb_give(s, p, T, LW):
        o = s.ep_l(p, 4, T + 3, T + 4)
        w = [colput(LW, 12, T + 2, T + 3)] + [ds_write("ds_write_b128", f"v{T}", O(4, dt), 16384 + dt * 1024) for dt in range(4)]
        for i in w: i.wt = {"cw"}; i.xw = i.xw | {"cgive", "cQ8"}
        return o + w
    def cmb_col(s, p, T, LW):
        nm, l, nm2, l2, x, y = [f"v{T+k}" for k in (2, 3, 4, 5, 6, 7)]
        r = I(f"ds_read2_b32 v[{T+4}:{T+5}], {y} offset0:{16*12} offset1:{16*13}", "ds", w=[nm2, l2], r=[y]); r.xr = {"cmb"}
        return [V("v_xor_b32", y, "0x1000", f"v{LW}"), r, V("v_cmp_nge_f32", ("s", 42, 2), sTHR, l2), SS("s_or_b64", sBAD[p], sBAD[p], ("s", 42, 2)),
                V("v_min_f32", x, nm, nm2), V("v_sub_f32", nm, x, nm), V("v_sub_f32", nm2, x, nm2), V("v_exp_f32", nm, nm), V("v_exp_f32", nm2, nm2),
                V("v_mul_f32", x, l, nm), V("v_fma_f32", x, l2, nm2, x), V("v_rcp_f32", x, x), V("v_mul_f32", nm, nm, x), V("v_mul_f32", nm2, nm2, x),
                V("v_add_f32", y, nm, nm2), V("v_mul_f32_e64", y, "-" + sB[p], y), colput(LW, 8, T + 2, T + 7), colput(LW, 10, T + 4, T + 4)]
    def half_addr(s, WA, RA, GA, LW, LR, base, base2, t0, t1):
        t0, t1, wa, ra = f"v{t0}", f"v{t1}", f"v{WA}", f"v{RA}"
        t = stmp(); t2 = stmp()
        a = [SS("s_add_u32", t, sW4K, base), SS("s_add_u32", t2, sW4K, base2), V("v_mbcnt_lo_u32_b32", t0, -1, 0), V("v_mbcnt_hi_u32_b32", t0, -1, t0),
             V("v_and_b32", t1, 15, t0), V("v_lshl_add_u32", f"v{LW}", t1, 2, t2), V("v_lshl_add_u32", wa, t1, 3, t), V("v_lshrrev_b32", t1, 4, t0), V("v_lshl_add_u32", wa, t1, 9, wa),
             V("v_lshl_add_u32", f"v{LR}", t1, 4, t2),
             V("v_lshl_add_u32", ra, t1, 8, t), V("v_and_b32", t1, 3, t0), V("v_lshl_add_u32", ra, t1, 6, ra), V("v_and_b32", t1, 12, t0), V("v_lshl_add_u32", ra, t1, 1, ra),
             V("v_and_b32", t1, 7, t0), V("v_lshlrev_b32", t1, 4, t1), V("v_lshrrev_b32", t0, 3, t0), V("v_lshl_add_u32", f"v{GA}", t0, 8, t1)]
        return a
    def half_put(s, pk, r, WA, X, gate):
        w = ds_write("ds_write_b64", f"v{WA}", ("v", pk, 2), X + r * 128); w.xr = set(gate); w.xw = {f"Xd{X}_{r}"}; return [w]
    def half_wide(s, p, n, H, FR, FB, TB, WA, X, gate, part=None):
        o = []
        for r in (0, 2):
            tb = TB[r // 2]
            if OP(p, n, 0)[0] == "a":
                x = [tb + 2 * j for j in range(4)]
                o += [V("v_accvgpr_read_b32", f"v{tb+2*j+k}", f"a{OP(p, n, 4*H+j)[1]+r+k}") for j in range(4) for k in range(2)]
            else: x = [OP(p, n, 4 * H + j)[1] + r for j in range(4)]
            for j in range(4): o += fmap(x[j], x[j], FR + r, FB + r)
            if part:
                T, U, FA = part
                rr = [ds_read("ds_read_b64", ("v", U + 2 * j, 2), f"v{T+1}", 16384 + j * 1024 + r * 4) for j in range(4)]
                for i in rr: i.xr = {"cmb"}
                o += rr
                for j in range(4): o += fmap(x[j], U + 2 * j, FA + r, x[j])
            o += [V("v_cvt_pk_bf16_f32", f"v{tb+d}", f"v{x[ja]+k}", f"v{x[ja+1]+k}") for d, ja, k in ((0, 0, 0), (2, 0, 1), (1, 2, 0), (3, 2, 1))]
            o += s.half_put(tb, r, WA, X, gate) + s.half_put(tb + 2, r + 1, WA, X, gate)
        return o
    def half_slim(s, p, n, H, FR, FB, T4, WA, X):
        o = []
        for r in range(4):
            o += [V("v_accvgpr_read_b32", f"v{T4+j}", f"a{O(n, 4*H+j)[1]+r}") for j in range(4)]
            o += [V("v_fma_f32", f"v{T4+j}", f"v{T4+j}", f"v{FR+r}", f"v{FB+r}") for j in range(4)]
            o += [V("v_cvt_pk_bf16_f32", f"v{T4+k}", f"v{T4+2*k}", f"v{T4+2*k+1}") for k in range(2)] + s.half_put(T4, r, WA, X, [])
        return o
    def half_out(s, p, n, H, rb, RA, GA, X, mod):
        if s.half[p]: t, o = s.rowoff(p, n, sD1 if H else sD0); off = 0
        else: t, o = s.rowoff(p, n); off = 128 * H
        for k in range(2):
            for u in range(2):
                i = ds_read("ds_read_b64_tr_b16", ("v", rb[k] + 2 * u, 2), f"v{RA}", X + k * 1024 + u * 32); i.xr = {f"Xd{X}_{r}" for r in range(4)}; o.append(i)
            o.append(bstore(("v", rb[k], 4), f"v{GA}", sO, t, off + k * 2048, mod=MODS[mod]))
            if p == 1 and OPT["sp"]: o[-1].cmt = "prio"
        return o
    def plan_trans(s):
        hv = s.half[0]; E = vQA + 64
        WA, RA, GA, LR, FR, FB, T4 = E, E + 1, E + 2, E + 3, E + 4, E + 8, E + 12
        s.LW = LW = vQA + 24
        s.CT = CT = vQA + 56; TB = [vQA + 16, vQA + 16 if hv else vQA + 48]; XB = [0] if hv else [0, X0 - 2048, X0]; cnt = [0]
        def fin(l, dl):
            for i in l:
                if i.k == "vmem": s.hint(i, s.bstart[15], dl, "dlm")
            return l
        def wide(n, H, dl):
            X = XB[cnt[0] % len(XB)]; cnt[0] += 1
            rb = [vQA + 8, vQA + 12] if H == 0 else ([T4, vQA + 52] if hv else [vQA + 56, vQA + 60])
            l = [rowget(FR, LR, 2 * n), rowget(FB, LR, 2 * n + 1)]
            l += s.half_wide(0, n, H, FR, FB, TB, WA, X, []) + s.half_out(0, n, H, rb, RA, GA, X, OPT["o0"])
            if n == 2: l += [V("v_accvgpr_write_b32", f"a{O(2, 4*H+3)[1]+r}", sB[1]) for r in range(4)]
            return fin(l, dl)
        def comb(dl):
            l = [rowget(FR, LR, 8), rowget(FB, LR, 9), rowget(T4, LR, 10)]
            l += s.half_wide(0, 4, 1, FR, FB, TB, WA, 0, [], part=(CT, vQA + 48, T4)) + s.half_out(0, 4, 1, [T4, vQA + 60], RA, GA, 0, OPT["o0"])
            return fin(l, dl)
        def slim(n, H, newf, dl):
            return fin(([rowget(FR, LR, 2 * n), rowget(FB, LR, 2 * n + 1)] if newf else []) + s.half_slim(0, n, H, FR, FB, T4, WA, 0) + s.half_out(0, n, H, [T4, T4], RA, GA, 0, OPT["o0"]), dl)
        urg = [2, 3] if hv else [2, 3, 4]
        s.ins = {(15, 0, 0): lambda: [V("v_mov_b32", f"v{vQA+28+r}", sB[1]) for r in range(4)] + s.half_addr(WA, RA, GA, LW, LR, X1 + 2048, X1, vQA + 2, vQA + 3) + (s.cmb_pre(CT, X1) if hv else []),
                 (15, 0, 1): lambda: sum((s.ep_l(0, n, vQA + 4, vQA + 5) + s.nbr(0, vQA + 5, vQA + 4) + [colput(LW, 2 * n, vQA + 4, vQA + 5)] for n in urg + [0, 1]), []),
                 (15, 2, 0): lambda: sum((wide(n, 0, OPT["h0"] + OPT["h1"] * k) for k, n in enumerate(urg)), []),
                 (16, 0, 0): lambda: sum((wide(n, 1, OPT["h2"] + OPT["h3"] * k) for k, n in enumerate(urg)), []) + (comb(OPT["h2"] + OPT["h3"] * 2) if hv else [])
                                     + sum((slim(k // 2, k % 2, k % 2 == 0, 330 + (k + 1) * OPT["hd"]) for k in range(4)), [])}

    def pvgroup(s, j, q, tiles, vbuf, cinit):
        pv = j // 16; hv = s.half[pv]; rd = []; mm = []
        for h, pref in ((0, [0, 1]), (1, [0, 1] if hv else [1, 0])):
            for ks in s.vks(j, 2 * q + h, pref): rd += s.vread(("a", vbuf + 8 * h + 4 * ks, 4), j, 2 * q + h, ks)
        if OPT["po"] and j % 16 and j != 30:
            for n in tiles:
                hs = [0, 1] if n % 2 == 0 or OPT["po"] == 2 else [1, 0]
                for x, h in enumerate(hs):
                    for ks in ([0] if hv and n == 4 else ([0, 1] if x == 0 else [1, 0])):
                        mm.append(mfma(OP(pv, n, 2 * q + h), P(j % 2, n, ks), ("a", vbuf + 8 * h + 4 * ks, 4), OP(pv, n, 2 * q + h)))
            return rd, mm
        for h in range(2):
            dt = 2 * q + h
            for n in (tiles if h == 0 else reversed(tiles)):
                if OPT["c4"] and j % 16 != 0 and j != 30:
                    if h == 0:
                        seq4 = [(0, 0), (0, 1), (1, 0), (1, 1)][::1 if n % 2 == 0 else -1]
                        if hv and n == 4: seq4 = [(0, 0), (1, 0)]
                        for hh, ks in seq4:
                            d_ = OP(pv, n, 2 * q + (j % 2))
                            mm.append(mfma(d_, P(j % 2, n if hh == 0 else (n + 2) % 4, ks), ("a", vbuf + 8 * hh + 4 * ks, 4), d_))
                    continue
                kss = [0] if hv and n == 4 else ([0, 1] if (n + h) % 2 == 0 or OPT["nosnake"] else [1, 0])
                for k_, ks in enumerate(kss):
                    ab = [("a", vbuf + 8 * h + 4 * ks, 4), P(j % 2, n, ks)][::-1 if OPT["swp"] else 1]
                    mm.append(mfma(OP(pv, n, dt), ab[0], ab[1], cinit(n) if j % 16 == 0 and k_ == 0 else OP(pv, n, dt)))
        return rd, mm
    def tq(s, b, q): return q ^ 2 if (OPT["kalt"] and s.half[b // 16] and b % 2 == 1 and b != 31) else q
    def block(s, j):
        b = j + 1; p = b // 16; pv = j // 16
        hq, hv = s.half[p], s.half[pv]
        first = (j % 16 == 0); trans = (j == 15)
        smfs = [{0: [0], 1: [1], 2: [2, 3], 3: [4]}, {0: [0, 1], 1: [2, 3], 2: [4], 3: []}, {0: [0, 1, 2, 3, 4], 1: [], 2: [], 3: []}][OPT["sm"]]
        if j == 0 and OPT["ep"]: smfs = {0: [], 1: [], 2: [], 3: [3, 4]}
        MX = vQA; CT = s.CT
        if j == 30: s.tail_pre()
        for q in range(4):
            vbuf = aK if (j == 0 and q % 2 == 0) else aV
            def cinit(n):
                if not OPT["ob"]: return "0"
                if j == 0: return ("a", aQB, 4)
                return O(2, 3 if q < 2 else 7) if OP(1, n, 0)[0] == "a" else ("v", vQA + 28, 4)
            rd, pvm = s.pvgroup(j, q, [3, 4] if j == 0 and OPT["ep"] else [0, 1, 2, 3, 4], vbuf, cinit)
            s.add(rd)
            if (j, q, 0) in s.ins: s.add(s.ins[(j, q, 0)]())
            cz = (b % 16 == 0 and q == 0)
            if j == 0:
                work = [(4, t, s.KF(1, t), None) for t in ([[0, 1], [2], [3], []] if not hq else [[0, 1], [], [], []])[q]]
            elif j == 30:
                work = [(4, q, s.KT(q), s.PT[0])] if not (hq and q >= 2) else []
            else: work = [(n, s.tq(b, q), (lambda ks: ("a", aK + 4 * ks, 4)), None) for n in range(4 if hq and s.tq(b, q) >= 2 else 5)]
            ch = []; sqs = []
            for n, t, kf, pb in work:
                if j in (0, 30): sq = Sx(s.sc % 5); s.sc += 1
                else: sq = Sx(n)
                sqs.append(sq); ch += s.chain(p, n, sq, kf, cz)
            s.add(ch); m0 = (ch + pvm)[0]
            if OPT["vb"] and j not in (0, 30):
                for k, i in enumerate([x for x in rd if x.k == "ds"]): s.hint(i, m0, -6 + k); s.hint(i, m0, -5 + k, "dlm")
                for k, i in enumerate(getattr(s, "lastk", [])): s.hint(i, m0, -10 + k - (OPT["vb"] - 1)); s.hint(i, m0, -9 + k - (OPT["vb"] - 1), "dlm")
            if j == 0 and q == 0 and OPT["ob"]: s.add([V("v_accvgpr_write_b32", f"a{aQB+r}", sB[0]) for r in range(4)])
            if q == 0:
                s.bstart[j] = m0
                if j in s.stamp_at: s.stamp(m0)
                lag = 0
                if s.half[0] and not s.half[1]: lag = min(OPT["lagmax"], (16 * (j if j <= 15 else 31 - j) * OPT["lagc"]) // 100)
                bat = []
                if j == 0: bat.append((s.dma("K", 3, gate="D-1") + s.dma("V", 2, gate="D-1"), OPT["l0"])); lag = OPT["l1"]
                if j == 1: lag = OPT["l2"]
                if j == 2: lag = OPT["l3"]
                dl = []
                if j + 4 <= 31: dl += s.dma("K", j + 4, gate=f"D{j-1}")
                if j + 3 <= 31: dl += s.dma("V", j + 3, gate=f"D{j-1}")
                bat.append((dl, lag))
                for dl, lag in bat:
                    for k, i in enumerate([x for x in dl if x.k == "vmem"]):
                        if OPT["dw"] and j >= 3:
                            L = OPT["dx"] + max(0, min(OPT["lagmax"], LEAD.get(j, 0) * OPT["dc"] // 100 + OPT["dy"])) * (s.tag == "Y") + OPT["dsp"] * k
                            s.hint(i, m0, L); s.hint(i, m0, L + OPT["dw"], "dlm"); continue
                        if OPT["eu"]:
                            s.ne = getattr(s, "ne", -1) + 1; L = OPT["eo"] + OPT["eu"] * s.ne
                            s.hint(i, s.bstart[0], L); s.hint(i, s.bstart[0], L + 8, "dlm"); continue
                        s.hint(i, m0, lag + 30 + 2 * k, "dlm")
                        if lag: s.hint(i, m0, lag - 20)
                        L = lag + 30 + 2 * k
                    s.add(dl)
                if j in s.qst: s.add(s.qst[j](m0, L + 12))
            qlen = len(ch) + len(pvm) + 1
            if OPT["spf"] and (q == 1 or (OPT["spf"] > 1 and q == 3) or OPT["spf"] > 2):
                for i in (raw("s_getpc_b64 s[40:41]", w=["s40"]), raw(f"s_load_dword s42, s[40:41], {OPT['spd']}", r=["s40"])):
                    s.hint(i, m0, 8); s.hint(i, m0, 12, "dlm"); s.add(i)
            k = 0
            for (n, t, kf, pb), sq in zip(work, sqs):
                if cz: s.add(s.rowmax(n, sq, f"v{MX}", f"v{MX+1}"))
                l = s.expcvt(b % 2, n, t, sq, pb)
                for i in l:
                    if i.k == "trans" and j not in (0, 30) and OPT["eh"]: s.hint(i, m0, OPT["e0"] + (k * qlen) // (4 * len(work))); k += 1
                s.add(l)
            if q == 3 and j < 30:
                opn = [f"K{j+2}", f"V{j+1}"] + (["V31"] if j == 29 else [])
                cm = trans and hv
                kw = dict(gate=f"D{j}", extra_need=["cw"] if cm else [], extra_w=["cmb"] if cm else [], extra_r=["cgive"] if cm else [])
                if j == 0:
                    bl = s.barrier(["V0"], opn, **kw); s.hint(bl[0], m0, 0); s.add(bl)
                else: s.add(s.sync([f"K{b}", f"V{j}"], opn, m0, off_bar=len(ch) - 3, off_rd=OPT["flr"] - (20 - len(ch)), **kw))
                if cm: s.add(s.cmb_col(pv, CT, s.LW))
            n0 = len(s.prog)
            if j < 30:
                if q < 3 and j > 0:
                    for ks in range(4): s.add(s.kread(("a", aK + 4 * ks, 4), b, s.tq(b, q + 1), ks))
                elif q == 3:
                    for ks in range(4): s.add(s.kread(("a", aK + 4 * ks, 4), b + 1, s.tq(b + 1, 0), ks))
            s.lastk = [x for x in s.prog[n0:] if x.k == "ds"]
            if trans and q == 0:
                s.add([s.smf(j, n) for n in range(5)])
            if (j, q, 1) in s.ins: s.add(s.ins[(j, q, 1)]())
            s.add(pvm)
            if not trans: s.add([s.smf(j, n) for n in smfs[q]])
            if trans:
                if hv and q == 1: s.add(s.cmb_give(pv, CT, s.LW))
                if q == 1: s.add([V("v_accvgpr_write_b32", f"a{aL+r}", 0) for r in range(10)])
            if q == 1 and j in s.stage: s.add(s.stage[j](m0))

    def plan_stage(s):
        s.stage = {}
        def g(m):
            o = []
            def ld(f, dst, k=0):
                t, oo = s.rowoff(1, f // 4)
                i = bload(dst, f"v{vDA if OPT['qlin'] else vG}", sQ, t, (f % 4) * 1024 if OPT["qlin"] else KOFF(f % 4), mod=MODS[OPT["q"]]); i.cmt = "strided"; s.hint(i, m, (k // 2) * OPT["sg1"])
                return oo + [i]
            def sc(f, src):
                d = Q(1, f // 4, f % 4); l = []
                for r in range(4):
                    if src[0] == "a": l += [V("v_accvgpr_read_b32", f"v{vT+1}", f"a{src[1]+r}")] + s.scale(f"v{vT+1}", f"a{d[1]+r}", vT)
                    else: l += s.scale(f"v{src[1]+r}", f"{d[0]}{d[1]+r}", vT)
                return l
            land = lambda f: ("v", vQB + 4 * (f + 1), 4) if f < 8 else Q(1, f // 4, f % 4)
            for f in range(12): o += ld(f, land(f), f)
            for f in range(0, 8, 2): o += sc(f, land(f)) + sc(f + 1, land(f + 1)) + ld(12 + f, land(12 + f)) + ld(13 + f, land(13 + f))
            for f in range(8, 20): o += sc(f, land(f))
            return o
        if not OPT["qd"]: s.stage[OPT["sg0"] if s.half[0] else OPT["sgx"]] = g
        s.qst = {}
        def tile(n, prev):
            def h(m, L):
                t, o = s.rowoff(1, n)
                w = wait(need=[f"rQ{prev}"]); w.xw = {f"cQ{prev}", "qbuf"}; s.hint(w, m, L - 2)
                o += [w, SS("s_add_u32", "m0", sW4K, X0)]
                for k in range(4):
                    i = dma(f"v{vDA if k % 2 == 0 else vDB}", sQ, t, k * 1024, mod=MODS[OPT["q"]])
                    i.wt = {f"dQ{n+5}"}; i.priv = (n + 5, "X0"); i.xr = {"qbuf"}; i.xw = {f"iQ{n+5}"}; i.cmt = "slow"
                    s.hint(i, m, L + OPT["qs"] * k); s.hint(i, m, L + OPT["qs"] * k + 6, "dlm"); o.append(i)
                w = wait(need=[f"dQ{n+5}"]); w.xr = {f"iQ{n+5}"}; w.xw = {f"oQ{n+5}"}; o.append(w)
                land = lambda f: vQB + 4 * (f % 8 + 1) if f < 11 else Q(1, f // 4, f % 4)[1]
                for ks in range(4):
                    d = land(4 * n + ks); a = f"v{vG}"
                    if ks: a = f"v{d}"; o.append(V("v_xor_b32", a, KOFF(ks), f"v{vG}"))
                    i = ds_read("ds_read_b128", ("v", d, 4), a, 0); i.xr = {f"oQ{n+5}", f"cQ{n+5}"}; i.priv = (n + 5, "X0"); i.wt = {f"rQ{n+5}"}; o.append(i)
                for ks in range(4):
                    d = Q(1, n, ks)
                    for r in range(4): o += s.scale(f"v{land(4*n+ks)+r}", f"{d[0]}{d[1]+r}", vT)
                return o
            return h
        if OPT["qd"]:
            for j, n, prev in zip((0, 2, 4, 6, 8), (0, 1, 2, 4, 3), (4, 5, 6, 7, 9)): s.qst[j + OPT["q0"] if j or OPT["q0"] else 1] = tile(n, prev)

    def tail_pre(s):
        hv = s.half[1]; Z = ("a", 0) if OPT["ov"] else ("v", vQA)
        s.KT = lambda t: (lambda ks: ("a", aK + 4 * ks, 4) if t == 0 else (("v", vP + 40 + 16 * (t - 1) + 4 * ks, 4) if t < 3 else (Z[0], Z[1] + 48 + 4 * ks, 4)))
        s.VT = lambda dt, ks: (Z[0], Z[1] + 8 * dt + 4 * ks, 4) if dt < 6 else ("a", aV + 8 * (dt - 6) + 4 * ks, 4)
        s.PT = [vP + 72, 236]
        for t in range(1, 4):
            for ks in range(4): s.add(s.kread(s.KT(t)(ks), 31, t, ks))
    def tail(s):
        j = 31; hv = s.half[1]
        for dt in range(8):
            for ks in s.vks(j, dt, [0, 1]): s.add(s.vread(s.VT(dt, ks), j, dt, ks))
        E = vQA + 64
        WA, RA, GA, LW, LR, RL, NC = E, E + 1, E + 2, E + 3, E + 4, E + 6, E + 7
        CT = 244; CU = 220
        F = vP
        TB = [F, F + 8]; FQ = [(E + 8, E + 12), (F + 16, F + 20)]; RB = [F + 24 + 4 * k for k in range(4)]
        a = s.half_addr(WA, RA, GA, LW, LR, VB, KB, RL, NC)
        for i in a: s.hint(i, s.bstart[28], 0)
        s.add(a)
        order = [4, 3, 2, 1, 0]; XB = [0, 2048, 16384, 18432]
        if hv: s.add(s.cmb_pre(CT, KB))
        k2 = 0
        for k, n in enumerate(order):
            pb = s.PT[k % 2]; hn = hv and n == 4; FR, FB = FQ[k % 2]
            ml = [[s.smf(j, n, pb)], [], [], []]
            for dt in range(8):
                kss = [0] if hn else ([0, 1] if dt % 2 == 0 else [1, 0])
                ml[dt // 2] += [mfma(OP(1, n, dt), ("v", pb + 4 * ks, 4), s.VT(dt, ks), OP(1, n, dt)) for ks in kss]
            if k == 0 and OPT["stm"] != 5: s.stamp(ml[0][0])
            if k == 0 and OPT["es"]: s.add(ml[0].pop(0))
            for t in range(4):
                if k < 4:
                    n2 = order[k + 1]; sq = Sx(s.sc % 5); s.sc += 1
                    s.add(s.chain(1, n2, sq, s.KT(t), False), s.expcvt(1, n2, t, sq, s.PT[(k + 1) % 2]))
                s.add(ml[t])
                if t == 0 and not hn: s.add(s.ep_l(1, n, RL, NC) + s.nbr(1, NC, RL) + [colput(LW, 2 * n, RL, NC, ["D29"]), rowget(FR, LR, 2 * n), rowget(FB, LR, 2 * n + 1)])
            if hn:
                s.add(s.cmb_give(1, CT, LW))
                s.add(s.sync([], [], ml[3][-1], extra_need=["cw"], extra_w=["cmb"], extra_r=["cgive"], off_bar=24, off_rd=OPT["tf"]))
                continue
            for H in range(2):
                X = XB[k2 % 4]
                ep = s.half_wide(1, n, H, FR, FB, TB, WA, X, ["D29"]) + s.half_out(1, n, H, RB[2 * (k2 % 2):], RA, GA, X, OPT["o1"]); k2 += 1
                for i in ep:
                    if i.k == "vmem": s.hint(i, ml[2 * H + 1][-1], OPT["tdl"], "dlm")
                s.add(ep)
            if hv and k == 1:
                X = XB[k2 % 4]
                s.add(s.cmb_col(1, CT, LW), rowget(FR, LR, 8), rowget(FB, LR, 9), rowget(CU + 8, LR, 10))
                s.add(s.half_wide(1, 4, 1, FR, FB, TB, WA, X, ["D29"], part=(CT, CU, CU + 8)), s.half_out(1, 4, 1, RB[2 * (k2 % 2):], RA, GA, X, OPT["o1"])); k2 += 1

    def final(s):
        hv = s.half[1]
        s.tail_pre()
        E = vQA + 64; F = vP; CT = 244
        WA, RA, GA, LW, LR, RL, NC = E, E + 1, E + 2, E + 3, E + 4, E + 6, E + 7
        a = s.half_addr(WA, RA, GA, LW, LR, VB, KB, RL, NC)
        for i in a: s.hint(i, s.bstart[28], 0)
        s.add(a)
        PT = {4: vP + 72, 3: 236, 2: 220, 1: vP + 72, 0: 236}
        XB = [0, 2048, 16384, 18432]; st = dict(k2=0, late=False, fq={}, nf=0); vdone = set(); last = [None]
        std = lambda n: f"q{n-1}0 l{n} p{n}0 q{n-1}1 p{n}1 e{n}0 q{n-1}2 p{n}2 q{n-1}3 p{n}3 e{n}1 " if n else "l0 p00 p01 e00 p02 p03 e01"
        if not hv:
            sc = ["q40 P0 q41 q42 q43 P1 s4 l4 q30 p40 q31 p41 e40 q32 q33 P2 s3 l3 p30 p31 e30 P3 s0 s1 s2 p42 q20 p32 q21 p43 e41 q22 p33 e31 q23 ",
                  "q40 P0 q41 q42 q43 P1 s4 l4 p40 p41 e40 q30 q31 P2 q32 q33 P3 s3 s0 s1 s2 p42 l3 p30 q20 p43 e41 p31 e30 q21 p32 q22 p33 e31 q23 "][OPT["fin"] - 1]
        else:
            sc = ["q40 P0 q41 q30 q31 P1 s4 l4 p40 p41 g q32 q33 P2 s3 l3 p30 p31 e30 P3 s0 s1 s2 p42 p32 q20 q21 p43 p33 e31 c q22 q23 ",
                  "q40 P0 q41 q30 q31 q32 P1 s4 l4 p40 p41 g q33 s3 P2 l3 p30 p31 e30 P3 s0 s1 s2 p42 p32 q20 p43 c q21 p33 e31 q22 q23 "][OPT["fin"] - 1]
        sc += "l2 p20 q10 p21 e20 q11 p22 q12 p23 e21 q13 l1 p10 q00 p11 e10 q01 p12 q02 p13 e11 q03 l0 p00 p01 e00 p02 p03 e01" if OPT["to"] else std(2) + std(1) + std(0)
        def mm(l):
            if 30 not in s.bstart:
                s.bstart[30] = l[0]
                if 30 in s.stamp_at: s.stamp(l[0])
            s.add(l); last[0] = l[-1]
        def temps():
            k2 = st["k2"]; st["k2"] += 1
            if st["late"]: return XB[k2 % 4], [F, F + 8], [F + 24 + 8 * (k2 % 2), F + 28 + 8 * (k2 % 2)]
            return (XB[k2 % 4], [220, 220], [228, 232]) if hv else (XB[k2 % 4], [244, 244], [vNM + 16, 244] if k2 == 0 else [228, 232])
        def fq(key, slots):
            for q_, k_ in st["fq"].items():
                if k_ == key: return q_, []
            q_ = (F + 16) if st["late"] and st["nf"] % 2 else (E + 8); st["nf"] += 1; st["fq"][q_] = key
            return q_, [rowget(q_, LR, slots[0]), rowget(q_ + 4, LR, slots[1])]
        def dls(l):
            for i in l:
                if i.k == "vmem": s.hint(i, last[0], OPT["tdl"], "dlm")
            return l
        for x in sc.split():
            c = x[0]; n = int(x[1]) if len(x) > 1 else 4; hn = hv and n == 4
            if c == "q":
                t = int(x[2]); sq = Sx(s.sc % 5); s.sc += 1
                mm(s.chain(1, n, sq, s.KT(t), False)); s.add(s.expcvt(1, n, t, sq, PT[n]))
            elif c == "P":
                rd, m_ = s.pvgroup(30, n, [0, 1, 2, 3, 4], aV, None); s.add(rd); mm(m_)
                for dt in (2 * n, 2 * n + 1):
                    for ks in s.vks(31, dt, [0, 1]): s.add(s.vread(s.VT(dt, ks), 31, dt, ks))
            elif c == "s":
                mm([s.smf(30, n)])
                if n == 2: st["late"] = True
            elif c == "l":
                mm([s.smf(31, n, PT[n])])
                if not hn: s.add(s.ep_l(1, n, RL, NC) + s.nbr(1, NC, RL) + [colput(LW, 2 * n, RL, NC, ["D29"])])
            elif c == "p":
                l = []
                for dt in (2 * int(x[2]), 2 * int(x[2]) + 1):
                    l += [mfma(OP(1, n, dt), ("v", PT[n] + 4 * ks, 4), s.VT(dt, ks), OP(1, n, dt)) for ks in ([0] if hn else ([0, 1] if dt % 2 == 0 else [1, 0]))]
                mm(l)
            elif c == "e":
                H = int(x[2]); X, TB, RB = temps(); FR, l = fq(n, (2 * n, 2 * n + 1))
                s.add(dls(l + s.half_wide(1, n, H, FR, FR + 4, TB, WA, X, ["D29"]) + s.half_out(1, n, H, RB, RA, GA, X, OPT["o1"])))
            elif c == "g":
                s.add(s.cmb_pre(CT, KB), s.cmb_give(1, CT, LW))
                s.add(s.sync([], [], last[0], extra_need=["cw"], extra_w=["cmb"], extra_r=["cgive"], off_bar=24, off_rd=30))
            elif c == "c":
                X, TB, RB = temps(); s.add(s.cmb_col(1, CT, LW)); FR, l = fq("c", (8, 9))
                s.add(dls(l + [rowget(228, LR, 10)] + s.half_wide(1, 4, 1, FR, FR + 4, TB, WA, X, ["D29"], part=(CT, vNM + 12, 228)) + s.half_out(1, 4, 1, RB, RA, GA, X, OPT["o1"])))

    def build(s):
        s.bstart = {}; s.stamp_at = {0, 4, 8, 15, 16, 18, 24} if OPT["stamps"] else set()
        s.nstamp = 1
        if OPT["stm"] == 1: s.stamp_at = {0}; s.nstamp = 2
        if OPT["stm"] == 2: s.stamp_at = set(range(OPT["pj"], OPT["pj"] + 8))
        if OPT["stm"] == 5: s.stamp_at = {0, 30}
        if OPT["stm"] == 4: s.stamp_at = {0, 22, 28}
        if OPT["stm"] == 6: s.stamp_at = {1, 3, 6, 10, 14, 19, 24, 29}
        if OPT["stm"] == 3: s.stamp_at = {0, 15, 16, 17, 18, 19, 30}
        s.plan_stage(); s.plan_trans()
        s.start()
        for j in range(30 if OPT["fin"] else 31): s.block(j)
        n0 = len(s.prog)
        s.final() if OPT["fin"] else s.tail()
        for k, m in enumerate([i for i in s.prog[n0:] if ismf(i)]): m.lg = OPT["gt"] if k % OPT["gp_"] == 0 else 0
        ms = [i for i in s.prog if ismf(i)]
        for m in ms[ms.index(s.bstart[15]):ms.index(s.bstart[17]) - 40]: m.lg = OPT["gr"]
        for k, m in enumerate(ms): m.mi = k
        for i, m, off, attr in s.hints: setattr(i, attr, ms[max(0, min(len(ms) - 1, m.mi + off))])
        JIT[:] = [(-10**6, s.bstart[1].mi, OPT["js" + s.tag]), (s.bstart[15].mi - 20, s.bstart[17].mi, OPT["jt" + s.tag]), (s.bstart[30].mi - 20, 10**6, OPT["jf" + s.tag])]
        out = schedule(s.prog, verbose=True, name=s.tag)
        s.est = (s.bstart[1].st, s.bstart[22].st - s.bstart[14].st, out[-1].st - s.bstart[29].st)
        if OPT["verbose"]:
            prev = None
            for j in sorted(s.bstart):
                if prev is not None: print(f"  blk {j-1}: {s.bstart[j].st - prev}", end="")
                prev = s.bstart[j].st
            print(f"\n  start {s.bstart[0].st}  tail from blk30 {out[-1].st - prev}")
        return out

def setup_common():
    t0, t1, w = "s34", "s35", "s3"
    R = Role("AA", "")
    l, m, g, a, b, c = "v16", "v17", "v18", "v19", "v20", "v21"
    o = [raw("s_cmp_lt_u32 s2, 256", w=["scc"]), br("s_cbranch_scc1", "Lgo"), raw("s_endpgm"), label("Lgo")]
    if OPT["stamps"]: o += [raw("s_memtime s[44:45]"), raw("s_memrealtime s[46:47]")]
    if OPT["rb"] != 3:
        o += [S("s_lshr_b32", t0, "s2", OPT["rb"] - 3), S("s_xor_b32", t0, t0, "s2"), S("s_and_b32", t0, t0, 8), S("s_mul_i32", t0, t0, 1 + (1 << (OPT["rb"] - 3))), S("s_xor_b32", "s2", "s2", t0)]
    o += [raw("s_load_dwordx4 s[8:11], s[0:1], 0"), raw("s_load_dwordx4 s[12:15], s[0:1], 16"),
          V("v_lshrrev_b32", "v1", 6, "v0"), V("v_and_b32", l, 63, "v0"), V("v_and_b32", m, 15, "v0"),
          V("v_readfirstlane_b32", w, "v1"), V("v_lshrrev_b32", g, 4, l)]
    if OPT["pf"]:
        o += [raw("s_getpc_b64 s[36:37]", w=["s36", "s37"]), label("Lpf"),
              S("s_lshr_b32", t0, "s2", 4), S("s_lshl_b32", t0, t0, 13), S("s_bitcmp1_b32", "s2", 3), S("s_cselect_b32", t1, "LroleY-Lpf", 0), S("s_add_u32", t0, t0, t1),
              V("v_lshl_add_u32", a, "v0", 5, t0), V("v_min_u32", a, "Lcodeend-Lpf", a), V("v_mov_b32", "v25", "s37"),
              I("v_add_co_u32 v24, vcc, s36, v19", "valu", w=["v24", "vcc"], r=["s36", "v19"]), I("v_addc_co_u32 v25, vcc, 0, v25, vcc", "valu", w=["v25", "vcc"], r=["v25", "vcc"]),
              I("global_load_dword v253, v[24:25], off", "vmem", w=["v253"], r=["v24", "v25"])]
        if OPT["pf2"]:
            o = o[:-1] + [V("v_accvgpr_write_b32", "a0", "v24"), V("v_accvgpr_write_b32", "a1", "v25"),
                  S("s_lshr_b32", t0, "s2", 4), S("s_lshl_b32", t0, t0, 10), S("s_add_u32", t0, t0, t1), V("v_lshl_add_u32", a, "v0", 2, t0), V("v_mov_b32", "v25", "s37"),
                  I("v_add_co_u32 v24, vcc, s36, v19", "valu", w=["v24", "vcc"], r=["s36", "v19"]), I("v_addc_co_u32 v25, vcc, 0, v25, vcc", "valu", w=["v25", "vcc"], r=["v25", "vcc"]), o[-1]]
    o += [V("v_xor_b32", a, g, m), V("v_lshlrev_b32", a, 4, a), V("v_lshl_add_u32", f"v{vDA}", g, 8, a), V("v_xor_b32", f"v{vDB}", 128, f"v{vDA}")]
    if OPT["dlin"]: o += [V("v_lshlrev_b32", f"v{vDA}", 4, l), V("v_lshlrev_b32", f"v{vDB}", 4, l)]
    if OPT["ob"]: o += [V("v_and_b32", a, 31, l), V("v_lshlrev_b32", a, 4, a), V("v_lshrrev_b32", b, 5, l), V("v_lshl_add_u32", "v22", b, 18, a)]
    o += [S("s_lshl_b32", sW4K, w, 12), S("s_mov_b32", sOFF, sW4K), S("s_mov_b32", sOFV, sW4K)]
    if OPT["rot"]:
        o += [S("s_lshr_b32", t0, "s2", 4)] + ([S("s_lshl_b32", t1, "s2", 1), S("s_and_b32", t1, t1, 14), S("s_add_u32", t0, t0, t1)] if OPT["rot"] == 2 else []) + ([S("s_lshl_b32", t0, t0, 1)] if OPT["rot"] == 3 else [])
        o += [S("s_and_b32", t0, t0, 15), S("s_lshl_b32", t0, t0, 14), S("s_add_u32", sOFF, sOFF, t0), S("s_mov_b32", sOFV, sOFF)]
    o += [S("s_mul_i32", "s28", w, 5 * 4096), S("s_add_u32", "s29", "s28", 4 * 4096)]
    if OPT["ab"]: o += [S("s_lshl_b32", "s30", w, 14), S("s_add_u32", "s30", "s30", 20 * 4096), S("s_and_b32", "s31", sW4K, "0x2000"), S("s_lshr_b32", "s31", "s31", 1), S("s_add_u32", "s31", "s31", 36 * 4096)]
    else: o += [S("s_add_u32", "s30", "s28", 18 * 4096), S("s_add_u32", "s31", "s28", 22 * 4096)]
    o += [S("s_bitcmp1_b32", "s2", 3), S("s_cselect_b64", ("s", 24, 2), ("s", 30, 2), ("s", 28, 2)), S("s_cselect_b64", ("s", 26, 2), ("s", 28, 2), ("s", 30, 2))]
    o += [S("s_and_b32", t0, "s2", 7), S("s_lshr_b32", t1, "s2", 4), S("s_lshl_b32", t0, t0, 4), S("s_add_u32", t0, t0, t1),
          S("s_mul_i32", t1, t0, 2 * HEADQ), S("s_lshl_b32", t0, t0, 19), S("s_mov_b32", "s6", 2 * HEADQ), S("s_mov_b32", "s7", "0x00020000")]
    o += [raw("s_waitcnt lgkmcnt(0)", k="salu")]
    if OPT["stamps"] and OPT["stm"] == 1: o += [raw("s_memtime s[48:49]"), raw("s_memrealtime s[50:51]")]
    o += [S("s_add_u32", "s4", "s8", t1), S("s_addc_u32", "s5", "s9", 0),
          S("s_add_u32", "s8", "s10", t0), S("s_addc_u32", "s9", "s11", 0), S("s_mov_b32", "s10", 2 * HEADK), S("s_mov_b32", "s11", "0x00020000")]
    srd2 = [S("s_add_u32", "s16", "s14", t1), S("s_addc_u32", "s17", "s15", 0), S("s_mov_b32", "s18", 2 * HEADQ), S("s_mov_b32", "s19", "0x00020000"),
          S("s_add_u32", "s12", "s12", t0), S("s_addc_u32", "s13", "s13", 0), S("s_mov_b32", "s14", 2 * HEADK), S("s_mov_b32", "s15", "0x00020000")]
    vl = [bload(("v", 24 + 4 * k, 4), "v22", sV, 0, 512 * k, mod=" nt") for k in range(2)] if OPT["ob"] else []
    parts = [R.qdma(0), R.dma("K", 0), R.dma("K", 1)] if OPT["so"] else [R.dma("K", 0), R.dma("K", 1), R.qdma(0)]
    k1late = []
    if OPT["so"] == 3: k1late = parts.pop(); parts = parts[::-1]
    if OPT["so"] == 4: k1late = parts.pop()
    parts.insert(OPT["bp"], srd2 + vl)
    for x in parts: o += x
    if OPT["stamps"]: o += [S("s_lshl_b32", "s100", "s2", 2), S("s_add_u32", "s100", "s100", w), S("s_mov_b32", "s101", "s2")] + ([S("s_mov_b32", "s95", 0)] if OPT["stm"] == 4 else [])
    if OPT["wu"]: o += [S("s_mov_b64", ("s", 96, 2), ("s", 8, 2)), S("s_mov_b64", ("s", 98, 2), ("s", 12, 2)), V("v_mov_b32", f"v{vQA+66}", 0)]
    o += [S("s_add_u32", "s26", "s26", HEADQ), S("s_add_u32", "s27", "s27", HEADQ)]
    o += [S("s_add_u32", "s33", sW4K, X0), V("v_and_b32", a, 1, g), V("v_lshlrev_b32", a, 6, a), V("v_lshrrev_b32", b, 1, g), V("v_lshl_add_u32", a, b, 4, a), V("v_lshl_add_u32", f"v{vG}", m, 8, a)]
    o += [V("v_and_b32", a, 3, m), V("v_and_b32", b, 4, m), V("v_lshl_add_u32", a, b, 1, a), V("v_lshlrev_b32", a, 4, a), V("v_xor_b32", a, a, f"v{vG}")]
    for ks in range(4):
        o += [V("v_xor_b32", b, KOFF(ks), a), V("v_add_u32", f"v{vKA+ks}", KB, b), V("v_add_u32", f"v{R.TA+ks}", "s33", b), V("v_add_u32", f"v{R.TA+4+ks}", KB + 49152 - X0, f"v{R.TA+ks}")]
    if OPT["qd"]: o += [V("v_mov_b32", f"v{vG}", f"v{R.TA}")]
    o += [V("v_lshrrev_b32", a, 2, l), V("v_and_b32", b, 3, a), V("v_and_b32", c, 4, a), V("v_lshl_add_u32", b, c, 1, b), V("v_and_b32", c, 2, l), V("v_lshl_add_u32", b, c, 1, b),
          V("v_lshlrev_b32", b, 4, b), V("v_and_b32", c, 1, l), V("v_lshl_add_u32", b, c, 3, b), V("v_lshl_add_u32", b, a, 8, b), V("v_add_u32", f"v{vVA}", VB, b)]
    o += [V("v_xor_b32", f"v{vVA+dt}", (dt & 3) * 16 + (dt >> 2) * 128, f"v{vVA}") for dt in range(1, 8)]
    o += [S("s_lshl_b32", t0, w, 8), S("s_add_u32", t0, t0, FLAG), V("v_lshl_add_u32", f"v{vFA}", l, 2, t0), V("v_mov_b32", f"v{vFE}", 0)]
    fi = ds_write("ds_write_b32", f"v{vFA}", f"v{vFE}", 0); fi.wt = {"cw"}; o.append(fi)
    o += [V("v_accvgpr_write_b32", f"a{aL+r}", 0) for r in range(12)]
    for msk, d in ((OPT["me"], a), (OPT["mo"], b), (OPT["mi_"], c)): o += [V("v_mov_b32", d, msk), V("v_bfe_i32", d, d, m, 1)]
    o += [V("v_and_b32", a, "0x3f803f80", a), V("v_and_b32", b, "0x3f803f80", b), V("v_and_b32", c, "0xaaaaaaaa", c), V("v_or_b32", f"v{vIDX}", "0x44444444", c)]
    o += [V("v_accvgpr_write_b32", f"a{aONE+i}", a) for i in range(4)] + [V("v_accvgpr_write_b32", f"a{aONE+4+i}", b) for i in range(4)]
    o += [S("s_mov_b32", sC, hex(CSCALE)), S("s_mov_b32", sC2, hex(CSCALE)), S("s_mov_b32", sMASK, "0xffff0000"), S("s_mov_b32", sTHR, hex(OPT["thr"])),
          S("s_mov_b64", sBAD[0], 0), S("s_mov_b64", sBAD[1], 0)]
    o += [S("s_and_b32", sD0, w, 1), S("s_lshl_b32", sFK, sD0, 13), S("s_lshl_b32", sD0, sD0, 7), S("s_or_b32", sFV, sFK, sD0)]
    if OPT["ob"]:
        x = [f"v{24+k}" for k in range(8)]; y = [f"v{32+k}" for k in range(8)]
        bo = [wait(need=x)] + [V("v_max_f32_e64", y[k], f"|{x[k]}|", f"|{x[4+k]}|") for k in range(4)]
        bo += [V("v_lshlrev_b32", x[k], 16, x[k]) for k in range(8)] + [V("v_max_f32_e64", y[4+k], f"|{x[k]}|", f"|{x[4+k]}|") for k in range(4)]
        bo += [swap("v_permlane16_swap_b32", y[k], y[4+k]) for k in range(4)] + [V("v_max_f32", y[k], y[k], y[4+k]) for k in range(4)]
        bo += [V("v_min3_f32", y[0], y[0], y[1], y[2]), V("v_min_f32", y[0], y[0], y[3])]
        bo += [V("v_min_f32_dpp", y[0], y[0], y[0], mod=f" row_ror:{k} row_mask:0xf bank_mask:0xf") for k in (8, 4, 2, 1)]
        bo += [V("v_and_b32", y[0], "0x7f800000", y[0]), V("v_min_f32", y[0], f32(2.0 ** 100), y[0]), V("v_mul_f32", y[0], f32(1.5 * 2.0 ** (OPT["kap"] - OPT["dlt"])), y[0]), nop(1)]
        bo += [V("v_readlane_b32", "s40", y[0], 0), V("v_readlane_b32", "s36", y[0], 16), V("v_readlane_b32", "s41", y[0], 32), V("v_readlane_b32", "s37", y[0], 48), nop(2),
               S("s_min_u32", "s40", "s40", "s36"), S("s_min_u32", "s41", "s41", "s37")]
    else: bo = []
    o += k1late
    if OPT["we"]: o += [S("s_bitcmp1_b32", "s2", 3), br("s_cbranch_scc1", "LroleY"), br("s_branch", "LroleX"), label("LwcX"), raw("s_mov_b64 vcc, 0")]
    if OPT["ep"]: bo += [V("v_accvgpr_write_b32", f"a{28+r}", "s40") for r in range(4)]
    if OPT["bq"]: o += bo
    if not OPT["so"] or OPT["sd"]: o += R.qdma(1)
    if not OPT["bq"]: o += bo
    o += [S("s_bitcmp1_b32", "s2", 3), br("s_cbranch_scc1", "LbodyY" if OPT["we"] else "LroleY")]
    return o

def setup_role(R, k):
    o = [S("s_xor_b32", sD1, sD0, 128)]
    if R.half[0]:
        o += [V("v_xor_b32", f"v{vKA+ks}", sFK, f"v{vKA+ks}") for ks in range(4)] + [V("v_xor_b32", f"v{vVA+dt}", sFV, f"v{vVA+dt}") for dt in range(8)]
        if OPT["v2"]: o += [V("v_xor_b32", VA2(dt), "0x2000", f"v{vVA+dt}") for dt in range(8)]
    return o

def finish(R, k):
    o = []
    if OPT["stamps"]:
        n = R.nstamp
        o += [raw(f"s_memtime s[{44+4*n}:{45+4*n}]"), raw(f"s_memrealtime s[{46+4*n}:{47+4*n}]"), raw("s_waitcnt vmcnt(0) lgkmcnt(0)")]; n += 1
        o += [raw(f"s_memtime s[{44+4*n}:{45+4*n}]"), raw(f"s_memrealtime s[{46+4*n}:{47+4*n}]"), raw("s_waitcnt lgkmcnt(0)")]; n += 1
        assert n <= 13
        if OPT["pi"] >= 0:
            i, j, kk = OPT["pi"], OPT["pj"], OPT["pk_"]
            if not OPT["pall"]: o += [raw("s_and_b32 s101, s101, 0xf7"), raw("s_cmp_lg_u32 s101, 100"), raw(f"s_cbranch_scc1 Lfin{k}")]
            o += [raw(f"s_sub_u32 s36, s{44+4*j+2*kk}, s{44+4*i+2*kk}"), raw("s_mul_i32 s36, s36, 10") if kk else raw("s_lshr_b32 s36, s36, 1"),
                  raw("s_min_u32 s36, s36, 200000"), raw("s_memrealtime s[38:39]"), raw("s_waitcnt lgkmcnt(0)")] + ([raw(f"s_mov_b32 s36, {OPT['pfix']}"), raw("s_mov_b32 s38, s46")] if OPT["pfix"] else []) + [label(f"Lspin{k}"), raw("s_memrealtime s[40:41]"), raw("s_waitcnt lgkmcnt(0)"),
                  raw("s_sub_u32 s37, s40, s38"), raw("s_cmp_lt_u32 s37, s36"), raw(f"s_cbranch_scc1 Lspin{k}")]
        else:
            o += [raw("; STAMPS"), raw("s_load_dwordx2 s[40:41], s[0:1], 40"), raw("v_mov_b32 v16, 0")]
            for x in range(n): o += [raw(f"v_writelane_b32 v16, s{44+4*x}, {2*x}"), raw(f"v_writelane_b32 v16, s{46+4*x}, {2*x+1}")]
            o += [raw(f"v_writelane_b32 v16, {n}, 63"), raw("v_writelane_b32 v16, s95, 62"), raw("s_lshl_b32 s100, s100, 8"), raw("v_mbcnt_lo_u32_b32 v17, -1, 0"), raw("v_mbcnt_hi_u32_b32 v17, -1, v17"), raw("v_lshlrev_b32 v17, 2, v17"),
                  raw("s_waitcnt lgkmcnt(0)"), raw("s_mov_b32 s42, 0x100000"), raw("s_mov_b32 s43, 0x00020000"), raw("buffer_store_dword v16, v17, s[40:43], s100 offen"), raw("s_waitcnt vmcnt(0)")]
    o += [label(f"Lfin{k}")]
    if OPT["slow"]: o += [raw("s_or_b64 s[36:37], s[30:31], s[32:33]"), raw("s_cbranch_scc1 Lslow")]
    o += [raw("s_endpgm")] + R.stubs
    return o

MACROS = """.macro qa d,a,b,c
v_mfma_f32_16x16x32_bf16 v[\\d:\\d+3], a[\\a:\\a+3], v[\\b:\\b+3], v[\\c:\\c+3]
.endm
.macro qb d,a,b,c
v_mfma_f32_16x16x32_bf16 v[\\d:\\d+3], a[\\a:\\a+3], a[\\b:\\b+3], v[\\c:\\c+3]
.endm
.macro pv d,a,b
v_mfma_f32_16x16x32_bf16 a[\\d:\\d+3], a[\\a:\\a+3], v[\\b:\\b+3], a[\\d:\\d+3]
.endm
.macro pw d,a,b
v_mfma_f32_16x16x32_bf16 v[\\d:\\d+3], a[\\a:\\a+3], v[\\b:\\b+3], v[\\d:\\d+3]
.endm
.macro pa d,a,b
v_mfma_f32_16x16x32_bf16 a[\\d:\\d+3], v[\\a:\\a+3], a[\\b:\\b+3], a[\\d:\\d+3]
.endm
.macro pb d,a,b
v_mfma_f32_16x16x32_bf16 v[\\d:\\d+3], v[\\a:\\a+3], a[\\b:\\b+3], v[\\d:\\d+3]
.endm
.macro ex r
v_exp_f32 v\\r, v\\r
.endm
.macro cv d,a,b
v_cvt_pk_bf16_f32 v\\d, v\\a, v\\b
.endm
.macro lk d,a,o
ds_read_b128 a[\\d:\\d+3], v\\a offset:\\o
.endm
.macro lv d,a,o
ds_read_b64_tr_b16 a[\\d:\\d+1], v\\a offset:\\o
.endm
"""
def compact(txt):
    M = "    v_mfma_f32_16x16x32_bf16 "
    txt = re.sub(M + r"v\[(\d+):\d+\], a\[(\d+):\d+\], v\[(\d+):\d+\], v\[\1:\d+\]", r"pw \1,\2,\3", txt)
    txt = re.sub(M + r"v\[(\d+):\d+\], a\[(\d+):\d+\], v\[(\d+):\d+\], v\[(\d+):\d+\]", r"qa \1,\2,\3,\4", txt)
    txt = re.sub(M + r"v\[(\d+):\d+\], a\[(\d+):\d+\], a\[(\d+):\d+\], v\[(\d+):\d+\]", r"qb \1,\2,\3,\4", txt)
    txt = re.sub(M + r"a\[(\d+):\d+\], a\[(\d+):\d+\], v\[(\d+):\d+\], a\[\1:\d+\]", r"pv \1,\2,\3", txt)
    txt = re.sub(M + r"a\[(\d+):\d+\], v\[(\d+):\d+\], a\[(\d+):\d+\], a\[\1:\d+\]", r"pa \1,\2,\3", txt)
    txt = re.sub(M + r"v\[(\d+):\d+\], v\[(\d+):\d+\], a\[(\d+):\d+\], v\[\1:\d+\]", r"pb \1,\2,\3", txt)
    txt = re.sub(r"    v_exp_f32 v(\d+), v\1\n", r"ex \1\n", txt)
    txt = re.sub(r"    v_cvt_pk_bf16_f32 v(\d+), v(\d+), v(\d+)", r"cv \1,\2,\3", txt)
    txt = re.sub(r"    ds_read_b128 a\[(\d+):\d+\], v(\d+) offset:(\d+)", r"lk \1,\2,\3", txt)
    txt = re.sub(r"    ds_read_b64_tr_b16 a\[(\d+):\d+\], v(\d+) offset:(\d+)", r"lv \1,\2,\3", txt)
    return txt.replace("\n    ", "\n")

def sizes(l):
    import subprocess, tempfile, os
    d = tempfile.mkdtemp()
    t = "".join(f"Z{k}:\n" + re.sub(r"(s_c?branch\w*) \w+", r"\1 Z0", re.sub(r"(?m)^L\w+:\n", "", i.text())) for k, i in enumerate(l)) + f"Z{len(l)}:\ns_endpgm\n"
    open(d + "/a.s", "w").write(t)
    subprocess.run(["clang", "-x", "assembler", "-target", "amdgcn-amd-amdhsa", "-mcpu=gfx950", "-c", d + "/a.s", "-o", d + "/a.o"], check=True)
    out = subprocess.run(["llvm-objdump", "-t", d + "/a.o"], capture_output=True, text=True).stdout
    ad = {x.split()[-1]: int(x.split()[0], 16) for x in out.splitlines() if re.search(r" Z\d+$", x)}
    return [ad[f"Z{k+1}"] - ad[f"Z{k}"] for k in range(len(l))]
def warmup(l, tag, dense):
    def entry(r):
        o = [raw("s_mov_b64 vcc, -1")]
        for w in range(3): o += [raw(f"s_cmp_eq_u32 {sW4K}, {4096*w}"), raw(f"s_cbranch_scc1 Lw{tag}{r}_{w}")]
        if r == 0 and OPT["we"]: return o + [raw(f"s_branch Lw{tag}{r}_3")] + ([label("LwcY"), raw("s_branch LwcX")] if tag == "Y" else []) + [label(f"Lbody{tag}")]
        return o + [raw(f"s_branch Lw{tag}{r}_3"), label(f"Lwr{tag}{r}"), raw("s_mov_b64 vcc, 0")]
    l = entry(0) + l
    sz = sizes(l); esz = sum(sizes(entry(1))); total = sum(sz)
    idx = {id(x): k for k, x in enumerate(l)}
    isd = [False] * len(l)
    for a, b in dense:
        for k in range(idx[id(a)] if a is not None else 0, idx[id(b)] if b is not None else len(l)): isd[k] = True
    ends = [e * 4096 + 1024 for e in (OPT["wu1"], OPT["wu2"]) if e]
    out = []; pos = 0; win = False; pads = [[]]; nxt = OPT["wg"] if isd[0] else 4096
    for k, (i, z) in enumerate(zip(l, sz)):
        prev = l[k - 1] if k else None
        free = prev is not None and ismf(prev) and i.k not in SCAL and not i.nop
        if isd[k]: nxt = min(nxt, (pos // OPT["wg"] + 1) * OPT["wg"])
        if pos >= nxt and not win and (free or pos >= nxt + 40) and sum(sz[k:k + 40]) >= 128:
            p = raw(""); pads[-1].append(p); out.append(p); pos += 4
            nxt = (pos // 4096 + 1) * 4096
        elif ends and pos >= ends[0] and not win and free:
            out += entry(len(pads)); pos += esz; pads.append([]); ends.pop(0)
        if i.t.startswith("v_cmp") and "vcc" in i.w: win = True
        if i.cmt == "check": win = False
        out.append(i); pos += z
    for r, pl in enumerate(pads):
        assert len(pl) >= 4, (r, len(pl))
        for k, p in enumerate(pl):
            p.t = f"\nLw{tag}{r}_{k}:\n    s_cbranch_vccnz " + (f"Lw{tag}{r}_{k+4}" if k + 4 < len(pl) else (f"Lwc{tag}" if r == 0 and OPT["we"] else f"Lwr{tag}{r}"))
    if OPT["verbose"]: print("  pads per round:", [len(x) for x in pads])
    return out
def build():
    STC[0] = OPT["stc"]; DWP[0] = OPT["dwp"]; IMPR[0] = OPT["im"]; BW[0] = OPT["bw"]; NOPW[0] = OPT["nw"]; TA_LIM[0] = OPT["tal"]; VM_LAT[0] = OPT["vml"]
    if OPT["dw"]:
        import bisect
        sv = _st[0]; RX = Role("AB", "X"); RX.build(); RY = Role("BA", "Y"); RY.build(); _st[0] = sv
        ty = [i.st - RY.bstart[0].st for i in RY.prog if ismf(i)]
        for j in range(3, 30): LEAD[j] = bisect.bisect_left(ty, RX.bstart[j].st - RX.bstart[0].st) - RY.bstart[j].mi
        if OPT["verbose"]: print("  lead:", LEAD)
    com = setup_common()
    body = ""
    txt = []
    for k, types in enumerate((("AB", "BA") if OPT["ab"] else ("AA", "AA"))):
        R = Role(types, "XY"[k])
        main = R.build()
        su = setup_role(R, k)
        for i in com + su: i.st = -1000
        tr = insert_waits(com + su + main)
        while fix_hazards(tr, verbose=OPT["verbose"] > 1): pass
        e = verify2(tr); assert e == 0, e
        nc = len(com)
        if OPT["loopt"]:
            tr = [i for i in tr if i.cmt != "check"]; R.stubs = []
            i0 = tr.index(R.bstart[23]); i1 = tr.index(R.bstart[27])
            tr = tr[:i0] + [raw(f"s_mov_b32 s42, {OPT['loopt']}"), label(f"Llt{k}")] + tr[i0:i1] + [raw("s_sub_u32 s20, s20, 65536"), raw("s_sub_u32 s43, s43, 65536"), raw("s_sub_u32 s42, s42, 1"), raw("s_cmp_lg_u32 s42, 0"), raw(f"s_cbranch_scc1 Llt{k}")] + tr[i1:]
        if OPT["nost"]: tr = [i for i in tr if not (i.k == "vmem" and "store" in i.t and i.st > 75000)]
        if OPT["nodsw"]: tr = [i for i in tr if not (i.k == "dsw" and "b64" in i.t and i.st > 75000)]
        if OPT["nowait"]: tr = [i for i in tr if not (i.k == "wait" and i.st > 20000)]
        if OPT["nosync"]: tr = [i for i in tr if not ("v255" in i.t and i.st > 20000)]
        if OPT["nodma"]: tr = [i for i in tr if not (i.k == "vmem" and i.ring and i.ring[1] >= 4)]
        if OPT["samekv"]:
            for i in tr:
                if i.t == "s_add_u32 s20, s20, 16384": i.t = "s_xor_b32 s20, s20, 16384"
        if OPT["nosmf"]: tr = [i for i in tr if i.tag != "smf"]
        if OPT["nocvt"]: tr = [i for i in tr if not (i.t.startswith("v_cvt_pk") and 136 <= int(i.t.split()[1][1:-1]) < 216 and i.st > 8000)]
        if OPT["nobar"]: tr = [i for i in tr if i.k != "bar"]
        if OPT["noxor"]: tr = [i for i in tr if "0x2000, " not in i.t]
        if OPT["nolds"]: tr = [i for i in tr if not (i.k == "ds" and i.ring and i.ring[1] >= 2)]
        if OPT["noexp"]: tr = [i for i in tr if "v_exp" not in i.t]
        assert all(a is b for a, b in zip(tr[:nc], com))
        code = tr[nc:]
        if OPT["stg"]:
            x = code.index(R.bstart[1])
            code = code[:x] + [raw(f"s_bitcmp0_b32 {sW4K}, {OPT['stb']}"), raw(f"s_cbranch_scc1 Lstg{k}"), raw(f"s_sleep {OPT['stg']}"), label(f"Lstg{k}")] + code[x:]
        if OPT["jit"]:
            import random
            random.seed(OPT["jit"] + k); c2 = []
            for x, i in enumerate(code):
                if ismf(i) and random.random() < 0.02:
                    c2 += [raw(f"s_cmp_lg_u32 {sW4K}, {4096*random.randrange(4)}"), raw(f"s_cbranch_scc1 Lj{k}_{x}"), raw(f"s_sleep {random.choice([1, 3, 10, 40])}"), label(f"Lj{k}_{x}")]
                c2.append(i)
            code = c2
        if OPT["wu"]: code = warmup(code, "XY"[k], [x for b_, x in enumerate([(R.bstart[30], None), (None, R.bstart[0]), (R.bstart[15], R.bstart[17])]) if OPT["wd"] >> b_ & 1])
        txt.append("".join(i.text() for i in code + finish(R, k)))
        if OPT["verbose"]: print("  nops:", sum(i.nop for i in tr), "waits:", sum(i.k == "wait" for i in tr))
    slow = ""
    if OPT["slow"]:
        import slowpath4 as slowpath
        slow = slowpath.text(sys.modules[__name__])
    al = ".p2align 12" if OPT["wu"] or OPT["al"] else ".p2align 6"
    body = "".join(i.text() for i in com) + (("    s_branch LbodyX\n" if OPT["we"] else "    s_branch LroleX\n") + al + "\nLroleX:\n" if OPT["wu"] or OPT["al"] else "") + txt[0] + slow + al + "\nLroleY:\n" + txt[1] + "Lcodeend:\n    s_endpgm\n" + (".fill 4096, 4, 0xbf810000\n" if OPT["spf"] else "")
    return compact(body) if OPT["compact"] else body

HEAD = f"""; softmax(Q K^T / sqrt(128)) V, B8 H32 Sq608 Sk1024 D128, bf16 in / bf16 out. Hand-designed; the instruction order is emitted by my own list-scheduling script.
; One workgroup (4 waves, 512 registers each) per CU. Workgroups 16i+x and 16i+8+x share two heads (one after the other), each taking about half of the
; ring (LDS-DMA); waves synchronise through epoch flags in LDS. S^T = K Q'^T with Q' = bf16(Q * log2(e)/sqrt(128)), P = exp2(S - m), O += P V, l += P 1.
; Softmax guard: m = (true maximum of the row's first 16 keys) + 10, so m never exceeds the row's true maximum by more than 10 (nothing extra underflows).
; Every row sum l is checked at run time (l <= 2^40, not NaN); a wave that fails the check recomputes its rows at Lslow with the true row maximum.
; The fp32 output accumulators start from a small constant B (tied to the smallest column scale of V) that is subtracted again in the epilogue.
; The Lw* branches are never taken in normal flow (vcc = 0); twice per launch a wave sets vcc and hops through them to pull the first line of each code page into the I-cache.
; @launch grid=(256,1,1) block=(256,1,1) lds=163840
.amdgcn_target "amdgcn-amd-amdhsa--gfx950"
{MACROS}.text
.globl {NAME}_kernel
.p2align 8
.type {NAME}_kernel,@function
{NAME}_kernel:
"""
TAIL = f""".section .rodata,"a"
.p2align 6
.amdhsa_kernel {NAME}_kernel
  .amdhsa_next_free_vgpr 512
  .amdhsa_next_free_sgpr 102
  .amdhsa_accum_offset 256
  .amdhsa_group_segment_fixed_size 0
  .amdhsa_kernarg_size 48
  .amdhsa_user_sgpr_count 2
  .amdhsa_user_sgpr_kernarg_segment_ptr 1
  .amdhsa_system_sgpr_workgroup_id_x 1
  .amdhsa_float_denorm_mode_32 3
.end_amdhsa_kernel
"""
if __name__ == "__main__":
    txt = HEAD + build() + TAIL
    if OPT["leg"]: txt = txt.replace("v_exp_f32", "v_exp_legacy_f32")
    open(sys.argv[1], "w").write(txt)
```

```python
import sys, struct, math, re
from asmir import *
from sched import *

NAME = "standalone__mha_softmax__near_ridge"
OPT = dict(neg=0, v2=1, jsX=0, jtX=0, jfX=0, jsY=0, jtY=0, jfY=0, stg=0, stb=13, jit=0, eu=12, eo=0, cm=0, we=0, leg=0, lfix=0, me=0x3333, mo=0xcccc, mi_=0xaaaa, dwp=0, dlin=0, qd=0, qs=10, q0=1, qlin=0, sgx=4, dsp=15, dw=10, dx=-14, dy=0, dc=85, al=0, wu=1, wu1=14, wu2=0, wd=0, wg=512, fin=1, pf2=0, rot=0, sp=0, es=1, dfr=0, po=0, im=7, bw=10, stc=64, gt=0, gp_=1, gr=0, nw=40, hl=30, df0=17, df1=2, tf=12, sm=0, to=0, pfix=0, eh=1, vb=0, c4=0, swp=1, gl=1, tl=0, h0=115, h1=30, h2=195, h3=30, hd=260, nost=0, nodsw=0, ep=0, epo=0, l0=40, l1=110, l2=90, l3=40, sv=0, sd=0, asap=1, kq=4, rb=3, kalt=1, sg0=2, sg1=140, vml=3500, tal=0, bp=0, bq=1, ob=1, kap=7, obias=0, dlt=10, olast=0, o2=0, one0=0, cz=0, nosnake=0, so=0, tch=0, u0=66, u1=19, u2=19, ov=1, ddl=130, cd=1, loopt=0, nowait=0, nosync=0, spf=0, spd=6144, sdl=24, tdl=16, fl=1, flr=20, stm=0, samekv=0, nosmf=0, nocvt=0, nodma=0, nobar=0, noxor=0, nolds=0, noexp=0, xd=0, thr=0x53800000, lagc=50, lagmax=240, stamps=0, kv=1, kvy=1, q=1, o0=4, o1=4, ab=1, pf=1, e0=7, pk=1, pi=-1, pj=0, pk_=1, pall=0, verbose=0, compact=1, slow=1)
MODS = ["", " nt", " sc1", " sc1 nt", " sc0 sc1", " sc0 sc1 nt", " sc0", " sc0 nt"]
for a in sys.argv[2:]:
    k, v = a.split("="); assert k in OPT, k; OPT[k] = int(v, 0)
vKA = 0; vVA = 4; vDA, vDB = 12, 13; vIDX = 14; vG = 15
vS = 16; vNM = 36; vQA = 56; vP = 136; vQB = 216; vT = 252
aO = 0; aL = 160; aONE = 172; aV = 180; aK = 196; aQB = 212
sQ, sK, sV, sO = 4, 8, 12, 16
sOFF = "s20"; sW4K = "s21"; sC = "s22"; sC2 = "s23"
sROW = [["s24", "s25"], ["s26", "s27"]]
sMASK = "s28"; sTHR = "s29"; sBAD = [("s", 30, 2), ("s", 32, 2)]; sFK = "s34"; sFV = "s35"; sD0 = "s3"; sD1 = "s2"
sOFV = "s94" if OPT["rot"] else "s43"; sB = ["s40", "s41"]
sTMP = [f"s{i}" for i in range(36, 40)]
HEADQ = 608 * 256; HEADK = 1024 * 256
CSCALE = struct.unpack("<I", struct.pack("<f", math.log2(math.e) / math.sqrt(128.0)))[0]
if OPT["neg"] == 1: CSCALE |= 0x80000000
X1 = 0; X0 = 16384; KB = 32768; VB = 98304; FLAG = 1024
vFA, vFE = 254, 255
_st = [0]
def stmp():
    _st[0] = (_st[0] + 1) % len(sTMP); return sTMP[_st[0]]
def SS(op, d, *src):
    i = S(op, d, *src); i.w.discard("scc"); return i

def Sx(n): return ("v", vS + 4 * n, 4)
def NM(n): return ("v", vNM + 4 * n, 4)
def Q(p, n, ks):
    f = 4 * n + ks
    if p == 0: return ("v", vQA + 4 * f, 4)
    return ("a", aQB + 4 * f, 4) if f < 11 else ("v", vQB + 4 * (f - 11), 4)
def P(par, n, ks): return ("v", vP + 40 * par + 8 * n + 4 * ks, 4)
def O(n, dt): return ("a", aO + 32 * n + 4 * dt, 4)
def OP(p, n, dt):
    if p == 1 and n < 2 and OPT["ov"]: return ("v", vQA + 32 * n + 4 * dt, 4)
    return O(n, dt)
def mul2(d, a, m):
    if m[0] == "s": l = [V("v_mul_f32", f"v{d+k}", m, f"v{a+k}") for k in range(2)]; f = V("v_pk_mul_f32", ("v", d, 2), ("v", a, 2), ("s", 22, 2))
    else:
        r = int(m[1:]); l = [V("v_mul_f32", f"v{d+k}", f"v{a+k}", m) for k in range(2)]
        f = V("v_pk_mul_f32", ("v", d, 2), ("v", a, 2), ("v", r & ~1, 2), mod=" op_sel:[0,1] op_sel_hi:[1,1]" if r & 1 else " op_sel_hi:[1,0]")
        f.r.discard(f"v{r^1}")
    if OPT["pk"]: l[0].fuse = l[1].fuse = f
    return l
def f32(x): return hex(struct.unpack("<I", struct.pack("<f", float(x)))[0])
def fmap(d, a, m, c):
    l = [V("v_fma_f32", f"v{d+k}", f"v{a+k}", f"v{m+k}", f"v{c+k}") for k in range(2)]
    if OPT["pk"]: l[0].fuse = l[1].fuse = V("v_pk_fma_f32", ("v", d, 2), ("v", a, 2), ("v", m, 2), ("v", c, 2))
    return l
def colput(LW, slot, a, b, gate=()):
    i = I(f"ds_write2_b32 v{LW}, v{a}, v{b} offset0:{16*slot} offset1:{16*slot+16}", "dsw", r=[f"v{LW}", f"v{a}", f"v{b}"])
    i.xw = {f"Fq{slot}", f"Fq{slot+1}"}; i.xr = set(gate); return i
def rowget(d, LR, slot):
    i = ds_read("ds_read_b128", ("v", d, 4), f"v{LR}", 64 * slot); i.xr = {f"Fq{slot}"}; return i
def VA2(dt): return f"v{P(dt // 4, 4, 1)[1] + dt % 4}"
def KOFF(ks): return (ks & 1) * 32 + (ks >> 1) * 128
def L(n): return ("a", aL + 4 * (n // 2), 4)
def Lr(n): return aL + 4 * (n // 2) + 2 * (n % 2)
def ONE(n): return ("a", aONE + 4 * (n % 2), 4)

LEAD = {}
class Role:
    def __init__(s, types, tag):
        s.half = [t == "B" for t in types]; s.tag = tag
        s.kst = [[s.half[0], 0] for _ in range(4)]; s.vst = [[s.half[0], 0] for _ in range(8)]
        s.prog = []; s.hints = []; s.nstamp = 0; s.epoch = 0; s.stubs = []
    def add(s, *l):
        for x in l:
            if isinstance(x, list): s.prog += x
            else: s.prog.append(x)
    def hint(s, i, m, off, attr="nb"): s.hints.append((i, m, off, attr)); return i
    def addr(s, st, reg, half, h, sflip):
        o = []
        if st[0] != half:
            if st[1]: o.append(V("v_xor_b32", reg, "0x2000", reg)); st[1] = 0
            o.append(V("v_xor_b32", reg, sflip, reg)); st[0] = half
        if not half: return o, h * 8192
        if st[1] != h: o.append(V("v_xor_b32", reg, "0x2000", reg)); st[1] = h
        return o, 0
    def kread(s, dst, b, t, ks):
        o, off = s.addr(s.kst[ks], f"v{vKA+ks}", s.half[b // 16], t >> 1, sFK)
        i = ds_read("ds_read_b128", dst, f"v{vKA+ks}", (b % 4) * 16384 + off + (t & 1) * 4096)
        i.ring = ("K", b); i.xr = {f"cK{b}", f"oK{b}"}; i.wt = {f"rK{b}"}
        return o + [i]
    def vread(s, dst, b, dt, ks):
        reg = f"v{vVA+dt}"; hb = s.half[b // 16]
        if OPT["v2"]:
            o = []; off = 0 if hb else ks * 8192
            if s.vst[dt][0] != hb:
                o.append(V("v_xor_b32", reg, sFV, reg)); s.vst[dt][0] = hb
                if hb: o.append(V("v_xor_b32", VA2(dt), "0x2000", reg))
            if hb and ks: reg = VA2(dt)
        else: o, off = s.addr(s.vst[dt], reg, hb, ks, sFV)
        for u in range(2):
            i = ds_read("ds_read_b64_tr_b16", (dst[0], dst[1] + 2 * u, 2), reg, (b % 4) * 16384 + off + u * 4096)
            i.ring = ("V", b); i.xr = {f"cV{b}", f"oV{b}"}; i.wt = {f"rV{b}"}
            o.append(i)
        return o
    def vks(s, b, dt, pref):
        if s.half[b // 16] and s.vst[dt][0] and not OPT["v2"]: return [s.vst[dt][1], s.vst[dt][1] ^ 1]
        return pref
    def dma(s, kind, b, gate=None):
        o = []
        so = sOFF if kind == "K" else sOFV
        gl = OPT["gl"] and b >= 4; gp = 96 if kind == "K" else 98
        srd = sK if kind == "K" else sV
        if OPT["rot"]:
            if b > 0: o += [SS("s_add_u32", so, so, 16384), SS("s_bitset1_b32" if b >= 16 else "s_bitset0_b32", so, 18)] + ([SS("s_bitset0_b32", so, 19)] if b > 16 else [])
            if gl: o.append(raw(f"s_add_u32 s{gp}, s{srd}, {so}\n    s_addc_u32 s{gp+1}, s{srd+1}, 0", w=[f"s{gp}"], r=[so])); o[-1].cmt = "two"
        elif gl:
            if b == 4:
                o.append(raw(f"s_add_u32 s{gp}, s{srd}, {so}\n    s_addc_u32 s{gp+1}, s{srd+1}, 0", w=[f"s{gp}"], r=[so])); o[-1].cmt = "two"
            o.append(raw(f"s_add_u32 s{gp}, s{gp}, 16384\n    s_addc_u32 s{gp+1}, s{gp+1}, 0", w=[f"s{gp}"], r=[f"s{gp}"])); o[-1].cmt = "two"
        elif b > 0: o.append(SS("s_add_u32", so, so, 16384))
        o.append(SS("s_add_u32", "m0", sW4K, (b % 4) * 16384 + (VB if kind == "V" else KB)))
        for k in range(4):
            i = dma(f"v{vDA if k % 2 == 0 else vDB}", sK if kind == "K" else sV, so, k * 1024, mod=MODS[OPT["kvy" if s.tag == "Y" and b >= 3 else "kv"]])
            if gl:
                va = f"v{vDA if k % 2 == 0 else vDB}"
                i = I(f"global_load_lds_dwordx4 {va}, s[{gp}:{gp+1}] offset:{k*1024}{MODS[OPT['kv']]}", "vmem", r=[va, f"s{gp}", "m0"])
            i.ring = (kind, b); i.wt = {f"d{kind}{b}"}; i.xw = {f"i{kind}{b}"}
            if gate: i.xr = {gate}
            o.append(i)
        return o
    def barrier(s, close, opn, gate=None, extra_need=(), extra_w=(), extra_r=()):
        w = wait(need=[f"r{x}" for x in close] + [f"d{x}" for x in opn] + list(extra_need))
        w.xw = {f"c{x}" for x in close} | {"barseq"}; w.xr = {f"i{x}" for x in opn} | set(extra_r)
        b = bar(); b.xr = {"barseq"}; b.xw = {f"o{x}" for x in opn} | ({gate} if gate else set()) | set(extra_w)
        return [w, b]
    def sync(s, close, opn, m, gate=None, extra_need=(), extra_w=(), extra_r=(), off_bar=0, off_rd=0):
        if not OPT["fl"]:
            bl = s.barrier(close, opn, gate, extra_need, extra_w, extra_r); s.hint(bl[0], m, off_bar); return bl
        s.epoch += 1; e = s.epoch; tag = f"{s.tag}{e}"
        w = wait(need=[f"d{x}" for x in opn]); w.xr = {f"i{x}" for x in opn}; w.xw = {"flseq"}; s.hint(w, m, 0)
        a = ds_write("ds_write_b32", f"v{vFA}", f"v{vFE}", 0); a.xr = {"flseq"} | set(extra_r); a.xw = {f"c{x}" for x in close}; a.cmt = "arrive"
        r = ds_read("ds_read_b32", f"v{vFE}", f"v{vDA}", FLAG); s.hint(r, m, off_rd)
        c = V("v_cmp_gt_u32", "vcc", e, f"v{vFE}")
        b = I(f"s_cbranch_vccnz Ls{tag}\nLr{tag}:", "br", r=["vcc", f"v{vDA}"], w=["vcc", f"v{vFE}"]); b.cmt = "check"
        b.xw = {f"o{x}" for x in opn} | ({gate} if gate else set()) | set(extra_w)
        s.stubs += [label(f"Ls{tag}"), raw(f"ds_read_b32 v{vFE}, v{vDA} offset:{FLAG}"), raw("s_waitcnt lgkmcnt(0)"), raw(f"v_cmp_gt_u32 vcc, {e}, v{vFE}"), raw("s_nop 0"),
                    raw(f"s_cbranch_vccnz Ls{tag}")] + ([raw("s_add_u32 s95, s95, 1")] if OPT["stm"] == 4 else []) + [raw(f"s_branch Lr{tag}")]
        if OPT["cd"]: s.hint(b, m, off_rd + 8 + OPT["cd"])
        mv = V("v_mov_b32", f"v{vFE}", e)
        for i in (w, a): s.hint(i, m, max(0, off_rd - 10), "dlm")
        return ([w] if opn else []) + [mv, a, r, c, b]
    def chain(s, p, n, sq, kf, czero):
        order = [0, 1, 2, 3] if n % 2 == 0 or OPT["nosnake"] else [3, 2, 1, 0]
        return [mfma(sq, kf(ks), Q(p, n, ks), sq if k else ("0" if czero or OPT["cz"] else NM(n))) for k, ks in enumerate(order)]
    def rowmax(s, n, sq, a, b):
        x = [f"v{sq[1]+r}" for r in range(4)]
        if OPT["neg"] == 1:
            l = [V("v_min3_f32", a, x[0], x[1], x[2]), V("v_min_f32", a, a, x[3]), V("v_add_f32", a, f32(-OPT["dlt"]), a), V("v_mov_b32", b, a),
                 swap("v_permlane16_swap_b32", a, b), V("v_min_f32", a, a, b), V("v_mov_b32", b, a), swap("v_permlane32_swap_b32", a, b)]
            return l + [V("v_max_f32", f"v{vNM+4*n+r}", "-" + a, "-" + b) for r in range(4)] + [V("v_add_f32", x[r], x[r], f"v{vNM+4*n}") for r in range(4)]
        l = [V("v_max3_f32", a, x[0], x[1], x[2]), V("v_max_f32", a, a, x[3])] + ([V("v_add_f32", a, hex(struct.unpack("<I", struct.pack("<f", OPT["dlt"] + OPT["dfr"] / 10.0))[0]), a)] if OPT["dlt"] else []) + [V("v_mov_b32", b, a),
             swap("v_permlane16_swap_b32", a, b), V("v_max_f32", a, a, b), V("v_mov_b32", b, a), swap("v_permlane32_swap_b32", a, b)]
        if OPT["cm"]: l += [V("v_mov_b32", a, f32(OPT["cm"] / 10.0)), V("v_mov_b32", b, a)]
        l += [V("v_min_f32", f"v{vNM+4*n+r}", "-" + a, "-" + b) for r in range(4)]
        l += [V("v_add_f32", x[r], x[r], f"v{vNM+4*n}") for r in range(4)]
        return l
    def expcvt(s, par, n, t, sq, pb=None):
        l = []
        if pb is None: pb = vP + 40 * par + 8 * n
        for h in range(2):
            x0, x1 = f"v{sq[1]+2*h}", f"v{sq[1]+2*h+1}"
            ng = "-" if OPT["neg"] == 1 else ""
            l += [V("v_exp_f32", x0, ng + x0), V("v_exp_f32", x1, ng + x1), V("v_cvt_pk_bf16_f32", f"v{pb+2*t+h}", x0, x1)]
        return l
    def smf(s, b, n, pb=None):
        if pb is None: pb = vP + 40 * (b % 2) + 8 * n
        if s.half[b // 16] and n == 4: return mfma(L(4), ONE(4), ("v", pb, 4), L(4))
        return smfmac(L(n), ONE(n), ("v", pb, 8), f"v{vIDX}")
    def scale(s, src, dst, ta, pk=False):
        a, b = f"v{ta}", f"v{ta+1}"
        l = [V("v_lshlrev_b32", a, 16, src), V("v_and_b32", b, sMASK, src)]
        l += mul2(ta, ta, sC)
        if dst[0] == "v": return l + [V("v_cvt_pk_bf16_f32", dst, a, b)]
        return l + [V("v_cvt_pk_bf16_f32", a, a, b), V("v_accvgpr_write_b32", dst, a)]
    def rowoff(s, p, n, extra=None):
        t = stmp()
        i = SS("s_add_u32", t, sROW[p][0], n * 4096) if n < 4 else SS("s_mov_b32", t, sROW[p][1])
        if extra is None: return t, [i]
        return t, [i, SS("s_add_u32", t, t, extra)]
    def stamp(s, m=None, off=0):
        if not OPT["stamps"]: return
        k = s.nstamp; s.nstamp += 1; assert k < 14
        a = raw(f"s_memtime s[{44+4*k}:{45+4*k}]"); b = raw(f"s_memrealtime s[{46+4*k}:{47+4*k}]")
        for i in (a, b):
            if m is not None: s.hint(i, m, off); s.hint(i, m, off + 2, "dlm")
            else: i.xw = {"seq"}
        s.add(a, b)

    QREG = [(KB + 32768, ("K", 2)), (VB + 16384, ("V", 1)), (VB + 32768, ("V", 2)), (KB + 49152, ("K", 3)), (X0, "X0")]
    TA = 236
    def qdma(s, n):
        t, o = s.rowoff(0, n)
        o.append(SS("s_add_u32", "m0", sW4K, s.QREG[n][0]))
        for k in range(4):
            i = dma(f"v{vDA if k % 2 == 0 else vDB}", sQ, t, k * 1024, mod=MODS[OPT["q"]])
            i.wt = {f"dQ{n}"}; i.priv = (n, s.QREG[n][1]); o.append(i)
        return o
    def start(s):
        half = s.half[0]; TA = s.TA
        def seq(l):
            for i in l:
                if i.k in ("vmem", "wait", "bar"): i.xw = i.xw | {"seq"}
                if OPT["asap"] and i.k in ("vmem", "salu"): i.cmt = "asap"
            return l
        KF = lambda b, t: (lambda ks: ("a", 96 + 16 * t + 4 * ks, 4) if b == 0 else Q(1, t, ks))
        s.KF = KF
        def kpart(bs, dm, order, sq):
            if OPT["stm"] == 1 and 0 in bs: s.stamp()
            bl = seq(s.barrier([], [f"K{b}" for b in bs], extra_need=["cw"]))
            s.add(bl[0], seq(dm), bl[1]) if not OPT["so"] else s.add(bl, seq(dm))
            if OPT["stm"] == 1 and 0 in bs: s.stamp()
            for k, (b, t) in enumerate(order):
                for ks in range(4):
                    l = s.kread(KF(b, t)(ks), b, t, ks)
                    if sq and k < OPT["kq"]: l[-1].xr = l[-1].xr | {"seq"}
                    s.add(l)
        if not OPT["so"]:
            kpart([0, 1], s.qdma(2) + (s.qdma(3) if OPT["sd"] else []), ((0, 0), (0, 1), (0, 2), (0, 3), (1, 2), (1, 3), (1, 0), (1, 1)), True)
        nxt = [s.qdma(3), s.qdma(4), s.dma("V", 0), s.dma("K", 2), s.dma("V", 1)]
        late = []; EP = {}
        if OPT["ep"]:
            nxt = [nxt[2], nxt[0], nxt[1], nxt[3], nxt[4]]
            EP = [{5: [0], 6: [1, 2], 7: [3]}, {6: [0, 1], 7: [2, 3]}, {5: [0, 1], 6: [2, 3]}, {6: [0, 1], 7: [2], 8: [3]}, {6: [0, 1], 8: [2, 3]}, {5: [0, 1], 7: [2, 3]}][OPT["epo"]]
        def grpA(q):
            rd, mm = s.pvgroup(0, q, [0, 1, 2], aK if q % 2 == 0 else aV, lambda n: ("a", 28, 4) if OPT["ob"] else "0")
            if q < 3: mm.append(s.smf(0, q))
            s.add(rd, mm); return mm
        if OPT["sv"] & 1: nxt[1], nxt[2] = nxt[2], nxt[1]
        if OPT["sv"] & 2: late = nxt[3] + nxt[4]; nxt[3] = []; nxt[4] = []
        if OPT["sv"] & 4: late = nxt[4]; nxt[4] = nxt[3]; nxt[3] = []
        if OPT["sd"]: nxt = nxt[1:] + [[]]
        k1d = nxt[0]
        if OPT["so"]: nxt[0] = s.qdma(1 + OPT["sd"])
        s.sc = 0
        for n in range(5):
            w = wait(need=[f"dQ{n}"]); w.xw = {"seq", f"oQ{n}"}; s.add(w)
            if n == 0 or n == 4 or OPT["stm"] == 1: s.stamp()
            base = TA + (4 if n in (1, 2, 3) else 0); off = s.QREG[n][0] - (KB + 49152 if n in (1, 2, 3) else X0)
            for ks in range(4):
                i = ds_read("ds_read_b128", Q(0, n, ks), f"v{base+ks}", off); i.xr = {f"oQ{n}", f"cQ{n}", "seq"}; i.priv = (n, s.QREG[n][1]); i.wt = {f"rQ{n}"}; s.add(i)
            s.add(seq(nxt[n]))
            if OPT["pf2"] and n == OPT["pf2"]:
                s.add(V("v_accvgpr_read_b32", f"v{TA+8}", "a0"), V("v_accvgpr_read_b32", f"v{TA+9}", "a1"),
                      seq([I(f"global_load_dword a{aQB+43}, v[{TA+8}:{TA+9}], off" if 0 else f"global_load_dword a95, v[{TA+8}:{TA+9}], off", "vmem", w=["a95"], r=[f"v{TA+8}", f"v{TA+9}"])]))
            for r in range(16):
                q = f"v{vQA+16*n+r}"; s.add(s.scale(q, q, TA + 8 + 2 * (r % 4), pk=OPT["pk"]))
            for q in EP.get(2 * n, []): grpA(q)
            if OPT["so"] == 1 and n == 0:
                s.prog[-1].xw = {"seq"}
                kpart([0, 1], s.qdma(2) + s.qdma(3), ((0, 0), (0, 1), (0, 2), (0, 3), (1, 2), (1, 3), (1, 0), (1, 1)), False)
            if OPT["so"] >= 2 and n == 0:
                s.prog[-1].xw = {"seq"}
                kpart([0], s.qdma(2 + OPT["sd"]), ((0, 0), (0, 1), (0, 2), (0, 3)), False)
            for b in range(2 if n < 4 else 1):
                if OPT["so"] >= 2 and n == 0 and b == 1:
                    ch[0].xw = {"seq"}
                    kpart([1], k1d, ((1, 0), (1, 1), (1, 2), (1, 3)), False)
                for t in range(2 if half and n == 4 else 4):
                    sq = Sx(s.sc % 5); s.sc += 1
                    ch = s.chain(0, n, sq, KF(b, t), t == 0 and b == 0); s.add(ch)
                    if t == 0 and b == 0:
                        s.add(s.rowmax(n, sq, f"v{TA+16}", f"v{TA+17}"))
                        if n == 4 and not OPT["ep"]:
                            ch[-1].xw = {"seq"}
                            s.add(seq(s.barrier(["K0", "K1"], ["V0"], gate="D-1")), seq(late))
                    s.add(s.expcvt(b, n, t, sq))
            if n < 4: ch[-1].xw = {"seq"}
            if OPT["ep"] and n == 2: s.add(seq(s.barrier(["K0", "K1"], ["V0"], gate="D-1")))
            for q in EP.get(2 * n + 1, []): grpA(q)[-1].xw = {"seq"}

    def nbr(s, p, d, rl):
        return [V("v_mul_f32_e64", f"v{d}", "-" + sB[p], f"v{rl}")] if OPT["ob"] else []
    def ep_l(s, p, n, rl, tmp):
        a, b = f"v{rl}", f"v{tmp}"
        o = [V("v_accvgpr_read_b32", a, f"a{Lr(n)}")]
        if not (s.half[p] and n == 4): o += [V("v_accvgpr_read_b32", b, f"a{Lr(n)+1}"), V("v_add_f32", a, a, b)]
        if OPT["lfix"]: o += [V("v_mov_b32", a, "0.5")]
        o += [V("v_cmp_nge_f32", ("s", 42, 2), sTHR, a), SS("s_or_b64", sBAD[p], sBAD[p], ("s", 42, 2))]
        if not (s.half[p] and n == 4): o += [V("v_rcp_f32", a, a)]
        return o
    def lane16(s, d):
        return [V("v_mbcnt_lo_u32_b32", d, -1, 0), V("v_mbcnt_hi_u32_b32", d, -1, d), V("v_lshlrev_b32", d, 4, d)]
    def cmb_pre(s, T, base):
        return s.lane16(f"v{T}") + [V("v_add_u32", f"v{T}", sW4K, f"v{T}"), V("v_add_u32", f"v{T}", base, f"v{T}"), V("v_xor_b32", f"v{T+1}", "0x1000", f"v{T}"),
             V("v_xor_b32", f"v{T+2}", "0x80000000", f"v{vNM+16}") if OPT["neg"] == 1 else V("v_mov_b32", f"v{T+2}", f"v{vNM+16}")]
    def cmb_give(s, p, T, LW):
        o = s.ep_l(p, 4, T + 3, T + 4)
        w = [colput(LW, 12, T + 2, T + 3)] + [ds_write("ds_write_b128", f"v{T}", O(4, dt), 16384 + dt * 1024) for dt in range(4)]
        for i in w: i.wt = {"cw"}; i.xw = i.xw | {"cgive", "cQ8"}
        return o + w
    def cmb_col(s, p, T, LW):
        nm, l, nm2, l2, x, y = [f"v{T+k}" for k in (2, 3, 4, 5, 6, 7)]
        r = I(f"ds_read2_b32 v[{T+4}:{T+5}], {y} offset0:{16*12} offset1:{16*13}", "ds", w=[nm2, l2], r=[y]); r.xr = {"cmb"}
        return [V("v_xor_b32", y, "0x1000", f"v{LW}"), r, V("v_cmp_nge_f32", ("s", 42, 2), sTHR, l2), SS("s_or_b64", sBAD[p], sBAD[p], ("s", 42, 2)),
                V("v_min_f32", x, nm, nm2), V("v_sub_f32", nm, x, nm), V("v_sub_f32", nm2, x, nm2), V("v_exp_f32", nm, nm), V("v_exp_f32", nm2, nm2),
                V("v_mul_f32", x, l, nm), V("v_fma_f32", x, l2, nm2, x), V("v_rcp_f32", x, x), V("v_mul_f32", nm, nm, x), V("v_mul_f32", nm2, nm2, x),
                V("v_add_f32", y, nm, nm2), V("v_mul_f32_e64", y, "-" + sB[p], y), colput(LW, 8, T + 2, T + 7), colput(LW, 10, T + 4, T + 4)]
    def half_addr(s, WA, RA, GA, LW, LR, base, base2, t0, t1):
        t0, t1, wa, ra = f"v{t0}", f"v{t1}", f"v{WA}", f"v{RA}"
        t = stmp(); t2 = stmp()
        a = [SS("s_add_u32", t, sW4K, base), SS("s_add_u32", t2, sW4K, base2), V("v_mbcnt_lo_u32_b32", t0, -1, 0), V("v_mbcnt_hi_u32_b32", t0, -1, t0),
             V("v_and_b32", t1, 15, t0), V("v_lshl_add_u32", f"v{LW}", t1, 2, t2), V("v_lshl_add_u32", wa, t1, 3, t), V("v_lshrrev_b32", t1, 4, t0), V("v_lshl_add_u32", wa, t1, 9, wa),
             V("v_lshl_add_u32", f"v{LR}", t1, 4, t2),
             V("v_lshl_add_u32", ra, t1, 8, t), V("v_and_b32", t1, 3, t0), V("v_lshl_add_u32", ra, t1, 6, ra), V("v_and_b32", t1, 12, t0), V("v_lshl_add_u32", ra, t1, 1, ra),
             V("v_and_b32", t1, 7, t0), V("v_lshlrev_b32", t1, 4, t1), V("v_lshrrev_b32", t0, 3, t0), V("v_lshl_add_u32", f"v{GA}", t0, 8, t1)]
        return a
    def half_put(s, pk, r, WA, X, gate):
        w = ds_write("ds_write_b64", f"v{WA}", ("v", pk, 2), X + r * 128); w.xr = set(gate); w.xw = {f"Xd{X}_{r}"}; return [w]
    def half_wide(s, p, n, H, FR, FB, TB, WA, X, gate, part=None):
        o = []
        for r in (0, 2):
            tb = TB[r // 2]
            if OP(p, n, 0)[0] == "a":
                x = [tb + 2 * j for j in range(4)]
                o += [V("v_accvgpr_read_b32", f"v{tb+2*j+k}", f"a{OP(p, n, 4*H+j)[1]+r+k}") for j in range(4) for k in range(2)]
            else: x = [OP(p, n, 4 * H + j)[1] + r for j in range(4)]
            for j in range(4): o += fmap(x[j], x[j], FR + r, FB + r)
            if part:
                T, U, FA = part
                rr = [ds_read("ds_read_b64", ("v", U + 2 * j, 2), f"v{T+1}", 16384 + j * 1024 + r * 4) for j in range(4)]
                for i in rr: i.xr = {"cmb"}
                o += rr
                for j in range(4): o += fmap(x[j], U + 2 * j, FA + r, x[j])
            o += [V("v_cvt_pk_bf16_f32", f"v{tb+d}", f"v{x[ja]+k}", f"v{x[ja+1]+k}") for d, ja, k in ((0, 0, 0), (2, 0, 1), (1, 2, 0), (3, 2, 1))]
            o += s.half_put(tb, r, WA, X, gate) + s.half_put(tb + 2, r + 1, WA, X, gate)
        return o
    def half_slim(s, p, n, H, FR, FB, T4, WA, X):
        o = []
        for r in range(4):
            o += [V("v_accvgpr_read_b32", f"v{T4+j}", f"a{O(n, 4*H+j)[1]+r}") for j in range(4)]
            o += [V("v_fma_f32", f"v{T4+j}", f"v{T4+j}", f"v{FR+r}", f"v{FB+r}") for j in range(4)]
            o += [V("v_cvt_pk_bf16_f32", f"v{T4+k}", f"v{T4+2*k}", f"v{T4+2*k+1}") for k in range(2)] + s.half_put(T4, r, WA, X, [])
        return o
    def half_out(s, p, n, H, rb, RA, GA, X, mod):
        if s.half[p]: t, o = s.rowoff(p, n, sD1 if H else sD0); off = 0
        else: t, o = s.rowoff(p, n); off = 128 * H
        for k in range(2):
            for u in range(2):
                i = ds_read("ds_read_b64_tr_b16", ("v", rb[k] + 2 * u, 2), f"v{RA}", X + k * 1024 + u * 32); i.xr = {f"Xd{X}_{r}" for r in range(4)}; o.append(i)
            o.append(bstore(("v", rb[k], 4), f"v{GA}", sO, t, off + k * 2048, mod=MODS[mod]))
            if p == 1 and OPT["sp"]: o[-1].cmt = "prio"
        return o
    def plan_trans(s):
        hv = s.half[0]; E = vQA + 64
        WA, RA, GA, LR, FR, FB, T4 = E, E + 1, E + 2, E + 3, E + 4, E + 8, E + 12
        s.LW = LW = vQA + 24
        s.CT = CT = vQA + 56; TB = [vQA + 16, vQA + 16 if hv else vQA + 48]; XB = [0] if hv else [0, X0 - 2048, X0]; cnt = [0]
        def fin(l, dl):
            for i in l:
                if i.k == "vmem": s.hint(i, s.bstart[15], dl, "dlm")
            return l
        def wide(n, H, dl):
            X = XB[cnt[0] % len(XB)]; cnt[0] += 1
            rb = [vQA + 8, vQA + 12] if H == 0 else ([T4, vQA + 52] if hv else [vQA + 56, vQA + 60])
            l = [rowget(FR, LR, 2 * n), rowget(FB, LR, 2 * n + 1)]
            l += s.half_wide(0, n, H, FR, FB, TB, WA, X, []) + s.half_out(0, n, H, rb, RA, GA, X, OPT["o0"])
            if n == 2: l += [V("v_accvgpr_write_b32", f"a{O(2, 4*H+3)[1]+r}", sB[1]) for r in range(4)]
            return fin(l, dl)
        def comb(dl):
            l = [rowget(FR, LR, 8), rowget(FB, LR, 9), rowget(T4, LR, 10)]
            l += s.half_wide(0, 4, 1, FR, FB, TB, WA, 0, [], part=(CT, vQA + 48, T4)) + s.half_out(0, 4, 1, [T4, vQA + 60], RA, GA, 0, OPT["o0"])
            return fin(l, dl)
        def slim(n, H, newf, dl):
            return fin(([rowget(FR, LR, 2 * n), rowget(FB, LR, 2 * n + 1)] if newf else []) + s.half_slim(0, n, H, FR, FB, T4, WA, 0) + s.half_out(0, n, H, [T4, T4], RA, GA, 0, OPT["o0"]), dl)
        urg = [2, 3] if hv else [2, 3, 4]
        s.ins = {(15, 0, 0): lambda: [V("v_mov_b32", f"v{vQA+28+r}", sB[1]) for r in range(4)] + s.half_addr(WA, RA, GA, LW, LR, X1 + 2048, X1, vQA + 2, vQA + 3) + (s.cmb_pre(CT, X1) if hv else []),
                 (15, 0, 1): lambda: sum((s.ep_l(0, n, vQA + 4, vQA + 5) + s.nbr(0, vQA + 5, vQA + 4) + [colput(LW, 2 * n, vQA + 4, vQA + 5)] for n in urg + [0, 1]), []),
                 (15, 2, 0): lambda: sum((wide(n, 0, OPT["h0"] + OPT["h1"] * k) for k, n in enumerate(urg)), []),
                 (16, 0, 0): lambda: sum((wide(n, 1, OPT["h2"] + OPT["h3"] * k) for k, n in enumerate(urg)), []) + (comb(OPT["h2"] + OPT["h3"] * 2) if hv else [])
                                     + sum((slim(k // 2, k % 2, k % 2 == 0, 330 + (k + 1) * OPT["hd"]) for k in range(4)), [])}

    def pvgroup(s, j, q, tiles, vbuf, cinit):
        pv = j // 16; hv = s.half[pv]; rd = []; mm = []
        for h, pref in ((0, [0, 1]), (1, [0, 1] if hv else [1, 0])):
            for ks in s.vks(j, 2 * q + h, pref): rd += s.vread(("a", vbuf + 8 * h + 4 * ks, 4), j, 2 * q + h, ks)
        if OPT["po"] and j % 16 and j != 30:
            for n in tiles:
                hs = [0, 1] if n % 2 == 0 or OPT["po"] == 2 else [1, 0]
                for x, h in enumerate(hs):
                    for ks in ([0] if hv and n == 4 else ([0, 1] if x == 0 else [1, 0])):
                        mm.append(mfma(OP(pv, n, 2 * q + h), P(j % 2, n, ks), ("a", vbuf + 8 * h + 4 * ks, 4), OP(pv, n, 2 * q + h)))
            return rd, mm
        for h in range(2):
            dt = 2 * q + h
            for n in (tiles if h == 0 else reversed(tiles)):
                if OPT["c4"] and j % 16 != 0 and j != 30:
                    if h == 0:
                        seq4 = [(0, 0), (0, 1), (1, 0), (1, 1)][::1 if n % 2 == 0 else -1]
                        if hv and n == 4: seq4 = [(0, 0), (1, 0)]
                        for hh, ks in seq4:
                            d_ = OP(pv, n, 2 * q + (j % 2))
                            mm.append(mfma(d_, P(j % 2, n if hh == 0 else (n + 2) % 4, ks), ("a", vbuf + 8 * hh + 4 * ks, 4), d_))
                    continue
                kss = [0] if hv and n == 4 else ([0, 1] if (n + h) % 2 == 0 or OPT["nosnake"] else [1, 0])
                for k_, ks in enumerate(kss):
                    ab = [("a", vbuf + 8 * h + 4 * ks, 4), P(j % 2, n, ks)][::-1 if OPT["swp"] else 1]
                    mm.append(mfma(OP(pv, n, dt), ab[0], ab[1], cinit(n) if j % 16 == 0 and k_ == 0 else OP(pv, n, dt)))
        return rd, mm
    def tq(s, b, q): return q ^ 2 if (OPT["kalt"] and s.half[b // 16] and b % 2 == 1 and b != 31) else q
    def block(s, j):
        b = j + 1; p = b // 16; pv = j // 16
        hq, hv = s.half[p], s.half[pv]
        first = (j % 16 == 0); trans = (j == 15)
        smfs = [{0: [0], 1: [1], 2: [2, 3], 3: [4]}, {0: [0, 1], 1: [2, 3], 2: [4], 3: []}, {0: [0, 1, 2, 3, 4], 1: [], 2: [], 3: []}][OPT["sm"]]
        if j == 0 and OPT["ep"]: smfs = {0: [], 1: [], 2: [], 3: [3, 4]}
        MX = vQA; CT = s.CT
        if j == 30: s.tail_pre()
        for q in range(4):
            vbuf = aK if (j == 0 and q % 2 == 0) else aV
            def cinit(n):
                if not OPT["ob"]: return "0"
                if j == 0: return ("a", aQB, 4)
                return O(2, 3 if q < 2 else 7) if OP(1, n, 0)[0] == "a" else ("v", vQA + 28, 4)
            rd, pvm = s.pvgroup(j, q, [3, 4] if j == 0 and OPT["ep"] else [0, 1, 2, 3, 4], vbuf, cinit)
            s.add(rd)
            if (j, q, 0) in s.ins: s.add(s.ins[(j, q, 0)]())
            cz = (b % 16 == 0 and q == 0)
            if j == 0:
                work = [(4, t, s.KF(1, t), None) for t in ([[0, 1], [2], [3], []] if not hq else [[0, 1], [], [], []])[q]]
            elif j == 30:
                work = [(4, q, s.KT(q), s.PT[0])] if not (hq and q >= 2) else []
            else: work = [(n, s.tq(b, q), (lambda ks: ("a", aK + 4 * ks, 4)), None) for n in range(4 if hq and s.tq(b, q) >= 2 else 5)]
            ch = []; sqs = []
            for n, t, kf, pb in work:
                if j in (0, 30): sq = Sx(s.sc % 5); s.sc += 1
                else: sq = Sx(n)
                sqs.append(sq); ch += s.chain(p, n, sq, kf, cz)
            s.add(ch); m0 = (ch + pvm)[0]
            if OPT["vb"] and j not in (0, 30):
                for k, i in enumerate([x for x in rd if x.k == "ds"]): s.hint(i, m0, -6 + k); s.hint(i, m0, -5 + k, "dlm")
                for k, i in enumerate(getattr(s, "lastk", [])): s.hint(i, m0, -10 + k - (OPT["vb"] - 1)); s.hint(i, m0, -9 + k - (OPT["vb"] - 1), "dlm")
            if j == 0 and q == 0 and OPT["ob"]: s.add([V("v_accvgpr_write_b32", f"a{aQB+r}", sB[0]) for r in range(4)])
            if q == 0:
                s.bstart[j] = m0
                if j in s.stamp_at: s.stamp(m0)
                lag = 0
                if s.half[0] and not s.half[1]: lag = min(OPT["lagmax"], (16 * (j if j <= 15 else 31 - j) * OPT["lagc"]) // 100)
                bat = []
                if j == 0: bat.append((s.dma("K", 3, gate="D-1") + s.dma("V", 2, gate="D-1"), OPT["l0"])); lag = OPT["l1"]
                if j == 1: lag = OPT["l2"]
                if j == 2: lag = OPT["l3"]
                dl = []
                if j + 4 <= 31: dl += s.dma("K", j + 4, gate=f"D{j-1}")
                if j + 3 <= 31: dl += s.dma("V", j + 3, gate=f"D{j-1}")
                bat.append((dl, lag))
                for dl, lag in bat:
                    for k, i in enumerate([x for x in dl if x.k == "vmem"]):
                        if OPT["dw"] and j >= 3:
                            L = OPT["dx"] + max(0, min(OPT["lagmax"], LEAD.get(j, 0) * OPT["dc"] // 100 + OPT["dy"])) * (s.tag == "Y") + OPT["dsp"] * k
                            s.hint(i, m0, L); s.hint(i, m0, L + OPT["dw"], "dlm"); continue
                        if OPT["eu"]:
                            s.ne = getattr(s, "ne", -1) + 1; L = OPT["eo"] + OPT["eu"] * s.ne
                            s.hint(i, s.bstart[0], L); s.hint(i, s.bstart[0], L + 8, "dlm"); continue
                        s.hint(i, m0, lag + 30 + 2 * k, "dlm")
                        if lag: s.hint(i, m0, lag - 20)
                        L = lag + 30 + 2 * k
                    s.add(dl)
                if j in s.qst: s.add(s.qst[j](m0, L + 12))
            qlen = len(ch) + len(pvm) + 1
            if OPT["spf"] and (q == 1 or (OPT["spf"] > 1 and q == 3) or OPT["spf"] > 2):
                for i in (raw("s_getpc_b64 s[40:41]", w=["s40"]), raw(f"s_load_dword s42, s[40:41], {OPT['spd']}", r=["s40"])):
                    s.hint(i, m0, 8); s.hint(i, m0, 12, "dlm"); s.add(i)
            k = 0
            for (n, t, kf, pb), sq in zip(work, sqs):
                if cz: s.add(s.rowmax(n, sq, f"v{MX}", f"v{MX+1}"))
                l = s.expcvt(b % 2, n, t, sq, pb)
                for i in l:
                    if i.k == "trans" and j not in (0, 30) and OPT["eh"]: s.hint(i, m0, OPT["e0"] + (k * qlen) // (4 * len(work))); k += 1
                s.add(l)
            if q == 3 and j < 30:
                opn = [f"K{j+2}", f"V{j+1}"] + (["V31"] if j == 29 else [])
                cm = trans and hv
                kw = dict(gate=f"D{j}", extra_need=["cw"] if cm else [], extra_w=["cmb"] if cm else [], extra_r=["cgive"] if cm else [])
                if j == 0:
                    bl = s.barrier(["V0"], opn, **kw); s.hint(bl[0], m0, 0); s.add(bl)
                else: s.add(s.sync([f"K{b}", f"V{j}"], opn, m0, off_bar=len(ch) - 3, off_rd=OPT["flr"] - (20 - len(ch)), **kw))
                if cm: s.add(s.cmb_col(pv, CT, s.LW))
            n0 = len(s.prog)
            if j < 30:
                if q < 3 and j > 0:
                    for ks in range(4): s.add(s.kread(("a", aK + 4 * ks, 4), b, s.tq(b, q + 1), ks))
                elif q == 3:
                    for ks in range(4): s.add(s.kread(("a", aK + 4 * ks, 4), b + 1, s.tq(b + 1, 0), ks))
            s.lastk = [x for x in s.prog[n0:] if x.k == "ds"]
            if trans and q == 0:
                s.add([s.smf(j, n) for n in range(5)])
            if (j, q, 1) in s.ins: s.add(s.ins[(j, q, 1)]())
            s.add(pvm)
            if not trans: s.add([s.smf(j, n) for n in smfs[q]])
            if trans:
                if hv and q == 1: s.add(s.cmb_give(pv, CT, s.LW))
                if q == 1: s.add([V("v_accvgpr_write_b32", f"a{aL+r}", 0) for r in range(10)])
            if q == 1 and j in s.stage: s.add(s.stage[j](m0))

    def plan_stage(s):
        s.stage = {}
        def g(m):
            o = []
            def ld(f, dst, k=0):
                t, oo = s.rowoff(1, f // 4)
                i = bload(dst, f"v{vDA if OPT['qlin'] else vG}", sQ, t, (f % 4) * 1024 if OPT["qlin"] else KOFF(f % 4), mod=MODS[OPT["q"]]); i.cmt = "strided"; s.hint(i, m, (k // 2) * OPT["sg1"])
                return oo + [i]
            def sc(f, src):
                d = Q(1, f // 4, f % 4); l = []
                for r in range(4):
                    if src[0] == "a": l += [V("v_accvgpr_read_b32", f"v{vT+1}", f"a{src[1]+r}")] + s.scale(f"v{vT+1}", f"a{d[1]+r}", vT)
                    else: l += s.scale(f"v{src[1]+r}", f"{d[0]}{d[1]+r}", vT)
                return l
            land = lambda f: ("v", vQB + 4 * (f + 1), 4) if f < 8 else Q(1, f // 4, f % 4)
            for f in range(12): o += ld(f, land(f), f)
            for f in range(0, 8, 2): o += sc(f, land(f)) + sc(f + 1, land(f + 1)) + ld(12 + f, land(12 + f)) + ld(13 + f, land(13 + f))
            for f in range(8, 20): o += sc(f, land(f))
            return o
        if not OPT["qd"]: s.stage[OPT["sg0"] if s.half[0] else OPT["sgx"]] = g
        s.qst = {}
        def tile(n, prev):
            def h(m, L):
                t, o = s.rowoff(1, n)
                w = wait(need=[f"rQ{prev}"]); w.xw = {f"cQ{prev}", "qbuf"}; s.hint(w, m, L - 2)
                o += [w, SS("s_add_u32", "m0", sW4K, X0)]
                for k in range(4):
                    i = dma(f"v{vDA if k % 2 == 0 else vDB}", sQ, t, k * 1024, mod=MODS[OPT["q"]])
                    i.wt = {f"dQ{n+5}"}; i.priv = (n + 5, "X0"); i.xr = {"qbuf"}; i.xw = {f"iQ{n+5}"}; i.cmt = "slow"
                    s.hint(i, m, L + OPT["qs"] * k); s.hint(i, m, L + OPT["qs"] * k + 6, "dlm"); o.append(i)
                w = wait(need=[f"dQ{n+5}"]); w.xr = {f"iQ{n+5}"}; w.xw = {f"oQ{n+5}"}; o.append(w)
                land = lambda f: vQB + 4 * (f % 8 + 1) if f < 11 else Q(1, f // 4, f % 4)[1]
                for ks in range(4):
                    d = land(4 * n + ks); a = f"v{vG}"
                    if ks: a = f"v{d}"; o.append(V("v_xor_b32", a, KOFF(ks), f"v{vG}"))
                    i = ds_read("ds_read_b128", ("v", d, 4), a, 0); i.xr = {f"oQ{n+5}", f"cQ{n+5}"}; i.priv = (n + 5, "X0"); i.wt = {f"rQ{n+5}"}; o.append(i)
                for ks in range(4):
                    d = Q(1, n, ks)
                    for r in range(4): o += s.scale(f"v{land(4*n+ks)+r}", f"{d[0]}{d[1]+r}", vT)
                return o
            return h
        if OPT["qd"]:
            for j, n, prev in zip((0, 2, 4, 6, 8), (0, 1, 2, 4, 3), (4, 5, 6, 7, 9)): s.qst[j + OPT["q0"] if j or OPT["q0"] else 1] = tile(n, prev)

    def tail_pre(s):
        hv = s.half[1]; Z = ("a", 0) if OPT["ov"] else ("v", vQA)
        s.KT = lambda t: (lambda ks: ("a", aK + 4 * ks, 4) if t == 0 else (("v", vP + 40 + 16 * (t - 1) + 4 * ks, 4) if t < 3 else (Z[0], Z[1] + 48 + 4 * ks, 4)))
        s.VT = lambda dt, ks: (Z[0], Z[1] + 8 * dt + 4 * ks, 4) if dt < 6 else ("a", aV + 8 * (dt - 6) + 4 * ks, 4)
        s.PT = [vP + 72, 236]
        for t in range(1, 4):
            for ks in range(4): s.add(s.kread(s.KT(t)(ks), 31, t, ks))
    def tail(s):
        j = 31; hv = s.half[1]
        for dt in range(8):
            for ks in s.vks(j, dt, [0, 1]): s.add(s.vread(s.VT(dt, ks), j, dt, ks))
        E = vQA + 64
        WA, RA, GA, LW, LR, RL, NC = E, E + 1, E + 2, E + 3, E + 4, E + 6, E + 7
        CT = 244; CU = 220
        F = vP
        TB = [F, F + 8]; FQ = [(E + 8, E + 12), (F + 16, F + 20)]; RB = [F + 24 + 4 * k for k in range(4)]
        a = s.half_addr(WA, RA, GA, LW, LR, VB, KB, RL, NC)
        for i in a: s.hint(i, s.bstart[28], 0)
        s.add(a)
        order = [4, 3, 2, 1, 0]; XB = [0, 2048, 16384, 18432]
        if hv: s.add(s.cmb_pre(CT, KB))
        k2 = 0
        for k, n in enumerate(order):
            pb = s.PT[k % 2]; hn = hv and n == 4; FR, FB = FQ[k % 2]
            ml = [[s.smf(j, n, pb)], [], [], []]
            for dt in range(8):
                kss = [0] if hn else ([0, 1] if dt % 2 == 0 else [1, 0])
                ml[dt // 2] += [mfma(OP(1, n, dt), ("v", pb + 4 * ks, 4), s.VT(dt, ks), OP(1, n, dt)) for ks in kss]
            if k == 0 and OPT["stm"] != 5: s.stamp(ml[0][0])
            if k == 0 and OPT["es"]: s.add(ml[0].pop(0))
            for t in range(4):
                if k < 4:
                    n2 = order[k + 1]; sq = Sx(s.sc % 5); s.sc += 1
                    s.add(s.chain(1, n2, sq, s.KT(t), False), s.expcvt(1, n2, t, sq, s.PT[(k + 1) % 2]))
                s.add(ml[t])
                if t == 0 and not hn: s.add(s.ep_l(1, n, RL, NC) + s.nbr(1, NC, RL) + [colput(LW, 2 * n, RL, NC, ["D29"]), rowget(FR, LR, 2 * n), rowget(FB, LR, 2 * n + 1)])
            if hn:
                s.add(s.cmb_give(1, CT, LW))
                s.add(s.sync([], [], ml[3][-1], extra_need=["cw"], extra_w=["cmb"], extra_r=["cgive"], off_bar=24, off_rd=OPT["tf"]))
                continue
            for H in range(2):
                X = XB[k2 % 4]
                ep = s.half_wide(1, n, H, FR, FB, TB, WA, X, ["D29"]) + s.half_out(1, n, H, RB[2 * (k2 % 2):], RA, GA, X, OPT["o1"]); k2 += 1
                for i in ep:
                    if i.k == "vmem": s.hint(i, ml[2 * H + 1][-1], OPT["tdl"], "dlm")
                s.add(ep)
            if hv and k == 1:
                X = XB[k2 % 4]
                s.add(s.cmb_col(1, CT, LW), rowget(FR, LR, 8), rowget(FB, LR, 9), rowget(CU + 8, LR, 10))
                s.add(s.half_wide(1, 4, 1, FR, FB, TB, WA, X, ["D29"], part=(CT, CU, CU + 8)), s.half_out(1, 4, 1, RB[2 * (k2 % 2):], RA, GA, X, OPT["o1"])); k2 += 1

    def final(s):
        hv = s.half[1]
        s.tail_pre()
        E = vQA + 64; F = vP; CT = 244
        WA, RA, GA, LW, LR, RL, NC = E, E + 1, E + 2, E + 3, E + 4, E + 6, E + 7
        a = s.half_addr(WA, RA, GA, LW, LR, VB, KB, RL, NC)
        for i in a: s.hint(i, s.bstart[28], 0)
        s.add(a)
        PT = {4: vP + 72, 3: 236, 2: 220, 1: vP + 72, 0: 236}
        XB = [0, 2048, 16384, 18432]; st = dict(k2=0, late=False, fq={}, nf=0); vdone = set(); last = [None]
        std = lambda n: f"q{n-1}0 l{n} p{n}0 q{n-1}1 p{n}1 e{n}0 q{n-1}2 p{n}2 q{n-1}3 p{n}3 e{n}1 " if n else "l0 p00 p01 e00 p02 p03 e01"
        if not hv:
            sc = ["q40 P0 q41 q42 q43 P1 s4 l4 q30 p40 q31 p41 e40 q32 q33 P2 s3 l3 p30 p31 e30 P3 s0 s1 s2 p42 q20 p32 q21 p43 e41 q22 p33 e31 q23 ",
                  "q40 P0 q41 q42 q43 P1 s4 l4 p40 p41 e40 q30 q31 P2 q32 q33 P3 s3 s0 s1 s2 p42 l3 p30 q20 p43 e41 p31 e30 q21 p32 q22 p33 e31 q23 "][OPT["fin"] - 1]
        else:
            sc = ["q40 P0 q41 q30 q31 P1 s4 l4 p40 p41 g q32 q33 P2 s3 l3 p30 p31 e30 P3 s0 s1 s2 p42 p32 q20 q21 p43 p33 e31 c q22 q23 ",
                  "q40 P0 q41 q30 q31 q32 P1 s4 l4 p40 p41 g q33 s3 P2 l3 p30 p31 e30 P3 s0 s1 s2 p42 p32 q20 p43 c q21 p33 e31 q22 q23 "][OPT["fin"] - 1]
        sc += "l2 p20 q10 p21 e20 q11 p22 q12 p23 e21 q13 l1 p10 q00 p11 e10 q01 p12 q02 p13 e11 q03 l0 p00 p01 e00 p02 p03 e01" if OPT["to"] else std(2) + std(1) + std(0)
        def mm(l):
            if 30 not in s.bstart:
                s.bstart[30] = l[0]
                if 30 in s.stamp_at: s.stamp(l[0])
            s.add(l); last[0] = l[-1]
        def temps():
            k2 = st["k2"]; st["k2"] += 1
            if st["late"]: return XB[k2 % 4], [F, F + 8], [F + 24 + 8 * (k2 % 2), F + 28 + 8 * (k2 % 2)]
            return (XB[k2 % 4], [220, 220], [228, 232]) if hv else (XB[k2 % 4], [244, 244], [vNM + 16, 244] if k2 == 0 else [228, 232])
        def fq(key, slots):
            for q_, k_ in st["fq"].items():
                if k_ == key: return q_, []
            q_ = (F + 16) if st["late"] and st["nf"] % 2 else (E + 8); st["nf"] += 1; st["fq"][q_] = key
            return q_, [rowget(q_, LR, slots[0]), rowget(q_ + 4, LR, slots[1])]
        def dls(l):
            for i in l:
                if i.k == "vmem": s.hint(i, last[0], OPT["tdl"], "dlm")
            return l
        for x in sc.split():
            c = x[0]; n = int(x[1]) if len(x) > 1 else 4; hn = hv and n == 4
            if c == "q":
                t = int(x[2]); sq = Sx(s.sc % 5); s.sc += 1
                mm(s.chain(1, n, sq, s.KT(t), False)); s.add(s.expcvt(1, n, t, sq, PT[n]))
            elif c == "P":
                rd, m_ = s.pvgroup(30, n, [0, 1, 2, 3, 4], aV, None); s.add(rd); mm(m_)
                for dt in (2 * n, 2 * n + 1):
                    for ks in s.vks(31, dt, [0, 1]): s.add(s.vread(s.VT(dt, ks), 31, dt, ks))
            elif c == "s":
                mm([s.smf(30, n)])
                if n == 2: st["late"] = True
            elif c == "l":
                mm([s.smf(31, n, PT[n])])
                if not hn: s.add(s.ep_l(1, n, RL, NC) + s.nbr(1, NC, RL) + [colput(LW, 2 * n, RL, NC, ["D29"])])
            elif c == "p":
                l = []
                for dt in (2 * int(x[2]), 2 * int(x[2]) + 1):
                    l += [mfma(OP(1, n, dt), ("v", PT[n] + 4 * ks, 4), s.VT(dt, ks), OP(1, n, dt)) for ks in ([0] if hn else ([0, 1] if dt % 2 == 0 else [1, 0]))]
                mm(l)
            elif c == "e":
                H = int(x[2]); X, TB, RB = temps(); FR, l = fq(n, (2 * n, 2 * n + 1))
                s.add(dls(l + s.half_wide(1, n, H, FR, FR + 4, TB, WA, X, ["D29"]) + s.half_out(1, n, H, RB, RA, GA, X, OPT["o1"])))
            elif c == "g":
                s.add(s.cmb_pre(CT, KB), s.cmb_give(1, CT, LW))
                s.add(s.sync([], [], last[0], extra_need=["cw"], extra_w=["cmb"], extra_r=["cgive"], off_bar=24, off_rd=30))
            elif c == "c":
                X, TB, RB = temps(); s.add(s.cmb_col(1, CT, LW)); FR, l = fq("c", (8, 9))
                s.add(dls(l + [rowget(228, LR, 10)] + s.half_wide(1, 4, 1, FR, FR + 4, TB, WA, X, ["D29"], part=(CT, vNM + 12, 228)) + s.half_out(1, 4, 1, RB, RA, GA, X, OPT["o1"])))

    def build(s):
        s.bstart = {}; s.stamp_at = {0, 4, 8, 15, 16, 18, 24} if OPT["stamps"] else set()
        s.nstamp = 1
        if OPT["stm"] == 1: s.stamp_at = {0}; s.nstamp = 2
        if OPT["stm"] == 2: s.stamp_at = set(range(OPT["pj"], OPT["pj"] + 8))
        if OPT["stm"] == 5: s.stamp_at = {0, 30}
        if OPT["stm"] == 4: s.stamp_at = {0, 22, 28}
        if OPT["stm"] == 6: s.stamp_at = {1, 3, 6, 10, 14, 19, 24, 29}
        if OPT["stm"] == 3: s.stamp_at = {0, 15, 16, 17, 18, 19, 30}
        s.plan_stage(); s.plan_trans()
        s.start()
        for j in range(30 if OPT["fin"] else 31): s.block(j)
        n0 = len(s.prog)
        s.final() if OPT["fin"] else s.tail()
        for k, m in enumerate([i for i in s.prog[n0:] if ismf(i)]): m.lg = OPT["gt"] if k % OPT["gp_"] == 0 else 0
        ms = [i for i in s.prog if ismf(i)]
        for m in ms[ms.index(s.bstart[15]):ms.index(s.bstart[17]) - 40]: m.lg = OPT["gr"]
        for k, m in enumerate(ms): m.mi = k
        for i, m, off, attr in s.hints: setattr(i, attr, ms[max(0, min(len(ms) - 1, m.mi + off))])
        JIT[:] = [(-10**6, s.bstart[1].mi, OPT["js" + s.tag]), (s.bstart[15].mi - 20, s.bstart[17].mi, OPT["jt" + s.tag]), (s.bstart[30].mi - 20, 10**6, OPT["jf" + s.tag])]
        out = schedule(s.prog, verbose=True, name=s.tag)
        s.est = (s.bstart[1].st, s.bstart[22].st - s.bstart[14].st, out[-1].st - s.bstart[29].st)
        if OPT["verbose"]:
            prev = None
            for j in sorted(s.bstart):
                if prev is not None: print(f"  blk {j-1}: {s.bstart[j].st - prev}", end="")
                prev = s.bstart[j].st
            print(f"\n  start {s.bstart[0].st}  tail from blk30 {out[-1].st - prev}")
        return out

def setup_common():
    t0, t1, w = "s34", "s35", "s3"
    R = Role("AA", "")
    l, m, g, a, b, c = "v16", "v17", "v18", "v19", "v20", "v21"
    o = [raw("s_cmp_lt_u32 s2, 256", w=["scc"]), br("s_cbranch_scc1", "Lgo"), raw("s_endpgm"), label("Lgo")]
    if OPT["stamps"]: o += [raw("s_memtime s[44:45]"), raw("s_memrealtime s[46:47]")]
    if OPT["rb"] != 3:
        o += [S("s_lshr_b32", t0, "s2", OPT["rb"] - 3), S("s_xor_b32", t0, t0, "s2"), S("s_and_b32", t0, t0, 8), S("s_mul_i32", t0, t0, 1 + (1 << (OPT["rb"] - 3))), S("s_xor_b32", "s2", "s2", t0)]
    o += [raw("s_load_dwordx4 s[8:11], s[0:1], 0"), raw("s_load_dwordx4 s[12:15], s[0:1], 16"),
          V("v_lshrrev_b32", "v1", 6, "v0"), V("v_and_b32", l, 63, "v0"), V("v_and_b32", m, 15, "v0"),
          V("v_readfirstlane_b32", w, "v1"), V("v_lshrrev_b32", g, 4, l)]
    if OPT["pf"]:
        o += [raw("s_getpc_b64 s[36:37]", w=["s36", "s37"]), label("Lpf"),
              S("s_lshr_b32", t0, "s2", 4), S("s_lshl_b32", t0, t0, 13), S("s_bitcmp1_b32", "s2", 3), S("s_cselect_b32", t1, "LroleY-Lpf", 0), S("s_add_u32", t0, t0, t1),
              V("v_lshl_add_u32", a, "v0", 5, t0), V("v_min_u32", a, "Lcodeend-Lpf", a), V("v_mov_b32", "v25", "s37"),
              I("v_add_co_u32 v24, vcc, s36, v19", "valu", w=["v24", "vcc"], r=["s36", "v19"]), I("v_addc_co_u32 v25, vcc, 0, v25, vcc", "valu", w=["v25", "vcc"], r=["v25", "vcc"]),
              I("global_load_dword v253, v[24:25], off", "vmem", w=["v253"], r=["v24", "v25"])]
        if OPT["pf2"]:
            o = o[:-1] + [V("v_accvgpr_write_b32", "a0", "v24"), V("v_accvgpr_write_b32", "a1", "v25"),
                  S("s_lshr_b32", t0, "s2", 4), S("s_lshl_b32", t0, t0, 10), S("s_add_u32", t0, t0, t1), V("v_lshl_add_u32", a, "v0", 2, t0), V("v_mov_b32", "v25", "s37"),
                  I("v_add_co_u32 v24, vcc, s36, v19", "valu", w=["v24", "vcc"], r=["s36", "v19"]), I("v_addc_co_u32 v25, vcc, 0, v25, vcc", "valu", w=["v25", "vcc"], r=["v25", "vcc"]), o[-1]]
    o += [V("v_xor_b32", a, g, m), V("v_lshlrev_b32", a, 4, a), V("v_lshl_add_u32", f"v{vDA}", g, 8, a), V("v_xor_b32", f"v{vDB}", 128, f"v{vDA}")]
    if OPT["dlin"]: o += [V("v_lshlrev_b32", f"v{vDA}", 4, l), V("v_lshlrev_b32", f"v{vDB}", 4, l)]
    if OPT["ob"]: o += [V("v_and_b32", a, 31, l), V("v_lshlrev_b32", a, 4, a), V("v_lshrrev_b32", b, 5, l), V("v_lshl_add_u32", "v22", b, 18, a)]
    o += [S("s_lshl_b32", sW4K, w, 12), S("s_mov_b32", sOFF, sW4K), S("s_mov_b32", sOFV, sW4K)]
    if OPT["rot"]:
        o += [S("s_lshr_b32", t0, "s2", 4)] + ([S("s_lshl_b32", t1, "s2", 1), S("s_and_b32", t1, t1, 14), S("s_add_u32", t0, t0, t1)] if OPT["rot"] == 2 else []) + ([S("s_lshl_b32", t0, t0, 1)] if OPT["rot"] == 3 else [])
        o += [S("s_and_b32", t0, t0, 15), S("s_lshl_b32", t0, t0, 14), S("s_add_u32", sOFF, sOFF, t0), S("s_mov_b32", sOFV, sOFF)]
    o += [S("s_mul_i32", "s28", w, 5 * 4096), S("s_add_u32", "s29", "s28", 4 * 4096)]
    if OPT["ab"]: o += [S("s_lshl_b32", "s30", w, 14), S("s_add_u32", "s30", "s30", 20 * 4096), S("s_and_b32", "s31", sW4K, "0x2000"), S("s_lshr_b32", "s31", "s31", 1), S("s_add_u32", "s31", "s31", 36 * 4096)]
    else: o += [S("s_add_u32", "s30", "s28", 18 * 4096), S("s_add_u32", "s31", "s28", 22 * 4096)]
    o += [S("s_bitcmp1_b32", "s2", 3), S("s_cselect_b64", ("s", 24, 2), ("s", 30, 2), ("s", 28, 2)), S("s_cselect_b64", ("s", 26, 2), ("s", 28, 2), ("s", 30, 2))]
    o += [S("s_and_b32", t0, "s2", 7), S("s_lshr_b32", t1, "s2", 4), S("s_lshl_b32", t0, t0, 4), S("s_add_u32", t0, t0, t1),
          S("s_mul_i32", t1, t0, 2 * HEADQ), S("s_lshl_b32", t0, t0, 19), S("s_mov_b32", "s6", 2 * HEADQ), S("s_mov_b32", "s7", "0x00020000")]
    o += [raw("s_waitcnt lgkmcnt(0)", k="salu")]
    if OPT["stamps"] and OPT["stm"] == 1: o += [raw("s_memtime s[48:49]"), raw("s_memrealtime s[50:51]")]
    o += [S("s_add_u32", "s4", "s8", t1), S("s_addc_u32", "s5", "s9", 0),
          S("s_add_u32", "s8", "s10", t0), S("s_addc_u32", "s9", "s11", 0), S("s_mov_b32", "s10", 2 * HEADK), S("s_mov_b32", "s11", "0x00020000")]
    srd2 = [S("s_add_u32", "s16", "s14", t1), S("s_addc_u32", "s17", "s15", 0), S("s_mov_b32", "s18", 2 * HEADQ), S("s_mov_b32", "s19", "0x00020000"),
          S("s_add_u32", "s12", "s12", t0), S("s_addc_u32", "s13", "s13", 0), S("s_mov_b32", "s14", 2 * HEADK), S("s_mov_b32", "s15", "0x00020000")]
    vl = [bload(("v", 24 + 4 * k, 4), "v22", sV, 0, 512 * k, mod=" nt") for k in range(2)] if OPT["ob"] else []
    parts = [R.qdma(0), R.dma("K", 0), R.dma("K", 1)] if OPT["so"] else [R.dma("K", 0), R.dma("K", 1), R.qdma(0)]
    k1late = []
    if OPT["so"] == 3: k1late = parts.pop(); parts = parts[::-1]
    if OPT["so"] == 4: k1late = parts.pop()
    parts.insert(OPT["bp"], srd2 + vl)
    for x in parts: o += x
    if OPT["stamps"]: o += [S("s_lshl_b32", "s100", "s2", 2), S("s_add_u32", "s100", "s100", w), S("s_mov_b32", "s101", "s2")] + ([S("s_mov_b32", "s95", 0)] if OPT["stm"] == 4 else [])
    if OPT["wu"]: o += [S("s_mov_b64", ("s", 96, 2), ("s", 8, 2)), S("s_mov_b64", ("s", 98, 2), ("s", 12, 2)), V("v_mov_b32", f"v{vQA+66}", 0)]
    o += [S("s_add_u32", "s26", "s26", HEADQ), S("s_add_u32", "s27", "s27", HEADQ)]
    o += [S("s_add_u32", "s33", sW4K, X0), V("v_and_b32", a, 1, g), V("v_lshlrev_b32", a, 6, a), V("v_lshrrev_b32", b, 1, g), V("v_lshl_add_u32", a, b, 4, a), V("v_lshl_add_u32", f"v{vG}", m, 8, a)]
    o += [V("v_and_b32", a, 3, m), V("v_and_b32", b, 4, m), V("v_lshl_add_u32", a, b, 1, a), V("v_lshlrev_b32", a, 4, a), V("v_xor_b32", a, a, f"v{vG}")]
    for ks in range(4):
        o += [V("v_xor_b32", b, KOFF(ks), a), V("v_add_u32", f"v{vKA+ks}", KB, b), V("v_add_u32", f"v{R.TA+ks}", "s33", b), V("v_add_u32", f"v{R.TA+4+ks}", KB + 49152 - X0, f"v{R.TA+ks}")]
    if OPT["qd"]: o += [V("v_mov_b32", f"v{vG}", f"v{R.TA}")]
    o += [V("v_lshrrev_b32", a, 2, l), V("v_and_b32", b, 3, a), V("v_and_b32", c, 4, a), V("v_lshl_add_u32", b, c, 1, b), V("v_and_b32", c, 2, l), V("v_lshl_add_u32", b, c, 1, b),
          V("v_lshlrev_b32", b, 4, b), V("v_and_b32", c, 1, l), V("v_lshl_add_u32", b, c, 3, b), V("v_lshl_add_u32", b, a, 8, b), V("v_add_u32", f"v{vVA}", VB, b)]
    o += [V("v_xor_b32", f"v{vVA+dt}", (dt & 3) * 16 + (dt >> 2) * 128, f"v{vVA}") for dt in range(1, 8)]
    o += [S("s_lshl_b32", t0, w, 8), S("s_add_u32", t0, t0, FLAG), V("v_lshl_add_u32", f"v{vFA}", l, 2, t0), V("v_mov_b32", f"v{vFE}", 0)]
    fi = ds_write("ds_write_b32", f"v{vFA}", f"v{vFE}", 0); fi.wt = {"cw"}; o.append(fi)
    o += [V("v_accvgpr_write_b32", f"a{aL+r}", 0) for r in range(12)]
    for msk, d in ((OPT["me"], a), (OPT["mo"], b), (OPT["mi_"], c)): o += [V("v_mov_b32", d, msk), V("v_bfe_i32", d, d, m, 1)]
    o += [V("v_and_b32", a, "0x3f803f80", a), V("v_and_b32", b, "0x3f803f80", b), V("v_and_b32", c, "0xaaaaaaaa", c), V("v_or_b32", f"v{vIDX}", "0x44444444", c)]
    o += [V("v_accvgpr_write_b32", f"a{aONE+i}", a) for i in range(4)] + [V("v_accvgpr_write_b32", f"a{aONE+4+i}", b) for i in range(4)]
    o += [S("s_mov_b32", sC, hex(CSCALE)), S("s_mov_b32", sC2, hex(CSCALE)), S("s_mov_b32", sMASK, "0xffff0000"), S("s_mov_b32", sTHR, hex(OPT["thr"])),
          S("s_mov_b64", sBAD[0], 0), S("s_mov_b64", sBAD[1], 0)]
    o += [S("s_and_b32", sD0, w, 1), S("s_lshl_b32", sFK, sD0, 13), S("s_lshl_b32", sD0, sD0, 7), S("s_or_b32", sFV, sFK, sD0)]
    if OPT["ob"]:
        x = [f"v{24+k}" for k in range(8)]; y = [f"v{32+k}" for k in range(8)]
        bo = [wait(need=x)] + [V("v_max_f32_e64", y[k], f"|{x[k]}|", f"|{x[4+k]}|") for k in range(4)]
        bo += [V("v_lshlrev_b32", x[k], 16, x[k]) for k in range(8)] + [V("v_max_f32_e64", y[4+k], f"|{x[k]}|", f"|{x[4+k]}|") for k in range(4)]
        bo += [swap("v_permlane16_swap_b32", y[k], y[4+k]) for k in range(4)] + [V("v_max_f32", y[k], y[k], y[4+k]) for k in range(4)]
        bo += [V("v_min3_f32", y[0], y[0], y[1], y[2]), V("v_min_f32", y[0], y[0], y[3])]
        bo += [V("v_min_f32_dpp", y[0], y[0], y[0], mod=f" row_ror:{k} row_mask:0xf bank_mask:0xf") for k in (8, 4, 2, 1)]
        bo += [V("v_and_b32", y[0], "0x7f800000", y[0]), V("v_min_f32", y[0], f32(2.0 ** 100), y[0]), V("v_mul_f32", y[0], f32(1.5 * 2.0 ** (OPT["kap"] - OPT["dlt"])), y[0]), nop(1)]
        bo += [V("v_readlane_b32", "s40", y[0], 0), V("v_readlane_b32", "s36", y[0], 16), V("v_readlane_b32", "s41", y[0], 32), V("v_readlane_b32", "s37", y[0], 48), nop(2),
               S("s_min_u32", "s40", "s40", "s36"), S("s_min_u32", "s41", "s41", "s37")]
    else: bo = []
    o += k1late
    if OPT["we"]: o += [S("s_bitcmp1_b32", "s2", 3), br("s_cbranch_scc1", "LroleY"), br("s_branch", "LroleX"), label("LwcX"), raw("s_mov_b64 vcc, 0")]
    if OPT["ep"]: bo += [V("v_accvgpr_write_b32", f"a{28+r}", "s40") for r in range(4)]
    if OPT["bq"]: o += bo
    if not OPT["so"] or OPT["sd"]: o += R.qdma(1)
    if not OPT["bq"]: o += bo
    o += [S("s_bitcmp1_b32", "s2", 3), br("s_cbranch_scc1", "LbodyY" if OPT["we"] else "LroleY")]
    return o

def setup_role(R, k):
    o = [S("s_xor_b32", sD1, sD0, 128)]
    if R.half[0]:
        o += [V("v_xor_b32", f"v{vKA+ks}", sFK, f"v{vKA+ks}") for ks in range(4)] + [V("v_xor_b32", f"v{vVA+dt}", sFV, f"v{vVA+dt}") for dt in range(8)]
        if OPT["v2"]: o += [V("v_xor_b32", VA2(dt), "0x2000", f"v{vVA+dt}") for dt in range(8)]
    return o

def finish(R, k):
    o = []
    if OPT["stamps"]:
        n = R.nstamp
        o += [raw(f"s_memtime s[{44+4*n}:{45+4*n}]"), raw(f"s_memrealtime s[{46+4*n}:{47+4*n}]"), raw("s_waitcnt vmcnt(0) lgkmcnt(0)")]; n += 1
        o += [raw(f"s_memtime s[{44+4*n}:{45+4*n}]"), raw(f"s_memrealtime s[{46+4*n}:{47+4*n}]"), raw("s_waitcnt lgkmcnt(0)")]; n += 1
        assert n <= 13
        if OPT["pi"] >= 0:
            i, j, kk = OPT["pi"], OPT["pj"], OPT["pk_"]
            if not OPT["pall"]: o += [raw("s_and_b32 s101, s101, 0xf7"), raw("s_cmp_lg_u32 s101, 100"), raw(f"s_cbranch_scc1 Lfin{k}")]
            o += [raw(f"s_sub_u32 s36, s{44+4*j+2*kk}, s{44+4*i+2*kk}"), raw("s_mul_i32 s36, s36, 10") if kk else raw("s_lshr_b32 s36, s36, 1"),
                  raw("s_min_u32 s36, s36, 200000"), raw("s_memrealtime s[38:39]"), raw("s_waitcnt lgkmcnt(0)")] + ([raw(f"s_mov_b32 s36, {OPT['pfix']}"), raw("s_mov_b32 s38, s46")] if OPT["pfix"] else []) + [label(f"Lspin{k}"), raw("s_memrealtime s[40:41]"), raw("s_waitcnt lgkmcnt(0)"),
                  raw("s_sub_u32 s37, s40, s38"), raw("s_cmp_lt_u32 s37, s36"), raw(f"s_cbranch_scc1 Lspin{k}")]
        else:
            o += [raw("; STAMPS"), raw("s_load_dwordx2 s[40:41], s[0:1], 40"), raw("v_mov_b32 v16, 0")]
            for x in range(n): o += [raw(f"v_writelane_b32 v16, s{44+4*x}, {2*x}"), raw(f"v_writelane_b32 v16, s{46+4*x}, {2*x+1}")]
            o += [raw(f"v_writelane_b32 v16, {n}, 63"), raw("v_writelane_b32 v16, s95, 62"), raw("s_lshl_b32 s100, s100, 8"), raw("v_mbcnt_lo_u32_b32 v17, -1, 0"), raw("v_mbcnt_hi_u32_b32 v17, -1, v17"), raw("v_lshlrev_b32 v17, 2, v17"),
                  raw("s_waitcnt lgkmcnt(0)"), raw("s_mov_b32 s42, 0x100000"), raw("s_mov_b32 s43, 0x00020000"), raw("buffer_store_dword v16, v17, s[40:43], s100 offen"), raw("s_waitcnt vmcnt(0)")]
    o += [label(f"Lfin{k}")]
    if OPT["slow"]: o += [raw("s_or_b64 s[36:37], s[30:31], s[32:33]"), raw("s_cbranch_scc1 Lslow")]
    o += [raw("s_endpgm")] + R.stubs
    return o

MACROS = """.macro qa d,a,b,c
v_mfma_f32_16x16x32_bf16 v[\\d:\\d+3], a[\\a:\\a+3], v[\\b:\\b+3], v[\\c:\\c+3]
.endm
.macro qb d,a,b,c
v_mfma_f32_16x16x32_bf16 v[\\d:\\d+3], a[\\a:\\a+3], a[\\b:\\b+3], v[\\c:\\c+3]
.endm
.macro pv d,a,b
v_mfma_f32_16x16x32_bf16 a[\\d:\\d+3], a[\\a:\\a+3], v[\\b:\\b+3], a[\\d:\\d+3]
.endm
.macro pw d,a,b
v_mfma_f32_16x16x32_bf16 v[\\d:\\d+3], a[\\a:\\a+3], v[\\b:\\b+3], v[\\d:\\d+3]
.endm
.macro pa d,a,b
v_mfma_f32_16x16x32_bf16 a[\\d:\\d+3], v[\\a:\\a+3], a[\\b:\\b+3], a[\\d:\\d+3]
.endm
.macro pb d,a,b
v_mfma_f32_16x16x32_bf16 v[\\d:\\d+3], v[\\a:\\a+3], a[\\b:\\b+3], v[\\d:\\d+3]
.endm
.macro ex r
v_exp_f32 v\\r, v\\r
.endm
.macro cv d,a,b
v_cvt_pk_bf16_f32 v\\d, v\\a, v\\b
.endm
.macro lk d,a,o
ds_read_b128 a[\\d:\\d+3], v\\a offset:\\o
.endm
.macro lv d,a,o
ds_read_b64_tr_b16 a[\\d:\\d+1], v\\a offset:\\o
.endm
"""
def compact(txt):
    M = "    v_mfma_f32_16x16x32_bf16 "
    txt = re.sub(M + r"v\[(\d+):\d+\], a\[(\d+):\d+\], v\[(\d+):\d+\], v\[\1:\d+\]", r"pw \1,\2,\3", txt)
    txt = re.sub(M + r"v\[(\d+):\d+\], a\[(\d+):\d+\], v\[(\d+):\d+\], v\[(\d+):\d+\]", r"qa \1,\2,\3,\4", txt)
    txt = re.sub(M + r"v\[(\d+):\d+\], a\[(\d+):\d+\], a\[(\d+):\d+\], v\[(\d+):\d+\]", r"qb \1,\2,\3,\4", txt)
    txt = re.sub(M + r"a\[(\d+):\d+\], a\[(\d+):\d+\], v\[(\d+):\d+\], a\[\1:\d+\]", r"pv \1,\2,\3", txt)
    txt = re.sub(M + r"a\[(\d+):\d+\], v\[(\d+):\d+\], a\[(\d+):\d+\], a\[\1:\d+\]", r"pa \1,\2,\3", txt)
    txt = re.sub(M + r"v\[(\d+):\d+\], v\[(\d+):\d+\], a\[(\d+):\d+\], v\[\1:\d+\]", r"pb \1,\2,\3", txt)
    txt = re.sub(r"    v_exp_f32 v(\d+), v\1\n", r"ex \1\n", txt)
    txt = re.sub(r"    v_cvt_pk_bf16_f32 v(\d+), v(\d+), v(\d+)", r"cv \1,\2,\3", txt)
    txt = re.sub(r"    ds_read_b128 a\[(\d+):\d+\], v(\d+) offset:(\d+)", r"lk \1,\2,\3", txt)
    txt = re.sub(r"    ds_read_b64_tr_b16 a\[(\d+):\d+\], v(\d+) offset:(\d+)", r"lv \1,\2,\3", txt)
    return txt.replace("\n    ", "\n")

def sizes(l):
    import subprocess, tempfile, os
    d = tempfile.mkdtemp()
    t = "".join(f"Z{k}:\n" + re.sub(r"(s_c?branch\w*) \w+", r"\1 Z0", re.sub(r"(?m)^L\w+:\n", "", i.text())) for k, i in enumerate(l)) + f"Z{len(l)}:\ns_endpgm\n"
    open(d + "/a.s", "w").write(t)
    subprocess.run(["clang", "-x", "assembler", "-target", "amdgcn-amd-amdhsa", "-mcpu=gfx950", "-c", d + "/a.s", "-o", d + "/a.o"], check=True)
    out = subprocess.run(["llvm-objdump", "-t", d + "/a.o"], capture_output=True, text=True).stdout
    ad = {x.split()[-1]: int(x.split()[0], 16) for x in out.splitlines() if re.search(r" Z\d+$", x)}
    return [ad[f"Z{k+1}"] - ad[f"Z{k}"] for k in range(len(l))]
def warmup(l, tag, dense):
    def entry(r):
        o = [raw("s_mov_b64 vcc, -1")]
        for w in range(3): o += [raw(f"s_cmp_eq_u32 {sW4K}, {4096*w}"), raw(f"s_cbranch_scc1 Lw{tag}{r}_{w}")]
        if r == 0 and OPT["we"]: return o + [raw(f"s_branch Lw{tag}{r}_3")] + ([label("LwcY"), raw("s_branch LwcX")] if tag == "Y" else []) + [label(f"Lbody{tag}")]
        return o + [raw(f"s_branch Lw{tag}{r}_3"), label(f"Lwr{tag}{r}"), raw("s_mov_b64 vcc, 0")]
    l = entry(0) + l
    sz = sizes(l); esz = sum(sizes(entry(1))); total = sum(sz)
    idx = {id(x): k for k, x in enumerate(l)}
    isd = [False] * len(l)
    for a, b in dense:
        for k in range(idx[id(a)] if a is not None else 0, idx[id(b)] if b is not None else len(l)): isd[k] = True
    ends = [e * 4096 + 1024 for e in (OPT["wu1"], OPT["wu2"]) if e]
    out = []; pos = 0; win = False; pads = [[]]; nxt = OPT["wg"] if isd[0] else 4096
    for k, (i, z) in enumerate(zip(l, sz)):
        prev = l[k - 1] if k else None
        free = prev is not None and ismf(prev) and i.k not in SCAL and not i.nop
        if isd[k]: nxt = min(nxt, (pos // OPT["wg"] + 1) * OPT["wg"])
        if pos >= nxt and not win and (free or pos >= nxt + 40) and sum(sz[k:k + 40]) >= 128:
            p = raw(""); pads[-1].append(p); out.append(p); pos += 4
            nxt = (pos // 4096 + 1) * 4096
        elif ends and pos >= ends[0] and not win and free:
            out += entry(len(pads)); pos += esz; pads.append([]); ends.pop(0)
        if i.t.startswith("v_cmp") and "vcc" in i.w: win = True
        if i.cmt == "check": win = False
        out.append(i); pos += z
    for r, pl in enumerate(pads):
        assert len(pl) >= 4, (r, len(pl))
        for k, p in enumerate(pl):
            p.t = f"\nLw{tag}{r}_{k}:\n    s_cbranch_vccnz " + (f"Lw{tag}{r}_{k+4}" if k + 4 < len(pl) else (f"Lwc{tag}" if r == 0 and OPT["we"] else f"Lwr{tag}{r}"))
    if OPT["verbose"]: print("  pads per round:", [len(x) for x in pads])
    return out
def build():
    STC[0] = OPT["stc"]; DWP[0] = OPT["dwp"]; IMPR[0] = OPT["im"]; BW[0] = OPT["bw"]; NOPW[0] = OPT["nw"]; TA_LIM[0] = OPT["tal"]; VM_LAT[0] = OPT["vml"]
    if OPT["dw"]:
        import bisect
        sv = _st[0]; RX = Role("AB", "X"); RX.build(); RY = Role("BA", "Y"); RY.build(); _st[0] = sv
        ty = [i.st - RY.bstart[0].st for i in RY.prog if ismf(i)]
        for j in range(3, 30): LEAD[j] = bisect.bisect_left(ty, RX.bstart[j].st - RX.bstart[0].st) - RY.bstart[j].mi
        if OPT["verbose"]: print("  lead:", LEAD)
    com = setup_common()
    body = ""
    txt = []
    for k, types in enumerate((("AB", "BA") if OPT["ab"] else ("AA", "AA"))):
        R = Role(types, "XY"[k])
        main = R.build()
        su = setup_role(R, k)
        for i in com + su: i.st = -1000
        tr = insert_waits(com + su + main)
        while fix_hazards(tr, verbose=OPT["verbose"] > 1): pass
        e = verify2(tr); assert e == 0, e
        nc = len(com)
        if OPT["loopt"]:
            tr = [i for i in tr if i.cmt != "check"]; R.stubs = []
            i0 = tr.index(R.bstart[23]); i1 = tr.index(R.bstart[27])
            tr = tr[:i0] + [raw(f"s_mov_b32 s42, {OPT['loopt']}"), label(f"Llt{k}")] + tr[i0:i1] + [raw("s_sub_u32 s20, s20, 65536"), raw("s_sub_u32 s43, s43, 65536"), raw("s_sub_u32 s42, s42, 1"), raw("s_cmp_lg_u32 s42, 0"), raw(f"s_cbranch_scc1 Llt{k}")] + tr[i1:]
        if OPT["nost"]: tr = [i for i in tr if not (i.k == "vmem" and "store" in i.t and i.st > 75000)]
        if OPT["nodsw"]: tr = [i for i in tr if not (i.k == "dsw" and "b64" in i.t and i.st > 75000)]
        if OPT["nowait"]: tr = [i for i in tr if not (i.k == "wait" and i.st > 20000)]
        if OPT["nosync"]: tr = [i for i in tr if not ("v255" in i.t and i.st > 20000)]
        if OPT["nodma"]: tr = [i for i in tr if not (i.k == "vmem" and i.ring and i.ring[1] >= 4)]
        if OPT["samekv"]:
            for i in tr:
                if i.t == "s_add_u32 s20, s20, 16384": i.t = "s_xor_b32 s20, s20, 16384"
        if OPT["nosmf"]: tr = [i for i in tr if i.tag != "smf"]
        if OPT["nocvt"]: tr = [i for i in tr if not (i.t.startswith("v_cvt_pk") and 136 <= int(i.t.split()[1][1:-1]) < 216 and i.st > 8000)]
        if OPT["nobar"]: tr = [i for i in tr if i.k != "bar"]
        if OPT["noxor"]: tr = [i for i in tr if "0x2000, " not in i.t]
        if OPT["nolds"]: tr = [i for i in tr if not (i.k == "ds" and i.ring and i.ring[1] >= 2)]
        if OPT["noexp"]: tr = [i for i in tr if "v_exp" not in i.t]
        assert all(a is b for a, b in zip(tr[:nc], com))
        code = tr[nc:]
        if OPT["neg"] == 2:
            for i in code: i.t = i.t.replace("v_exp_f32", "v_exp_f32_e64")
        if OPT["stg"]:
            x = code.index(R.bstart[1])
            code = code[:x] + [raw(f"s_bitcmp0_b32 {sW4K}, {OPT['stb']}"), raw(f"s_cbranch_scc1 Lstg{k}"), raw(f"s_sleep {OPT['stg']}"), label(f"Lstg{k}")] + code[x:]
        if OPT["jit"]:
            import random
            random.seed(OPT["jit"] + k); c2 = []
            for x, i in enumerate(code):
                if ismf(i) and random.random() < 0.02:
                    c2 += [raw(f"s_cmp_lg_u32 {sW4K}, {4096*random.randrange(4)}"), raw(f"s_cbranch_scc1 Lj{k}_{x}"), raw(f"s_sleep {random.choice([1, 3, 10, 40])}"), label(f"Lj{k}_{x}")]
                c2.append(i)
            code = c2
        if OPT["wu"]: code = warmup(code, "XY"[k], [x for b_, x in enumerate([(R.bstart[30], None), (None, R.bstart[0]), (R.bstart[15], R.bstart[17])]) if OPT["wd"] >> b_ & 1])
        txt.append("".join(i.text() for i in code + finish(R, k)))
        if OPT["verbose"]: print("  nops:", sum(i.nop for i in tr), "waits:", sum(i.k == "wait" for i in tr))
    slow = ""
    if OPT["slow"]:
        import slowpath4 as slowpath
        slow = slowpath.text(sys.modules[__name__])
    al = ".p2align 12" if OPT["wu"] or OPT["al"] else ".p2align 6"
    body = "".join(i.text() for i in com) + (("    s_branch LbodyX\n" if OPT["we"] else "    s_branch LroleX\n") + al + "\nLroleX:\n" if OPT["wu"] or OPT["al"] else "") + txt[0] + slow + al + "\nLroleY:\n" + txt[1] + "Lcodeend:\n    s_endpgm\n" + (".fill 4096, 4, 0xbf810000\n" if OPT["spf"] else "")
    return compact(body) if OPT["compact"] else body

HEAD = f"""; softmax(Q K^T / sqrt(128)) V, B8 H32 Sq608 Sk1024 D128, bf16 in / bf16 out. Hand-designed; the instruction order is emitted by my own list-scheduling script.
; One workgroup (4 waves, 512 registers each) per CU. Workgroups 16i+x and 16i+8+x share two heads (one after the other), each taking about half of the
; ring (LDS-DMA); waves synchronise through epoch flags in LDS. S^T = K Q'^T with Q' = bf16(Q * log2(e)/sqrt(128)), P = exp2(S - m), O += P V, l += P 1.
; Softmax guard: m = (true maximum of the row's first 16 keys) + 10, so m never exceeds the row's true maximum by more than 10 (nothing extra underflows).
; Every row sum l is checked at run time (l <= 2^40, not NaN); a wave that fails the check recomputes its rows at Lslow with the true row maximum.
; The fp32 output accumulators start from a small constant B (tied to the smallest column scale of V) that is subtracted again in the epilogue.
; The Lw* branches are never taken in normal flow (vcc = 0); twice per launch a wave sets vcc and hops through them to pull the first line of each code page into the I-cache.
; @launch grid=(256,1,1) block=(256,1,1) lds=163840
.amdgcn_target "amdgcn-amd-amdhsa--gfx950"
{MACROS}.text
.globl {NAME}_kernel
.p2align 8
.type {NAME}_kernel,@function
{NAME}_kernel:
"""
TAIL = f""".section .rodata,"a"
.p2align 6
.amdhsa_kernel {NAME}_kernel
  .amdhsa_next_free_vgpr 512
  .amdhsa_next_free_sgpr 102
  .amdhsa_accum_offset 256
  .amdhsa_group_segment_fixed_size 0
  .amdhsa_kernarg_size 48
  .amdhsa_user_sgpr_count 2
  .amdhsa_user_sgpr_kernarg_segment_ptr 1
  .amdhsa_system_sgpr_workgroup_id_x 1
  .amdhsa_float_denorm_mode_32 3
.end_amdhsa_kernel
"""
if __name__ == "__main__":
    txt = HEAD + build() + TAIL
    if OPT["leg"]: txt = txt.replace("v_exp_f32", "v_exp_legacy_f32")
    open(sys.argv[1], "w").write(txt)
```
